```python
import torch

def _softmax(x, axis=-1):
    return torch.softmax(x, dim=axis)
def _gelu(x):
    return torch.nn.functional.gelu(x, approximate="tanh")
def _silu(x):
    return torch.nn.functional.silu(x)
def _sigmoid(x):
    return torch.sigmoid(x)
def _layernorm(x, axis=-1, eps=1e-5):
    m = x.mean(dim=axis, keepdim=True)
    v = x.var(dim=axis, keepdim=True, unbiased=False)
    return (x - m) / torch.sqrt(v + eps)
def _scatter_add(tgt, idx, src, axis=0):
    return tgt.clone().index_add_(axis, idx, src)
def _segment_sum(src, seg, n):
    out = torch.zeros((n,) + src.shape[1:], dtype=src.dtype)
    return out.index_add_(0, seg, src)
def _pad(x, pw):
    flat = tuple(v for pair in reversed(pw) for v in pair)
    return torch.nn.functional.pad(x, flat)

kernel_name = 'sequential_preLN__spectral_fnet__moe_arch_mod__prompt'

def setup_inputs():

    _w = (lambda a: (lambda t: t.to(torch.bfloat16) if t.is_floating_point() else t)(torch.as_tensor(a)))
    def _A_setup():
        B, S, D = 1, 2048, 640
        ns = torch.arange(S)[:, None] * torch.arange(S)[None, :]
        nd = torch.arange(D)[:, None] * torch.arange(D)[None, :]
        Ws_re = torch.cos(-2.0 * torch.pi * ns / S).to(float)
        Ws_im = torch.sin(-2.0 * torch.pi * ns / S).to(float)
        Wd_re = torch.cos(-2.0 * torch.pi * nd / D).to(float)
        Wd_im = torch.sin(-2.0 * torch.pi * nd / D).to(float)
        return {
            "x": _w((lambda *s: torch.randn(*s, dtype=torch.bfloat16) * 0.1)(B, S, D)),
            "dft_seq_re": _w(Ws_re),
            "dft_seq_im": _w(Ws_im),
            "dft_hid_re": _w(Wd_re),
            "dft_hid_im": _w(Wd_im),
        }
    _A_in = _A_setup()

    def _B_setup():
        B, S, D, F, C = 1, 2048, 640, 1728, 8
        return {
            "x": _w((lambda *s: torch.randn(*s, dtype=torch.bfloat16) * 0.1)(B, S, D)),
            "w_r": _w((lambda *s: torch.randn(*s, dtype=torch.bfloat16) * 1.6)(D)),
            "w_gate": _w((lambda *s: torch.randn(*s, dtype=torch.bfloat16) * 0.8)(D, F)),
            "w_up": _w((lambda *s: torch.randn(*s, dtype=torch.bfloat16) * 0.8)(D, F)),
            "w_down": _w((lambda *s: torch.randn(*s, dtype=torch.bfloat16) * 0.8)(F, D)),
        }
    _B_in = _B_setup()

    return {
        "A_x": _A_in["x"],
        "A_dft_seq_re": _A_in["dft_seq_re"],
        "A_dft_seq_im": _A_in["dft_seq_im"],
        "A_dft_hid_re": _A_in["dft_hid_re"],
        "A_dft_hid_im": _A_in["dft_hid_im"],
        "B_x": _B_in["x"],
        "B_w_r": _B_in["w_r"],
        "B_w_gate": _B_in["w_gate"],
        "B_w_up": _B_in["w_up"],
        "B_w_down": _B_in["w_down"],
    }

def reference(A_x, A_dft_seq_re, A_dft_seq_im, A_dft_hid_re, A_dft_hid_im, B_x, B_w_r, B_w_gate, B_w_up, B_w_down):
    def _A_ref(x, dft_seq_re, dft_seq_im, dft_hid_re, dft_hid_im):
        a = torch.einsum("bsd,ed->bse", x, dft_hid_re)
        b = torch.einsum("bsd,ed->bse", x, dft_hid_im)
        y = torch.einsum("ts,bse->bte", dft_seq_re, a) - torch.einsum("ts,bse->bte", dft_seq_im, b)
        return y

    def _B_ref(x, w_r, w_gate, w_up, w_down):
        B, S, D = x.shape
        C = 8
        r = x @ w_r
        idx = torch.argsort(-r, axis=-1)[:, :C]
        idx_e = (lambda x, n, axis: torch.repeat_interleave(x, n, dim=axis))(idx.reshape(B, C, 1), D, axis=2)
        x_sel = (lambda x, i, axis: torch.take_along_dim(x, i, dim=axis))(x, idx_e, axis=1)
        g = _silu(x_sel @ w_gate)
        u = x_sel @ w_up
        y = (g * u) @ w_down
        r_sel = _sigmoid((lambda x, i, axis: torch.take_along_dim(x, i, dim=axis))(r, idx, axis=1))
        y = y * r_sel.reshape(B, C, 1)
        b_off = (torch.arange(B) * S).reshape(B, 1)
        flat_idx = (idx + b_off).reshape(B * C)
        zero = (x * 0.0).reshape(B * S, D)
        upd = _scatter_add(zero, flat_idx, y.reshape(B * C, D), axis=0)
        return x + upd.reshape(B, S, D)

    x = A_x
    h = x + _A_ref(_layernorm(x, axis=-1), A_dft_seq_re, A_dft_seq_im, A_dft_hid_re, A_dft_hid_im)
    h2 = h + _B_ref(_layernorm(h, axis=-1), B_w_r, B_w_gate, B_w_up, B_w_down)
    return h2
```

```python
import re

def v(i, n=1): return f"v{i}" if n == 1 else f"v[{i}:{i+n-1}]"
def a(i, n=1): return f"a{i}" if n == 1 else f"a[{i}:{i+n-1}]"
def s(i, n=1): return f"s{i}" if n == 1 else f"s[{i}:{i+n-1}]"

_REG = re.compile(r"^(-|\|)?(abs\()?(-)?([vas])(\d+|\[(\d+):(\d+)\])\)?\|?$")

def regs_of(tok):
    tok = tok.strip()
    if tok in ("vcc", "vcc_lo", "vcc_hi"): return {"vcc"}
    if tok in ("exec", "exec_lo", "exec_hi"): return {"exec"}
    if tok == "m0": return {"m0"}
    m = _REG.match(tok)
    if not m: return set()
    k = m.group(4)
    if m.group(6) is not None:
        return {f"{k}{i}" for i in range(int(m.group(6)), int(m.group(7)) + 1)}
    return {f"{k}{m.group(5)}"}

TRANS = ("v_exp_f32", "v_log_f32", "v_rcp_f32", "v_rsq_f32", "v_sqrt_f32", "v_sin_f32", "v_cos_f32", "v_rcp_iflag_f32",
         "v_exp_f16", "v_log_f16", "v_rcp_f16", "v_rsq_f16", "v_sqrt_f16", "v_sin_f16", "v_cos_f16")

class Ins:
    def __init__(self, text):
        self.text = text
        t = text.split(";")[0].strip()
        self.label = None
        self.op = ""
        self.w = set(); self.r = set()
        self.kind = "none"
        if not t or t.startswith("."):
            if t.endswith(":"): self.label = t[:-1]
            return
        if t.endswith(":"):
            self.label = t[:-1]; return
        parts = t.split(None, 1)
        op = parts[0]; self.op = op
        rest = parts[1] if len(parts) > 1 else ""
        ops = []; cur = ""; depth = 0
        for ch in rest:
            if ch in "[(": depth += 1
            if ch in "])": depth -= 1
            if ch == "," and depth == 0:
                ops.append(cur.strip()); cur = ""
            else: cur += ch
        if cur.strip(): ops.append(cur.strip())
        mods = ""
        if ops:
            lastp = ops[-1].split(None, 1)
            ops[-1] = lastp[0]
            mods = lastp[1] if len(lastp) > 1 else ""
        self.ops = ops; self.mods = mods
        R = [regs_of(o) for o in ops]
        base = re.sub(r"_(e32|e64|dpp|sdwa)$", "", op)
        self.base = base
        self.dpp = op.endswith("_dpp") or any(k in mods for k in ("quad_perm", "row_shr", "row_shl", "row_ror", "row_bcast", "row_mirror", "row_half_mirror", "row_newbcast", "wave_"))
        self.sdwa = op.endswith("_sdwa") or "op_sel" in mods
        allr = lambda lst: set().union(*lst) if lst else set()
        if op.startswith("v_mfma") or op.startswith("v_smfmac"):
            self.kind = "mfma"
            self.w = R[0]; self.A = R[1]; self.B = R[2]; self.C = R[3]
            self.r = R[1] | R[2] | R[3]
            if "32x32x16" in op or "32x32x8" in op: self.passes = 8
            elif "16x16x32" in op or "16x16x16" in op: self.passes = 4
            elif "4x4x4" in op: self.passes = 2
            else: raise ValueError("unknown mfma " + op)
        elif op.startswith("v_"):
            self.kind = "valu"
            if base.startswith("v_cmpx"):
                self.w = R[0] | {"exec"}; self.r = allr(R[1:])
            elif base.startswith("v_cmp"):
                self.w = R[0]; self.r = allr(R[1:])
            elif base in ("v_swap_b32", "v_permlane16_swap_b32", "v_permlane32_swap_b32"):
                self.w = R[0] | R[1]; self.r = R[0] | R[1]
            elif base in ("v_add_co_u32", "v_sub_co_u32", "v_subrev_co_u32", "v_addc_co_u32", "v_subb_co_u32", "v_subbrev_co_u32", "v_mad_u64_u32", "v_div_scale_f32"):
                self.w = R[0] | R[1]; self.r = allr(R[2:])
            elif base in ("v_fmac_f32", "v_dot2c_f32_bf16", "v_dot2c_f32_f16", "v_pk_fmac_f16", "v_fmac_f16", "v_writelane_b32"):
                self.w = R[0]; self.r = allr(R)
            elif base == "v_nop":
                pass
            else:
                self.w = R[0]; self.r = allr(R[1:])
                if self.dpp: self.r |= R[0]
                if base == "v_cndmask_b32" and len(ops) == 3: self.r |= {"vcc"}
            self.trans = base in TRANS
            self.dot = base.startswith("v_dot")
        elif op.startswith("ds_"):
            self.kind = "ds"
            if op.startswith("ds_read") or op.startswith("ds_bpermute") or op.startswith("ds_permute") or op.startswith("ds_swizzle") or "_rtn" in op:
                self.w = R[0]; self.r = allr(R[1:])
            else:
                self.r = allr(R)
        elif op.startswith("buffer_") or op.startswith("global_") or op.startswith("flat_"):
            self.kind = "vmem"
            islds = (" lds" in " " + mods) or "load_lds" in op
            self.lds = islds
            if op in ("buffer_wbl2", "buffer_inv"):
                pass
            elif "load" in op and not islds:
                self.w = R[0]; self.r = allr(R[1:])
            elif "atomic" in op and "sc0" in mods:
                self.w = R[0]; self.r = allr(R)
            else:
                self.r = allr(R)
            if islds: self.r |= {"m0"}
            self.widestore = ("store" in op and ("x3" in op or "x4" in op))
            if self.widestore:
                self.sdata = R[0] if op.startswith("buffer_") else R[1]
        elif op.startswith("s_"):
            self.kind = "salu"
            if op.startswith("s_cmp") or op.startswith("s_cbranch") or op in ("s_branch", "s_nop", "s_waitcnt", "s_barrier", "s_endpgm", "s_setprio", "s_sleep", "s_bitcmp0_b32", "s_bitcmp1_b32"):
                self.r = allr(R)
            elif "saveexec" in op:
                self.w = R[0] | {"exec"}; self.r = allr(R[1:]) | {"exec"}
            else:
                self.w = R[0] if R else set(); self.r = allr(R[1:])
        else:
            raise ValueError("unknown instr " + text)

    def states(self):
        if self.kind == "none": return 0
        if self.op == "s_nop": return int(self.ops[0], 0) + 1
        return 1

def isv(x): return x[0] in "va" and x not in ("vcc",)
def iss(x): return (x[0] == "s") or x == "vcc"

def need(p, c):
    n = 0
    if p.kind == "valu":
        wv = {x for x in p.w if isv(x)}; ws = {x for x in p.w if iss(x)}
        if c.kind == "mfma":
            if wv & c.r: n = max(n, 3 if p.dot else 2)
            if "exec" in p.w: n = max(n, 4)
        if c.kind == "valu":
            if c.dpp and (wv & c.r): n = max(n, 2)
            if c.dpp and "exec" in p.w: n = max(n, 5)
            if c.base in ("v_readlane_b32", "v_readfirstlane_b32") and (wv & c.r): n = max(n, 1)
            if c.base in ("v_readlane_b32", "v_writelane_b32") and (ws & c.r): n = max(n, 4)
            if c.base in ("v_readlane_b32", "v_writelane_b32", "v_readfirstlane_b32") and "exec" in p.w: n = max(n, 4)
            if c.base.startswith("v_permlane") and (wv & c.r): n = max(n, 2)
            if c.base.startswith("v_permlane") and "exec" in p.w: n = max(n, 4)
            if ws & c.r: n = max(n, 2)
            if "exec" in p.w and "exec" in c.r: n = max(n, 2)
            if p.trans and not c.trans and (wv & c.r): n = max(n, 1)
            if p.sdwa and (wv & (c.r | c.w)): n = max(n, 1)
            if p.dot and (wv & (c.r | c.w)):
                if c.base == p.base:
                    srcab = set().union(*[regs_of(o) for o in c.ops[1:3]])
                    if wv & srcab: n = max(n, 3)
                else: n = max(n, 3)
            if c.base == "v_div_fmas_f32" and "vcc" in p.w: n = max(n, 4)
        if c.kind in ("vmem", "ds"):
            if ws & c.r and c.kind == "vmem": n = max(n, 5)
            if p.dot and (wv & c.r): n = max(n, 3)
            if p.trans and (wv & c.r): n = max(n, 1)
        if c.kind == "salu":
            if ws & c.r: n = max(n, 1)
            if c.op in ("s_cbranch_vccz", "s_cbranch_vccnz") and "vcc" in p.w: n = max(n, 1)
    if p.kind == "mfma":
        P = p.passes
        tab_c_over = {2: 4, 4: 6, 8: 10, 16: 18}[P]
        tab_ab = {2: 5, 4: 8, 8: 12, 16: 20}[P]
        if c.kind == "mfma":
            if p.w & (c.A | c.B): n = max(n, tab_ab)
            if p.w & c.C:
                if p.w == c.C and P == c.passes: n = max(n, 2 if P == 2 else 0)
                else: n = max(n, tab_c_over)
            elif p.w & c.w:
                n = max(n, tab_c_over)
        elif c.kind in ("valu", "vmem", "ds"):
            if p.w & (c.r | c.w): n = max(n, tab_ab)
            if c.kind == "valu" and (p.C & c.w): n = max(n, {2: 1, 4: 3, 8: 7, 16: 15}[P])
    if p.kind == "salu":
        if "m0" in p.w and "m0" in c.r and c.kind in ("vmem", "ds"): n = max(n, 1)
    if p.kind == "vmem" and getattr(p, "widestore", False):
        if p.sdata & c.w: n = max(n, 2 if c.kind == "valu" else 1)
    return n

class Prog:
    def __init__(self):
        self.lines = []
    def __call__(self, text):
        for ln in text.split("\n"):
            if ln.strip(): self.lines.append(ln.strip())
    def raw(self, text): self.lines.append(text)

    def finalize(self):
        ins = [Ins(t) for t in self.lines]
        W = 24
        def isbr(y): return y.kind == "salu" and (y.op.startswith("s_cbranch") or y.op == "s_branch")
        def windows(idx):
            res = []
            def go(j, acc, dist, depth):
                while j >= 0 and dist < W:
                    x = ins[j]
                    if x.label:
                        if depth < 4:
                            for k, y in enumerate(ins):
                                if isbr(y) and y.ops and y.ops[0] == x.label:
                                    go(k, list(acc), dist, depth + 1)
                        jj = j - 1
                        while jj >= 0 and ins[jj].kind == "none" and not ins[jj].label: jj -= 1
                        if jj >= 0 and ins[jj].op in ("s_branch", "s_endpgm"):
                            res.append(acc); return
                    if x.kind != "none":
                        acc.append((x, dist))
                        dist += x.states()
                    j -= 1
                res.append(acc)
            go(idx - 1, [], 0, 0)
            return res
        for it in range(20):
            changed = False
            i = 0
            while i < len(ins):
                c = ins[i]
                if c.kind == "none" or c.op == "s_nop":
                    i += 1; continue
                short = 0
                for path in windows(i):
                    for p, dist in path:
                        short = max(short, need(p, c) - dist)
                if short > 0:
                    nops = []
                    while short > 0:
                        k = min(short, 16); nops.append(Ins(f"s_nop {k-1}")); short -= k
                    ins[i:i] = nops
                    i += len(nops)
                    changed = True
                i += 1
            if not changed: break
        else:
            raise RuntimeError("no fixpoint")
        txt = []
        for x in ins:
            if x.label or x.text.startswith(".") or x.text.startswith(";"): txt.append(x.text)
            else: txt.append("    " + x.text)
        return "\n".join(txt) + "\n"
```

```python
import sys, struct
sys.path.insert(0, "work")
from asmlib import *

NAME = "sequential_preLN__spectral_fnet__moe_arch_mod__prompt"
XB = 2621440
Z_OFF = 0
HN_OFF = 0x300000
KEY_OFF = 0x600000
ACT_OFF = 0x610000
SEL_OFF = 0x620000
WS_SZ = 0x700000

def f2u(x): return "0x%08x" % struct.unpack("<I", struct.pack("<f", x))[0]

def kernel_head(P, name):
    P.raw(f".globl {name}")
    P.raw(".p2align 8")
    P.raw(f".type {name},@function")
    P.raw(f"{name}:")

def desc(name, vgpr, accum, sgpr=64):
    return f""".p2align 6
.amdhsa_kernel {name}
  .amdhsa_next_free_vgpr {vgpr}
  .amdhsa_next_free_sgpr {sgpr}
  .amdhsa_accum_offset {accum}
  .amdhsa_group_segment_fixed_size 0
  .amdhsa_kernarg_size 104
  .amdhsa_user_sgpr_count 2
  .amdhsa_user_sgpr_kernarg_segment_ptr 1
  .amdhsa_system_sgpr_workgroup_id_x 1
.end_amdhsa_kernel
"""

def bf16_round(P, r):
    P(f"v_cvt_pk_bf16_f32 {v(r)}, {v(r)}, {v(r)}")
    P(f"v_lshlrev_b32 {v(r)}, 16, {v(r)}")

def gen_k1(P):
    kernel_head(P, "k1_kernel")
    vN, vQ, vW, vXO = 1, 2, 3, 4
    X = 16; U = 96; V = 116; F = 136; SQ = 152; SM = 153; RHO = 154; T = 160
    HT = 25600; HS = 144
    P(f"""
    s_cmp_ge_u32 s2, 256
    s_cbranch_scc1 k1_end
    s_load_dwordx2 s[4:5], s[0:1], 0
    s_load_dwordx2 s[8:9], s[0:1], 96
    s_and_b32 s12, s2, 7
    s_lshr_b32 s13, s2, 6
    s_lshl_b32 s13, s13, 3
    s_add_u32 s12, s12, s13
    s_lshr_b32 s13, s2, 3
    s_and_b32 s13, s13, 7
    v_lshrrev_b32 v{vW}, 6, v0
    v_and_b32 v{vN}, 15, v0
    v_bfe_u32 v{vQ}, v0, 4, 2
    v_readfirstlane_b32 s14, v{vW}
    v_lshl_add_u32 v{vXO}, v{vW}, 4, v{vN}
    v_mul_u32_u24 v{vXO}, 40960, v{vXO}
    v_lshl_add_u32 v{vXO}, v{vQ}, 4, v{vXO}
    s_mul_i32 s15, s12, 1280
    s_mov_b32 s6, {XB}
    s_mov_b32 s7, 0x20000
    s_mov_b32 s10, {WS_SZ}
    s_mov_b32 s11, 0x20000
    s_waitcnt lgkmcnt(0)
    """)
    for k in range(20):
        P(f"buffer_load_dwordx4 {v(X+4*k,4)}, v{vXO}, s[4:7], s15 offen offset:{64*k}")
    P(f"""
    s_cmp_eq_u32 s13, 0
    s_cselect_b32 s16, 8, s13
    v_lshrrev_b32 v5, 1, v{vN}
    v_lshlrev_b32 v5, 3, v5
    v_add_u32 v5, s16, v5
    v_and_b32 v6, 1, v{vN}
    v_cvt_f32_u32 v6, v6
    v_mul_f32 v6, {f2u(-0.25)}, v6
    v_lshlrev_b32 v7, 3, v{vQ}
    v_and_b32 v8, 63, v0
    v_lshlrev_b32 v8, 4, v8
    s_mov_b32 s17, s14
    s_mov_b32 s22, {f2u(1.0/640)}
    k1_wgen:
    s_mul_i32 s18, s17, 52
    s_lshr_b32 s18, s18, 8
    s_mul_i32 s19, s18, 5
    s_sub_u32 s19, s17, s19
    s_lshl_b32 s18, s18, 6
    s_lshl_b32 s19, s19, 5
    s_lshl_b32 s20, s17, 10
    v_add_u32 v9, s18, v5
    v_add_u32 v10, s19, v7
    v_mul_u32_u24 v10, v9, v10
    v_cvt_f32_u32 v9, v9
    v_cvt_f32_u32 v10, v10
    v_mul_f32 v9, s22, v9
    v_fma_f32 v{T}, v10, s22, v6
    """)
    for i in range(1, 8):
        P(f"v_add_f32 v{T+i}, v{T+i-1}, v9")
    for i in range(8):
        P(f"v_cos_f32 v{T+i}, v{T+i}")
    P(f"v_add_u32 v11, s20, v8")
    for i in range(4):
        P(f"v_cvt_pk_bf16_f32 v{T+8+i}, v{T+2*i}, v{T+2*i+1}")
    P(f"""
    ds_write_b128 v11, {v(T+8,4)}
    s_add_u32 s17, s17, 4
    s_cmp_lt_u32 s17, 25
    s_cbranch_scc1 k1_wgen
    s_waitcnt lgkmcnt(0)
    s_barrier
    """)
    for f in range(25):
        P(f"ds_read_b128 {a(4*f,4)}, v8 offset:{1024*f}")
    P(f"""
    s_and_b32 s18, s14, 1
    s_lshl_b32 s18, s18, 4
    v_add_u32 v12, s18, v{vN}
    v_cvt_f32_u32 v9, v12
    v_mul_f32 v9, {f2u(1.0/64)}, v9
    v_cvt_f32_u32 v10, v7
    v_cmp_eq_u32 s[24:25], 0, v12
    v_mov_b32 v13, 0xbc003c00
    """)
    for kk in range(2):
        if kk == 0: P(f"v_mul_f32 v{T}, v9, v10")
        else:
            P(f"v_add_f32 v10, {f2u(32.0)}, v10")
            P(f"v_mul_f32 v{T}, v9, v10")
        for i in range(1, 8):
            P(f"v_add_f32 v{T+i}, v{T+i-1}, v9")
        for i in range(8):
            P(f"v_sin_f32 v{T+8+i}, v{T+i}")
            P(f"v_cos_f32 v{T+i}, v{T+i}")
        for i in range(4):
            P(f"v_cvt_pk_f16_f32 v{F+4*kk+i}, v{T+2*i}, v{T+2*i+1}")
            P(f"v_cvt_pk_f16_f32 v{F+8+4*kk+i}, v{T+8+2*i}, v{T+8+2*i+1}")
        for i in range(4):
            P(f"v_cndmask_b32 v{F+8+4*kk+i}, v{F+8+4*kk+i}, v13, s[24:25]")
    P(f"""
    s_and_b32 s18, s13, 1
    s_mul_i32 s26, s18, 0x80008000
    s_mov_b32 s27, 0x3f803f80
    s_xor_b32 s28, s27, s26
    v_mov_b32 v{SQ}, 0
    v_mov_b32 v{SM}, 0
    s_waitcnt lgkmcnt(0)
    """)
    for k in range(20):
        qd = k // 5; kp = k % 5
        acc = U if (qd & 1) == 0 else V
        P(f"s_waitcnt vmcnt({19-k})")
        xr = X + 4*k
        if qd >= 2:
            for i in range(4): P(f"v_xor_b32 v{xr+i}, s26, v{xr+i}")
        ones = "s27" if qd < 2 else "s28"
        dots = []
        for i in range(4):
            dots.append(f"v_dot2c_f32_bf16 v{SQ}, v{xr+i}, v{xr+i}")
            dots.append(f"v_dot2c_f32_bf16 v{SM}, {ones}, v{xr+i}")
        if qd >= 2:
            P(dots.pop(0)); P(dots.pop(0))
        for t in range(5):
            c = "0" if (qd < 2 and kp == 0) else v(acc+4*t, 4)
            P(f"v_mfma_f32_16x16x32_bf16 {v(acc+4*t,4)}, {v(xr,4)}, {a(4*(5*t+kp),4)}, {c}")
            for _ in range(2):
                if dots: P(dots.pop(0))
    for r in (SQ, SM):
        tmp = T if r == SQ else T+1
        P(f"v_mov_b32 v{tmp}, v{r}")
    for r in (SQ, SM):
        tmp = T if r == SQ else T+1
        P(f"v_permlane32_swap_b32 v{r}, v{tmp}")
    for r in (SQ, SM):
        tmp = T if r == SQ else T+1
        P(f"v_add_f32 v{r}, v{r}, v{tmp}")
        P(f"v_mov_b32 v{tmp}, v{r}")
    for r in (SQ, SM):
        tmp = T if r == SQ else T+1
        P(f"v_permlane16_swap_b32 v{r}, v{tmp}")
    for r in (SQ, SM):
        tmp = T if r == SQ else T+1
        P(f"v_add_f32 v{r}, v{r}, v{tmp}")
    P(f"""
    v_mul_f32 v{SM}, s22, v{SM}
    v_mul_f32 v{SM}, v{SM}, v{SM}
    v_fma_f32 v{SQ}, v{SQ}, s22, -v{SM}
    v_max_f32 v{SQ}, 0, v{SQ}
    """)
    bf16_round(P, SQ)
    P(f"v_add_f32 v{SQ}, {f2u(1e-5)}, v{SQ}")
    bf16_round(P, SQ)
    P(f"v_sqrt_f32 v{SQ}, v{SQ}")
    bf16_round(P, SQ)
    P(f"v_rcp_f32 v{SQ}, v{SQ}")
    for r in range(4):
        for q in range(4):
            P(f"v_mov_b32_dpp v{RHO+r}, v{SQ} row_newbcast:{4*q+r} row_mask:{hex(1<<q)} bank_mask:0xf")
    P(f"""
    s_and_b32 s18, s13, 1
    s_cmp_eq_u32 s18, 1
    s_cbranch_scc1 k1_odd
    s_and_b32 s18, s13, 2
    s_cmp_eq_u32 s18, 0
    s_cselect_b32 s19, 1.0, -1.0
    """)
    for i in range(20):
        P(f"v_fmac_f32 v{U+i}, s19, v{V+i}")
    P(f"""
    s_branch k1_comb_done
    k1_odd:
    s_lshr_b32 s18, s13, 1
    v_xor_b32 v14, s18, v{vN}
    v_and_b32 v14, 1, v14
    v_cvt_f32_u32 v14, v14
    v_fma_f32 v14, v14, 2.0, -1.0
    """)
    for i in range(20):
        P(f"v_fmac_f32_dpp v{U+i}, v{V+i}, v14 quad_perm:[1,0,3,2] row_mask:0xf bank_mask:0xf")
    P("k1_comb_done:")
    P(f"""
    v_mul_u32_u24 v9, {HS}, v{vN}
    v_lshl_add_u32 v10, v{vW}, 5, v9
    v_lshl_add_u32 v10, v{vQ}, 3, v10
    """)
    for t in range(5):
        for r in range(4):
            P(f"v_mul_f32 v{U+4*t+r}, v{U+4*t+r}, v{RHO+r}")
        P(f"v_cvt_pk_f16_f32 v{V+2*t}, v{U+4*t}, v{U+4*t+1}")
        P(f"v_cvt_pk_f16_f32 v{V+2*t+1}, v{U+4*t+2}, v{U+4*t+3}")
        P(f"ds_write_b64 v10, {v(V+2*t,2)} offset:{HT + 16*t*HS}")
    P(f"""
    s_lshr_b32 s18, s14, 1
    s_mul_i32 s18, s18, 3
    s_mul_i32 s19, s18, {16*HS}
    v_lshl_add_u32 v9, v{vQ}, 4, v9
    v_add_u32 v9, s19, v9
    s_mov_b32 s20, 81920
    v_mul_lo_u32 v11, v12, s20
    v_lshl_add_u32 v11, v{vQ}, 4, v11
    s_mul_i32 s20, s12, 2560
    s_mul_i32 s21, s13, 320
    s_add_u32 s20, s20, s21
    s_lshl_b32 s21, s18, 6
    s_add_u32 s20, s20, s21
    s_waitcnt lgkmcnt(0)
    s_barrier
    """)
    AF = X
    for t in range(3):
        for kk in range(2):
            P(f"ds_read_b128 {v(AF+8*t+4*kk,4)}, v9 offset:{HT + 16*t*HS + 64*kk}")
    DC = X + 32
    def unit(t):
        c = DC + 8*t
        P(f"s_waitcnt lgkmcnt({4-2*t})")
        P(f"v_mfma_f32_16x16x32_f16 {v(c,4)}, {v(AF+8*t,4)}, {v(F,4)}, 0")
        P(f"v_mfma_f32_16x16x32_f16 {v(c+4,4)}, {v(AF+8*t,4)}, {v(F+8,4)}, 0")
        P(f"v_mfma_f32_16x16x32_f16 {v(c,4)}, {v(AF+8*t+4,4)}, {v(F+4,4)}, {v(c,4)}")
        P(f"v_mfma_f32_16x16x32_f16 {v(c+4,4)}, {v(AF+8*t+4,4)}, {v(F+12,4)}, {v(c+4,4)}")
    def fin(t):
        c = DC + 8*t; o = U + 4*t
        P(f"v_cvt_pk_f16_f32 v{o}, v{c}, v{c+1}")
        P(f"v_cvt_pk_f16_f32 v{o+1}, v{c+4}, v{c+5}")
        P(f"v_cvt_pk_f16_f32 v{o+2}, v{c+2}, v{c+3}")
        P(f"v_cvt_pk_f16_f32 v{o+3}, v{c+6}, v{c+7}")
        P(f"buffer_store_dwordx4 {v(o,4)}, v11, s[8:11], s20 offen offset:{64*t}")
    unit(0); unit(1); unit(2)
    fin(0); fin(1)
    P("s_cmp_ge_u32 s14, 2")
    P("s_cbranch_scc1 k1_end")
    fin(2)
    P("k1_end:")
    P("s_endpgm")
    return desc("k1_kernel", 276, 176), HT + 96*HS

def wave_sum(P, regs):
    for sh in (1, 2, 4, 8):
        for r in regs:
            P(f"v_add_f32_dpp v{r}, v{r}, v{r} row_shr:{sh} row_mask:0xf bank_mask:0xf bound_ctrl:0")
    for r in regs:
        P(f"v_add_f32_dpp v{r}, v{r}, v{r} row_bcast:15 row_mask:0xa bank_mask:0xf")
    for r in regs:
        P(f"v_add_f32_dpp v{r}, v{r}, v{r} row_bcast:31 row_mask:0xc bank_mask:0xf")

def gen_k2(P):
    kernel_head(P, "k2_kernel")
    vN, vQ, vG, vL = 1, 2, 3, 4
    ZR = 16; XR = 48; WR = 53; CF = 60; AC = 76; T = 84; WF = 100; H = 110
    RS = 724
    P(f"""
    s_cmp_ge_u32 s2, 256
    s_cbranch_scc1 k2_end
    s_load_dwordx2 s[4:5], s[0:1], 0
    s_load_dwordx2 s[8:9], s[0:1], 96
    s_load_dwordx2 s[12:13], s[0:1], 48
    s_load_dwordx2 s[16:17], s[0:1], 80
    s_and_b32 s20, s2, 7
    s_lshr_b32 s21, s2, 6
    s_lshl_b32 s21, s21, 3
    s_add_u32 s20, s20, s21
    s_lshr_b32 s21, s2, 3
    s_and_b32 s21, s21, 7
    v_lshrrev_b32 v{vG}, 6, v0
    v_and_b32 v{vN}, 15, v0
    v_bfe_u32 v{vQ}, v0, 4, 2
    v_and_b32 v{vL}, 63, v0
    v_readfirstlane_b32 s22, v{vG}
    v_mul_u32_u24 v5, 2560, v{vQ}
    v_lshl_add_u32 v5, v{vN}, 4, v5
    v_lshl_add_u32 v5, v{vG}, 8, v5
    s_mul_i32 s23, s20, 81920
    s_mov_b32 s6, {XB}
    s_mov_b32 s7, 0x20000
    s_mov_b32 s10, {WS_SZ}
    s_mov_b32 s11, 0x20000
    s_mov_b32 s14, 1280
    s_mov_b32 s15, 0x20000
    s_mov_b32 s18, {XB}
    s_mov_b32 s19, 0x20000
    """)
    P(f"""
    s_cmp_eq_u32 s20, 0
    s_cselect_b32 s25, 32, 64
    s_lshl_b32 s24, s25, 2
    s_mul_i32 s24, s24, s21
    s_add_u32 s24, s24, s20
    s_and_b32 s26, s22, 3
    s_mul_i32 s26, s26, s25
    s_add_u32 s26, s26, s24
    s_sub_u32 s27, 2048, s26
    s_cmp_eq_u32 s26, 0
    s_cselect_b32 s27, 1024, s27
    s_bitcmp1_b32 s22, 2
    s_cselect_b32 s26, s27, s26
    s_mul_i32 s27, s26, 1280
    v_lshlrev_b32 v6, 2, v{vL}
    s_waitcnt lgkmcnt(0)
    """)
    for i in range(8):
        P(f"buffer_load_dwordx4 {v(ZR+4*i,4)}, v5, s[8:11], s23 offen")
        if i < 7: P(f"s_add_u32 s23, s23, 10240")
    for i in range(5):
        P(f"buffer_load_dword v{WR+i}, v6, s[12:15], 0 offen offset:{256*i}")
    for i in range(5):
        P(f"buffer_load_dword v{XR+i}, v6, s[4:7], s27 offen offset:{256*i}")
    P(f"""
    v_and_b32 v7, 3, v{vN}
    v_mul_u32_u24 v7, s25, v7
    v_add_u32 v7, s24, v7
    v_sub_u32 v8, 2048, v7
    v_mov_b32 v9, 1024
    v_cmp_eq_u32 vcc, 0, v7
    v_cndmask_b32 v8, v8, v9, vcc
    v_and_b32 v9, 4, v{vN}
    v_cmp_ne_u32 vcc, 0, v9
    v_cndmask_b32 v7, v7, v8, vcc
    v_sub_u32 v8, 2048, v7
    v_and_b32 v8, 2047, v8
    v_cmp_lt_u32 vcc, 7, v{vN}
    v_cndmask_b32 v7, v7, v8, vcc
    v_and_b32 v8, 63, v7
    v_mov_b32 v9, 0x80008000
    v_cmp_gt_u32 vcc, 32, v8
    v_cndmask_b32 v9, 0, v9, vcc
    v_cmp_eq_u32 s[28:29], 32, v8
    v_cvt_f32_u32 v10, v7
    v_cvt_f32_u32 v11, v{vQ}
    v_mul_f32 v10, {f2u(1.0/2048)}, v10
    v_mul_f32 v11, v10, v11
    v_mul_f32 v10, 4.0, v10
    """)
    for i in range(8):
        P(f"v_cos_f32 v12, v11")
        P(f"v_sin_f32 v13, v11")
        if i < 7: P(f"v_add_f32 v11, v11, v10")
        P(f"v_cvt_pk_f16_f32 v{CF+2*i}, v12, -v13")
        P(f"v_cvt_pk_f16_f32 v{CF+2*i+1}, v13, v12")
        P(f"v_xor_b32 v{CF+2*i+1}, v9, v{CF+2*i+1}")
    P(f"""
    s_cmp_lg_u32 s20, 0
    s_cbranch_scc1 k2_nofix
    """)
    for i in range(8):
        P(f"v_cndmask_b32 v{CF+2*i+1}, 0, v{CF+2*i}, s[28:29]")
        P(f"v_cndmask_b32 v{CF+2*i}, v{CF+2*i}, 0, s[28:29]")
    P("k2_nofix:")
    P(f"""
    v_lshlrev_b32 v7, 5, v{vG}
    v_lshl_add_u32 v7, v{vN}, 1, v7
    v_mul_u32_u24 v8, 205, v7
    v_lshrrev_b32 v8, 13, v8
    v_mul_u32_u24 v9, 40, v8
    v_sub_u32 v7, v7, v9
    v_cmp_eq_u32 vcc, 0, v8
    v_cndmask_b32 v8, v8, 8, vcc
    v_lshl_add_u32 v14, v7, 3, v8
    v_add_u32 v15, 8, v14
    v_sub_u32 v7, 640, v14
    v_sub_u32 v8, 640, v15
    v_cmp_lt_u32 vcc, 1, v{vQ}
    v_cndmask_b32 v14, v14, v7, vcc
    v_cndmask_b32 v15, v15, v8, vcc
    v_lshrrev_b32 v7, 4, v14
    v_lshrrev_b32 v8, 4, v15
    v_lshl_add_u32 v14, v7, 1, v14
    v_lshl_add_u32 v15, v8, 1, v15
    v_and_b32 v7, 1, v{vQ}
    v_mul_u32_u24 v7, {4*RS}, v7
    v_add_lshl_u32 v14, v14, v7, 2
    v_add_lshl_u32 v15, v15, v7, 2
    """)
    for k in range(4):
        z = ZR + 8*k
        P(f"s_waitcnt vmcnt({10 + 6 - 2*k})")
        P(f"v_swap_b32 v{z+2}, v{z+4}")
        P(f"v_swap_b32 v{z+3}, v{z+5}")
        c0 = "0" if k == 0 else v(AC, 4)
        c1 = "0" if k == 0 else v(AC+4, 4)
        P(f"v_mfma_f32_16x16x32_f16 {v(AC,4)}, {v(CF+4*k,4)}, {v(z,4)}, {c0}")
        P(f"v_mfma_f32_16x16x32_f16 {v(AC+4,4)}, {v(CF+4*k,4)}, {v(z+4,4)}, {c1}")
    P(f"""
    v_lshrrev_b32 v7, 3, v{vL}
    v_add_lshl_u32 v7, v7, v{vL}, 3
    s_and_b32 s30, s22, 7
    s_mul_i32 s30, s30, {RS*4}
    v_add_u32 v7, s30, v7
    """)
    for r in range(4):
        P(f"ds_write_b32 v14, v{AC+r} offset:{r*RS*4}")
        P(f"ds_write_b32 v15, v{AC+4+r} offset:{r*RS*4}")
    P("s_waitcnt vmcnt(0)")
    for i in range(5):
        P(f"v_lshlrev_b32 v{WF+2*i}, 16, v{WR+i}")
        P(f"v_and_b32 v{WF+2*i+1}, 0xffff0000, v{WR+i}")
    for i in range(5):
        P(f"v_lshlrev_b32 v{H+2*i}, 16, v{XR+i}")
        P(f"v_and_b32 v{H+2*i+1}, 0xffff0000, v{XR+i}")
    SW = 8
    P(f"v_add_f32 v{SW}, v{WF}, v{WF+1}")
    for i in range(2, 10): P(f"v_add_f32 v{SW}, v{SW}, v{WF+i}")
    P(f"""
    s_waitcnt lgkmcnt(0)
    s_barrier
    s_cmp_ge_u32 s22, 8
    s_cbranch_scc1 k2_end
    """)
    for i in range(5):
        P(f"ds_read_b64 {v(T+2*i,2)}, v7 offset:{576*i}")
    P("s_waitcnt lgkmcnt(0)")
    P(f"v_writelane_b32 v{T}, 0, 0")
    S1, S2, S3 = 9, 10, 11
    for i in range(10):
        P(f"v_add_f32 v{H+i}, v{H+i}, v{T+i}")
    P(f"v_add_f32 v{S1}, v{H}, v{H+1}")
    P(f"v_mul_f32 v{S2}, v{H}, v{H}")
    P(f"v_mul_f32 v{S3}, v{H}, v{WF}")
    for i in range(1, 10):
        if i > 1: P(f"v_add_f32 v{S1}, v{S1}, v{H+i}")
        P(f"v_fmac_f32 v{S2}, v{H+i}, v{H+i}")
        P(f"v_fmac_f32 v{S3}, v{H+i}, v{WF+i}")
    wave_sum(P, [S1, S2, S3, SW])
    P(f"""
    v_mul_f32 v{S1}, {f2u(1.0/640)}, v{S1}
    v_mul_f32 v12, v{S1}, v{S1}
    v_mul_f32 v{S2}, {f2u(1.0/640)}, v{S2}
    v_sub_f32 v{S2}, v{S2}, v12
    v_max_f32 v{S2}, 0, v{S2}
    """)
    bf16_round(P, S2)
    bf16_round(P, S1)
    P(f"v_add_f32 v{S2}, {f2u(1e-5)}, v{S2}")
    bf16_round(P, S2)
    P(f"v_sqrt_f32 v{S2}, v{S2}")
    bf16_round(P, S2)
    P(f"""
    v_rcp_f32 v{S2}, v{S2}
    v_fma_f32 v{S3}, -v{S1}, v{SW}, v{S3}
    v_mul_f32 v{S1}, v{S1}, v{S2}
    v_mul_f32 v{S3}, v{S3}, v{S2}
    v_readlane_b32 s31, v{S2}, 63
    v_readlane_b32 s32, v{S1}, 63
    v_cvt_pk_bf16_f32 v{S3}, v{S3}, v{S3}
    v_mov_b32 v12, s32
    """)
    for i in range(10):
        P(f"v_fma_f32 v{T+i}, v{H+i}, s31, -v12")
    for i in range(10):
        P(f"v_add_f32 v{H+i}, v{H+i}, v{T+i}")
    P(f"s_add_u32 s33, s27, {HN_OFF}")
    for i in range(5):
        P(f"v_cvt_pk_bf16_f32 v{XR+i}, v{H+2*i}, v{H+2*i+1}")
        P(f"buffer_store_dword v{XR+i}, v6, s[16:19], s27 offen offset:{256*i}")
    for i in range(5):
        P(f"v_cvt_pk_bf16_f32 v{WR+i}, v{T+2*i}, v{T+2*i+1}")
        P(f"buffer_store_dword v{WR+i}, v6, s[8:11], s33 offen offset:{256*i}")
    P(f"""
    v_readlane_b32 s34, v{S3}, 63
    s_and_b32 s34, s34, 0xffff0000
    s_ashr_i32 s35, s34, 31
    s_or_b32 s35, s35, 0x80000000
    s_xor_b32 s34, s34, s35
    s_and_b32 s34, s34, 0xffff0000
    s_sub_u32 s35, 2047, s26
    s_or_b32 s34, s34, s35
    s_lshl_b32 s35, s26, 2
    s_add_u32 s35, s35, {KEY_OFF}
    v_mov_b32 v12, s34
    v_mov_b32 v13, 0
    s_mov_b64 exec, 1
    buffer_store_dword v12, v13, s[8:11], s35 offen
    k2_end:
    s_endpgm
    """)
    return desc("k2_kernel", 120, 120), 8*RS*4

def wave_min_u32(P, r):
    for sh in (1, 2, 4, 8):
        P(f"v_min_u32_dpp v{r}, v{r}, v{r} row_shr:{sh} row_mask:0xf bank_mask:0xf")
    P(f"v_min_u32_dpp v{r}, v{r}, v{r} row_bcast:15 row_mask:0xa bank_mask:0xf")
    P(f"v_min_u32_dpp v{r}, v{r}, v{r} row_bcast:31 row_mask:0xc bank_mask:0xf")

def gen_k3(P):
    kernel_head(P, "k3_kernel")
    vN, vQ, vW, vL = 1, 2, 3, 4
    K = 16; D = 24; G = 32; U = 52; A = 72; AG = 92; AU = 96
    CAND = 40960; RED = 41216
    P(f"""
    s_and_b32 s20, s2, 7
    s_lshr_b32 s21, s2, 5
    s_lshl_b32 s21, s21, 3
    s_add_u32 s20, s20, s21
    s_cmp_ge_u32 s20, 27
    s_cbranch_scc1 k3_end
    s_load_dwordx2 s[8:9], s[0:1], 96
    s_load_dwordx2 s[4:5], s[0:1], 56
    s_load_dwordx2 s[12:13], s[0:1], 64
    s_lshr_b32 s21, s2, 3
    s_and_b32 s21, s21, 3
    s_lshl_b32 s20, s20, 2
    s_add_u32 s20, s20, s21
    v_lshrrev_b32 v{vW}, 6, v0
    v_and_b32 v{vN}, 15, v0
    v_bfe_u32 v{vQ}, v0, 4, 2
    v_and_b32 v{vL}, 63, v0
    v_readfirstlane_b32 s22, v{vW}
    v_lshlrev_b32 v5, 5, v0
    v_lshrrev_b32 v6, 1, v{vL}
    v_mul_u32_u24 v7, 160, v{vW}
    v_add_u32 v6, v6, v7
    v_mul_u32_u24 v6, 3456, v6
    v_and_b32 v7, 1, v0
    v_lshl_add_u32 v6, v7, 4, v6
    s_mov_b32 s6, {640*3456}
    s_mov_b32 s7, 0x20000
    s_mov_b32 s10, {WS_SZ}
    s_mov_b32 s11, 0x20000
    s_mov_b32 s14, {640*3456}
    s_mov_b32 s15, 0x20000
    s_mov_b32 s23, {KEY_OFF}
    s_lshl_b32 s24, s20, 5
    s_mul_i32 s25, s22, 5120
    s_waitcnt lgkmcnt(0)
    buffer_load_dwordx4 {v(K,4)}, v5, s[8:11], s23 offen
    buffer_load_dwordx4 {v(K+4,4)}, v5, s[8:11], s23 offen offset:16
    """)
    for i in range(5):
        P(f"s_mov_b32 m0, s25")
        P(f"buffer_load_dwordx4 v6, s[4:7], s24 offen lds")
        P(f"s_add_u32 m0, s25, 20480")
        P(f"buffer_load_dwordx4 v6, s[12:15], s24 offen lds")
        if i < 4:
            P(f"s_add_u32 s24, s24, {32*3456}")
            P(f"s_add_u32 s25, s25, 1024")
    P(f"""
    s_mov_b32 s26, -1
    s_mov_b32 m0, 0
    v_mov_b32 v8, 0
    s_waitcnt vmcnt(10)
    k3_loop:
    """)
    for i in range(8): P(f"v_sub_u32 v{D+i}, s26, v{K+i}")
    P(f"""
    v_min3_u32 v{D}, v{D}, v{D+1}, v{D+2}
    v_min3_u32 v{D+3}, v{D+3}, v{D+4}, v{D+5}
    v_min3_u32 v{D}, v{D}, v{D+6}, v{D+7}
    v_min_u32 v{D}, v{D}, v{D+3}
    """)
    wave_min_u32(P, D)
    P(f"""
    v_readlane_b32 s27, v{D}, 63
    s_sub_u32 s26, s26, s27
    v_writelane_b32 v8, s26, m0
    s_sub_u32 s26, s26, 1
    s_add_u32 m0, m0, 1
    s_cmp_lt_u32 m0, 8
    s_cbranch_scc1 k3_loop
    v_lshlrev_b32 v9, 2, v{vL}
    v_lshl_add_u32 v10, v{vW}, 5, v9
    s_mov_b64 exec, 0xff
    ds_write_b32 v10, v8 offset:{CAND}
    s_mov_b64 exec, -1
    s_waitcnt lgkmcnt(0)
    s_barrier
    v_and_b32 v10, 127, v9
    ds_read_b32 v8, v10 offset:{CAND}
    v_mov_b32 v11, 0
    s_waitcnt lgkmcnt(0)
    """)
    for i in range(32):
        P(f"v_readlane_b32 s{28+(i%8)}, v8, {i}")
        if i % 8 == 7:
            for j in range(8):
                P(f"v_cmp_gt_u32 vcc, s{28+j}, v8")
                P(f"v_addc_co_u32 v11, vcc, 0, v11, vcc")
    P(f"""
    v_and_b32 v12, 32, v{vL}
    v_add_lshl_u32 v11, v11, v12, 2
    ds_permute_b32 v8, v11, v8
    v_and_b32 v12, 7, v{vL}
    v_lshlrev_b32 v12, 2, v12
    s_waitcnt lgkmcnt(0)
    ds_bpermute_b32 v8, v12, v8
    s_waitcnt lgkmcnt(0)
    v_and_b32 v13, 2047, v8
    v_sub_u32 v13, 2047, v13
    v_mul_u32_u24 v13, 1280, v13
    v_lshl_add_u32 v13, v{vQ}, 4, v13
    s_mul_i32 s24, s22, 320
    s_add_u32 s24, s24, {HN_OFF}
    """)
    for i in range(5):
        P(f"buffer_load_dwordx4 {v(A+4*i,4)}, v13, s[8:11], s24 offen offset:{64*i}")
    P(f"""
    s_or_b32 s25, s20, s22
    s_cmp_lg_u32 s25, 0
    s_cbranch_scc1 k3_nosel
    s_mov_b32 s25, {SEL_OFF}
    s_mov_b64 exec, 0xff
    buffer_store_dword v8, v12, s[8:11], s25 offen
    s_mov_b64 exec, -1
    s_waitcnt vmcnt(0)
    k3_nosel:
    v_lshlrev_b32 v14, 8, v{vQ}
    v_lshl_add_u32 v14, v{vN}, 3, v14
    s_mul_i32 s25, s22, 5120
    v_add_u32 v14, s25, v14
    s_waitcnt vmcnt(5)
    """)
    for i in range(5):
        P(f"ds_read_b64_tr_b16 {v(G+4*i,2)}, v14 offset:{1024*i}")
        P(f"ds_read_b64_tr_b16 {v(G+4*i+2,2)}, v14 offset:{1024*i+128}")
        P(f"ds_read_b64_tr_b16 {v(U+4*i,2)}, v14 offset:{20480+1024*i}")
        P(f"ds_read_b64_tr_b16 {v(U+4*i+2,2)}, v14 offset:{20480+1024*i+128}")
    P("s_waitcnt vmcnt(0) lgkmcnt(0)")
    for i in range(5):
        P(f"v_mfma_f32_16x16x32_bf16 {v(AG,4)}, {v(A+4*i,4)}, {v(G+4*i,4)}, {'0' if i==0 else v(AG,4)}")
        P(f"v_mfma_f32_16x16x32_bf16 {v(AU,4)}, {v(A+4*i,4)}, {v(U+4*i,4)}, {'0' if i==0 else v(AU,4)}")
    P(f"""
    v_lshlrev_b32 v15, 8, v{vQ}
    v_lshl_add_u32 v15, v{vN}, 2, v15
    v_lshl_add_u32 v15, v{vW}, 10, v15
    s_mov_b32 exec_hi, 0
    """)
    for r in range(4):
        P(f"ds_write_b32 v15, v{AG+r} offset:{RED+64*r}")
        P(f"ds_write_b32 v15, v{AU+r} offset:{RED+512+64*r}")
    P(f"""
    s_mov_b64 exec, -1
    s_waitcnt lgkmcnt(0)
    s_barrier
    s_cmp_ge_u32 s22, 2
    s_cbranch_scc1 k3_end
    v_lshlrev_b32 v15, 2, v0
    """)
    for w in range(4):
        P(f"ds_read_b32 v{D+w}, v15 offset:{RED+1024*w}")
        P(f"ds_read_b32 v{D+4+w}, v15 offset:{RED+512+1024*w}")
    P(f"""
    v_lshrrev_b32 v5, 4, v0
    v_mul_u32_u24 v5, 3456, v5
    v_lshl_add_u32 v5, v{vN}, 1, v5
    s_lshl_b32 s24, s20, 5
    s_add_u32 s24, s24, {ACT_OFF}
    s_waitcnt lgkmcnt(0)
    v_add_f32 v{D}, v{D}, v{D+1}
    v_add_f32 v{D+2}, v{D+2}, v{D+3}
    v_add_f32 v{D+4}, v{D+4}, v{D+5}
    v_add_f32 v{D+6}, v{D+6}, v{D+7}
    v_add_f32 v{D}, v{D}, v{D+2}
    v_add_f32 v{D+4}, v{D+4}, v{D+6}
    """)
    bf16_round(P, D); bf16_round(P, D+4)
    P(f"""
    v_mul_f32 v{D+1}, {f2u(-1.4426950408889634)}, v{D}
    v_exp_f32 v{D+1}, v{D+1}
    v_add_f32 v{D+1}, 1.0, v{D+1}
    v_rcp_f32 v{D+1}, v{D+1}
    v_mul_f32 v{D}, v{D}, v{D+1}
    """)
    bf16_round(P, D)
    P(f"""
    v_mul_f32 v{D}, v{D}, v{D+4}
    v_cvt_pk_bf16_f32 v{D}, v{D}, v{D}
    buffer_store_short v{D}, v5, s[8:11], s24 offen
    k3_end:
    s_endpgm
    """)
    return desc("k3_kernel", 104, 104), RED + 4096

def gen_k4(P):
    kernel_head(P, "k4_kernel")
    vN, vQ, vW, vL = 1, 2, 3, 4
    A = 16; B = 52; AC = 88; D = 92
    RED = 55296
    P(f"""
    s_and_b32 s20, s2, 7
    s_lshr_b32 s21, s2, 5
    s_lshl_b32 s21, s21, 3
    s_add_u32 s20, s20, s21
    s_cmp_ge_u32 s20, 10
    s_cbranch_scc1 k4_end
    s_load_dwordx2 s[8:9], s[0:1], 96
    s_load_dwordx2 s[4:5], s[0:1], 72
    s_load_dwordx2 s[16:17], s[0:1], 80
    s_lshr_b32 s21, s2, 3
    s_and_b32 s21, s21, 3
    s_lshl_b32 s20, s20, 2
    s_add_u32 s20, s20, s21
    v_lshrrev_b32 v{vW}, 6, v0
    v_and_b32 v{vN}, 15, v0
    v_bfe_u32 v{vQ}, v0, 4, 2
    v_and_b32 v{vL}, 63, v0
    v_readfirstlane_b32 s22, v{vW}
    v_lshrrev_b32 v6, 1, v{vL}
    v_mul_u32_u24 v7, 288, v{vW}
    v_add_u32 v6, v6, v7
    v_mul_u32_u24 v6, 1280, v6
    v_and_b32 v7, 1, v0
    v_lshl_add_u32 v6, v7, 4, v6
    v_and_b32 v5, 7, v0
    v_mul_u32_u24 v5, 3456, v5
    v_lshl_add_u32 v5, v{vQ}, 4, v5
    v_bfe_u32 v8, v0, 4, 3
    v_lshlrev_b32 v8, 2, v8
    s_mov_b32 s6, {1728*1280}
    s_mov_b32 s7, 0x20000
    s_mov_b32 s10, {WS_SZ}
    s_mov_b32 s11, 0x20000
    s_mov_b32 s18, {XB}
    s_mov_b32 s19, 0x20000
    s_lshl_b32 s24, s20, 5
    s_mul_i32 s25, s22, 9216
    s_mul_i32 s26, s22, 576
    s_add_u32 s26, s26, {ACT_OFF}
    s_mov_b32 s27, {SEL_OFF}
    s_waitcnt lgkmcnt(0)
    buffer_load_dword v9, v8, s[8:11], s27 offen
    """)
    for i in range(9):
        P(f"s_mov_b32 m0, s25")
        P(f"buffer_load_dwordx4 v6, s[4:7], s24 offen lds")
        if i < 8:
            P(f"s_add_u32 s24, s24, {32*1280}")
            P(f"s_add_u32 s25, s25, 1024")
    for i in range(9):
        P(f"buffer_load_dwordx4 {v(A+4*i,4)}, v5, s[8:11], s26 offen offset:{64*i}")
    P(f"""
    s_waitcnt vmcnt(18)
    v_and_b32 v10, 2047, v9
    v_sub_u32 v10, 2047, v10
    v_mul_u32_u24 v10, 1280, v10
    v_lshl_add_u32 v10, v{vN}, 1, v10
    s_lshl_b32 s24, s20, 5
    buffer_load_ushort v11, v10, s[16:19], s24 offen
    v_and_b32 v9, 0xffff0000, v9
    v_ashrrev_i32 v12, 31, v9
    v_not_b32 v12, v12
    v_or_b32 v12, 0x80000000, v12
    v_xor_b32 v9, v9, v12
    v_and_b32 v9, 0xffff0000, v9
    v_mul_f32 v9, {f2u(-1.4426950408889634)}, v9
    v_exp_f32 v9, v9
    v_add_f32 v9, 1.0, v9
    v_rcp_f32 v9, v9
    """)
    bf16_round(P, 9)
    P(f"""
    v_lshlrev_b32 v14, 8, v{vQ}
    v_lshl_add_u32 v14, v{vN}, 3, v14
    s_mul_i32 s25, s22, 9216
    v_add_u32 v14, s25, v14
    s_waitcnt vmcnt(10)
    """)
    for i in range(9):
        P(f"ds_read_b64_tr_b16 {v(B+4*i,2)}, v14 offset:{1024*i}")
        P(f"ds_read_b64_tr_b16 {v(B+4*i+2,2)}, v14 offset:{1024*i+128}")
    P("s_waitcnt vmcnt(0) lgkmcnt(0)")
    for i in range(9):
        P(f"v_mfma_f32_16x16x32_bf16 {v(AC,4)}, {v(A+4*i,4)}, {v(B+4*i,4)}, {'0' if i==0 else v(AC,4)}")
    P(f"""
    v_lshlrev_b32 v15, 8, v{vQ}
    v_lshl_add_u32 v15, v{vN}, 2, v15
    v_lshl_add_u32 v15, v{vW}, 9, v15
    s_mov_b32 exec_hi, 0
    """)
    for r in range(4):
        P(f"ds_write_b32 v15, v{AC+r} offset:{RED+64*r}")
    P(f"""
    s_mov_b64 exec, -1
    s_waitcnt lgkmcnt(0)
    s_barrier
    s_cmp_ge_u32 s22, 2
    s_cbranch_scc1 k4_end
    v_lshlrev_b32 v15, 2, v0
    """)
    for w in range(6):
        P(f"ds_read_b32 v{D+w}, v15 offset:{RED+512*w}")
    P(f"""
    v_lshlrev_b32 v11, 16, v11
    s_waitcnt lgkmcnt(0)
    v_add_f32 v{D}, v{D}, v{D+1}
    v_add_f32 v{D+2}, v{D+2}, v{D+3}
    v_add_f32 v{D+4}, v{D+4}, v{D+5}
    v_add_f32 v{D}, v{D}, v{D+2}
    v_add_f32 v{D}, v{D}, v{D+4}
    """)
    bf16_round(P, D)
    P(f"v_mul_f32 v{D}, v{D}, v9")
    bf16_round(P, D)
    P(f"""
    v_add_f32 v{D}, v{D}, v11
    v_cvt_pk_bf16_f32 v{D}, v{D}, v{D}
    buffer_store_short v{D}, v10, s[16:19], s24 offen
    k4_end:
    s_endpgm
    """)
    return desc("k4_kernel", 104, 104), RED + 3072

def main(out, extra_empty=0):
    P = Prog()
    d1, l1 = gen_k1(P); d2, l2 = gen_k2(P); d3, l3 = gen_k3(P); d4, l4 = gen_k4(P)
    descs = [d1, d2, d3, d4]
    hdr = ["; 2D-DFT (two-stage, MFMA) + LN + top-8 routed SwiGLU; generated by work/gen1.py",
           f"; @launch kernel=k1_kernel grid=(256,1,1) block=(256,1,1) lds={l1}",
           f"; @launch kernel=k2_kernel grid=(256,1,1) block=(640,1,1) lds={l2}",
           f"; @launch kernel=k3_kernel grid=(128,1,1) block=(256,1,1) lds={l3}",
           f"; @launch kernel=k4_kernel grid=(64,1,1) block=(384,1,1) lds={l4}"]
    if extra_empty:
        kernel_head(P, "k5_kernel"); P("s_endpgm"); descs.append(desc("k5_kernel", 8, 8))
        hdr += ["; @launch kernel=k5_kernel grid=(256,1,1) block=(256,1,1) lds=0"] * extra_empty
    body = P.finalize()
    txt = "\n".join(hdr) + '\n.amdgcn_target "amdgcn-amd-amdhsa--gfx950"\n.text\n' + body + '.section .rodata,"a"\n' + "".join(descs)
    open(out, "w").write(txt)

if __name__ == "__main__":
    main(sys.argv[1], int(sys.argv[2]) if len(sys.argv) > 2 else 0)
```

```python
import sys, struct
sys.path.insert(0, "work")
from asmlib import *

NAME = "sequential_preLN__spectral_fnet__moe_arch_mod__prompt"
XB = 2621440
EPOCH = 0
STATS = 0x4000
FLAGS = 0x8000
KEYS = 0x10000
ACT = 0x18000
ZOFF = 0x20000
ST_OFF = 0x300000
WS_SZ = 0x400000
SPIN = 1 << 16

L_W = 0
L_HT = 25600; HS = 144
L_CF = 39424
L_MISC = 43520
L_TAG = L_MISC; L_T = L_MISC + 4; L_CNT = L_MISC + 8; L_KREC = L_MISC + 16; L_SEL = L_MISC + 32; L_LIST = L_MISC + 64
L_RED = 44032
L_WT = 52224
L_END = L_WT + 57344
RS = 800

sGRP, sJ, sWV, sG, sSUB, sTAG, sTB, sSTR, sROW, sROWB = 32, 33, 34, 35, 36, 37, 38, 39, 40, 41
vN, vQ, vW, vL = 1, 2, 3, 4

OPT = dict(stamps=False)

def f2u(x): return "0x%08x" % struct.unpack("<I", struct.pack("<f", x))[0]
NST = 14
def stamp(P, i):
    if OPT["stamps"]: P(f"s_memrealtime s[{70+2*i}:{71+2*i}]")

def bf16_round(P, r):
    P(f"v_cvt_pk_bf16_f32 {v(r)}, {v(r)}, {v(r)}")
    P(f"v_lshlrev_b32 {v(r)}, 16, {v(r)}")

def trow(P, dst, rho, t1, t2):
    P(f"""
    v_and_b32 v{dst}, 3, v{rho}
    v_mul_u32_u24 v{dst}, s{sSTR}, v{dst}
    v_add_u32 v{dst}, s{sTB}, v{dst}
    v_sub_u32 v{t1}, 2048, v{dst}
    v_mov_b32 v{t2}, 1024
    v_cmp_eq_u32 vcc, 0, v{dst}
    v_cndmask_b32 v{t1}, v{t1}, v{t2}, vcc
    v_and_b32 v{t2}, 4, v{rho}
    v_cmp_ne_u32 vcc, 0, v{t2}
    v_cndmask_b32 v{dst}, v{dst}, v{t1}, vcc
    """)

def gen(P):
    name = NAME + "_kernel"
    P.raw(f".globl {name}"); P.raw(".p2align 8"); P.raw(f".type {name},@function"); P.raw(f"{name}:")
    stamp(P, 0)
    P(f"""
    s_cmp_ge_u32 s2, 256
    s_cbranch_scc1 L_end
    s_load_dwordx2 s[4:5], s[0:1], 0
    s_load_dwordx2 s[8:9], s[0:1], 96
    s_load_dwordx2 s[12:13], s[0:1], 80
    s_load_dwordx2 s[16:17], s[0:1], 48
    s_load_dwordx2 s[20:21], s[0:1], 56
    s_load_dwordx2 s[24:25], s[0:1], 64
    s_load_dwordx2 s[28:29], s[0:1], 72
    v_lshrrev_b32 v{vW}, 6, v0
    v_and_b32 v{vN}, 15, v0
    v_bfe_u32 v{vQ}, v0, 4, 2
    v_readfirstlane_b32 s{sWV}, v{vW}
    v_and_b32 v{vL}, 63, v0
    s_and_b32 s42, s2, 7
    s_lshr_b32 s43, s2, 6
    s_lshl_b32 s43, s43, 3
    s_add_u32 s{sGRP}, s42, s43
    s_bfe_u32 s{sJ}, s2, 0x30003
    s_lshr_b32 s43, s2, 5
    s_lshl_b32 s43, s43, 3
    s_add_u32 s{sG}, s42, s43
    s_bfe_u32 s{sSUB}, s2, 0x20003
    s_mov_b32 s6, {XB}
    s_mov_b32 s7, 0x20000
    s_mov_b32 s10, {WS_SZ}
    s_mov_b32 s11, 0x20000
    s_mov_b32 s14, {XB}
    s_mov_b32 s15, 0x20000
    s_mov_b32 s18, 1280
    s_mov_b32 s19, 0x20000
    s_mov_b32 s22, {640*3456}
    s_mov_b32 s23, 0x20000
    s_mov_b32 s26, {640*3456}
    s_mov_b32 s27, 0x20000
    s_mov_b32 s30, {1728*1280}
    s_mov_b32 s31, 0x20000
    s_cmp_eq_u32 s{sGRP}, 0
    s_cselect_b32 s{sSTR}, 32, 64
    s_lshl_b32 s{sTB}, s{sSTR}, 2
    s_mul_i32 s{sTB}, s{sTB}, s{sJ}
    s_add_u32 s{sTB}, s{sTB}, s{sGRP}
    s_mul_i32 s44, s{sJ}, 5
    s_lshr_b32 s44, s44, 2
    s_lshl_b32 s44, s44, 1
    s_mov_b32 s45, {f2u(1.0/640)}
    v_lshlrev_b32 v8, 4, v{vL}
    s_cmp_ge_u32 s{sWV}, 4
    s_cbranch_scc1 L_H
    """)
    X = 16; U = 96; V = 116; G = 136; S = 140; ON = 144; RHO = 148; T = 152
    P(f"""
    v_lshl_add_u32 v5, v{vW}, 4, v{vN}
    v_mul_u32_u24 v5, 40960, v5
    v_lshl_add_u32 v5, v{vQ}, 4, v5
    s_mul_i32 s46, s{sGRP}, 1280
    s_add_u32 s47, s46, 1280
    s_lshl_b32 s48, s44, 6
    s_add_u32 s48, s48, s46
    s_waitcnt lgkmcnt(0)
    """)
    stamp(P, 1)
    def xload(k):
        P(f"buffer_load_dwordx4 {v(X+4*k,4)}, v5, s[4:7], s48 offen" + (" offset:64" if k & 1 else ""))
        if k & 1 and k < 19:
            P(f"s_add_u32 s48, s48, 128")
            P(f"s_cmp_eq_u32 s48, s47")
            P(f"s_cselect_b32 s48, s46, s48")
    NPRE = 10
    for k in range(NPRE): xload(k)
    P(f"""
    s_and_b32 s49, s{sJ}, 1
    s_mul_i32 s50, s49, 0x80008000
    v_mov_b32 v{ON}, 0x3f803f80
    v_mov_b32 v{ON+1}, 0x3f803f80
    v_mov_b32 v{ON+2}, 0x3f803f80
    v_mov_b32 v{ON+3}, 0x3f803f80
    v_and_b32 v6, 3, v{vN}
    v_cmp_eq_u32 s[52:53], 1, v6
    v_cmp_eq_u32 s[54:55], 2, v6
    v_cmp_eq_u32 s[56:57], 3, v6
    v_mul_u32_u24 v9, {HS}, v{vN}
    v_lshl_add_u32 v10, v{vW}, 5, v9
    v_lshl_add_u32 v10, v{vQ}, 3, v10
    s_lshr_b32 s51, s{sJ}, 1
    v_xor_b32 v14, s51, v{vN}
    v_and_b32 v14, 1, v14
    v_cvt_f32_u32 v14, v14
    v_fma_f32 v14, v14, 2.0, -1.0
    s_barrier
    """)
    stamp(P, 2)
    for kp in range(5):
        for t in range(5):
            f = 5*t + kp
            P(f"ds_read_b128 {a(4*f,4)}, v8 offset:{L_W + 1024*f}")
    for k in range(20):
        qd = k // 5; kp = k % 5
        acc = U if (qd & 1) == 0 else V
        outstanding = min(NPRE - 1, 19 - k)
        P(f"s_waitcnt vmcnt({outstanding})")
        if k == 0: stamp(P, 3)
        if k + NPRE < 20: xload(k + NPRE)
        xr = X + 4*k
        if k == 10:
            for i in range(4): P(f"v_xor_b32 v{ON+i}, s50, v{ON+i}")
        if qd >= 2:
            for i in range(4): P(f"v_xor_b32 v{xr+i}, s50, v{xr+i}")
        P(f"v_mfma_f32_16x16x32_bf16 {v(G,4)}, {v(xr,4)}, {v(xr,4)}, {'0' if k==0 else v(G,4)}")
        P(f"v_mfma_f32_16x16x32_bf16 {v(S,4)}, {v(ON,4)}, {v(xr,4)}, {'0' if k==0 else v(S,4)}")
        if k < 5: P(f"s_waitcnt lgkmcnt({min(15, 20-5*k)})" if k > 0 else "s_waitcnt lgkmcnt(15)")
        if k == 0: P("s_nop 0")
        for t in range(5):
            c = "0" if (qd < 2 and kp == 0) else v(acc+4*t, 4)
            P(f"v_mfma_f32_16x16x32_bf16 {v(acc+4*t,4)}, {v(xr,4)}, {a(4*(5*t+kp),4)}, {c}")
    stamp(P, 4)
    P(f"""
    v_cndmask_b32 v{G}, v{G}, v{G+1}, s[52:53]
    v_cndmask_b32 v{G}, v{G}, v{G+2}, s[54:55]
    v_cndmask_b32 v{G}, v{G}, v{G+3}, s[56:57]
    v_mul_f32 v{S}, s45, v{S}
    v_mul_f32 v{S}, v{S}, v{S}
    v_fma_f32 v{G}, v{G}, s45, -v{S}
    v_max_f32 v{G}, 0, v{G}
    """)
    bf16_round(P, G)
    P(f"v_add_f32 v{G}, {f2u(1e-5)}, v{G}")
    bf16_round(P, G)
    P(f"v_sqrt_f32 v{G}, v{G}")
    bf16_round(P, G)
    P(f"v_rcp_f32 v{G}, v{G}")
    P(f"""
    s_cmp_eq_u32 s49, 1
    s_cbranch_scc1 L_odd
    s_bitcmp1_b32 s{sJ}, 1
    s_cselect_b32 s51, -1.0, 1.0
    """)
    for i in range(20): P(f"v_fmac_f32 v{U+i}, s51, v{V+i}")
    P("s_branch L_comb")
    P("L_odd:")
    for i in range(20):
        P(f"v_fmac_f32_dpp v{U+i}, v{V+i}, v14 quad_perm:[1,0,3,2] row_mask:0xf bank_mask:0xf")
    P("L_comb:")
    for q in range(4):
        for r in range(4):
            P(f"v_mov_b32_dpp v{RHO+r}, v{G} row_newbcast:{4*q+r} row_mask:{hex(1<<q)} bank_mask:0xf")
    for t in range(5):
        P(f"v_pk_mul_f32 {v(U+4*t,2)}, {v(U+4*t,2)}, {v(RHO,2)}")
        P(f"v_pk_mul_f32 {v(U+4*t+2,2)}, {v(U+4*t+2,2)}, {v(RHO+2,2)}")
        P(f"v_cvt_pk_f16_f32 v{V+2*t}, v{U+4*t}, v{U+4*t+1}")
        P(f"v_cvt_pk_f16_f32 v{V+2*t+1}, v{U+4*t+2}, v{U+4*t+3}")
        P(f"ds_write_b64 v10, {v(V+2*t,2)} offset:{L_HT + 16*t*HS}")
    P(f"""
    s_waitcnt lgkmcnt(0)
    s_barrier
    """)
    stamp(P, 5)
    P("s_branch L_prep")

    P("L_H:")
    T = 32; F = 16
    P(f"""
    s_sub_u32 s46, s{sWV}, 4
    s_cmp_eq_u32 s{sJ}, 0
    s_cselect_b32 s47, 8, s{sJ}
    v_lshrrev_b32 v5, 1, v{vN}
    v_lshl_add_u32 v5, v5, 3, s47
    v_and_b32 v6, 1, v{vN}
    v_cvt_f32_u32 v6, v6
    v_mul_f32 v6, {f2u(-0.25)}, v6
    v_lshlrev_b32 v7, 3, v{vQ}
    s_mov_b32 s48, s46
    L_wgen:
    s_mul_i32 s49, s48, 52
    s_lshr_b32 s49, s49, 8
    s_mul_i32 s50, s49, 5
    s_sub_u32 s50, s48, s50
    s_add_u32 s50, s50, s44
    s_lshl_b32 s49, s49, 6
    s_lshl_b32 s50, s50, 5
    s_lshl_b32 s51, s48, 10
    v_add_u32 v9, s49, v5
    v_add_u32 v10, s50, v7
    v_mul_u32_u24 v10, v9, v10
    v_cvt_f32_u32 v9, v9
    v_cvt_f32_u32 v10, v10
    v_mul_f32 v9, s45, v9
    v_fma_f32 v{T}, v10, s45, v6
    v_fract_f32 v{T}, v{T}
    """)
    for i in range(1, 8): P(f"v_add_f32 v{T+i}, v{T+i-1}, v9")
    for i in range(8): P(f"v_cos_f32 v{T+i}, v{T+i}")
    P(f"v_add_u32 v11, s51, v8")
    for i in range(4): P(f"v_cvt_pk_bf16_f32 v{T+8+i}, v{T+2*i}, v{T+2*i+1}")
    P(f"""
    ds_write_b128 v11, {v(T+8,4)} offset:{L_W}
    s_add_u32 s48, s48, 4
    s_cmp_lt_u32 s48, 25
    s_cbranch_scc1 L_wgen
    s_waitcnt lgkmcnt(0)
    s_barrier
    """)
    P(f"""
    s_mov_b32 s49, 81920
    v_mul_lo_u32 v13, v{vN}, s49
    v_lshl_add_u32 v13, v{vQ}, 4, v13
    s_mul_i32 s52, s{sGRP}, 2560
    s_mul_i32 s49, s{sJ}, 320
    s_add_u32 s52, s52, s49
    s_add_u32 s52, s52, {ZOFF}
    s_cmp_eq_u32 s46, 0
    s_cbranch_scc1 L_poison
    s_cmp_eq_u32 s46, 1
    s_cbranch_scc1 L_pref
    s_branch L_hgo
    """)
    P(f"""
    L_poison:
    v_mov_b32 v15, 0
    buffer_load_dword v14, v15, s[8:11], 0 offen sc1
    v_mov_b32 v{T}, -1
    v_mov_b32 v{T+1}, -1
    v_mov_b32 v{T+2}, -1
    v_mov_b32 v{T+3}, -1
    s_add_u32 s53, s52, {16*81920}
    """)
    for t in range(5):
        P(f"buffer_store_dwordx4 {v(T,4)}, v13, s[8:11], s52 offen offset:{64*t} sc1")
        P(f"buffer_store_dwordx4 {v(T,4)}, v13, s[8:11], s53 offen offset:{64*t} sc1")
    P(f"v_lshrrev_b32 v9, 3, v{vL}")
    trow(P, 10, 9, 11, 12)
    P(f"""
    v_mul_u32_u24 v11, 1280, v10
    v_and_b32 v12, 7, v{vL}
    v_lshl_add_u32 v11, v12, 4, v11
    v_lshlrev_b32 v10, 3, v10
    s_mov_b32 s53, {STATS}
    """)
    for i in range(10):
        P(f"buffer_store_dwordx4 {v(T,4)}, v11, s[12:15], 0 offen offset:{128*i} sc1")
    P(f"""
    buffer_store_dwordx2 {v(T,2)}, v10, s[8:11], s53 offen sc1
    s_lshl_b32 s53, s2, 7
    s_add_u32 s54, s53, {KEYS}
    s_add_u32 s55, s53, {FLAGS}
    buffer_store_dwordx4 {v(T,4)}, v15, s[8:11], s54 offen sc1
    s_cmp_ge_u32 s{sG}, 27
    s_cbranch_scc1 L_noactp
    s_lshl_b32 s54, s{sG}, 2
    s_add_u32 s54, s54, s{sSUB}
    s_lshl_b32 s54, s54, 8
    s_add_u32 s54, s54, {ACT}
    v_lshlrev_b32 v9, 2, v{vL}
    buffer_store_dword v{T}, v9, s[8:11], s54 offen sc1
    L_noactp:
    v_mov_b32 v9, {L_MISC}
    v_mov_b32 v{T+2}, 0
    s_mov_b32 s54, 0x9e3779b1
    s_waitcnt vmcnt(0)
    v_mul_lo_u32 v{T}, v14, s54
    v_add_u32 v{T}, 0x7f4a7c15, v{T}
    s_mov_b64 exec, 1
    buffer_store_dword v{T}, v15, s[8:11], s55 offen sc1
    ds_write_b96 v9, {v(T,3)}
    s_mov_b64 exec, -1
    """)
    stamp(P, 1)
    P("s_branch L_hgo")
    P(f"""
    L_pref:
    s_lshr_b32 s53, s2, 3
    v_mul_u32_u24 v9, 13, v{vL}
    v_lshrrev_b32 v9, 8, v9
    v_mul_u32_u24 v10, 20, v9
    v_sub_u32 v10, v{vL}, v10
    s_mul_i32 s54, s53, 20
    v_add_u32 v10, s54, v10
    v_mul_u32_u24 v10, 3456, v10
    v_lshl_add_u32 v10, v9, 10, v10
    s_lshl_b32 s54, s42, 7
    v_mov_b32 v11, 0x7fffffff
    v_cmp_gt_u32 vcc, 60, v{vL}
    v_cndmask_b32 v10, v11, v10, vcc
    v_lshlrev_b32 v9, 6, v{vL}
    buffer_load_dword v{T}, v9, s[16:19], 0 offen
    buffer_load_dword v{T}, v10, s[20:23], s54 offen
    buffer_load_dword v{T}, v10, s[20:23], s54 offen offset:64
    buffer_load_dword v{T}, v10, s[24:27], s54 offen
    buffer_load_dword v{T}, v10, s[24:27], s54 offen offset:64
    s_mul_i32 s55, s53, 54
    v_add_u32 v12, s55, v{vL}
    v_mul_u32_u24 v12, 1280, v12
    v_cmp_gt_u32 vcc, 54, v{vL}
    v_cndmask_b32 v12, v11, v12, vcc
    s_cmp_ge_u32 s42, 3
    s_cbranch_scc1 L_pref_b
    v_cmp_gt_u32 vcc, 20, v{vL}
    v_cndmask_b32 v10, v11, v10, vcc
    buffer_load_dword v{T}, v10, s[20:23], s54 offen offset:3072
    buffer_load_dword v{T}, v10, s[20:23], s54 offen offset:3136
    buffer_load_dword v{T}, v10, s[24:27], s54 offen offset:3072
    buffer_load_dword v{T}, v10, s[24:27], s54 offen offset:3136
    s_branch L_pref_c
    L_pref_b:
    s_sub_u32 s55, s54, 384
    buffer_load_dword v{T}, v12, s[28:31], s55 offen
    buffer_load_dword v{T}, v12, s[28:31], s55 offen offset:64
    L_pref_c:
    s_cmp_ge_u32 s42, 5
    s_cbranch_scc1 L_pref_d
    buffer_load_dword v{T}, v12, s[28:31], s54 offen offset:640
    buffer_load_dword v{T}, v12, s[28:31], s54 offen offset:704
    L_pref_d:
    """)
    T = 48
    P("L_hgo:")
    P(f"""
    s_and_b32 s49, s46, 1
    s_lshl_b32 s49, s49, 4
    v_add_u32 v12, s49, v{vN}
    v_cvt_f32_u32 v9, v12
    v_mul_f32 v9, {f2u(1.0/64)}, v9
    v_cvt_f32_u32 v10, v7
    v_cmp_eq_u32 s[56:57], 0, v12
    v_mov_b32 v11, 0xbc003c00
    """)
    for kk in range(2):
        if kk == 1: P(f"v_add_f32 v10, {f2u(32.0)}, v10")
        P(f"v_mul_f32 v{T}, v9, v10")
        for i in range(1, 8): P(f"v_add_f32 v{T+i}, v{T+i-1}, v9")
        for i in range(8):
            P(f"v_sin_f32 v{T+8+i}, v{T+i}")
            P(f"v_cos_f32 v{T+i}, v{T+i}")
        for i in range(4):
            P(f"v_cvt_pk_f16_f32 v{F+4*kk+i}, v{T+2*i}, v{T+2*i+1}")
            P(f"v_cvt_pk_f16_f32 v{F+8+4*kk+i}, v{T+8+2*i}, v{T+8+2*i+1}")
        for i in range(4):
            P(f"v_cndmask_b32 v{F+8+4*kk+i}, v{F+8+4*kk+i}, v11, s[56:57]")
    P(f"v_and_b32 v9, 7, v{vN}")
    trow(P, 10, 9, 11, 14)
    P(f"""
    v_sub_u32 v11, 2048, v10
    v_and_b32 v11, 2047, v11
    v_cmp_lt_u32 vcc, 7, v{vN}
    v_cndmask_b32 v10, v10, v11, vcc
    v_and_b32 v11, 63, v10
    v_mov_b32 v14, 0x80008000
    v_cmp_gt_u32 vcc, 32, v11
    v_cndmask_b32 v14, 0, v14, vcc
    v_cmp_eq_u32 s[56:57], 32, v11
    s_lshl_b32 s49, s46, 1
    s_add_u32 s49, s49, s{sJ}
    """)
    for h in range(2):
        P(f"""
        s_and_b32 s50, s49, 7
        s_lshl_b32 s50, s50, 2
        v_add_u32 v11, s50, v{vQ}
        v_mul_u32_u24 v11, v11, v10
        v_cvt_f32_u32 v11, v11
        v_mul_f32 v11, {f2u(1.0/2048)}, v11
        v_cos_f32 v{T+4}, v11
        v_sin_f32 v{T+5}, v11
        s_add_u32 s49, s49, 1
        v_cvt_pk_f16_f32 v{T+2*h}, v{T+4}, -v{T+5}
        v_cvt_pk_f16_f32 v{T+2*h+1}, v{T+5}, v{T+4}
        v_xor_b32 v{T+2*h+1}, v14, v{T+2*h+1}
        """)
    P(f"""
    s_cmp_lg_u32 s{sGRP}, 0
    s_cbranch_scc1 L_nofix
    """)
    for h in range(2):
        P(f"v_cndmask_b32 v{T+2*h+1}, 0, v{T+2*h}, s[56:57]")
        P(f"v_cndmask_b32 v{T+2*h}, v{T+2*h}, 0, s[56:57]")
    P(f"""
    L_nofix:
    s_lshl_b32 s49, s46, 10
    v_add_u32 v11, s49, v8
    ds_write_b128 v11, {v(T,4)} offset:{L_CF}
    s_lshr_b32 s49, s46, 1
    s_mul_i32 s49, s49, 3
    s_mul_i32 s50, s49, {16*HS}
    v_mul_u32_u24 v9, {HS}, v{vN}
    v_lshl_add_u32 v9, v{vQ}, 4, v9
    v_add_u32 v9, s50, v9
    s_lshl_b32 s49, s49, 6
    s_add_u32 s52, s52, s49
    s_and_b32 s49, s46, 1
    s_mul_i32 s49, s49, {16*81920}
    s_add_u32 s52, s52, s49
    s_waitcnt lgkmcnt(0)
    """)
    stamp(P, 2)
    P("s_barrier")
    stamp(P, 3)
    AF = 64; DC = 88; ZO = 112
    for t in range(3):
        for kk in range(2):
            P(f"ds_read_b128 {v(AF+8*t+4*kk,4)}, v9 offset:{L_HT + 16*t*HS + 64*kk}")
    def unit(t):
        c = DC + 8*t
        P(f"s_waitcnt lgkmcnt({4-2*t})")
        P(f"v_mfma_f32_16x16x32_f16 {v(c,4)}, {v(AF+8*t,4)}, {v(F,4)}, 0")
        P(f"v_mfma_f32_16x16x32_f16 {v(c+4,4)}, {v(AF+8*t,4)}, {v(F+8,4)}, 0")
        P(f"v_mfma_f32_16x16x32_f16 {v(c,4)}, {v(AF+8*t+4,4)}, {v(F+4,4)}, {v(c,4)}")
        P(f"v_mfma_f32_16x16x32_f16 {v(c+4,4)}, {v(AF+8*t+4,4)}, {v(F+12,4)}, {v(c+4,4)}")
    def fin(t):
        c = DC + 8*t; o = ZO + 4*t
        P(f"v_cvt_pk_f16_f32 v{o}, v{c}, v{c+1}")
        P(f"v_cvt_pk_f16_f32 v{o+1}, v{c+4}, v{c+5}")
        P(f"v_cvt_pk_f16_f32 v{o+2}, v{c+2}, v{c+3}")
        P(f"v_cvt_pk_f16_f32 v{o+3}, v{c+6}, v{c+7}")
        P(f"v_min_u32 v{o}, -2, v{o}")
        P(f"buffer_store_dwordx4 {v(o,4)}, v13, s[8:11], s52 offen offset:{64*t} sc1")
    unit(0); unit(1); unit(2)
    fin(0); fin(1)
    P(f"s_cmp_ge_u32 s46, 2")
    P("s_cbranch_scc1 L_prep")
    fin(2)

    ZR = 16; ZB = 48; XR = 80; WR = 88; CF = 96; AC = 112; AB = 120; T = 128; WF = 138
    H = 16
    P("L_prep:")
    if OPT["stamps"]:
        P(f"s_cmp_lt_u32 s{sWV}, 4"); P("s_cbranch_scc1 L_st1"); stamp(P, 4); P("L_st1:")
    P(f"""
    s_and_b32 s{sROW}, s{sWV}, 3
    s_mul_i32 s{sROW}, s{sROW}, s{sSTR}
    s_add_u32 s{sROW}, s{sROW}, s{sTB}
    s_sub_u32 s49, 2048, s{sROW}
    s_cmp_eq_u32 s{sROW}, 0
    s_cselect_b32 s49, 1024, s49
    s_bitcmp1_b32 s{sWV}, 2
    s_cselect_b32 s{sROW}, s49, s{sROW}
    s_mul_i32 s{sROWB}, s{sROW}, 1280
    v_lshlrev_b32 v6, 2, v{vL}
    buffer_load_dwordx4 {v(XR,4)}, v8, s[4:7], s{sROWB} offen
    buffer_load_dword v{XR+4}, v6, s[4:7], s{sROWB} offen offset:1024
    buffer_load_dwordx4 {v(WR,4)}, v8, s[16:19], 0 offen
    buffer_load_dword v{WR+4}, v6, s[16:19], 0 offen offset:1024
    """)
    for k in range(4):
        P(f"ds_read_b128 {v(CF+4*k,4)}, v8 offset:{L_CF + 1024*k}")
    P(f"""
    v_lshrrev_b32 v15, 1, v{vL}
    v_mul_u32_u24 v15, 3456, v15
    v_and_b32 v9, 1, v{vL}
    v_lshl_add_u32 v15, v9, 4, v15
    s_cmp_lt_u32 s{sWV}, 4
    s_cbranch_scc1 L_prep2
    s_cmp_ge_u32 s{sG}, 27
    s_cbranch_scc1 L_prep2
    s_lshl_b32 s58, s{sG}, 2
    s_add_u32 s58, s58, s{sSUB}
    s_lshl_b32 s58, s58, 5
    s_mul_i32 s49, s46, {160*3456}
    s_add_u32 s58, s58, s49
    s_mul_i32 s59, s46, 10240
    s_add_u32 s59, s59, {L_WT}
    s_mov_b32 s49, s58
    s_mov_b32 m0, s59
    """)
    for i in range(5):
        P(f"buffer_load_dwordx4 v15, s[20:23], s49 offen lds")
        if i < 4:
            P(f"s_add_u32 s49, s49, {32*3456}")
            P(f"s_add_u32 m0, m0, 1024")
    P("L_prep2:")
    P(f"""
    v_mul_u32_u24 v5, 2560, v{vQ}
    v_lshl_add_u32 v5, v{vN}, 4, v5
    v_lshl_add_u32 v5, v{vW}, 8, v5
    s_mul_i32 s49, s{sGRP}, 81920
    s_add_u32 s49, s49, {ZOFF}
    """)
    for i in range(8):
        P(f"s_add_u32 s50, s{sJ}, {i}")
        P(f"s_and_b32 s50, s50, 7")
        P(f"s_mul_i32 s50, s50, 10240")
        P(f"s_add_u32 s{60+i}, s50, s49")
    def yaddr(gadd, d0, d1):
        P(f"""
        v_lshlrev_b32 v7, 5, v{vW}
        v_lshl_add_u32 v7, v{vN}, 1, v7
        """)
        if gadd: P(f"v_add_u32 v7, {gadd}, v7")
        P(f"""
        v_mul_u32_u24 v9, 205, v7
        v_lshrrev_b32 v9, 13, v9
        v_mul_u32_u24 v10, 40, v9
        v_sub_u32 v7, v7, v10
        v_cmp_eq_u32 vcc, 0, v9
        v_cndmask_b32 v9, v9, 8, vcc
        v_lshl_add_u32 v{d0}, v7, 3, v9
        v_add_u32 v{d1}, 8, v{d0}
        v_sub_u32 v7, 640, v{d0}
        v_sub_u32 v9, 640, v{d1}
        v_cmp_lt_u32 vcc, 1, v{vQ}
        v_cndmask_b32 v{d0}, v{d0}, v7, vcc
        v_cndmask_b32 v{d1}, v{d1}, v9, vcc
        v_lshrrev_b32 v7, 4, v{d0}
        v_lshrrev_b32 v9, 4, v{d1}
        v_lshl_add_u32 v{d0}, v7, 2, v{d0}
        v_lshl_add_u32 v{d1}, v9, 2, v{d1}
        v_and_b32 v7, 1, v{vQ}
        v_mul_u32_u24 v7, {4*RS}, v7
        v_add_lshl_u32 v{d0}, v{d0}, v7, 2
        v_add_lshl_u32 v{d1}, v{d1}, v7, 2
        """)
    yaddr(0, 11, 12)
    P(f"""
    s_cmp_ge_u32 s{sWV}, 4
    s_cbranch_scc1 L_hack
    """)
    yaddr(256, 13, 14)
    P(f"""
    v_mov_b32 v7, {L_TAG}
    ds_read_b32 v9, v7
    v_lshlrev_b32 v7, 7, v0
    s_mov_b32 s49, {FLAGS}
    s_mov_b32 s50, 0
    L_fpoll:
    buffer_load_dword v10, v7, s[8:11], s49 offen sc1
    s_add_u32 s50, s50, 1
    s_cmp_gt_u32 s50, {SPIN}
    s_waitcnt vmcnt(0) lgkmcnt(0)
    v_cmp_ne_u32 vcc, v9, v10
    s_cbranch_scc1 L_b3
    s_cbranch_vccnz L_fpoll
    s_branch L_b3
    L_hack:
    s_cmp_ge_u32 s{sG}, 27
    s_cbranch_scc1 L_hack4
    s_waitcnt vmcnt(9)
    s_branch L_b3
    L_hack4:
    s_waitcnt vmcnt(4)
    L_b3:
    """)
    stamp(P, 6)
    P("s_barrier")
    stamp(P, 7)
    P(f"""
    s_mov_b32 s50, 0
    L_zretry:
    """)
    for i in range(8):
        P(f"buffer_load_dwordx4 {v(ZR+4*i,4)}, v5, s[8:11], s{60+i} offen sc1")
    def zproc(Z, A, base):
        for k in range(4):
            z = Z + 8*k
            P(f"s_waitcnt vmcnt({base + 6 - 2*k})" + (" lgkmcnt(0)" if k == 0 else ""))
            P(f"v_swap_b32 v{z+2}, v{z+4}")
            P(f"v_swap_b32 v{z+3}, v{z+5}")
            P(f"v_max3_u32 v10, v10, v{z}, v{z+2}")
            P(f"v_mfma_f32_16x16x32_f16 {v(A,4)}, {v(CF+4*k,4)}, {v(z,4)}, {'0' if k==0 else v(A,4)}")
            P(f"v_mfma_f32_16x16x32_f16 {v(A+4,4)}, {v(CF+4*k,4)}, {v(z+4,4)}, {'0' if k==0 else v(A+4,4)}")
    P(f"""
    v_mov_b32 v10, 0
    s_cmp_ge_u32 s{sWV}, 2
    s_cbranch_scc1 L_zone
    """)
    for i in range(8):
        P(f"buffer_load_dwordx4 {v(ZB+4*i,4)}, v5, s[8:11], s{60+i} offen offset:2048 sc1")
    zproc(ZR, AC, 8)
    zproc(ZB, AB, 0)
    P("s_branch L_zchk")
    P("L_zone:")
    P(f"""
    s_cmp_lt_u32 s{sWV}, 4
    s_cbranch_scc1 L_zone0
    s_cmp_ge_u32 s{sG}, 27
    s_cbranch_scc1 L_zone0
    s_cmp_lg_u32 s50, 0
    s_cbranch_scc1 L_zone0
    s_add_u32 m0, s59, 5120
    """)
    for i in range(5):
        P(f"buffer_load_dwordx4 v15, s[24:27], s58 offen lds")
        if i < 4:
            P(f"s_add_u32 s58, s58, {32*3456}")
            P(f"s_add_u32 m0, m0, 1024")
    zproc(ZR, AC, 5)
    P("s_branch L_zchk")
    P("L_zone0:")
    zproc(ZR, AC, 0)
    P(f"""
    L_zchk:
    s_add_u32 s50, s50, 1
    v_cmp_eq_u32 vcc, -1, v10
    s_cmp_gt_u32 s50, {SPIN}
    s_cbranch_scc1 L_zok
    s_cbranch_vccnz L_zretry
    L_zok:
    """)
    stamp(P, 8)
    for r in range(4):
        P(f"ds_write_b32 v11, v{AC+r} offset:{L_W + r*RS*4}")
        P(f"ds_write_b32 v12, v{AC+4+r} offset:{L_W + r*RS*4}")
    P(f"""
    s_cmp_ge_u32 s{sWV}, 2
    s_cbranch_scc1 L_y1
    """)
    for r in range(4):
        P(f"ds_write_b32 v13, v{AB+r} offset:{L_W + r*RS*4}")
        P(f"ds_write_b32 v14, v{AB+4+r} offset:{L_W + r*RS*4}")
    P(f"""
    s_or_b32 s49, s2, s{sWV}
    s_cmp_lg_u32 s49, 0
    s_cbranch_scc1 L_y1
    v_mov_b32 v7, 0
    s_mov_b64 exec, 1
    buffer_store_dword v9, v7, s[8:11], 0 offen sc1
    s_mov_b64 exec, -1
    L_y1:
    """)
    for i in range(5):
        P(f"v_lshlrev_b32 v{WF+2*i}, 16, v{WR+i}")
        P(f"v_and_b32 v{WF+2*i+1}, 0xffff0000, v{WR+i}")
    for i in range(5):
        P(f"v_lshlrev_b32 v{H+2*i}, 16, v{XR+i}")
        P(f"v_and_b32 v{H+2*i+1}, 0xffff0000, v{XR+i}")
    SW, S1, S2, S3 = 28, 29, 30, 31
    P(f"v_add_f32 v{SW}, v{WF}, v{WF+1}")
    for i in range(2, 10): P(f"v_add_f32 v{SW}, v{SW}, v{WF+i}")
    P(f"""
    s_mul_i32 s49, s{sWV}, {RS*4}
    v_lshrrev_b32 v7, 1, v{vL}
    v_lshlrev_b32 v7, 4, v7
    v_lshl_add_u32 v7, v{vL}, 5, v7
    v_add_u32 v7, s49, v7
    v_lshrrev_b32 v9, 3, v{vL}
    v_lshlrev_b32 v9, 4, v9
    v_lshl_add_u32 v9, v{vL}, 3, v9
    v_add_u32 v9, s49, v9
    s_waitcnt lgkmcnt(0)
    s_barrier
    """)
    stamp(P, 9)
    P(f"""
    ds_read_b128 {v(T,4)}, v7 offset:{L_W}
    ds_read_b128 {v(T+4,4)}, v7 offset:{L_W+16}
    ds_read_b64 {v(T+8,2)}, v9 offset:{L_W+2560}
    s_waitcnt lgkmcnt(0)
    v_writelane_b32 v{T}, 0, 0
    """)
    for i in range(5): P(f"v_pk_add_f32 {v(H+2*i,2)}, {v(H+2*i,2)}, {v(T+2*i,2)}")
    A1, A2, A3 = 32, 34, 36
    P(f"v_pk_add_f32 {v(A1,2)}, {v(H,2)}, {v(H+2,2)}")
    P(f"v_pk_mul_f32 {v(A2,2)}, {v(H,2)}, {v(H,2)}")
    P(f"v_pk_mul_f32 {v(A3,2)}, {v(H,2)}, {v(WF,2)}")
    for i in range(1, 5):
        if i > 1: P(f"v_pk_add_f32 {v(A1,2)}, {v(A1,2)}, {v(H+2*i,2)}")
        P(f"v_pk_fma_f32 {v(A2,2)}, {v(H+2*i,2)}, {v(H+2*i,2)}, {v(A2,2)}")
        P(f"v_pk_fma_f32 {v(A3,2)}, {v(H+2*i,2)}, {v(WF+2*i,2)}, {v(A3,2)}")
    P(f"v_add_f32 v{S1}, v{A1}, v{A1+1}")
    P(f"v_add_f32 v{S2}, v{A2}, v{A2+1}")
    P(f"v_add_f32 v{S3}, v{A3}, v{A3+1}")
    regs = [S1, S2, S3, SW]
    for sh in (1, 2, 4, 8):
        for r in regs: P(f"v_add_f32_dpp v{r}, v{r}, v{r} row_shr:{sh} row_mask:0xf bank_mask:0xf bound_ctrl:0")
    for r in regs: P(f"v_add_f32_dpp v{r}, v{r}, v{r} row_bcast:15 row_mask:0xa bank_mask:0xf")
    for r in regs: P(f"v_add_f32_dpp v{r}, v{r}, v{r} row_bcast:31 row_mask:0xc bank_mask:0xf")
    MC = 38
    P(f"""
    v_mul_f32 v{MC}, s45, v{S1}
    v_mul_f32 v{A1}, v{MC}, v{MC}
    v_fma_f32 v{S2}, v{S2}, s45, -v{A1}
    v_max_f32 v{S2}, 0, v{S2}
    """)
    bf16_round(P, S2)
    bf16_round(P, MC)
    P(f"v_add_f32 v{S2}, {f2u(1e-5)}, v{S2}")
    bf16_round(P, S2)
    P(f"v_sqrt_f32 v{S2}, v{S2}")
    P(f"v_fma_f32 v{S3}, -v{MC}, v{SW}, v{S3}")
    bf16_round(P, S2)
    P(f"""
    v_add_f32 v{MC+1}, 1.0, v{S2}
    v_rcp_f32 v{S2}, v{S2}
    v_rcp_f32 v{MC+1}, v{MC+1}
    s_lshl_b32 s49, s{sWV}, 1
    s_add_u32 s49, s49, {L_KREC}
    v_mul_f32 v{S3}, v{S3}, v{S2}
    v_mov_b32 v{A1}, s49
    v_cvt_pk_bf16_f32 v{S3}, v{S3}, v{S3}
    v_ashrrev_i32 v{A2}, 31, v{S3}
    v_or_b32 v{A2}, 0x80000000, v{A2}
    v_xor_b32 v{S3}, v{S3}, v{A2}
    v_lshrrev_b32 v{S3}, 16, v{S3}
    v_min_u32 v{S3}, 0xfffe, v{S3}
    s_mov_b32 exec_lo, 0
    s_mov_b32 exec_hi, 0x80000000
    ds_write_b16 v{A1}, v{S3}
    v_mul_f32 v{S1}, v{MC}, v{S2}
    v_min_u32 v{MC}, -2, v{MC}
    v_min_u32 v{MC+1}, -2, v{MC+1}
    v_mov_b32 v{A1}, 0
    s_lshl_b32 s49, s{sROW}, 3
    s_add_u32 s49, s49, {STATS}
    v_readlane_b32 s50, v{S2}, 63
    v_readlane_b32 s51, v{S1}, 63
    s_waitcnt lgkmcnt(0)
    s_barrier
    buffer_store_dwordx2 {v(MC,2)}, v{A1}, s[8:11], s49 offen sc1
    s_cmp_lg_u32 s{sWV}, 0
    s_cbranch_scc1 L_nokey
    v_mov_b32 v{A2}, {L_KREC}
    ds_read_b128 {v(40,4)}, v{A2}
    s_lshl_b32 s49, s2, 7
    s_add_u32 s49, s49, {KEYS}
    s_waitcnt lgkmcnt(0)
    buffer_store_dwordx4 {v(40,4)}, v{A1}, s[8:11], s49 offen sc1
    L_nokey:
    s_mov_b64 exec, -1
    v_add_f32 v{A1}, 1.0, s50
    v_mov_b32 v{A2}, s51
    """)
    stamp(P, 10)
    for i in range(10): P(f"v_fma_f32 v{H+i}, v{H+i}, v{A1}, -v{A2}")
    for i in range(5):
        P(f"v_cvt_pk_bf16_f32 v{XR+i}, v{H+2*i}, v{H+2*i+1}")
        P(f"v_min_u32 v{XR+i}, -2, v{XR+i}")
    P(f"""
    buffer_store_dwordx4 {v(XR,4)}, v8, s[12:15], s{sROWB} offen sc1
    buffer_store_dword v{XR+4}, v6, s[12:15], s{sROWB} offen offset:1024 sc1
    s_cmp_ge_u32 s{sG}, 37
    s_cbranch_scc1 L_fin
    """)
    BW = 48
    AR = 96
    KK = 16; ID = 24; K4 = 32
    P(f"""
    v_lshlrev_b32 v14, 8, v{vQ}
    v_lshl_add_u32 v14, v{vN}, 3, v14
    s_cmp_lt_u32 s{sG}, 27
    s_cbranch_scc1 L_f1a
    """)
    P(f"""
    v_lshrrev_b32 v15, 1, v{vL}
    v_mul_u32_u24 v15, 1280, v15
    v_and_b32 v9, 1, v{vL}
    v_lshl_add_u32 v15, v9, 4, v15
    s_sub_u32 s58, s{sG}, 27
    s_lshl_b32 s58, s58, 2
    s_add_u32 s58, s58, s{sSUB}
    s_lshl_b32 s58, s58, 5
    s_mul_i32 s49, s{sWV}, {224*1280}
    s_add_u32 s49, s49, s58
    s_mul_i32 s59, s{sWV}, 7168
    s_add_u32 s59, s59, {L_WT}
    s_mov_b32 m0, s59
    """)
    for i in range(7):
        P(f"buffer_load_dwordx4 v15, s[28:31], s49 offen lds")
        if i < 6:
            P(f"s_add_u32 s49, s49, {32*1280}")
            P(f"s_add_u32 m0, m0, 1024")
    P(f"""
    v_add_u32 v14, s59, v14
    s_waitcnt vmcnt(0)
    """)
    for i in range(7):
        P(f"ds_read_b64_tr_b16 {v(BW+4*i,2)}, v14 offset:{1024*i}")
        P(f"ds_read_b64_tr_b16 {v(BW+4*i+2,2)}, v14 offset:{1024*i+128}")
    P("s_branch L_tk")
    P("L_f1a:")
    P(f"""
    s_cmp_lt_u32 s{sWV}, 4
    s_cbranch_scc1 L_tk
    v_add_u32 v14, s59, v14
    s_waitcnt vmcnt(3)
    """)
    for i in range(10):
        P(f"ds_read_b64_tr_b16 {v(BW+4*i,2)}, v14 offset:{1024*i}")
        P(f"ds_read_b64_tr_b16 {v(BW+4*i+2,2)}, v14 offset:{1024*i+128}")
    for i in range(4): P(f"v_mov_b32 v{AR+i}, 0x3f803f80")
    P(f"""
    s_lshl_b32 s49, s46, 7
    v_lshl_add_u32 v13, v{vN}, 2, s49
    s_waitcnt lgkmcnt(0)
    """)
    for i in range(5):
        P(f"v_mfma_f32_16x16x32_bf16 {v(88,4)}, {v(AR,4)}, {v(BW+4*i,4)}, {'0' if i==0 else v(88,4)}")
        P(f"v_mfma_f32_16x16x32_bf16 {v(92,4)}, {v(AR,4)}, {v(BW+20+4*i,4)}, {'0' if i==0 else v(92,4)}")
    P(f"ds_write_b32 v13, v88 offset:{L_RED+4096}")
    P(f"ds_write_b32 v13, v92 offset:{L_RED+4096+64}")
    P("L_tk:")
    P(f"""
    s_cmp_ge_u32 s{sWV}, 4
    s_cbranch_scc1 L_tk1
    v_and_b32 v9, 7, v0
    v_lshrrev_b32 v10, 6, v0
    v_lshl_add_u32 v9, v10, 3, v9
    v_bfe_u32 v10, v0, 3, 3
    v_mov_b32 v11, 64
    v_cmp_eq_u32 vcc, 0, v9
    v_cndmask_b32 v11, v11, 32, vcc
    v_lshlrev_b32 v10, 2, v10
    v_mad_u32_u24 v{ID}, v10, v11, v9
    v_add_u32 v{ID+1}, v{ID}, v11
    v_add_u32 v{ID+2}, v{ID+1}, v11
    v_add_u32 v{ID+3}, v{ID+2}, v11
    v_sub_u32 v{ID+4}, 2048, v{ID}
    v_sub_u32 v{ID+5}, 2048, v{ID+1}
    v_sub_u32 v{ID+6}, 2048, v{ID+2}
    v_sub_u32 v{ID+7}, 2048, v{ID+3}
    v_mov_b32 v11, 1024
    v_cmp_eq_u32 vcc, 0, v{ID}
    v_cndmask_b32 v{ID+4}, v{ID+4}, v11, vcc
    v_lshlrev_b32 v7, 7, v0
    s_mov_b32 s49, {KEYS}
    s_mov_b32 s50, 0
    s_mov_b32 s51, 0xffff0000
    s_waitcnt vmcnt(2)
    L_tk1:
    v_mov_b32 v12, {L_MISC}
    s_barrier
    s_cmp_ge_u32 s{sWV}, 4
    s_cbranch_scc1 L_tk2
    """)
    stamp(P, 11)
    P(f"""
    L_kpoll:
    buffer_load_dwordx4 {v(K4,4)}, v7, s[8:11], s49 offen sc1
    s_add_u32 s50, s50, 1
    s_cmp_gt_u32 s50, {SPIN}
    s_waitcnt vmcnt(0)
    v_max3_u32 v10, v{K4}, v{K4+1}, v{K4+2}
    v_max_u32 v10, v10, v{K4+3}
    v_cmp_eq_u32 vcc, -1, v10
    s_cbranch_scc1 L_kok
    s_cbranch_vccnz L_kpoll
    L_kok:
    """)
    stamp(P, 12)
    for i in range(4):
        P(f"v_lshl_or_b32 v{KK+2*i}, v{K4+i}, 16, v{ID+2*i}")
        P(f"v_and_or_b32 v{KK+2*i+1}, v{K4+i}, s51, v{ID+2*i+1}")
    P(f"""
    v_max3_u32 v10, v{KK}, v{KK+1}, v{KK+2}
    v_max3_u32 v11, v{KK+3}, v{KK+4}, v{KK+5}
    v_max3_u32 v10, v10, v{KK+6}, v{KK+7}
    v_max_u32 v10, v10, v11
    """)
    for sh in (1, 2, 4, 8):
        P(f"v_max_u32_dpp v10, v10, v10 row_shr:{sh} row_mask:0xf bank_mask:0xf")
    P(f"""
    v_max_u32_dpp v10, v10, v10 row_bcast:15 row_mask:0xa bank_mask:0xf
    s_mov_b32 exec_lo, 0x80000000
    s_mov_b32 exec_hi, 0x80000000
    ds_min_u32 v12, v10 offset:4
    s_mov_b64 exec, -1
    L_tk2:
    s_waitcnt lgkmcnt(0)
    s_barrier
    s_cmp_ge_u32 s{sWV}, 4
    s_cbranch_scc1 L_tk3
    ds_read_b32 v10, v12 offset:4
    s_waitcnt lgkmcnt(0)
    L_tkagain:
    """)
    for i in range(8): P(f"v_cmp_ge_u32 s[{52+2*i}:{53+2*i}], v{KK+i}, v10")
    P("s_mov_b32 s50, 0")
    for i in range(8):
        P(f"v_mbcnt_lo_u32_b32 v{K4+i}, s{52+2*i}, 0")
        P(f"v_mbcnt_hi_u32_b32 v{K4+i}, s{53+2*i}, v{K4+i}")
        P(f"v_add_u32 v{K4+i}, s50, v{K4+i}")
        P(f"s_bcnt1_i32_b64 s49, s[{52+2*i}:{53+2*i}]")
        P(f"s_add_u32 s50, s50, s49")
    P(f"""
    v_mov_b32 v11, s50
    s_mov_b64 exec, 1
    ds_add_rtn_u32 v11, v12, v11 offset:8
    s_mov_b64 exec, -1
    s_waitcnt lgkmcnt(0)
    v_readfirstlane_b32 s49, v11
    """)
    for i in range(8):
        P(f"v_add_u32 v{K4+i}, s49, v{K4+i}")
        P(f"v_min_u32 v{K4+i}, 64, v{K4+i}")
        P(f"v_lshlrev_b32 v{K4+i}, 2, v{K4+i}")
    for i in range(8):
        P(f"s_mov_b64 exec, s[{52+2*i}:{53+2*i}]")
        P(f"ds_write_b32 v{K4+i}, v{KK+i} offset:{L_LIST}")
    P(f"""
    s_mov_b64 exec, -1
    L_tk3:
    s_waitcnt lgkmcnt(0)
    s_barrier
    ds_read_b32 v11, v12 offset:8
    ds_read_b32 v9, v6 offset:{L_LIST}
    v_mov_b32 v13, {L_LIST}
    v_mov_b32 v10, 0
    s_mov_b32 s47, 0
    s_waitcnt lgkmcnt(0)
    v_readfirstlane_b32 s48, v11
    v_cmp_lt_u32 vcc, v{vL}, v11
    v_cndmask_b32 v9, 0, v9, vcc
    s_min_u32 s43, s48, 64
    L_rank:
    v_readlane_b32 s49, v9, s47
    s_add_u32 s47, s47, 1
    v_cmp_gt_u32 vcc, s49, v9
    s_cmp_lt_u32 s47, s43
    v_addc_co_u32 v10, vcc, 0, v10, vcc
    s_cbranch_scc1 L_rank
    v_cmp_gt_u32 vcc, 8, v10
    v_lshlrev_b32 v10, 2, v10
    v_and_b32 v11, 28, v6
    s_and_saveexec_b64 s[68:69], vcc
    ds_write_b32 v10, v9 offset:{L_SEL}
    s_mov_b64 exec, s[68:69]
    s_cmp_le_u32 s48, 64
    s_cbranch_scc1 L_tkdone
    ds_read_b32 v10, v12 offset:{32+28}
    s_waitcnt lgkmcnt(0)
    s_barrier
    v_mov_b32 v11, 0
    ds_write_b32 v12, v11 offset:8
    s_waitcnt lgkmcnt(0)
    s_barrier
    s_cmp_ge_u32 s{sWV}, 4
    s_cbranch_scc1 L_tk3
    s_branch L_tkagain
    L_tkdone:
    s_cmp_ge_u32 s{sG}, 27
    s_cbranch_scc1 L_f2
    """)
    P(f"""
    s_cmp_eq_u32 s{sWV}, 0
    s_cbranch_scc1 L_f1fin
    s_cmp_lt_u32 s{sWV}, 4
    s_cbranch_scc1 L_fin
    ds_read_b32 v9, v11 offset:{L_SEL}
    s_mul_i32 s49, s46, 320
    s_mov_b32 s50, 0
    s_waitcnt lgkmcnt(0)
    """)
    stamp(P, 11)
    P(f"""
    v_and_b32 v9, 2047, v9
    v_mul_u32_u24 v9, 1280, v9
    v_lshl_add_u32 v9, v{vQ}, 4, v9
    s_mov_b32 exec_lo, 0x00ff00ff
    s_mov_b32 exec_hi, 0x00ff00ff
    L_gretry:
    """)
    for i in range(5):
        P(f"buffer_load_dwordx4 {v(AR+4*i,4)}, v9, s[12:15], s49 offen offset:{64*i} sc1")
    P(f"""
    s_add_u32 s50, s50, 1
    s_cmp_gt_u32 s50, {SPIN}
    v_mov_b32 v10, 0
    """)
    for i in range(5):
        P(f"s_waitcnt vmcnt({4-i})")
        P(f"v_max3_u32 v10, v10, v{AR+4*i}, v{AR+4*i+1}")
        P(f"v_max3_u32 v10, v10, v{AR+4*i+2}, v{AR+4*i+3}")
    P(f"""
    v_cmp_eq_u32 vcc, -1, v10
    s_cbranch_scc1 L_gok
    s_cbranch_vccnz L_gretry
    L_gok:
    s_mov_b64 exec, -1
    """)
    stamp(P, 12)
    for i in range(5):
        P(f"v_mfma_f32_16x16x32_bf16 {v(88,4)}, {v(AR+4*i,4)}, {v(BW+4*i,4)}, {'0' if i==0 else v(88,4)}")
        P(f"v_mfma_f32_16x16x32_bf16 {v(92,4)}, {v(AR+4*i,4)}, {v(BW+20+4*i,4)}, {'0' if i==0 else v(92,4)}")
    P(f"""
    v_lshlrev_b32 v15, 8, v{vQ}
    v_lshl_add_u32 v15, v{vN}, 2, v15
    s_lshl_b32 s49, s46, 10
    v_add_u32 v15, s49, v15
    s_mov_b32 exec_hi, 0
    """)
    for r in range(4):
        P(f"ds_write_b32 v15, v{88+r} offset:{L_RED+64*r}")
        P(f"ds_write_b32 v15, v{92+r} offset:{L_RED+512+64*r}")
    P(f"""
    s_waitcnt lgkmcnt(0)
    s_barrier
    s_mov_b64 exec, -1
    s_branch L_fin
    """)
    D = 16
    P(f"""
    L_f1fin:
    v_lshrrev_b32 v11, 3, v{vL}
    v_lshlrev_b32 v11, 2, v11
    ds_read_b32 v9, v11 offset:{L_SEL}
    v_and_b32 v13, 7, v{vL}
    v_lshlrev_b32 v13, 3, v13
    """)
    for w in range(4):
        P(f"ds_read_b64 {v(D+4*w,2)}, v13 offset:{L_RED+4096+128*w}")
        P(f"ds_read_b64 {v(D+4*w+2,2)}, v13 offset:{L_RED+4096+128*w+64}")
    P(f"""
    s_mov_b32 s49, {STATS}
    s_mov_b32 s50, 0
    s_waitcnt lgkmcnt(0)
    v_and_b32 v9, 2047, v9
    v_lshlrev_b32 v9, 3, v9
    L_sretry:
    buffer_load_dwordx2 {v(40,2)}, v9, s[8:11], s49 offen sc1
    s_add_u32 s50, s50, 1
    s_cmp_gt_u32 s50, {SPIN}
    s_waitcnt vmcnt(0)
    v_max_u32 v10, v40, v41
    v_cmp_eq_u32 vcc, -1, v10
    s_cbranch_scc1 L_sok
    s_cbranch_vccnz L_sretry
    L_sok:
    v_pk_add_f32 {v(D,2)}, {v(D,2)}, {v(D+4,2)}
    v_pk_add_f32 {v(D+2,2)}, {v(D+2,2)}, {v(D+6,2)}
    v_pk_add_f32 {v(D+8,2)}, {v(D+8,2)}, {v(D+12,2)}
    v_pk_add_f32 {v(D+10,2)}, {v(D+10,2)}, {v(D+14,2)}
    v_pk_add_f32 {v(D,2)}, {v(D,2)}, {v(D+8,2)}
    v_pk_add_f32 {v(D+2,2)}, {v(D+2,2)}, {v(D+10,2)}
    v_mul_f32 v44, -v40, v{D}
    v_mul_f32 v45, -v40, v{D+1}
    v_mul_f32 v46, -v40, v{D+2}
    v_mul_f32 v47, -v40, v{D+3}
    v_lshlrev_b32 v13, 3, v{vL}
    s_lshl_b32 s49, s{sG}, 2
    s_add_u32 s49, s49, s{sSUB}
    s_lshl_b32 s49, s49, 8
    s_add_u32 s49, s49, {ACT}
    s_barrier
    """)
    for w in range(4):
        P(f"ds_read_b64 {v(D+4*w,2)}, v13 offset:{L_RED+1024*w}")
        P(f"ds_read_b64 {v(D+4*w+2,2)}, v13 offset:{L_RED+1024*w+512}")
    P(f"""
    s_waitcnt lgkmcnt(4)
    v_pk_add_f32 {v(44,2)}, {v(44,2)}, {v(D,2)}
    v_pk_add_f32 {v(46,2)}, {v(46,2)}, {v(D+2,2)}
    v_pk_add_f32 {v(44,2)}, {v(44,2)}, {v(D+4,2)}
    v_pk_add_f32 {v(46,2)}, {v(46,2)}, {v(D+6,2)}
    s_waitcnt lgkmcnt(0)
    v_pk_add_f32 {v(D+8,2)}, {v(D+8,2)}, {v(D+12,2)}
    v_pk_add_f32 {v(D+10,2)}, {v(D+10,2)}, {v(D+14,2)}
    v_pk_add_f32 {v(44,2)}, {v(44,2)}, {v(D+8,2)}
    v_pk_add_f32 {v(46,2)}, {v(46,2)}, {v(D+10,2)}
    v_mul_f32 v44, v44, v41
    v_mul_f32 v45, v45, v41
    v_mul_f32 v46, v46, v41
    v_mul_f32 v47, v47, v41
    v_mul_f32 v{D}, {f2u(-1.4426950408889634)}, v44
    v_mul_f32 v{D+1}, {f2u(-1.4426950408889634)}, v45
    v_exp_f32 v{D}, v{D}
    v_exp_f32 v{D+1}, v{D+1}
    v_mul_f32 v44, v44, v46
    v_mul_f32 v45, v45, v47
    v_add_f32 v{D}, 1.0, v{D}
    v_add_f32 v{D+1}, 1.0, v{D+1}
    v_rcp_f32 v{D}, v{D}
    v_rcp_f32 v{D+1}, v{D+1}
    v_mul_f32 v44, v44, v{D}
    v_mul_f32 v45, v45, v{D+1}
    v_cvt_pk_bf16_f32 v44, v44, v45
    v_min_u32 v44, -2, v44
    buffer_store_dword v44, v6, s[8:11], s49 offen sc1
    s_branch L_fin
    """)
    P(f"""
    L_f2:
    s_cmp_lg_u32 s{sWV}, 0
    s_cbranch_scc1 L_f2b
    v_lshrrev_b32 v11, 3, v{vL}
    v_lshlrev_b32 v11, 2, v11
    ds_read_b32 v9, v11 offset:{L_SEL}
    v_and_b32 v13, 7, v{vL}
    s_mov_b32 s50, 0
    s_waitcnt lgkmcnt(0)
    v_and_b32 v40, 2047, v9
    v_mul_u32_u24 v40, 1280, v40
    v_lshl_add_u32 v40, v13, 2, v40
    s_sub_u32 s58, s{sG}, 27
    s_lshl_b32 s58, s58, 2
    s_add_u32 s58, s58, s{sSUB}
    s_lshl_b32 s58, s58, 5
    L_oretry:
    buffer_load_dword v41, v40, s[12:15], s58 offen sc1
    s_add_u32 s50, s50, 1
    s_cmp_gt_u32 s50, {SPIN}
    s_waitcnt vmcnt(0)
    v_cmp_eq_u32 vcc, -1, v41
    s_cbranch_scc1 L_ook
    s_cbranch_vccnz L_oretry
    L_ook:
    v_ashrrev_i32 v10, 31, v9
    v_not_b32 v10, v10
    v_or_b32 v10, 0x80000000, v10
    v_xor_b32 v9, v9, v10
    v_and_b32 v9, 0xffff0000, v9
    v_mul_f32 v9, {f2u(-1.4426950408889634)}, v9
    v_exp_f32 v9, v9
    v_lshlrev_b32 v42, 16, v41
    v_add_f32 v9, 1.0, v9
    v_rcp_f32 v44, v9
    v_and_b32 v43, 0xffff0000, v41
    L_f2b:
    v_and_b32 v9, 7, v{vN}
    v_lshlrev_b32 v9, 5, v9
    v_and_b32 v10, 1, v{vQ}
    v_lshl_add_u32 v9, v10, 4, v9
    v_lshrrev_b32 v10, 1, v{vQ}
    v_lshl_add_u32 v9, v10, 8, v9
    s_mul_i32 s49, s{sWV}, {7*512}
    s_add_u32 s49, s49, {ACT}
    s_mov_b32 s50, 0
    """)
    for i in (20, 21, 22, 23, 24, 25, 26, 27): P(f"v_mov_b32 v{AR+i}, 0")
    P(f"""
    s_mov_b32 exec_lo, 0x00ff00ff
    s_mov_b32 exec_hi, 0x00ff00ff
    L_a1:
    buffer_load_dwordx4 {v(AR,4)}, v9, s[8:11], s49 offen sc1
    s_add_u32 s50, s50, 1
    s_cmp_gt_u32 s50, {SPIN}
    s_waitcnt vmcnt(0)
    v_max3_u32 v10, v{AR}, v{AR+1}, v{AR+2}
    v_max_u32 v10, v10, v{AR+3}
    v_cmp_eq_u32 vcc, -1, v10
    s_cbranch_scc1 L_a2
    s_cbranch_vccnz L_a1
    L_a2:
    """)
    for i in range(1, 5):
        P(f"buffer_load_dwordx4 {v(AR+4*i,4)}, v9, s[8:11], s49 offen offset:{512*i} sc1")
    P(f"""
    s_cmp_eq_u32 s{sWV}, 7
    s_cbranch_scc1 L_a3
    buffer_load_dwordx4 {v(AR+20,4)}, v9, s[8:11], s49 offen offset:{512*5} sc1
    buffer_load_dwordx4 {v(AR+24,4)}, v9, s[8:11], s49 offen offset:{512*6} sc1
    L_a3:
    s_add_u32 s50, s50, 1
    s_cmp_gt_u32 s50, {SPIN}
    v_mov_b32 v10, 0
    s_waitcnt vmcnt(0)
    """)
    for i in range(1, 7):
        P(f"v_max3_u32 v10, v10, v{AR+4*i}, v{AR+4*i+1}")
        P(f"v_max3_u32 v10, v10, v{AR+4*i+2}, v{AR+4*i+3}")
    P(f"""
    v_cmp_eq_u32 vcc, -1, v10
    s_cbranch_scc1 L_a4
    s_cbranch_vccnz L_a2
    L_a4:
    s_mov_b64 exec, -1
    """)
    stamp(P, 13)
    for i in range(7):
        acc = 88 if i % 2 == 0 else 92
        P(f"v_mfma_f32_16x16x32_bf16 {v(acc,4)}, {v(AR+4*i,4)}, {v(BW+4*i,4)}, {'0' if i<2 else v(acc,4)}")
    P(f"""
    v_lshlrev_b32 v15, 8, v{vQ}
    v_lshl_add_u32 v15, v{vN}, 2, v15
    v_lshl_add_u32 v15, v{vW}, 9, v15
    v_pk_add_f32 {v(88,2)}, {v(88,2)}, {v(92,2)}
    v_pk_add_f32 {v(90,2)}, {v(90,2)}, {v(94,2)}
    s_mov_b32 exec_hi, 0
    """)
    for r in range(4): P(f"ds_write_b32 v15, v{88+r} offset:{L_RED+64*r}")
    P(f"""
    s_mov_b64 exec, -1
    v_lshlrev_b32 v13, 3, v{vL}
    s_waitcnt lgkmcnt(0)
    s_barrier
    s_cmp_lg_u32 s{sWV}, 0
    s_cbranch_scc1 L_fin
    """)
    for w in range(8): P(f"ds_read_b64 {v(D+2*w,2)}, v13 offset:{L_RED+512*w}")
    P(f"""
    s_waitcnt lgkmcnt(4)
    v_pk_add_f32 {v(D,2)}, {v(D,2)}, {v(D+2,2)}
    v_pk_add_f32 {v(D+4,2)}, {v(D+4,2)}, {v(D+6,2)}
    s_waitcnt lgkmcnt(0)
    v_pk_add_f32 {v(D+8,2)}, {v(D+8,2)}, {v(D+10,2)}
    v_pk_add_f32 {v(D+12,2)}, {v(D+12,2)}, {v(D+14,2)}
    v_pk_add_f32 {v(D,2)}, {v(D,2)}, {v(D+4,2)}
    v_pk_add_f32 {v(D+8,2)}, {v(D+8,2)}, {v(D+12,2)}
    v_pk_add_f32 {v(D,2)}, {v(D,2)}, {v(D+8,2)}
    v_fma_f32 v42, v{D}, v44, v42
    v_fma_f32 v43, v{D+1}, v44, v43
    v_cvt_pk_bf16_f32 v42, v42, v43
    buffer_store_dword v42, v40, s[12:15], s58 offen sc1
    L_fin:
    """)
    if OPT["stamps"]:
        P(f"""
        s_memrealtime s[{70+2*NST}:{71+2*NST}]
        s_waitcnt vmcnt(0)
        s_memrealtime s[{72+2*NST}:{73+2*NST}]
        s_and_b32 s49, s{sWV}, 3
        s_cmp_lg_u32 s49, 0
        s_cbranch_scc1 L_end
        s_waitcnt lgkmcnt(0)
        s_lshl_b32 s49, s2, 6
        s_lshl_b32 s50, s{sWV}, 12
        s_add_u32 s49, s49, s50
        s_add_u32 s49, s49, {ST_OFF}
        s_mov_b64 exec, 1
        v_mov_b32 v1, 0
        """)
        for i in range(NST+2):
            P(f"v_mov_b32 v2, s{70+2*i}")
            P(f"buffer_store_dword v2, v1, s[8:11], s49 offen offset:{4*i}")
    P("L_end:")
    P("s_endpgm")
    return name

def main(out):
    P = Prog()
    name = gen(P)
    body = P.finalize()
    hdr = f"""; fused 2D-DFT (two-stage MFMA) + LayerNorms + top-8 routed SwiGLU; generated by a script (work/gen2.py)
; @launch grid=(256,1,1) block=(512,1,1) lds={L_END}
.amdgcn_target "amdgcn-amd-amdhsa--gfx950"
.text
"""
    d = f""".section .rodata,"a"
.p2align 6
.amdhsa_kernel {name}
  .amdhsa_next_free_vgpr 256
  .amdhsa_next_free_sgpr 102
  .amdhsa_accum_offset 156
  .amdhsa_group_segment_fixed_size 0
  .amdhsa_kernarg_size 104
  .amdhsa_user_sgpr_count 2
  .amdhsa_user_sgpr_kernarg_segment_ptr 1
  .amdhsa_system_sgpr_workgroup_id_x 1
.end_amdhsa_kernel
"""
    open(out, "w").write(hdr + body + d)

if __name__ == "__main__":
    for a_ in sys.argv[2:]:
        k, _, val = a_.partition("=")
        OPT[k] = int(val) if val else True
    main(sys.argv[1])
```

```python
import re

def v(i, n=1): return f"v{i}" if n == 1 else f"v[{i}:{i+n-1}]"
def a(i, n=1): return f"a{i}" if n == 1 else f"a[{i}:{i+n-1}]"
def s(i, n=1): return f"s{i}" if n == 1 else f"s[{i}:{i+n-1}]"

_REG = re.compile(r"^(-|\|)?(abs\()?(-)?([vas])(\d+|\[(\d+):(\d+)\])\)?\|?$")

def regs_of(tok):
    tok = tok.strip()
    if tok in ("vcc", "vcc_lo", "vcc_hi"): return {"vcc"}
    if tok in ("exec", "exec_lo", "exec_hi"): return {"exec"}
    if tok == "m0": return {"m0"}
    m = _REG.match(tok)
    if not m: return set()
    k = m.group(4)
    if m.group(6) is not None:
        return {f"{k}{i}" for i in range(int(m.group(6)), int(m.group(7)) + 1)}
    return {f"{k}{m.group(5)}"}

TRANS = ("v_exp_f32", "v_log_f32", "v_rcp_f32", "v_rsq_f32", "v_sqrt_f32", "v_sin_f32", "v_cos_f32", "v_rcp_iflag_f32",
         "v_exp_f16", "v_log_f16", "v_rcp_f16", "v_rsq_f16", "v_sqrt_f16", "v_sin_f16", "v_cos_f16")

class Ins:
    def __init__(self, text):
        self.text = text
        t = text.split(";")[0].strip()
        self.label = None
        self.op = ""
        self.w = set(); self.r = set()
        self.kind = "none"
        if not t or t.startswith("."):
            if t.endswith(":"): self.label = t[:-1]
            return
        if t.endswith(":"):
            self.label = t[:-1]; return
        parts = t.split(None, 1)
        op = parts[0]; self.op = op
        rest = parts[1] if len(parts) > 1 else ""
        ops = []; cur = ""; depth = 0
        for ch in rest:
            if ch in "[(": depth += 1
            if ch in "])": depth -= 1
            if ch == "," and depth == 0:
                ops.append(cur.strip()); cur = ""
            else: cur += ch
        if cur.strip(): ops.append(cur.strip())
        mods = ""
        if ops:
            lastp = ops[-1].split(None, 1)
            ops[-1] = lastp[0]
            mods = lastp[1] if len(lastp) > 1 else ""
        self.ops = ops; self.mods = mods
        R = [regs_of(o) for o in ops]
        base = re.sub(r"_(e32|e64|dpp|sdwa)$", "", op)
        self.base = base
        self.dpp = op.endswith("_dpp") or any(k in mods for k in ("quad_perm", "row_shr", "row_shl", "row_ror", "row_bcast", "row_mirror", "row_half_mirror", "row_newbcast", "wave_"))
        self.sdwa = op.endswith("_sdwa") or "op_sel" in mods
        allr = lambda lst: set().union(*lst) if lst else set()
        if op.startswith("v_mfma") or op.startswith("v_smfmac"):
            self.kind = "mfma"
            self.w = R[0]; self.A = R[1]; self.B = R[2]; self.C = R[3]
            self.r = R[1] | R[2] | R[3]
            if op.startswith("v_smfmac"):
                self.C = R[0]; self.B = R[2] | R[3]; self.r |= R[0]
            if "32x32x16" in op or "32x32x8" in op: self.passes = 8
            elif "16x16x32" in op or "16x16x16" in op or "16x16x64" in op: self.passes = 4
            elif "4x4x4" in op: self.passes = 2
            else: raise ValueError("unknown mfma " + op)
        elif op.startswith("v_"):
            self.kind = "valu"
            if base.startswith("v_cmpx"):
                self.w = R[0] | {"exec"}; self.r = allr(R[1:])
            elif base.startswith("v_cmp"):
                self.w = R[0]; self.r = allr(R[1:])
            elif base in ("v_swap_b32", "v_permlane16_swap_b32", "v_permlane32_swap_b32"):
                self.w = R[0] | R[1]; self.r = R[0] | R[1]
            elif base in ("v_add_co_u32", "v_sub_co_u32", "v_subrev_co_u32", "v_addc_co_u32", "v_subb_co_u32", "v_subbrev_co_u32", "v_mad_u64_u32", "v_div_scale_f32"):
                self.w = R[0] | R[1]; self.r = allr(R[2:])
            elif base in ("v_fmac_f32", "v_dot2c_f32_bf16", "v_dot2c_f32_f16", "v_pk_fmac_f16", "v_fmac_f16", "v_writelane_b32"):
                self.w = R[0]; self.r = allr(R)
            elif base == "v_nop":
                pass
            else:
                self.w = R[0]; self.r = allr(R[1:])
                if self.dpp: self.r |= R[0]
                if base == "v_cndmask_b32" and len(ops) == 3: self.r |= {"vcc"}
            self.trans = base in TRANS
            self.dot = base.startswith("v_dot")
        elif op.startswith("ds_"):
            self.kind = "ds"
            if op.startswith("ds_read") or op.startswith("ds_bpermute") or op.startswith("ds_permute") or op.startswith("ds_swizzle") or "_rtn" in op:
                self.w = R[0]; self.r = allr(R[1:])
                if "d16" in op: self.r |= R[0]
            else:
                self.r = allr(R)
        elif op.startswith("buffer_") or op.startswith("global_") or op.startswith("flat_"):
            self.kind = "vmem"
            islds = (" lds" in " " + mods) or "load_lds" in op
            self.lds = islds
            if op in ("buffer_wbl2", "buffer_inv"):
                pass
            elif "load" in op and not islds:
                self.w = R[0]; self.r = allr(R[1:])
            elif "atomic" in op and "sc0" in mods:
                self.w = R[0]; self.r = allr(R)
            else:
                self.r = allr(R)
            if islds: self.r |= {"m0"}
            self.widestore = ("store" in op and ("x3" in op or "x4" in op))
            if self.widestore:
                self.sdata = R[0] if op.startswith("buffer_") else R[1]
        elif op.startswith("s_"):
            self.kind = "salu"
            if op.startswith("s_cmp") or op.startswith("s_cbranch") or op in ("s_branch", "s_nop", "s_waitcnt", "s_barrier", "s_endpgm", "s_setprio", "s_sleep", "s_bitcmp0_b32", "s_bitcmp1_b32"):
                self.r = allr(R)
            elif "saveexec" in op:
                self.w = R[0] | {"exec"}; self.r = allr(R[1:]) | {"exec"}
            else:
                self.w = R[0] if R else set(); self.r = allr(R[1:])
        else:
            raise ValueError("unknown instr " + text)

    def states(self):
        if self.kind == "none": return 0
        if self.op == "s_nop": return int(self.ops[0], 0) + 1
        return 1

def isv(x): return x[0] in "va" and x not in ("vcc",)
def iss(x): return (x[0] == "s") or x == "vcc"

def need(p, c):
    n = 0
    if p.kind == "valu":
        wv = {x for x in p.w if isv(x)}; ws = {x for x in p.w if iss(x)}
        if c.kind == "mfma":
            if wv & c.r: n = max(n, 3 if p.dot else 2)
            if "exec" in p.w: n = max(n, 4)
        if c.kind == "valu":
            if c.dpp and (wv & c.r): n = max(n, 2)
            if c.dpp and "exec" in p.w: n = max(n, 5)
            if c.base in ("v_readlane_b32", "v_readfirstlane_b32") and (wv & c.r): n = max(n, 1)
            if c.base in ("v_readlane_b32", "v_writelane_b32") and (ws & c.r): n = max(n, 4)
            if c.base in ("v_readlane_b32", "v_writelane_b32", "v_readfirstlane_b32") and "exec" in p.w: n = max(n, 4)
            if c.base.startswith("v_permlane") and (wv & c.r): n = max(n, 2)
            if c.base.startswith("v_permlane") and "exec" in p.w: n = max(n, 4)
            if ws & c.r: n = max(n, 2)
            if "exec" in p.w and "exec" in c.r: n = max(n, 2)
            if p.trans and not c.trans and (wv & c.r): n = max(n, 1)
            if p.sdwa and (wv & (c.r | c.w)): n = max(n, 1)
            if p.dot and (wv & (c.r | c.w)):
                if c.base == p.base:
                    srcab = set().union(*[regs_of(o) for o in c.ops[1:3]])
                    if wv & srcab: n = max(n, 3)
                else: n = max(n, 3)
            if c.base == "v_div_fmas_f32" and "vcc" in p.w: n = max(n, 4)
        if c.kind in ("vmem", "ds"):
            if ws & c.r and c.kind == "vmem": n = max(n, 5)
            if p.dot and (wv & c.r): n = max(n, 3)
            if p.trans and (wv & c.r): n = max(n, 1)
        if c.kind == "salu":
            if ws & c.r: n = max(n, 1)
            if c.op in ("s_cbranch_vccz", "s_cbranch_vccnz") and "vcc" in p.w: n = max(n, 1)
    if p.kind == "mfma":
        P = p.passes
        tab_c_over = {2: 4, 4: 6, 8: 10, 16: 18}[P]
        tab_ab = {2: 5, 4: 8, 8: 12, 16: 20}[P]
        if c.kind == "mfma":
            if p.w & (c.A | c.B): n = max(n, tab_ab)
            if p.w & c.C:
                if p.w == c.C and P == c.passes: n = max(n, 2 if P == 2 else 0)
                else: n = max(n, tab_c_over)
            elif p.w & c.w:
                n = max(n, tab_c_over)
        elif c.kind in ("valu", "vmem", "ds"):
            if p.w & (c.r | c.w): n = max(n, tab_ab)
            if c.kind == "valu" and (p.C & c.w): n = max(n, {2: 1, 4: 3, 8: 7, 16: 15}[P])
    if p.kind == "salu":
        if "m0" in p.w and "m0" in c.r and c.kind in ("vmem", "ds"): n = max(n, 1)
    if p.kind == "vmem" and getattr(p, "widestore", False):
        if p.sdata & c.w: n = max(n, 2 if c.kind == "valu" else 1)
    return n

class Prog:
    def __init__(self):
        self.lines = []
    def __call__(self, text):
        for ln in text.split("\n"):
            if ln.strip(): self.lines.append(ln.strip())
    def raw(self, text): self.lines.append(text)

    def finalize(self):
        ins = [Ins(t) for t in self.lines]
        W = 24
        def isbr(y): return y.kind == "salu" and (y.op.startswith("s_cbranch") or y.op == "s_branch")
        def windows(idx):
            res = []
            def go(j, acc, dist, depth):
                while j >= 0 and dist < W:
                    x = ins[j]
                    if x.label:
                        if depth < 4:
                            for k, y in enumerate(ins):
                                if isbr(y) and y.ops and y.ops[0] == x.label:
                                    go(k, list(acc), dist, depth + 1)
                        jj = j - 1
                        while jj >= 0 and ins[jj].kind == "none" and not ins[jj].label: jj -= 1
                        if jj >= 0 and ins[jj].op in ("s_branch", "s_endpgm"):
                            res.append(acc); return
                    if x.kind != "none":
                        acc.append((x, dist))
                        dist += x.states()
                    j -= 1
                res.append(acc)
            go(idx - 1, [], 0, 0)
            return res
        for it in range(20):
            changed = False
            i = 0
            while i < len(ins):
                c = ins[i]
                if c.kind == "none" or c.op == "s_nop":
                    i += 1; continue
                short = 0
                for path in windows(i):
                    for p, dist in path:
                        short = max(short, need(p, c) - dist)
                if short > 0:
                    nops = []
                    while short > 0:
                        k = min(short, 16); nops.append(Ins(f"s_nop {k-1}")); short -= k
                    ins[i:i] = nops
                    i += len(nops)
                    changed = True
                i += 1
            if not changed: break
        else:
            raise RuntimeError("no fixpoint")
        txt = []
        for x in ins:
            if x.label or x.text.startswith(".") or x.text.startswith(";"): txt.append(x.text)
            else: txt.append("    " + x.text)
        return "\n".join(txt) + "\n"
```

```python
import sys, struct
sys.path.insert(0, "work")
from asmlib import *

NAME = "sequential_preLN__spectral_fnet__moe_arch_mod__prompt"
XB = 2621440
FLAGS = 0x2c0000
KEYS = 0x8000
KST = 384
ACT = 0x18000
ZM = 0x20000
ZT = ZM + 0x200000
STATS = 0x2a0000
ST_OFF = 0x300000
WS_SZ = 0x400000
OOB = 0x1000000
SPIN = 1 << 16

L_MISC = 0
L_CNT = 0; L_TAG = 4; L_ZP = 16; L_SEL = 32; L_KREC = 64; L_GM = 128; L_LIST = 192
L_PS = 512
L_CS = 1024
L_RED = 2048
L_HT = 2048; HS = 144
L_CF = 13568
L_W = 17664
L_X = 43264
L_XR = 125184
L_WR = 145664
L_F = 146944
L_END = 146944 + 8192
L_WT = 17664
RS = 800

sGRP, sJ, sWV, sSL, sXCD, sTB, sSTR, sROW, sROWB, sIDX, sRHO, sC640, sHW = 32, 33, 34, 36, 37, 38, 39, 40, 41, 35, 44, 45, 46
vN, vQ, vW, vL, vL4, vL16 = 1, 2, 3, 4, 6, 8
sTAG = 3; sZP = 100

OPT = dict(stamps=False, xnt=1, wnt=1, cpre=1, npre=5, tail=0, pf1=1)

def f2u(x): return "0x%08x" % struct.unpack("<I", struct.pack("<f", x))[0]
NST = 14
def stamp(P, i):
    if OPT["stamps"]: P(f"s_memrealtime s[{70+2*i}:{71+2*i}]")

def bf16_round(r):
    return [f"v_cvt_pk_bf16_f32 {v(r)}, {v(r)}, {v(r)}", f"v_lshlrev_b32 {v(r)}, 16, {v(r)}"]

def spin_tail(P, cnt, again, ok):
    P(f"""
    s_add_u32 s{cnt}, s{cnt}, 1
    s_cmp_gt_u32 s{cnt}, {SPIN}
    s_cbranch_scc1 {ok}
    s_cbranch_vccnz {again}
    {ok}:
    """)

def cheb2(P, T, k):
    for i in range(2, 8):
        P(f"v_fma_f32 v{T+i}, v{k}, v{T+i-1}, -v{T+i-2}")
        P(f"v_fma_f32 v{T+8+i}, v{k}, v{T+8+i-1}, -v{T+8+i-2}")

def gen(P):
    name = NAME + "_kernel"
    xnt = " nt" if OPT["xnt"] else ""
    wnt = " nt" if OPT["wnt"] else ""
    P.raw(".p2align 12"); P.raw(".fill 0x340, 4, 0xbf810000")
    P.raw(f".globl {name}"); P.raw(".p2align 8"); P.raw(f".type {name},@function"); P.raw(f"{name}:")
    P("L_start:")
    stamp(P, 0)
    if OPT.get("padto"): P("s_memrealtime s[70:71]")
    def ptrs():
        P(f"""
        s_load_dwordx2 s[12:13], s[0:1], 80
        s_load_dwordx2 s[16:17], s[0:1], 48
        s_load_dwordx2 s[20:21], s[0:1], 56
        s_load_dwordx2 s[24:25], s[0:1], 64
        s_load_dwordx2 s[28:29], s[0:1], 72
        """)
    ZP = [66, 67, 42, 68]
    MK = 24
    def tagcalc():
        P(f"""
        s_mul_i32 s{sTAG}, s{sTAG}, 0x9e3779b1
        s_add_u32 s{sTAG}, s{sTAG}, 0x7f4a7c15
        v_mov_b32 v14, s{sTAG}
        """)
        for i in range(3):
            P(f"s_bfe_u32 s43, s{sTAG}, {hex((2<<16) | (2*i))}")
            P(f"s_mul_i32 s43, s43, 0x8001")
            P(f"s_and_b32 s{ZP[i]}, s43, 0x10001")
        P(f"s_xor_b32 s68, s66, 0x10001")
    def consts():
        P(f"""
        s_mov_b64 s[12:13], s[26:27]
        s_mov_b64 s[16:17], s[18:19]
        s_mov_b64 s[28:29], s[24:25]
        s_mov_b64 s[24:25], s[22:23]
        s_mov_b32 s14, {XB}
        s_mov_b32 s15, 0x20000
        s_mov_b32 s18, 1280
        s_mov_b32 s19, 0x20000
        s_mov_b32 s22, {640*3456}
        s_mov_b32 s23, 0x20000
        s_mov_b32 s26, {640*3456}
        s_mov_b32 s27, 0x20000
        s_mov_b32 s30, {1728*1280}
        s_mov_b32 s31, 0x20000
        v_lshlrev_b32 v{vL4}, 2, v{vL}
        v_mov_b32 v13, 0
        s_and_b32 s43, s{sJ}, 3
        s_lshr_b32 s{sIDX}, s2, 6
        s_lshl3_add_u32 s{sIDX}, s{sIDX}, s{sXCD}
        s_lshl2_add_u32 s{sIDX}, s{sIDX}, s43
        s_cmp_eq_u32 s{sGRP}, 0
        s_cselect_b32 s{sSTR}, 32, 64
        s_lshl_b32 s{sTB}, s{sSTR}, 3
        s_mul_i32 s{sTB}, s{sTB}, s43
        s_add_u32 s{sTB}, s{sTB}, s{sGRP}
        """)
    def rows4(dst=92):
        for pr in range(2):
            sa, sb = 56 + 2*pr, 57 + 2*pr
            P(f"""
            s_add_u32 s{sa}, s{sHW}, {4*pr}
            s_mul_i32 s{sa}, s{sa}, s{sSTR}
            s_add_u32 s{sa}, s{sa}, s{sTB}
            s_sub_u32 s{sb}, 2048, s{sa}
            s_cmp_eq_u32 s{sa}, 0
            s_cselect_b32 s{sb}, 1024, s{sb}
            s_mul_i32 s{sa}, s{sa}, 1280
            s_mul_i32 s{sb}, s{sb}, 1280
            """)
        P(f"""
        v_mov_b32 v10, s56
        v_mov_b32 v9, s57
        v_mov_b32 v11, s58
        v_mov_b32 v12, s59
        v_mov_b32_dpp v10, v9 quad_perm:[0,1,2,3] row_mask:0x2 bank_mask:0xf
        s_movk_i32 s62, 1024
        v_mov_b32_dpp v10, v11 quad_perm:[0,1,2,3] row_mask:0x4 bank_mask:0xf
        v_mov_b32_dpp v10, v12 quad_perm:[0,1,2,3] row_mask:0x8 bank_mask:0xf
        v_lshl_add_u32 v{dst}, v{vN}, 4, v10
        """)
    def statconsts(ON, IX):
        P(f"""
        v_mov_b32 v{ON}, 0x3f803f80
        v_mov_b32 v{ON+1}, 0x3f803f80
        v_mov_b32 v{ON+2}, 0x3f803f80
        v_mov_b32 v{ON+3}, 0x3f803f80
        v_and_b32 v9, 1, v{vN}
        v_mul_u32_u24 v{IX}, 0xaaaa, v9
        v_or_b32 v{IX}, 0x4444, v{IX}
        v_lshl_or_b32 v{IX}, v{IX}, 16, v{IX}
        v_and_b32 v9, 3, v{vN}
        v_cmp_eq_u32 s[60:61], 1, v9
        v_cmp_eq_u32 s[50:51], 2, v9
        v_cmp_eq_u32 s[66:67], 3, v9
        v_lshrrev_b32 v9, 2, v{vN}
        v_cmp_eq_u32 s[68:69], v9, v{vQ}
        """)
    def statwrite(G, S, A):
        P(f"""
        v_cndmask_b32 v{G}, v{G}, v{G+1}, s[60:61]
        v_cndmask_b32 v{G}, v{G}, v{G+2}, s[50:51]
        v_cndmask_b32 v{G}, v{G}, v{G+3}, s[66:67]
        v_add_f32 v{G+1}, v{S}, v{S+1}
        s_mov_b64 exec, s[68:69]
        ds_write_b64 v{A}, {v(G,2)} offset:{L_PS}
        s_mov_b64 exec, -1
        """)
    P(f"""
    s_load_dwordx2 s[4:5], s[0:1], 0
    s_load_dwordx2 s[8:9], s[0:1], 96
    s_load_dwordx16 s[16:31], s[0:1], 40
    s_mov_b32 s10, {WS_SZ}
    s_mov_b32 s11, 0x20000
    v_lshrrev_b32 v{vW}, 6, v0
    s_cmp_ge_u32 s2, 256
    s_cbranch_scc1 L_end
    v_readfirstlane_b32 s{sWV}, v{vW}
    s_bfe_u32 s{sJ}, s2, 0x30003
    v_and_b32 v{vL}, 63, v0
    v_and_b32 v{vN}, 15, v0
    v_bfe_u32 v{vQ}, v0, 4, 2
    s_and_b32 s{sXCD}, s2, 7
    s_lshr_b32 s43, s2, 7
    s_lshl1_add_u32 s{sGRP}, s{sXCD}, s43
    s_sub_u32 s43, 32, s{sGRP}
    s_cmp_eq_u32 s{sGRP}, 0
    s_cselect_b32 s43, 16, s43
    s_bitcmp1_b32 s2, 6
    s_cselect_b32 s{sGRP}, s43, s{sGRP}
    s_mul_i32 s{sRHO}, s{sJ}, 5
    s_lshr_b32 s{sRHO}, s{sRHO}, 2
    s_and_b32 s{sHW}, s{sWV}, 3
    s_mov_b32 s{sC640}, {f2u(1.0/640)}
    v_lshlrev_b32 v{vL16}, 4, v{vL}
    s_cmp_ge_u32 s{sWV}, 4
    s_cbranch_scc1 L_W
    """)
    if OPT["cpre"]:
        P(f"""
        s_cmp_ge_u32 s{sWV}, 2
        s_cbranch_scc1 L_Mx
        s_getpc_b64 s[42:43]
        L_pc:
        v_lshlrev_b32 v10, 7, v0
        v_add_u32 v10, 896, v10
        v_min_u32 v10, L_end-L_pc, v10
        v_mov_b32 v11, s43
        v_add_co_u32 v10, vcc, s42, v10
        v_addc_co_u32 v11, vcc, 0, v11, vcc
        global_load_dword v15, v[10:11], off
        """)
    P(f"""
    L_Mx:
    v_lshrrev_b32 v9, 3, v{vL}
    s_lshl_b32 s47, s{sHW}, 4
    v_add_u32 v5, s47, v9
    v_mul_u32_u24 v5, 40960, v5
    v_xor_b32 v9, v9, v{vL}
    v_and_b32 v9, 7, v9
    v_lshl_add_u32 v5, v9, 4, v5
    v_add_u32 v7, {8*40960}, v5
    s_mul_i32 s50, s{sGRP}, 1280
    s_add_u32 s47, s50, 1280
    s_lshr_b32 s52, s{sWV}, 2
    s_mul_i32 s52, s52, 5
    s_add_u32 s48, s{sRHO}, s52
    s_cmp_ge_u32 s48, 10
    s_cselect_b32 s49, 10, 0
    s_sub_u32 s48, s48, s49
    s_lshl_b32 s48, s48, 7
    s_add_u32 s48, s48, s50
    s_mul_i32 s49, s{sHW}, 20480
    s_add_u32 s49, s49, {L_X}
    s_lshl_b32 s52, s52, 11
    s_add_u32 m0, s49, s52
    s_mov_b32 s6, {XB}
    s_mov_b32 s7, 0x20000
    s_mov_b32 s52, 5
    s_waitcnt lgkmcnt(0)
    """)
    stamp(P, 1)
    P(f"""
    s_cmp_ge_u32 s{sWV}, 4
    s_cbranch_scc1 L_H1
    L_xl:
    buffer_load_dwordx4 v5, s[4:7], s48 offen{xnt} lds
    s_add_u32 m0, m0, 1024
    s_add_u32 s51, s48, 128
    buffer_load_dwordx4 v7, s[4:7], s48 offen{xnt} lds
    s_add_u32 m0, m0, 1024
    s_cmp_eq_u32 s51, s47
    s_cselect_b32 s48, s50, s51
    s_sub_u32 s52, s52, 1
    s_cmp_lg_u32 s52, 0
    s_cbranch_scc1 L_xl
    s_cmp_ge_u32 s{sWV}, 4
    s_cbranch_scc1 L_H2
    s_cmp_lg_u32 s{sWV}, 3
    s_cbranch_scc1 L_M
    """)
    T = 32; K8 = 76; a_, b_, c_, d_ = 78, 79, 80, 81
    P(f"""
    L_W:
    s_cmp_eq_u32 s{sJ}, 0
    s_cselect_b32 s53, 8, s{sJ}
    s_lshl_b32 s54, s{sRHO}, 6
    v_and_b32 v26, 7, v{vN}
    v_lshl_add_u32 v26, v26, 3, s53
    v_lshrrev_b32 v{c_}, 3, v{vN}
    v_lshl_add_u32 v27, v{vQ}, 1, s54
    v_cvt_f32_u32 v{c_}, v{c_}
    s_cmp_ge_u32 s{sWV}, 4
    s_cselect_b32 s52, s{sHW}, 4
    v_mul_f32 v{c_}, {f2u(-0.25)}, v{c_}
    v_lshl_add_u32 v{a_}, s52, 6, v26
    v_mul_u32_u24 v{b_}, v{a_}, v27
    v_cvt_f32_u32 v{a_}, v{a_}
    v_cvt_f32_u32 v{b_}, v{b_}
    v_mul_f32 v{a_}, s{sC640}, v{a_}
    v_fma_f32 v{b_}, v{b_}, s{sC640}, v{c_}
    v_mul_f32 v{K8}, {f2u(8.0)}, v{a_}
    v_fract_f32 v{T}, v{b_}
    s_mul_i32 s55, s52, 5120
    v_add_f32 v{T+2}, v{T}, v{a_}
    v_add_f32 v{T+4}, v{T}, v{K8}
    v_add_f32 v{T+6}, v{T+2}, v{K8}
    v_cos_f32 v{K8}, v{K8}
    """)
    for i in range(4):
        P(f"v_sin_f32 v{T+2*i+1}, -v{T+2*i}")
        P(f"v_cos_f32 v{T+2*i}, v{T+2*i}")
    P(f"""
    v_add_f32 v{K8}, v{K8}, v{K8}
    v_add_u32 v{d_}, s55, v{vL16}
    v_mov_b32 v{K8+1}, v{K8}
    """)
    for kp in range(5):
        if kp:
            for c in (2*kp, 2*kp+1):
                for i in range(2):
                    P(f"v_pk_fma_f32 {v(T+4*c+2*i,2)}, {v(K8,2)}, {v(T+4*c-4+2*i,2)}, {v(T+4*c-8+2*i,2)} neg_lo:[0,0,1] neg_hi:[0,0,1]")
        pk = 84 + 4*(kp & 1)
        for i in range(4): P(f"v_cvt_pk_f16_f32 v{pk+i}, v{T+8*kp+2*i}, v{T+8*kp+2*i+1}")
        P(f"ds_write_b128 v{d_}, {v(pk,4)} offset:{L_W + 1024*kp}")
    P(f"""
    s_cmp_lt_u32 s{sWV}, 4
    s_cbranch_scc1 L_M
    """)
    XF = 16; G = 32; S = 36; ON = 40; IX = 44; PZ = 60
    P(f"""
    s_branch L_Mx
    L_H1:
    s_load_dword s{sTAG}, s[8:9], 0
    """)
    T = 64; F = 80; PZ = 152
    P(f"""
    v_lshrrev_b32 v9, 1, v{vN}
    v_lshl_add_u32 v9, s{sHW}, 3, v9
    v_and_b32 v11, 1, v{vN}
    v_lshl_add_u32 v10, v9, 1, v11
    v_cmp_eq_u32 vcc, 1, v10
    v_cndmask_b32 v9, v9, 32, vcc
    v_cndmask_b32 v11, v11, 0, vcc
    v_cvt_f32_u32 v9, v9
    v_cvt_f32_u32 v11, v11
    v_mul_f32 v9, {f2u(1.0/64)}, v9
    v_mul_f32 v11, {f2u(-0.25)}, v11
    v_lshlrev_b32 v10, 3, v{vQ}
    v_cvt_f32_u32 v10, v10
    v_cos_f32 v12, v9
    v_fma_f32 v{T}, v9, v10, v11
    v_add_f32 v10, {f2u(32.0)}, v10
    v_fma_f32 v{T+8}, v9, v10, v11
    v_add_f32 v{T+1}, v{T}, v9
    v_add_f32 v{T+9}, v{T+8}, v9
    v_cos_f32 v{T}, v{T}
    v_cos_f32 v{T+1}, v{T+1}
    v_cos_f32 v{T+8}, v{T+8}
    v_cos_f32 v{T+9}, v{T+9}
    v_add_f32 v12, v12, v12
    """)
    cheb2(P, T, 12)
    for i in range(8): P(f"v_cvt_pk_f16_f32 v{F+i}, v{T+2*i}, v{T+2*i+1}")
    P(f"""
    s_lshl_b32 s43, s{sHW}, 11
    s_add_u32 s43, s43, {L_F}
    v_add_u32 v9, s43, v{vL16}
    ds_write_b128 v9, {v(F,4)}
    ds_write_b128 v9, {v(F+4,4)} offset:1024
    """)
    consts()
    P(f"""
    v_mov_b32 v{PZ}, -1
    v_mov_b32 v{PZ+1}, -1
    v_mov_b32 v{PZ+2}, -1
    v_mov_b32 v{PZ+3}, -1
    v_mul_u32_u24 v150, 3456, v{vL}
    v_mul_u32_u24 v151, 1280, v{vL}
    """)
    rows4(107)
    P(f"""
    s_mul_i32 s53, s{sHW}, 5120
    s_mul_i32 s54, s{sHW}, 320
    s_and_b32 s63, s{sJ}, 3
    s_lshl2_add_u32 s63, s63, s{sHW}
    s_mul_i32 s64, s63, {40*3456}
    s_lshr_b32 s43, s{sIDX}, 2
    s_lshl_b32 s43, s43, 7
    s_add_u32 s64, s64, s43
    s_and_b32 s63, s63, 7
    s_mul_i32 s65, s63, {216*1280}
    s_sub_u32 s43, s{sIDX}, 108
    s_lshr_b32 s43, s43, 1
    s_lshl_b32 s43, s43, 7
    s_add_u32 s65, s65, s43
    s_lshl2_add_u32 s63, s{sIDX}, s{sHW}
    s_lshl_b32 s63, s63, 6
    s_add_u32 s63, s63, {ACT}
    """)
    N2 = OPT.get("pf2a", 1)
    def chores():
        P(f"""
        s_cmp_ge_u32 s{sJ}, 4
        s_cbranch_scc1 L_ch1
        """)
        P(f"s_add_u32 m0, s53, {L_XR}")
        for i in range(4):
            P(f"buffer_load_dwordx4 v{vL16}, s[4:7], s{56+i} offen lds")
            P("s_add_u32 m0, m0, 1024")
        P(f"""
        buffer_load_dwordx4 v107, s[4:7], s62 offen lds
        s_add_u32 m0, s54, {L_WR}
        s_mov_b64 exec, 0xfffff
        buffer_load_dwordx4 v{vL16}, s[16:19], s54 offen lds
        s_mov_b64 exec, -1
        """)
        for i in range(4): P(f"buffer_store_dwordx4 {v(PZ,4)}, v{vL16}, s[12:15], s{56+i} offen sc1")
        P(f"""
        buffer_store_dwordx4 {v(PZ,4)}, v107, s[12:15], s62 offen sc1
        s_waitcnt vmcnt(11)
        s_branch L_ch3
        L_ch1:
        s_cmp_ge_u32 s{sIDX}, 108
        s_cbranch_scc1 L_ch2
        s_mov_b64 exec, 15
        buffer_store_dwordx4 {v(PZ,4)}, v{vL16}, s[8:11], s63 offen sc1
        s_mov_b32 exec_lo, -1
        s_mov_b32 exec_hi, 0xff
        buffer_load_dword v15, v150, s[20:23], s64 offen{wnt}
        buffer_load_dword v15, v150, s[24:27], s64 offen{wnt}
        s_waitcnt vmcnt(3)
        s_branch L_ch3
        L_ch2:
        s_mov_b32 exec_hi, 0x3fffff
        """)
        for i in range(N2):
            P(f"buffer_load_dword v15, v151, s[28:31], s65 offen{wnt}")
            P(f"s_add_u32 s65, s65, {54*1280}")
        P(f"""
        s_waitcnt vmcnt({N2})
        L_ch3:
        s_mov_b64 exec, -1
        """)
    P(f"""
    v_xor_b32 v11, v{vQ}, v{vN}
    v_and_b32 v11, 7, v11
    v_lshlrev_b32 v11, 4, v11
    v_lshl_add_u32 v11, v{vN}, 7, v11
    v_add_u32 v11, s49, v11
    v_xor_b32 v12, 64, v11
    v_lshl_add_u32 v10, s{sHW}, 4, v{vN}
    v_lshlrev_b32 v10, 3, v10
    s_cmp_eq_u32 s{sJ}, 0
    s_cselect_b32 s55, {f2u(-8.0)}, 0
    v_mov_b32 v{S}, 0
    v_mov_b32 v{S+1}, 0
    v_mov_b32 v{S+2}, 0
    v_mov_b32 v{S+3}, 0
    """)
    P("""
    s_barrier
    s_branch L_xl
    L_H2:
    """)
    stamp(P, 2)
    statconsts(ON, IX)
    def hrd(b):
        x = XF + 8*(b & 1)
        P(f"s_waitcnt vmcnt({2*(9-b)})")
        P(f"ds_read_b128 {v(x,4)}, v11 offset:{2048*b}")
        P(f"ds_read_b128 {v(x+4,4)}, v12 offset:{2048*b}")
    def gram(b):
        x = XF + 8*(b & 1)
        P(f"v_mfma_f32_16x16x32_bf16 {v(G,4)}, {v(x,4)}, {v(x,4)}, {'0' if b==5 else v(G,4)}")
        P(f"v_smfmac_f32_16x16x64_bf16 {v(S,4)}, {v(ON,4)}, {v(x,8)}, v{IX}")
        P(f"v_mfma_f32_16x16x32_bf16 {v(G,4)}, {v(x+4,4)}, {v(x+4,4)}, {v(G,4)}")
    hrd(5); hrd(6)
    P("s_waitcnt lgkmcnt(2)"); gram(5)
    hrd(7)
    P("s_waitcnt lgkmcnt(2)"); gram(6)
    hrd(8)
    P("s_waitcnt lgkmcnt(2)"); gram(7)
    chores()
    P(f"""
    ds_read_b128 {v(XF+8,4)}, v11 offset:{2048*9}
    ds_read_b128 {v(XF+12,4)}, v12 offset:{2048*9}
    s_setprio 3
    s_barrier
    ds_read_b64 {v(46,2)}, v10 offset:{L_PS}
    s_waitcnt lgkmcnt(3)
    """)
    gram(8)
    P("s_waitcnt lgkmcnt(0)")
    gram(9)
    P(f"""
    v_add3_f32 v{S}, v{S}, v{S+1}, v47
    v_cndmask_b32 v{G}, v{G}, v{G+1}, s[60:61]
    v_mul_f32 v{S}, s{sC640}, v{S}
    v_cndmask_b32 v{G}, v{G}, v{G+2}, s[50:51]
    v_mul_f32 v{S+1}, v{S}, v{S}
    v_cndmask_b32 v{G}, v{G}, v{G+3}, s[66:67]
    v_add_f32 v{G}, v{G}, v46
    v_fma_f32 v{G}, v{G}, s{sC640}, -v{S+1}
    v_max_f32 v{G}, 0, v{G}
    """.replace(f"v_add3_f32 v{S}, v{S}, v{S+1}, v47", f"v_add_f32 v{S}, v{S}, v{S+1}\n    v_add_f32 v{S}, v{S}, v47"))
    for o in bf16_round(G) + [f"v_add_f32 v{G}, {f2u(1e-5)}, v{G}"] + bf16_round(G) + [f"v_sqrt_f32 v{G}, v{G}", f"v_mul_f32 v{S}, s55, v{S}"] + bf16_round(G): P(o)
    P(f"""
    v_rcp_f32 v{G}, v{G}
    s_mov_b64 exec, s[68:69]
    v_mul_f32 v{G+1}, v{S}, v{G}
    ds_write_b64 v10, {v(G,2)} offset:{L_PS+512}
    s_mov_b64 exec, -1
    """)
    P(f"""
    s_waitcnt lgkmcnt(0)
    s_barrier
    """)
    P("s_setprio 0")
    stamp(P, 3)
    tagcalc()
    P(f"""
    v_mov_b32 v16, s{ZP[0]}
    v_mov_b32 v17, s{ZP[1]}
    v_mov_b32 v18, s{ZP[2]}
    v_mov_b32 v19, s{ZP[3]}
    ds_write_b128 v13, v[16:19] offset:{L_ZP}
    ds_write2_b32 v13, v13, v14 offset0:0 offset1:1
    v_mov_b32 v9, -1
    ds_write_b32 v{vL4}, v9 offset:{L_LIST}
    s_cmp_ge_u32 s{sJ}, 4
    s_cbranch_scc1 L_hf
    """)
    T = 32
    P(f"""
    v_and_b32 v10, 7, v{vN}
    v_mul_u32_u24 v10, s{sSTR}, v10
    v_add_u32 v10, s{sTB}, v10
    v_sub_u32 v11, 2048, v10
    v_mov_b32 v12, 1024
    v_cmp_eq_u32 vcc, 0, v10
    v_cndmask_b32 v11, v11, v12, vcc
    v_cmp_lt_u32 vcc, 7, v{vN}
    v_cndmask_b32 v10, v10, v11, vcc
    v_and_b32 v11, 63, v10
    v_bfrev_b32 v12, 1
    v_cmp_gt_u32 vcc, 32, v11
    v_cndmask_b32 v12, 0, v12, vcc
    v_lshrrev_b32 v9, 1, v11
    s_add_u32 s49, s{sHW}, s{sJ}
    s_and_b32 s49, s49, 3
    s_lshl_b32 s49, s49, 3
    """)
    for h in range(2):
        P(f"""
        v_add_u32 v11, s49, v{vQ}
        v_mul_u32_u24 v11, v11, v10
        v_cvt_f32_u32 v11, v11
        v_mul_f32 v11, {f2u(1.0/2048)}, v11
        v_cos_f32 v{T+4}, v11
        v_sin_f32 v{T+5}, v11
        s_add_u32 s49, s49, 4
        v_cvt_pk_f16_f32 v{T+2*h}, v{T+4}, v{T+5}
        v_cvt_pk_f16_f32 v{T+2*h+1}, -v{T+5}, v{T+4}
        v_xor_b32 v{T+2*h}, v12, v{T+2*h}
        v_xor_b32 v{T+2*h+1}, v12, v{T+2*h+1}
        """)
    P(f"""
    s_cmp_lg_u32 s{sGRP}, 0
    s_cbranch_scc1 L_nofix
    """)
    for i in range(4):
        P(f"v_and_b32 v{T+i}, 0xffff, v{T+i}")
        P(f"v_lshlrev_b32 v{T+i}, v9, v{T+i}")
    P(f"""
    L_nofix:
    s_lshl_b32 s49, s{sHW}, 10
    v_add_u32 v11, s49, v{vL16}
    ds_write_b128 v11, {v(T,4)} offset:{L_CF}
    """)

    P("s_waitcnt vmcnt(5) lgkmcnt(0)")
    stamp(P, 4)
    P(f"""
    s_barrier
    s_branch L_prep
    L_hf:
    s_waitcnt lgkmcnt(0)
    """)
    stamp(P, 4)
    P(f"""
    s_barrier
    s_waitcnt vmcnt(2)
    s_cmp_lt_u32 s{sIDX}, 108
    s_cbranch_scc1 L_ffn
    s_barrier
    s_mov_b32 exec_hi, 0x3fffff
    """)
    for i in range(N2, 4):
        P(f"buffer_load_dword v15, v151, s[28:31], s65 offen{wnt}")
        P(f"s_add_u32 s65, s65, {54*1280}")
    P(f"""
    s_mov_b64 exec, -1
    s_branch L_noflag
    """)

    P.raw(".p2align 12")
    WR_ = 156; XL = 16; U = 56; AD = 96; C1 = 108; F = 116; G = 124; S = 128; ON = 132; IX = 136; T = 16
    ACC = 16; UF = 36; RH = 138; OF = 140; PZ = 152; ZV = 132
    P("L_M:")
    stamp(P, 2)
    P(f"""
    v_mul_u32_u24 v9, 10, v{vQ}
    v_and_b32 v10, 7, v{vN}
    v_lshl_add_u32 v11, v{vN}, 7, s49
    """)
    for c in range(0, 10, 2):
        P(f"""
        v_xor_b32 v12, v9, v10
        v_and_b32 v{AD+c}, 7, v12
        v_lshrrev_b32 v12, 3, v12
        v_lshl_add_u32 v{AD+c}, v{AD+c}, 4, v11
        v_lshl_add_u32 v{AD+c}, v12, 11, v{AD+c}
        v_xor_b32 v{AD+c+1}, 16, v{AD+c}
        """)
        if c < 8: P("v_add_u32 v9, 2, v9")
    statconsts(ON, IX)
    P(f"""
    v_mul_u32_u24 v9, s{sJ}, v{vQ}
    v_and_b32 v10, 1, v{vN}
    v_lshlrev_b32 v10, 1, v10
    v_sub_u32 v9, v9, v10
    v_cvt_f32_i32 v9, v9
    v_mul_f32 v9, {f2u(0.125)}, v9
    v_cos_f32 v9, v9
    v_and_b32 v10, 2, v{vN}
    v_lshlrev_b32 v10, 3, v10
    v_cvt_pk_bf16_f32 v9, v9, 0
    v_lshlrev_b32 v9, v10, v9
    v_lshrrev_b32 v10, 2, v{vN}
    s_and_b32 s43, s{sJ}, 1
    s_mul_i32 s43, s43, 0x80008000
    """)
    for i in range(4):
        P(f"v_cmp_eq_u32 vcc, {i}, v10")
        P(f"v_cndmask_b32 v{C1+i}, 0, v9, vcc")
        P(f"v_xor_b32 v{C1+4+i}, s43, v{C1+i}")
    P(f"""
    v_mul_u32_u24 v143, {HS}, v{vN}
    v_lshl_add_u32 v142, v{vW}, 5, v143
    v_lshl_add_u32 v142, v{vQ}, 3, v142
    v_lshl_add_u32 v143, v{vQ}, 4, v143
    v_lshlrev_b32 v144, 17, v{vQ}
    v_lshl_add_u32 v144, v{vN}, 4, v144
    v_lshlrev_b32 v145, 7, v{vQ}
    v_lshl_add_u32 v145, v{vN}, 2, v145
    s_mov_b32 s55, 0xfffefffe
    v_and_b32 v146, 3, v{vN}
    v_lshlrev_b32 v146, 2, v146
    v_mov_b32 v13, 0
    s_lshl_b32 s43, s{sHW}, 11
    s_add_u32 s43, s43, {L_F}
    v_add_u32 v149, s43, v{vL16}
    v_lshl_add_u32 v148, v{vW}, 4, v{vN}
    v_lshlrev_b32 v148, 3, v148
    s_lshl_b32 s52, s{sHW}, 19
    s_lshl_b32 s43, s{sGRP}, 11
    s_add_u32 s52, s52, s43
    s_lshl_b32 s43, s{sJ}, 8
    s_add_u32 s52, s52, s43
    s_add_u32 s52, s52, {ZM}
    s_add_u32 s53, s52, 65536
    s_lshl_b32 s54, s{sGRP}, 3
    s_add_u32 s54, s54, s{sJ}
    s_lshl_b32 s54, s54, 2
    s_add_u32 s54, s54, s{sHW}
    s_lshl_b32 s54, s54, 9
    s_add_u32 s54, s54, {ZT}
    v_mov_b32 v{S}, 0
    v_mov_b32 v{S+1}, 0
    v_mov_b32 v{S+2}, 0
    v_mov_b32 v{S+3}, 0
    v_mov_b32 v{OF+1}, 0
    """)
    P("s_barrier")
    for f in range(20):
        P(f"ds_read_b128 {v(WR_+4*f,4)}, v{vL16} offset:{L_W + 1024*f}")
    stamp(P, 13)
    P("s_waitcnt vmcnt(0)")
    stamp(P, 3)
    for c in range(10): P(f"ds_read_b128 {v(XL+4*c,4)}, v{AD+c}")
    for c in range(0, 10, 2):
        P(f"s_waitcnt lgkmcnt({8-c})")
        x = XL + 4*c
        P(f"v_mfma_f32_16x16x32_bf16 {v(G,4)}, {v(x,4)}, {v(x,4)}, {'0' if c==0 else v(G,4)}")
        P(f"v_smfmac_f32_16x16x64_bf16 {v(S,4)}, {v(ON,4)}, {v(x,8)}, v{IX}")
        P(f"v_mfma_f32_16x16x32_bf16 {v(G,4)}, {v(x+4,4)}, {v(x+4,4)}, {v(G,4)}")
    for c in range(10):
        P(f"v_mfma_f32_16x16x32_bf16 {v(U+4*c,4)}, {v(C1,4)}, {v(XL+4*c,4)}, 0")
        if c == 3: statwrite(G, S, 148)
    P(f"""
    s_setprio 2
    s_waitcnt lgkmcnt(0)
    s_barrier
    """)
    stamp(P, 12)
    for c in range(10): P(f"ds_read_b128 {v(XL+4*c,4)}, v{AD+c} offset:10240")
    for f in range(20, 25): P(f"ds_read_b128 {v(WR_+4*f,4)}, v{vL16} offset:{L_W + 1024*f}")
    CA1 = OPT.get("ca1", 7)
    for c in range(10):
        if c == CA1:
            P("s_barrier")
            P(f"ds_read_b64 {v(RH+1,2)}, v148 offset:{L_PS+512}".replace(v(RH+1,2), v(G,2)))
        P(f"s_waitcnt lgkmcnt({min(15, 14-c + (1 if c >= CA1 else 0))})")
        P(f"v_mfma_f32_16x16x32_bf16 {v(U+4*c,4)}, {v(C1+4,4)}, {v(XL+4*c,4)}, {v(U+4*c,4)}")
    P(f"""
    s_waitcnt lgkmcnt(0)
    v_mov_b32 v{RH}, v{G}
    v_mov_b32 v{RH+1}, v{G}
    v_mov_b32 v{OF}, v{G+1}
    """)
    def conv(kp):
        o = []
        for i in range(4):
            o.append(f"v_pk_fma_f32 {v(U+8*kp+2*i,2)}, {v(U+8*kp+2*i,2)}, {v(RH,2)}, {v(OF,2)}")
        for i in range(4):
            o.append(f"v_cvt_pk_f16_f32 v{UF+4*kp+i}, v{U+8*kp+2*i}, v{U+8*kp+2*i+1}")
        return o
    for o in conv(0): P(o)
    PK = 56
    for kp in range(5):
        nxt = conv(kp+1) if kp < 4 else []
        for t in range(5):
            P(f"v_mfma_f32_16x16x32_f16 {v(ACC+4*t,4)}, {v(UF+4*kp,4)}, {v(WR_+4*(5*t+kp),4)}, {'0' if kp==0 else v(ACC+4*t,4)}")
            for _ in range(2):
                if nxt: P(nxt.pop(0))
    stamp(P, 4)
    for t in range(5):
        P(f"v_cvt_pk_f16_f32 v{PK+2*t}, v{ACC+4*t}, v{ACC+4*t+1}")
        P(f"v_cvt_pk_f16_f32 v{PK+2*t+1}, v{ACC+4*t+2}, v{ACC+4*t+3}")
        P(f"ds_write_b64 v142, {v(PK+2*t,2)} offset:{L_HT + 16*t*HS}")
    P(f"""
    s_waitcnt lgkmcnt(0)
    s_barrier
    """)
    BF = 16; DC = 70; ZO = 92
    P(f"""
    ds_read_b128 {v(F,4)}, v149
    ds_read_b128 {v(F+4,4)}, v149 offset:1024
    """)
    for t in range(5):
        for kk in range(2):
            P(f"ds_read_b128 {v(BF+8*t+4*kk,4)}, v143 offset:{L_HT + 16*t*HS + 64*kk}")
    P(f"""
    ds_read_b128 {v(ZV,4)}, v13 offset:{L_ZP}
    ds_read_b32 v147, v146 offset:{L_ZP}
    ds_read_b32 v14, v13 offset:{L_TAG}
    """)
    for t in range(5):
        c = DC + 4*t
        P(f"s_waitcnt lgkmcnt({11-2*t if t < 2 else (7 if t == 2 else 0)})")
        P(f"v_mfma_f32_16x16x32_f16 {v(c,4)}, {v(F,4)}, {v(BF+8*t,4)}, 0")
        P(f"v_mfma_f32_16x16x32_f16 {v(c,4)}, {v(F+4,4)}, {v(BF+8*t+4,4)}, {v(c,4)}")
        if t >= 2:
            for u in range(2):
                P(f"v_cvt_pk_f16_f32 v{ZO+4*u+t-2}, v{DC+4*(t-2)+2*u}, v{DC+4*(t-2)+2*u+1}")
                if t >= 3: P(f"v_and_or_b32 v{ZO+4*u+t-3}, v{ZO+4*u+t-3}, s55, v{ZV+t-3}")
    for u in range(2):
        P(f"v_and_or_b32 v{ZO+4*u+2}, v{ZO+4*u+2}, s55, v{ZV+2}")
        P(f"v_cvt_pk_f16_f32 v{ZO+4*u+3}, v{DC+12+2*u}, v{DC+12+2*u+1}")
        P(f"v_and_or_b32 v{ZO+4*u+3}, v{ZO+4*u+3}, s55, v{ZV+3}")
        P(f"buffer_store_dwordx4 {v(ZO+4*u,4)}, v144, s[8:11], s{52+u} offen sc1")
    for u in range(2):
        P(f"v_cvt_pk_f16_f32 v{ZO+8+u}, v{DC+16+2*u}, v{DC+16+2*u+1}")
        P(f"v_and_or_b32 v{ZO+8+u}, v{ZO+8+u}, s55, v147")
        P(f"buffer_store_dword v{ZO+8+u}, v145, s[8:11], s54 offen offset:{64*u} sc1")
    P("s_setprio 0")
    stamp(P, 5)
    consts()
    P(f"""
    s_cmp_ge_u32 s{sJ}, 4
    s_cbranch_scc1 L_ffn
    """)
    for i in range(4): P(f"v_readfirstlane_b32 s{ZP[i]}, v{ZV+i}")
    P(f"""
    s_branch L_prep
    L_rare:
    """)
    P.raw(".p2align 12")

    ZR = 16; CF = 80; AC = 96; YA = 112
    P(f"""
    L_prep:
    v_mov_b32 v5, 0
    v_mov_b32 v7, 0
    s_add_u32 s69, s{sWV}, -1
    s_cmp_lt_u32 s69, 3
    s_cbranch_scc1 L_b3
    s_cmp_eq_u32 s{sWV}, 0
    s_cbranch_scc1 L_ztail
    v_lshlrev_b32 v5, 11, v{vQ}
    v_lshrrev_b32 v10, 3, v{vN}
    s_add_u32 s49, s{sHW}, s{sJ}
    s_and_b32 s49, s49, 3
    v_lshl_add_u32 v10, s49, 1, v10
    v_lshl_add_u32 v5, v10, 8, v5
    v_and_b32 v9, 7, v{vN}
    v_lshl_add_u32 v5, v9, 4, v5
    v_add_u32 v7, 128, v5
    v_lshlrev_b32 v9, 3, v9
    s_lshl_b32 s49, s{sGRP}, 16
    s_add_u32 s49, s49, {ZM}
    s_mov_b32 s48, 13
    s_mov_b32 s51, 64
    s_branch L_zcom
    L_ztail:
    v_lshrrev_b32 v10, 1, v{vN}
    v_and_b32 v9, 1, v{vN}
    """)
    if OPT.get("tail", 0) == 0:
        P(f"""
        v_lshlrev_b32 v5, 14, v{vQ}
        v_lshl_add_u32 v5, v10, 11, v5
        v_lshl_add_u32 v5, v9, 4, v5
        v_add_u32 v7, 32, v5
        s_lshl_b32 s49, s{sGRP}, 6
        s_mov_b32 s48, 16
        """)
    else:
        P(f"""
        v_lshlrev_b32 v5, 9, v{vQ}
        v_lshl_add_u32 v5, v{vN}, 4, v5
        v_add_u32 v7, 256, v5
        s_lshl_b32 s49, s{sGRP}, 14
        s_mov_b32 s48, 11
        """)
    P(f"""
    v_lshlrev_b32 v9, 5, v9
    v_add_u32 v9, 256, v9
    s_add_u32 s49, s49, {ZT}
    s_mov_b32 s51, 8
    L_zcom:
    v_cmp_eq_u32 vcc, 0, v10
    v_cndmask_b32 v10, v10, 8, vcc
    v_add_u32 v9, v9, v10
    v_and_b32 v11, 1, v{vQ}
    v_mul_u32_u24 v11, {4*RS}, v11
    v_cmp_lt_u32 s[52:53], 1, v{vQ}
    s_movk_i32 s54, 320
    """)
    for u in range(4):
        P(f"v_sub_u32 v10, 640, v9")
        if u == 3:
            P(f"v_cmp_eq_u32 vcc, s54, v9")
            P(f"v_cndmask_b32 v10, v10, 0, vcc")
        P(f"""
        v_cndmask_b32 v10, v9, v10, s[52:53]
        v_lshrrev_b32 v12, 4, v10
        v_lshl_add_u32 v10, v12, 2, v10
        v_add_lshl_u32 v{YA+u}, v10, v11, 2
        """)
        if u < 3: P(f"v_add_u32 v9, s51, v9")
    P(f"s_lshl_b32 s50, s{sJ}, 1")
    for i in range(8):
        P(f"s_add_u32 s{58+i}, s50, {i}")
        P(f"s_and_b32 s{58+i}, s{58+i}, 7")
        P(f"s_lshl_b32 s{58+i}, s{58+i}, s48")
        P(f"s_add_u32 s{58+i}, s{58+i}, s49")
    P(f"""
    s_cmp_ge_u32 s{sWV}, 4
    s_cbranch_scc1 L_lnp
    L_b3:
    """)
    P("s_waitcnt vmcnt(0) lgkmcnt(0)")
    stamp(P, 6)
    P("s_barrier")
    stamp(P, 7)
    NZB = OPT.get("nzb", 0)
    P(f"""
    s_cmp_lt_u32 s69, 3
    s_cbranch_scc1 L_lnp
    s_mov_b32 s50, 0
    """)
    def zl(i):
        P(f"buffer_load_dwordx4 {v(ZR+8*i,4)}, v5, s[8:11], s{58+i} offen sc1")
        P(f"buffer_load_dwordx4 {v(ZR+8*i+4,4)}, v7, s[8:11], s{58+i} offen sc1")
    for i in range(8):
        zl(i)
        if i == 1:
            for k in range(4):
                P(f"ds_read_b128 {v(CF+4*k,4)}, v{vL16} offset:{L_CF + 1024*k}")
        if (NZB == 3 and i in (1, 3, 5)) or (NZB == 1 and i == 3) or (NZB == 2 and i in (3, 5)): P("s_barrier")
    P(f"""
    s_cmp_ge_u32 s{sWV}, 4
    s_cbranch_scc1 L_zg0
    L_lnp:
    """)
    WF = 116; HA = 126; HB = 136; XR = 146; SW = 154
    P(f"""
    s_mul_i32 s49, s{sHW}, 5120
    s_lshr_b32 s47, s{sWV}, 2
    s_lshl_b32 s48, s47, 11
    s_add_u32 s48, s48, s49
    s_add_u32 s48, s48, {L_XR}
    s_lshl_b32 s47, s47, 9
    s_add_u32 s47, s47, s49
    s_add_u32 s47, s47, {L_XR+4096}
    v_add_u32 v160, s48, v{vL16}
    v_add_u32 v161, s47, v{vL4}
    v_add_u32 v162, {L_WR}, v{vL16}
    v_add_u32 v163, {L_WR+1024}, v{vL4}
    """)
    P(f"""
    s_mul_i32 s49, s{sWV}, {RS*4}
    s_add_u32 s49, s49, {L_W}
    v_lshrrev_b32 v9, 1, v{vL}
    v_lshlrev_b32 v9, 4, v9
    v_lshl_add_u32 v9, v{vL}, 5, v9
    v_add_u32 v{XR}, s49, v9
    v_lshrrev_b32 v9, 3, v{vL}
    v_lshlrev_b32 v9, 4, v9
    v_lshl_add_u32 v9, v{vL}, 3, v9
    v_add_u32 v{XR+1}, s49, v9
    """)
    def pos(dst, c, mul):
        P(f"""
        v_mul_u32_u24 v9, {mul}, v{vL}
        v_sub_u32 v9, {c}, v9
        v_lshrrev_b32 v10, 4, v9
        v_lshl_add_u32 v9, v10, 2, v9
        v_lshl_add_u32 v{dst}, v9, 2, s49
        """)
    pos(XR+2, 632, 8); pos(XR+3, 640, 8); pos(XR+4, 128, 2); pos(XR+5, 127, 2)
    P(f"""
    s_mul_i32 s{sROW}, s{sWV}, s{sSTR}
    s_add_u32 s{sROW}, s{sROW}, s{sTB}
    s_sub_u32 s{sROWB}, 2048, s{sROW}
    s_cmp_eq_u32 s{sROW}, 0
    s_cselect_b32 s{sROWB}, 1024, s{sROWB}
    v_mov_b32 v9, s{sROW}
    v_mov_b32 v10, s{sROWB}
    v_cmp_lt_u32 vcc, 31, v{vL}
    v_cndmask_b32 v9, v9, v10, vcc
    v_lshlrev_b32 v{XR+6}, 6, v9
    v_lshrrev_b32 v9, 5, v{vL}
    v_lshl_add_u32 v9, v9, 3, v{vW}
    v_lshlrev_b32 v{XR+7}, 2, v9
    s_mul_i32 s56, s{sROW}, 1280
    s_mul_i32 s57, s{sROWB}, 1280
    s_mul_i32 s54, s{sIDX}, {KST}
    """)
    XT = 164
    P(f"""
    ds_read_b128 {v(XT,4)}, v162
    ds_read_b32 v{XT+4}, v163
    s_waitcnt lgkmcnt(0)
    """)
    def unpack(dst):
        for i in range(5):
            P(f"v_lshlrev_b32 v{dst+2*i}, 16, v{XT+i}")
            P(f"v_and_b32 v{dst+2*i+1}, 0xffff0000, v{XT+i}")
    unpack(WF)
    P(f"""
    ds_read_b128 {v(XT,4)}, v160
    ds_read_b32 v{XT+4}, v161
    v_pk_add_f32 {v(SW,2)}, {v(WF,2)}, {v(WF+2,2)}
    v_pk_add_f32 {v(SW,2)}, {v(SW,2)}, {v(WF+4,2)}
    v_pk_add_f32 {v(SW,2)}, {v(SW,2)}, {v(WF+6,2)}
    v_pk_add_f32 {v(SW,2)}, {v(SW,2)}, {v(WF+8,2)}
    v_add_f32 v{SW}, v{SW}, v{SW+1}
    s_waitcnt lgkmcnt(0)
    """)
    unpack(HA)
    P(f"""
    ds_read_b128 {v(XT,4)}, v160 offset:1024
    ds_read_b32 v{XT+4}, v161 offset:256
    """)
    for sh in (1, 2, 4, 8):
        P(f"v_add_f32_dpp v{SW}, v{SW}, v{SW} row_shr:{sh} row_mask:0xf bank_mask:0xf bound_ctrl:0")
    P(f"v_add_f32_dpp v{SW}, v{SW}, v{SW} row_bcast:15 row_mask:0xa bank_mask:0xf")
    P(f"v_add_f32_dpp v{SW}, v{SW}, v{SW} row_bcast:31 row_mask:0xc bank_mask:0xf")
    P("s_waitcnt lgkmcnt(0)")
    unpack(HB)
    P(f"""
    v_readlane_b32 s55, v{SW}, 63
    """)
    P(f"""
    s_cmp_ge_u32 s{sWV}, 4
    s_cbranch_scc1 L_b3
    s_cmp_lg_u32 s{sWV}, 0
    s_cbranch_scc1 L_y1
    L_zg0:
    s_waitcnt lgkmcnt(0)
    L_zgo:
    v_mov_b32 v10, 0
    """)
    for k in range(4):
        z = ZR + 16*k
        P(f"s_waitcnt vmcnt({12 - 4*k})")
        for l in range(4):
            for u in range(l+1, 4):
                P(f"v_swap_b32 v{z+4*l+u}, v{z+4*u+l}")
        for u in range(4):
            P(f"v_mfma_f32_16x16x32_f16 {v(AC+4*u,4)}, {v(CF+4*k,4)}, {v(z+4*u,4)}, {'0' if k==0 else v(AC+4*u,4)}")
            P(f"v_bitop3_b32 v11, v{z+4*u}, v{z+4*u+1}, s{ZP[u]} bitop3:0x7e")
            P(f"v_bitop3_b32 v12, v{z+4*u+2}, v{z+4*u+3}, s{ZP[u]} bitop3:0x7e")
            P(f"v_or3_b32 v10, v10, v11, v12")
    P(f"v_and_b32 v10, 0x10001, v10")
    P(f"v_cmp_ne_u32 vcc, 0, v10")
    spin_tail(P, 50, "L_zretry", "L_zok")
    stamp(P, 8)
    if OPT["stamps"] and not OPT.get("dbgm"): P("s_mov_b32 s96, s50")
    for u in range(4):
        for r in range(4):
            P(f"ds_write_b32 v{YA+u}, v{AC+4*u+r} offset:{L_W + r*RS*4}")
    P(f"""
    L_y1:
    s_waitcnt lgkmcnt(0)
    s_barrier
    """)
    stamp(P, 9)
    FW = 16; RV = 28; R1 = 36
    P(f"""
    ds_read_b128 {v(FW,4)}, v{XR}
    ds_read_b128 {v(FW+4,4)}, v{XR} offset:16
    ds_read_b64 {v(FW+8,2)}, v{XR+1} offset:2560
    ds_read_b32 v{R1}, v{XR+3}
    ds_read_b128 {v(RV+4,4)}, v{XR+2} offset:16
    ds_read_b128 {v(RV,4)}, v{XR+2}
    ds_read_b32 v{R1+1}, v{XR+4}
    ds_read_b32 v{R1+2}, v{XR+5}
    """)
    rev = [R1] + [RV+7-i for i in range(7)] + [R1+1, R1+2]
    P(f"""
    s_cmp_eq_u32 s{sROW}, 0
    s_cbranch_scc1 L_special
    L_specret:
    s_waitcnt lgkmcnt(5)
    v_writelane_b32 v{FW}, 0, 0
    """)
    A1, A2, A3, B1, B2, B3 = 40, 42, 44, 46, 48, 50
    def accum(Hr, i, a1, a2, a3):
        if i == 0:
            P(f"v_pk_mul_f32 {v(a2,2)}, {v(Hr,2)}, {v(Hr,2)}")
            P(f"v_pk_mul_f32 {v(a3,2)}, {v(Hr,2)}, {v(WF,2)}")
        else:
            P(f"v_pk_add_f32 {v(a1,2)}, {v(a1 if i>1 else Hr,2)}, {v(Hr+2*i,2)}")
            P(f"v_pk_fma_f32 {v(a2,2)}, {v(Hr+2*i,2)}, {v(Hr+2*i,2)}, {v(a2,2)}")
            P(f"v_pk_fma_f32 {v(a3,2)}, {v(Hr+2*i,2)}, {v(WF+2*i,2)}, {v(a3,2)}")
    for i in range(5):
        P(f"v_pk_add_f32 {v(HA+2*i,2)}, {v(HA+2*i,2)}, {v(FW+2*i,2)}")
        accum(HA, i, A1, A2, A3)
    P("s_waitcnt lgkmcnt(0)")
    P(f"v_writelane_b32 v{R1}, 0, 0")
    for i in range(5):
        P(f"v_add_f32 v{HB+2*i}, v{HB+2*i}, v{rev[2*i]}")
        P(f"v_add_f32 v{HB+2*i+1}, v{HB+2*i+1}, v{rev[2*i+1]}")
        accum(HB, i, B1, B2, B3)
    for r in (A1, A2, A3, B1, B2, B3): P(f"v_add_f32 v{r}, v{r}, v{r+1}")
    for x_, y_ in ((A1, B1), (A2, B2), (A3, B3)): P(f"v_permlane32_swap_b32 v{x_}, v{y_}")
    S1, S2, S3 = A1, A2, A3
    for x_, y_ in ((A1, B1), (A2, B2), (A3, B3)): P(f"v_add_f32 v{x_}, v{x_}, v{y_}")
    regs = [S1, S2, S3]
    for sh in (1, 2, 4, 8):
        for r in regs: P(f"v_add_f32_dpp v{r}, v{r}, v{r} row_shr:{sh} row_mask:0xf bank_mask:0xf bound_ctrl:0")
    for r in regs: P(f"v_add_f32_dpp v{r}, v{r}, v{r} row_bcast:15 row_mask:0xa bank_mask:0xf")
    MC = 52; TM = 46
    P(f"""
    v_mul_f32 v{MC}, s{sC640}, v{S1}
    v_mul_f32 v{TM}, v{MC}, v{MC}
    v_fma_f32 v{S2}, v{S2}, s{sC640}, -v{TM}
    v_max_f32 v{S2}, 0, v{S2}
    s_mov_b32 s47, 0xffff8000
    """)
    for o in bf16_round(S2) + bf16_round(MC): P(o)
    P(f"v_add_f32 v{S2}, {f2u(1e-5)}, v{S2}")
    for o in bf16_round(S2): P(o)
    P(f"v_sqrt_f32 v{S2}, v{S2}")
    P(f"v_fma_f32 v{S3}, -v{MC}, s55, v{S3}")
    for o in bf16_round(S2): P(o)
    P(f"""
    v_add_f32 v{MC+1}, 1.0, v{S2}
    v_rcp_f32 v{S2}, v{S2}
    v_rcp_f32 v{MC+1}, v{MC+1}
    v_mul_f32 v{S3}, v{S3}, v{S2}
    v_cvt_pk_bf16_f32 v{S3}, v{S3}, v{S3}
    v_ashrrev_i32 v{TM}, 31, v{S3}
    v_or_b32 v{TM}, 0x80000000, v{TM}
    v_xor_b32 v{S3}, v{S3}, v{TM}
    v_lshrrev_b32 v{S3}, 1, v{S3}
    v_bfi_b32 v{S3}, s47, v{S3}, v14
    s_brev_b32 exec_lo, 1
    s_brev_b32 exec_hi, 1
    ds_write_b32 v{XR+7}, v{S3} offset:{L_KREC}
    v_mov_b32 v{MC+2}, v14
    v_mov_b32 v{MC+3}, v14
    v_mul_f32 v{S1}, v{MC}, v{S2}
    v_add_f32 v{S2}, 1.0, v{S2}
    s_mov_b32 s47, {STATS}
    v_readlane_b32 s51, v{S1}, 31
    v_readlane_b32 s53, v{S1}, 63
    v_readlane_b32 s50, v{S2}, 31
    v_readlane_b32 s52, v{S2}, 63
    s_waitcnt lgkmcnt(0)
    s_barrier
    s_cmp_lg_u32 s{sWV}, 3
    s_cbranch_scc1 L_nokey
    s_mov_b64 exec, 15
    ds_read_b128 {v(56,4)}, v{vL16} offset:{L_KREC}
    s_add_u32 s49, s54, {KEYS}
    s_waitcnt lgkmcnt(0)
    buffer_store_dwordx4 {v(56,4)}, v{vL16}, s[8:11], s49 offen sc1
    s_brev_b32 exec_lo, 1
    s_brev_b32 exec_hi, 1
    L_nokey:
    buffer_store_dwordx4 {v(MC,4)}, v{XR+6}, s[8:11], s47 offen sc1
    s_mov_b64 exec, -1
    v_mov_b32 v{TM}, s51
    v_mov_b32 v{TM+1}, s53
    """)
    stamp(P, 10)
    for (Hr, sc, tm, so, o) in ((HA, 50, TM, 56, 16), (HB, 52, TM+1, 57, 24)):
        for i in range(10): P(f"v_fma_f32 v{Hr+i}, v{Hr+i}, s{sc}, -v{tm}")
        for i in range(5):
            P(f"v_cvt_pk_bf16_f32 v{o+i}, v{Hr+2*i}, v{Hr+2*i+1}")
            P(f"v_min_u32 v{o+i}, -2, v{o+i}")
        P(f"buffer_store_dwordx4 {v(o,4)}, v{vL16}, s[12:15], s{so} offen sc1")
        P(f"buffer_store_dword v{o+4}, v{vL4}, s[12:15], s{so} offen offset:1024 sc1")
    stamp(P, 11)
    P(f"""
    s_cmp_lg_u32 s{sWV}, 3
    s_cbranch_scc1 L_finp
    s_cmp_lg_u32 s2, 0
    s_cbranch_scc1 L_finp
    s_mov_b64 exec, 1
    buffer_store_dword v14, v5, s[8:11], 0 offen sc1
    L_finp:
    {"s_branch L_fin" if (OPT["stamps"] or OPT.get("padto")) else "s_endpgm"}
    """)
    RARE = Prog()
    P_main = P
    P = RARE
    P("L_zretry:")
    for i in range(8):
        P(f"buffer_load_dwordx4 {v(ZR+8*i,4)}, v5, s[8:11], s{58+i} offen sc1")
        P(f"buffer_load_dwordx4 {v(ZR+8*i+4,4)}, v7, s[8:11], s{58+i} offen sc1")
    P("s_branch L_zgo")
    P(f"""
    L_special:
    s_waitcnt lgkmcnt(0)
    v_readlane_b32 s49, v{FW}, 0
    s_mov_b32 exec_lo, 0
    s_mov_b32 exec_hi, 0xfffffe00
    v_swap_b32 v{FW}, v{rev[0]}
    s_mov_b32 exec_hi, 0xffffff00
    """)
    for i in range(1, 8): P(f"v_swap_b32 v{FW+i}, v{rev[i]}")
    P(f"""
    s_mov_b64 exec, -1
    v_swap_b32 v{FW+8}, v{rev[8]}
    v_swap_b32 v{FW+9}, v{rev[9]}
    v_writelane_b32 v{rev[0]}, s49, 40
    s_branch L_specret
    """)

    P = P_main
    k_ = P.lines.index("L_rare:") + 1
    P.lines[k_:k_] = RARE.lines
    BW = 48; AR = 112; A0 = 128
    KK = 16; ID = 24; K4 = 32; CB = 112
    P.raw(".p2align 12")
    P(f"""
    L_ffn:
    s_barrier
    s_cmp_lg_u32 s{sWV}, 0
    s_cbranch_scc1 L_noflag
    s_mul_i32 s49, s{sIDX}, {KST}
    s_add_u32 s49, s49, {FLAGS}
    s_mov_b64 exec, 1
    buffer_store_dword v14, v13, s[8:11], s49 offen sc1
    s_mov_b64 exec, -1
    L_noflag:
    s_cmp_ge_u32 s{sIDX}, 108
    s_cbranch_scc1 L_f2load
    """)
    P(f"""
    v_lshrrev_b32 v13, 1, v{vL}
    v_mul_u32_u24 v13, 3456, v13
    v_and_b32 v9, 1, v{vL}
    v_lshl_add_u32 v13, v9, 4, v13
    s_lshl_b32 s58, s{sIDX}, 5
    s_and_b32 s47, s{sJ}, 3
    s_mul_i32 s47, s47, 5
    s_mov_b32 s48, s{sWV}
    L_dma1:
    s_add_u32 s49, s48, s47
    s_cmp_ge_u32 s49, 20
    s_cselect_b32 s50, 20, 0
    s_sub_u32 s49, s49, s50
    s_lshr_b32 s50, s49, 2
    s_lshl_b32 s50, s50, 13
    s_and_b32 s51, s49, 3
    s_lshl_b32 s51, s51, 10
    s_add_u32 s50, s50, s51
    s_add_u32 m0, s50, {L_WT}
    s_mul_i32 s51, s49, {32*3456}
    s_add_u32 s51, s51, s58
    {"s_nop 0" if OPT.get("now") else f"buffer_load_dwordx4 v13, s[20:23], s51 offen lds"}
    s_add_u32 m0, m0, 4096
    s_add_u32 s48, s48, 8
    {"s_nop 0" if OPT.get("now") else f"buffer_load_dwordx4 v13, s[24:27], s51 offen lds"}
    s_cmp_lt_u32 s48, 20
    s_cbranch_scc1 L_dma1
    v_lshlrev_b32 v15, 9, v{vQ}
    v_lshl_add_u32 v15, v{vN}, 3, v15
    v_lshl_add_u32 v15, v{vW}, 13, v15
    s_waitcnt vmcnt(0)
    s_barrier
    s_cmp_ge_u32 s{sWV}, 5
    s_cbranch_scc1 L_tk
    """)
    for blk in range(4):
        for h in range(2):
            r = BW + 4*(2*blk + h)
            P(f"ds_read_b64_tr_b16 {v(r,2)}, v15 offset:{L_WT + 2048*blk + 256*h}")
            P(f"ds_read_b64_tr_b16 {v(r+2,2)}, v15 offset:{L_WT + 2048*blk + 256*h + 128}")
    for i in range(4): P(f"v_mov_b32 v{AR+i}, 0x3f803f80")
    P(f"""
    s_lshl_b32 s49, s{sWV}, 7
    v_lshl_add_u32 v13, v{vN}, 2, s49
    s_waitcnt lgkmcnt(0)
    """)
    for i in range(4):
        P(f"v_mfma_f32_16x16x32_bf16 {v(A0,4)}, {v(AR,4)}, {v(BW+4*i,4)}, {'0' if i==0 else v(A0,4)}")
        P(f"v_mfma_f32_16x16x32_bf16 {v(A0+4,4)}, {v(AR,4)}, {v(BW+16+4*i,4)}, {'0' if i==0 else v(A0+4,4)}")
    P(f"ds_write_b32 v13, v{A0} offset:{L_CS}")
    P(f"ds_write_b32 v13, v{A0+4} offset:{L_CS+64}")
    P("s_branch L_tk")
    P(f"""
    L_f2load:
    v_lshrrev_b32 v13, 2, v{vL}
    v_mul_u32_u24 v13, 1280, v13
    v_and_b32 v9, 3, v{vL}
    v_lshl_add_u32 v13, v9, 4, v13
    s_sub_u32 s58, s{sIDX}, 108
    s_lshl_b32 s58, s58, 6
    s_and_b32 s47, s{sJ}, 1
    s_mul_i32 s47, s47, 56
    s_mov_b32 s48, s{sWV}
    L_dma2:
    s_add_u32 s49, s48, s47
    s_cmp_ge_u32 s49, 112
    s_cselect_b32 s50, 112, 0
    s_sub_u32 s49, s49, s50
    s_lshl_b32 s50, s49, 10
    s_add_u32 m0, s50, {L_WT}
    s_mul_i32 s51, s49, {16*1280}
    s_add_u32 s51, s51, s58
    s_add_u32 s48, s48, 8
    {"s_nop 0" if OPT.get("now") else f"buffer_load_dwordx4 v13, s[28:31], s51 offen lds"}
    s_cmp_lt_u32 s48, 112
    s_cbranch_scc1 L_dma2
    v_lshlrev_b32 v15, 10, v{vQ}
    v_lshrrev_b32 v9, 2, v{vN}
    v_lshl_add_u32 v15, v9, 6, v15
    v_and_b32 v9, 3, v{vN}
    v_lshl_add_u32 v15, v9, 3, v15
    v_lshl_add_u32 v15, v{vW}, 14, v15
    s_waitcnt vmcnt(0)
    s_barrier
    s_cmp_ge_u32 s{sWV}, 7
    s_cbranch_scc1 L_tk
    """)
    for blk in range(4):
        for h in range(2):
            for ct in range(2):
                r = BW + 4*(4*blk + 2*h + ct)
                o = L_WT + 4096*blk + 512*h + 32*ct
                P(f"ds_read_b64_tr_b16 {v(r,2)}, v15 offset:{o}")
                P(f"ds_read_b64_tr_b16 {v(r+2,2)}, v15 offset:{o + 256}")
    P("L_tk:")
    stamp(P, 6)
    P(f"""
    v_bfe_u32 v9, v0, 4, 3
    v_lshlrev_b32 v9, 1, v9
    v_add_u32 v40, 1, v9
    v_sub_u32 v41, 32, v9
    v_sub_u32 v42, 32, v40
    v_cmp_eq_u32 vcc, 0, v9
    v_cndmask_b32 v41, v41, 16, vcc
    v_and_b32 v12, 128, v0
    v_cmp_ne_u32 vcc, 0, v12
    v_cndmask_b32 v9, v9, v41, vcc
    v_cndmask_b32 v40, v40, v42, vcc
    v_bfe_u32 v10, v0, 2, 2
    v_and_b32 v12, 1, v0
    v_lshl_add_u32 v10, v10, 1, v12
    v_lshlrev_b32 v10, 2, v10
    v_mov_b32 v11, 64
    v_cmp_eq_u32 vcc, 0, v9
    v_cndmask_b32 v11, v11, 32, vcc
    v_mad_u32_u24 v{ID}, v10, v11, v9
    v_lshl_add_u32 v{ID+4}, v10, 6, v40
    """)
    for i in range(1, 4):
        P(f"v_add_u32 v{ID+i}, v{ID+i-1}, v11")
        P(f"v_add_u32 v{ID+4+i}, 64, v{ID+3+i}")
    P(f"""
    v_and_b32 v12, 2, v0
    v_cmp_ne_u32 vcc, 0, v12
    """)
    for i in range(8):
        P(f"v_sub_u32 v9, 2048, v{ID+i}")
        P(f"v_cndmask_b32 v{ID+i}, v{ID+i}, v9, vcc")
    P(f"""
    v_mov_b32 v11, 1024
    v_cmp_eq_u32 vcc, 2, v0
    v_cndmask_b32 v{ID}, v{ID}, v11, vcc
    v_lshrrev_b32 v7, 2, v0
    v_mul_u32_u24 v7, {KST}, v7
    v_and_b32 v12, 3, v0
    v_lshl_add_u32 v7, v12, 4, v7
    s_mov_b32 s53, {KEYS + 64*KST}
    v_mov_b32 v12, 0
    v_lshrrev_b32 v5, 4, v0
    v_lshlrev_b32 v5, 2, v5
    v_lshlrev_b32 v15, 2, v{vN}
    v_lshlrev_b32 v43, 4, v{vQ}
    v_mov_b32 v13, 1
    s_mov_b32 s52, {KEYS}
    s_mov_b32 s51, 0x7fff8000
    s_cmp_eq_u32 s{sWV}, 6
    s_cbranch_scc1 L_pad0
    s_cmp_eq_u32 s{sWV}, 7
    s_cbranch_scc1 L_fchk
    s_cmp_ge_u32 s{sWV}, 4
    s_cbranch_scc1 L_tk2
    s_mov_b32 s50, 0
    """)
    stamp(P, 7)
    P(f"""
    L_kpoll:
    buffer_load_dwordx4 {v(KK,4)}, v7, s[8:11], s52 offen sc1
    buffer_load_dwordx4 {v(KK+4,4)}, v7, s[8:11], s53 offen sc1
    s_waitcnt vmcnt(0)
    v_bitop3_b32 v9, v{KK}, v{KK+1}, v14 bitop3:0x7e
    v_bitop3_b32 v10, v{KK+4}, v{KK+5}, v14 bitop3:0x7e
    v_bitop3_b32 v11, v{KK+2}, v{KK+6}, v14 bitop3:0x7e
    v_or3_b32 v10, v10, v9, v11
    v_and_b32 v10, 0x7fff, v10
    v_cmp_ne_u32 vcc, 0, v10
    """)
    spin_tail(P, 50, "L_kpoll", "L_kok")
    stamp(P, 8)
    if OPT["stamps"] and not OPT.get("dbgm"): P("s_mov_b32 s96, s50")
    for i in range(8):
        P(f"v_and_or_b32 v{KK+i}, v{KK+i}, s51, v{ID+i}")
    P(f"""
    v_max3_u32 v9, v{KK}, v{KK+1}, v{KK+2}
    v_max3_u32 v11, v{KK+3}, v{KK+4}, v{KK+5}
    v_max3_u32 v9, v9, v{KK+6}, v{KK+7}
    v_max_u32 v9, v9, v11
    v_max_u32_dpp v10, v9, v9 row_ror:1 row_mask:0xf bank_mask:0xf
    v_max_u32_dpp v10, v10, v10 row_ror:2 row_mask:0xf bank_mask:0xf
    v_max_u32_dpp v10, v10, v10 row_ror:4 row_mask:0xf bank_mask:0xf
    v_max_u32_dpp v10, v10, v10 row_ror:8 row_mask:0xf bank_mask:0xf
    ds_write_b32 v5, v10 offset:{L_GM}
    L_tk2:
    s_waitcnt lgkmcnt(0)
    s_barrier
    s_cmp_ge_u32 s{sWV}, 4
    s_cbranch_scc1 L_tk3
    """)
    def rank16(off, own):
        P(f"ds_read_b32 v{own}, v15 offset:{off}")
        P(f"ds_read_b128 {v(CB,4)}, v43 offset:{off}")
    def rank16b(own, acc):
        P("s_waitcnt lgkmcnt(0)")
        for i in range(4): P(f"v_sub_u32 v{CB+i}, v{own}, v{CB+i}")
        P(f"v_lshrrev_b32 v{acc}, 31, v{CB}")
        for i in range(1, 4): P(f"v_alignbit_b32 v{acc}, v{acc}, v{CB+i}, 31")
        P(f"""
        v_bcnt_u32_b32 v{acc}, v{acc}, 0
        v_mov_b32 v{CB}, v{acc}
        v_permlane16_swap_b32 v{acc}, v{CB}
        v_add_u32 v{acc}, v{acc}, v{CB}
        v_mov_b32 v{CB}, v{acc}
        v_permlane32_swap_b32 v{acc}, v{CB}
        v_add_u32 v{acc}, v{acc}, v{CB}
        """)
    rank16(L_GM, 10)
    rank16b(10, 11)
    P(f"""
    v_cmp_eq_u32 vcc, 7, v11
    s_ff1_i32_b64 s47, vcc
    v_readlane_b32 s48, v10, s47
    L_tkagain:
    v_mov_b32 v10, v9
    L_app:
    v_cmp_le_i32 vcc, s48, v10
    s_cbranch_vccz L_tk3
    s_mov_b64 exec, vcc
    ds_add_rtn_u32 v11, v12, v13
    s_mov_b64 exec, -1
    v_add_u32 v{K4+8}, -1, v10
    """)
    for i in range(8): P(f"v_sub_u32 v{K4+i}, v{K4+8}, v{KK+i}")
    P(f"""
    v_min3_u32 v{K4}, v{K4}, v{K4+1}, v{K4+2}
    v_min3_u32 v{K4+3}, v{K4+3}, v{K4+4}, v{K4+5}
    v_min3_u32 v{K4}, v{K4}, v{K4+6}, v{K4+7}
    v_min3_u32 v{K4}, v{K4}, v{K4+3}, v10
    s_waitcnt lgkmcnt(0)
    v_min_u32 v11, 16, v11
    v_lshlrev_b32 v11, 2, v11
    s_mov_b64 exec, vcc
    ds_write_b32 v11, v10 offset:{L_LIST}
    v_sub_u32 v10, v{K4+8}, v{K4}
    s_mov_b64 exec, -1
    s_branch L_app
    L_pad0:
    s_branch L_pad1
    L_fchk:
    s_cmp_lt_u32 s{sIDX}, 108
    s_cbranch_scc1 L_tk2
    v_mul_u32_u24 v11, {KST}, v{vL}
    s_mov_b32 s49, {FLAGS}
    s_mov_b32 s47, {FLAGS+64*KST}
    s_mov_b32 s50, 0
    L_dpoll:
    buffer_load_dword v9, v11, s[8:11], s49 offen sc1
    buffer_load_dword v10, v11, s[8:11], s47 offen sc1
    s_waitcnt vmcnt(0)
    v_bitop3_b32 v9, v9, v10, v14 bitop3:0x7e
    v_cmp_ne_u32 vcc, 0, v9
    """)
    spin_tail(P, 50, "L_dpoll", "L_dok")
    P("s_branch L_tk2")
    P(f"""
    L_tk3:
    s_waitcnt lgkmcnt(0)
    s_barrier
    ds_read_b32 v{K4+9}, v12
    """)
    rank16(L_LIST, 10)
    rank16b(10, 11)
    P(f"""
    v_cmp_gt_u32 vcc, 8, v11
    v_readfirstlane_b32 s47, v{K4+9}
    v_lshlrev_b32 v11, 2, v11
    s_mov_b64 exec, vcc
    ds_write_b32 v11, v10 offset:{L_SEL}
    s_mov_b64 exec, -1
    s_cmp_le_u32 s47, 16
    s_cbranch_scc1 L_tkdone
    ds_read_b32 v10, v12 offset:{L_SEL+28}
    s_waitcnt lgkmcnt(0)
    s_barrier
    v_readfirstlane_b32 s48, v10
    v_mov_b32 v11, -1
    ds_write_b32 v12, v12
    ds_write_b32 v15, v11 offset:{L_LIST}
    s_waitcnt lgkmcnt(0)
    s_barrier
    s_cmp_ge_u32 s{sWV}, 4
    s_cbranch_scc1 L_tk3
    s_branch L_tkagain
    L_pad1:
    s_branch L_pad2
    L_tkdone:
    s_cmp_ge_u32 s{sIDX}, 108
    s_cbranch_scc1 L_f2
    """)
    P(f"""
    s_cmp_eq_u32 s{sWV}, 5
    s_cbranch_scc1 L_f1fin
    s_cmp_gt_u32 s{sWV}, 5
    s_cbranch_scc1 L_fin2
    v_lshrrev_b32 v11, 1, v{vN}
    v_lshlrev_b32 v11, 2, v11
    ds_read_b32 v9, v11 offset:{L_SEL}
    v_and_b32 v10, 1, v{vN}
    v_lshl_add_u32 v10, v{vQ}, 1, v10
    v_lshlrev_b32 v10, 4, v10
    s_lshl_b32 s49, s{sWV}, 8
    s_movk_i32 s51, 1280
    v_lshlrev_b32 v15, 7, v{vQ}
    v_lshl_add_u32 v15, v{vN}, 2, v15
    v_lshl_add_u32 v15, v{vW}, 10, v15
    v_add_u32 v15, {L_RED}, v15
    s_waitcnt lgkmcnt(0)
    """)
    stamp(P, 10)
    P(f"""
    v_and_b32 v9, 2047, v9
    v_mad_u32_u24 v9, v9, s51, v10
    s_mov_b32 s50, 0
    L_gretry:
    buffer_load_dwordx4 {v(AR,4)}, v9, s[12:15], s49 offen sc1
    buffer_load_dwordx4 {v(AR+4,4)}, v9, s[12:15], s49 offen offset:128 sc1
    """)
    for b in range(2):
        P(f"s_waitcnt vmcnt({1-b})")
        for gu in range(2):
            for h in range(2):
                acc = A0 + 8*gu + 4*h
                P(f"v_mfma_f32_16x16x32_bf16 {v(acc,4)}, {v(AR+4*b,4)}, {v(BW+16*gu+8*b+4*h,4)}, {'0' if b==0 else v(acc,4)}")
            if b == 0 and gu == 0: P(f"v_max3_u32 v10, v{AR}, v{AR+1}, v{AR+2}")
            if b == 1 and gu == 0:
                P(f"v_max3_u32 v10, v10, v{AR+3}, v{AR+4}")
                P(f"v_max3_u32 v10, v10, v{AR+5}, v{AR+6}")
            if b == 1 and gu == 1: P(f"v_max_u32 v10, v10, v{AR+7}")
    P(f"v_cmp_eq_u32 vcc, -1, v10")
    spin_tail(P, 50, "L_gretry", "L_gok")
    stamp(P, 11)
    P(f"""
    v_add_f32 v{A0}, v{A0}, v{A0+5}
    v_add_f32 v{A0+2}, v{A0+2}, v{A0+7}
    ds_write2_b32 v15, v{A0}, v{A0+2} offset0:0 offset1:16
    v_add_f32 v{A0+8}, v{A0+8}, v{A0+13}
    v_add_f32 v{A0+10}, v{A0+10}, v{A0+15}
    ds_write2_b32 v15, v{A0+8}, v{A0+10} offset0:128 offset1:144
    s_waitcnt lgkmcnt(0)
    s_barrier
    s_branch L_fin
    L_pad2:
    s_branch L_pad3
    """)
    D = 16
    P(f"""
    L_f1fin:
    v_lshrrev_b32 v11, 3, v{vL}
    v_lshlrev_b32 v11, 2, v11
    ds_read_b32 v9, v11 offset:{L_SEL}
    v_and_b32 v13, 7, v{vL}
    v_lshlrev_b32 v13, 3, v13
    """)
    for w in range(5):
        P(f"ds_read_b64 {v(D+4*w,2)}, v13 offset:{L_CS+128*w}")
        P(f"ds_read_b64 {v(D+4*w+2,2)}, v13 offset:{L_CS+128*w+64}")
    P(f"""
    s_mov_b32 s49, {STATS}
    s_waitcnt lgkmcnt(10)
    v_and_b32 v9, 2047, v9
    v_lshlrev_b32 v9, 6, v9
    buffer_load_dwordx4 {v(40,4)}, v9, s[8:11], s49 offen sc1
    s_mov_b32 s50, 0
    v_lshlrev_b32 v13, 3, v{vL}
    s_waitcnt lgkmcnt(0)
    """)
    for w in range(1, 5):
        P(f"v_pk_add_f32 {v(D,2)}, {v(D,2)}, {v(D+4*w,2)}")
        P(f"v_pk_add_f32 {v(D+2,2)}, {v(D+2,2)}, {v(D+4*w+2,2)}")
    P(f"""
    s_branch L_swait
    L_sretry:
    buffer_load_dwordx4 {v(40,4)}, v9, s[8:11], s49 offen sc1
    L_swait:
    s_waitcnt vmcnt(0)
    v_cmp_ne_u32 vcc, v14, v42
    """)
    spin_tail(P, 50, "L_sretry", "L_sok")
    P(f"""
    s_lshl_b32 s49, s{sIDX}, 8
    s_add_u32 s49, s49, {ACT}
    v_mul_f32 v44, -v40, v{D}
    v_mul_f32 v45, -v40, v{D+1}
    v_mul_f32 v46, -v40, v{D+2}
    v_mul_f32 v47, -v40, v{D+3}
    v_mul_f32 v42, {f2u(-1.4426950408889634)}, v41
    v_mul_f32 v43, v41, v41
    s_barrier
    """)
    for w in range(5): P(f"ds_read_b64 {v(D+4*w,2)}, v13 offset:{L_RED+1024*w}")
    for w in range(5): P(f"ds_read_b64 {v(D+4*w+2,2)}, v13 offset:{L_RED+1024*w+512}")
    P(f"""
    s_waitcnt lgkmcnt(7)
    v_pk_add_f32 {v(44,2)}, {v(44,2)}, {v(D,2)}
    v_pk_add_f32 {v(D+4,2)}, {v(D+4,2)}, {v(D+8,2)}
    s_waitcnt lgkmcnt(5)
    v_pk_add_f32 {v(D+12,2)}, {v(D+12,2)}, {v(D+16,2)}
    v_pk_add_f32 {v(44,2)}, {v(44,2)}, {v(D+4,2)}
    v_pk_add_f32 {v(44,2)}, {v(44,2)}, {v(D+12,2)}
    v_mul_f32 v{D}, v42, v44
    v_mul_f32 v{D+1}, v42, v45
    v_exp_f32 v{D}, v{D}
    v_exp_f32 v{D+1}, v{D+1}
    s_waitcnt lgkmcnt(0)
    v_pk_add_f32 {v(46,2)}, {v(46,2)}, {v(D+2,2)}
    v_pk_add_f32 {v(D+6,2)}, {v(D+6,2)}, {v(D+10,2)}
    v_add_f32 v{D}, 1.0, v{D}
    v_add_f32 v{D+1}, 1.0, v{D+1}
    v_pk_add_f32 {v(D+14,2)}, {v(D+14,2)}, {v(D+18,2)}
    v_rcp_f32 v{D}, v{D}
    v_rcp_f32 v{D+1}, v{D+1}
    v_pk_add_f32 {v(46,2)}, {v(46,2)}, {v(D+6,2)}
    v_mul_f32 v44, v44, v43
    v_mul_f32 v45, v45, v43
    v_pk_add_f32 {v(46,2)}, {v(46,2)}, {v(D+14,2)}
    v_pk_mul_f32 {v(44,2)}, {v(44,2)}, {v(D,2)}
    v_pk_mul_f32 {v(44,2)}, {v(44,2)}, {v(46,2)}
    v_cvt_pk_bf16_f32 v44, v44, v45
    v_min_u32 v44, -2, v44
    buffer_store_dword v44, v{vL4}, s[8:11], s49 offen sc1
    s_branch L_fin
    L_pad3:
    s_branch L_pad4
    """)
    P(f"""
    L_f2:
    s_cmp_eq_u32 s{sWV}, 7
    s_cbranch_scc1 L_f2fin
    s_lshl_b32 s49, s{sWV}, 12
    s_add_u32 s49, s49, {ACT}
    s_mov_b32 s50, 0
    v_lshlrev_b32 v15, 8, v{vQ}
    v_lshl_add_u32 v15, v{vN}, 2, v15
    v_lshl_add_u32 v15, v{vW}, 10, v15
    v_add_u32 v15, {L_RED}, v15
    """)
    for i in range(4): P(f"v_mov_b32 v{AR+12+i}, 0")
    if OPT.get("adelay"): P("s_barrier")
    stamp(P, 10)
    P("L_a2:")
    for i in range(3):
        P(f"buffer_load_dwordx4 {v(AR+4*i,4)}, v{vL16}, s[8:11], s49 offen offset:{1024*i} sc1")
    P(f"""
    s_cmp_eq_u32 s{sWV}, 6
    s_cbranch_scc1 L_a3
    buffer_load_dwordx4 {v(AR+12,4)}, v{vL16}, s[8:11], s49 offen offset:3072 sc1
    L_a3:
    v_mov_b32 v10, 0
    """)
    for b in range(4):
        P(f"s_waitcnt vmcnt({max(0, 2-b)})")
        for h in range(2):
            for ct in range(2):
                acc = A0 + 8*ct + 4*h
                P(f"v_mfma_f32_16x16x32_bf16 {v(acc,4)}, {v(AR+4*b,4)}, {v(BW+16*b+8*h+4*ct,4)}, {'0' if b==0 else v(acc,4)}")
            P(f"v_max3_u32 v10, v10, v{AR+4*b+2*h}, v{AR+4*b+2*h+1}")
    P(f"v_cmp_eq_u32 vcc, -1, v10")
    spin_tail(P, 50, "L_a2", "L_a4")
    stamp(P, 11)
    if OPT["stamps"]: P("s_mov_b32 s94, s50")
    P(f"""
    v_add_f32 v{A0}, v{A0}, v{A0+5}
    v_add_f32 v{A0+2}, v{A0+2}, v{A0+7}
    ds_write2_b32 v15, v{A0}, v{A0+2} offset0:0 offset1:32
    v_add_f32 v{A0+8}, v{A0+8}, v{A0+13}
    v_add_f32 v{A0+10}, v{A0+10}, v{A0+15}
    ds_write2_b32 v15, v{A0+8}, v{A0+10} offset0:16 offset1:48
    s_waitcnt lgkmcnt(0)
    s_barrier
    s_branch L_fin
    L_pad4:
    s_branch L_tk2
    L_f2fin:
    v_lshrrev_b32 v11, 3, v{vL}
    v_lshlrev_b32 v11, 2, v11
    ds_read_b32 v9, v11 offset:{L_SEL}
    v_and_b32 v13, 7, v{vL}
    s_mov_b32 s50, 0
    s_waitcnt lgkmcnt(0)
    v_and_b32 v46, 2047, v9
    v_mul_u32_u24 v46, 1280, v46
    v_lshl_add_u32 v46, v13, 3, v46
    L_oretry:
    buffer_load_dwordx2 {v(44,2)}, v46, s[12:15], s58 offen sc1
    s_waitcnt vmcnt(0)
    v_max_u32 v10, v44, v45
    v_cmp_eq_u32 vcc, -1, v10
    """)
    spin_tail(P, 50, "L_oretry", "L_ook")
    if OPT.get("adelay"):
        P(f"s_sleep {OPT['adelay']}")
        P("s_barrier")
    O = 48
    P(f"""
    v_lshlrev_b32 v9, 1, v9
    v_ashrrev_i32 v10, 31, v9
    v_not_b32 v10, v10
    v_or_b32 v10, 0x80000000, v10
    v_xor_b32 v9, v9, v10
    v_and_b32 v9, 0xffff0000, v9
    v_mul_f32 v9, {f2u(-1.4426950408889634)}, v9
    v_exp_f32 v9, v9
    v_add_f32 v9, 1.0, v9
    v_rcp_f32 v47, v9
    v_lshlrev_b32 v{O}, 16, v44
    v_and_b32 v{O+1}, 0xffff0000, v44
    v_lshlrev_b32 v{O+2}, 16, v45
    v_and_b32 v{O+3}, 0xffff0000, v45
    s_barrier
    """)
    for w in range(7): P(f"ds_read_b128 {v(D+4*w,4)}, v{vL16} offset:{L_RED+1024*w}")
    def pk2(d, x):
        P(f"v_pk_add_f32 {v(d,2)}, {v(d,2)}, {v(x,2)}"); P(f"v_pk_add_f32 {v(d+2,2)}, {v(d+2,2)}, {v(x+2,2)}")
    P("s_waitcnt lgkmcnt(5)"); pk2(D, D+4)
    P("s_waitcnt lgkmcnt(3)"); pk2(D+8, D+12)
    P("s_waitcnt lgkmcnt(1)"); pk2(D+16, D+20); pk2(D, D+8)
    P("s_waitcnt lgkmcnt(0)"); pk2(D+16, D+24); pk2(D, D+16)
    for i in range(4): P(f"v_fma_f32 v{O+i}, v{D+i}, v47, v{O+i}")
    P(f"""
    v_cvt_pk_bf16_f32 v44, v{O}, v{O+1}
    v_cvt_pk_bf16_f32 v45, v{O+2}, v{O+3}
    buffer_store_dwordx2 {v(44,2)}, v46, s[12:15], s58 offen sc1
    L_fin:
    """)
    if OPT.get("padto"):
        P(f"""
        L_padt:
        s_memrealtime s[72:73]
        s_waitcnt lgkmcnt(0)
        s_sub_u32 s72, s72, s70
        s_cmp_lt_u32 s72, {OPT["padto"]}
        s_cbranch_scc1 L_padt
        """)
    P("L_fin2:")
    if OPT["stamps"]:
        P(f"""
        s_memrealtime s[{70+2*NST}:{71+2*NST}]
        s_waitcnt vmcnt(0)
        s_memrealtime s[{72+2*NST}:{73+2*NST}]
        s_waitcnt lgkmcnt(0)
        s_lshl_b32 s49, s2, 6
        s_lshl_b32 s50, s{sWV}, 14
        s_add_u32 s49, s49, s50
        s_add_u32 s49, s49, {ST_OFF}
        s_mov_b64 exec, 1
        v_mov_b32 v1, 0
        """)
        for i in range(NST+2):
            P(f"v_mov_b32 v2, s{70+2*i}")
            P(f"buffer_store_dword v2, v1, s[8:11], s49 offen offset:{4*i}")
    P("L_end:")
    P("s_endpgm")
    return name

def main(out):
    P = Prog()
    name = gen(P)
    body = P.finalize()
    hdr = f"""; fused 2D-DFT (two-stage MFMA) + LayerNorms + top-8 routed SwiGLU; written by a generator script of mine
; @launch grid=(256,1,1) block=(512,1,1) lds={L_END}
.amdgcn_target "amdgcn-amd-amdhsa--gfx950"
.text
"""
    d = f""".section .rodata,"a"
.p2align 6
.amdhsa_kernel {name}
  .amdhsa_next_free_vgpr 256
  .amdhsa_next_free_sgpr 102
  .amdhsa_accum_offset 256
  .amdhsa_group_segment_fixed_size 0
  .amdhsa_kernarg_size 104
  .amdhsa_user_sgpr_count 2
  .amdhsa_user_sgpr_kernarg_segment_ptr 1
  .amdhsa_system_sgpr_workgroup_id_x 1
.end_amdhsa_kernel
"""
    open(out, "w").write(hdr + body + d)

if __name__ == "__main__":
    for a_ in sys.argv[2:]:
        k, _, val = a_.partition("=")
        OPT[k] = int(val) if val else True
    main(sys.argv[1])
```

```python
import sys, struct
sys.path.insert(0, "work")
from asmlib import *

NAME = "sequential_preLN__spectral_fnet__moe_arch_mod__prompt"
XB = 2621440
FLAGS = 0x2c0000
KEYS = 0x8000
KST = 384
ACT = 0x18000
ZM = 0x20000
ZT = ZM + 0x200000
STATS = 0x2a0000
ST_OFF = 0x300000
WS_SZ = 0x400000
OOB = 0x1000000
SPIN = 1 << 16

L_MISC = 0
L_CNT = 0; L_TAG = 4; L_ZP = 16; L_SEL = 32; L_KREC = 64; L_GM = 128; L_LIST = 192
L_PS = 512
L_CS = 1024
L_RED = 2048
L_HT = 2048; HS = 144
L_CF = 13568
L_W = 17664
L_X = 43264
L_XR = 125184
L_WR = 145664
L_F = 146944
L_END = 146944 + 8192
L_WT = 17664
RS = 800

sGRP, sJ, sWV, sSL, sXCD, sTB, sSTR, sROW, sROWB, sIDX, sRHO, sC640, sHW = 32, 33, 34, 36, 37, 38, 39, 40, 41, 35, 44, 45, 46
vN, vQ, vW, vL, vL4, vL16 = 1, 2, 3, 4, 6, 8
sTAG = 3; sZP = 100

OPT = dict(stamps=False, xnt=1, wnt=1, cpre=1, npre=5, tail=0, pf1=1)

def f2u(x): return "0x%08x" % struct.unpack("<I", struct.pack("<f", x))[0]
NST = 14
SEC = ["p1"]
def stamp(P, i):
    if OPT["stamps"]: P(f"s_memrealtime s[{70+2*i}:{71+2*i}]")
    if OPT.get("padfrom") == {"p1": 0, "m": 100, "p2": 200, "ffn": 300}[SEC[0]] + i and i: P("s_memrealtime s[70:71]")

def bf16_round(r):
    return [f"v_cvt_pk_bf16_f32 {v(r)}, {v(r)}, {v(r)}", f"v_lshlrev_b32 {v(r)}, 16, {v(r)}"]

def spin_tail(P, cnt, again, ok):
    P(f"""
    s_add_u32 s{cnt}, s{cnt}, 1
    s_cmp_gt_u32 s{cnt}, {SPIN}
    s_cbranch_scc1 {ok}
    s_cbranch_vccnz {again}
    {ok}:
    """)

def cheb2(P, T, k):
    for i in range(2, 8):
        P(f"v_fma_f32 v{T+i}, v{k}, v{T+i-1}, -v{T+i-2}")
        P(f"v_fma_f32 v{T+8+i}, v{k}, v{T+8+i-1}, -v{T+8+i-2}")

def gen(P):
    name = NAME + "_kernel"
    xnt = " nt" if OPT["xnt"] else ""
    wnt = " nt" if OPT["wnt"] else ""
    P.raw(".p2align 12"); P.raw(".fill 0x340, 4, 0xbf810000")
    P.raw(f".globl {name}"); P.raw(".p2align 8"); P.raw(f".type {name},@function"); P.raw(f"{name}:")
    P("L_start:")
    stamp(P, 0)
    if OPT.get("padto"): P("s_memrealtime s[70:71]")
    def ptrs():
        P(f"""
        s_load_dwordx2 s[12:13], s[0:1], 80
        s_load_dwordx2 s[16:17], s[0:1], 48
        s_load_dwordx2 s[20:21], s[0:1], 56
        s_load_dwordx2 s[24:25], s[0:1], 64
        s_load_dwordx2 s[28:29], s[0:1], 72
        """)
    ZP = [66, 67, 42, 68]
    MK = 24
    def tagcalc():
        P(f"""
        s_mul_i32 s{sTAG}, s{sTAG}, 0x9e3779b1
        s_add_u32 s{sTAG}, s{sTAG}, 0x7f4a7c15
        v_mov_b32 v14, s{sTAG}
        """)
        for i in range(3):
            P(f"s_bfe_u32 s43, s{sTAG}, {hex((2<<16) | (2*i))}")
            P(f"s_mul_i32 s43, s43, 0x8001")
            P(f"s_and_b32 s{ZP[i]}, s43, 0x10001")
        P(f"s_xor_b32 s68, s66, 0x10001")
    def consts():
        P(f"""
        s_mov_b64 s[12:13], s[26:27]
        s_mov_b64 s[16:17], s[18:19]
        s_mov_b64 s[28:29], s[24:25]
        s_mov_b64 s[24:25], s[22:23]
        s_mov_b32 s14, {XB}
        s_mov_b32 s15, 0x20000
        s_mov_b32 s18, 1280
        s_mov_b32 s19, 0x20000
        s_mov_b32 s22, {640*3456}
        s_mov_b32 s23, 0x20000
        s_mov_b32 s26, {640*3456}
        s_mov_b32 s27, 0x20000
        s_mov_b32 s30, {1728*1280}
        s_mov_b32 s31, 0x20000
        v_lshlrev_b32 v{vL4}, 2, v{vL}
        v_mov_b32 v13, 0
        s_and_b32 s43, s{sJ}, 3
        s_lshr_b32 s{sIDX}, s2, 6
        s_lshl3_add_u32 s{sIDX}, s{sIDX}, s{sXCD}
        s_lshl2_add_u32 s{sIDX}, s{sIDX}, s43
        s_cmp_eq_u32 s{sGRP}, 0
        s_cselect_b32 s{sSTR}, 32, 64
        s_lshl_b32 s{sTB}, s{sSTR}, 3
        s_mul_i32 s{sTB}, s{sTB}, s43
        s_add_u32 s{sTB}, s{sTB}, s{sGRP}
        """)
    def rows4(dst=92):
        for pr in range(2):
            sa, sb = 56 + 2*pr, 57 + 2*pr
            P(f"""
            s_add_u32 s{sa}, s{sHW}, {4*pr}
            s_mul_i32 s{sa}, s{sa}, s{sSTR}
            s_add_u32 s{sa}, s{sa}, s{sTB}
            s_sub_u32 s{sb}, 2048, s{sa}
            s_cmp_eq_u32 s{sa}, 0
            s_cselect_b32 s{sb}, 1024, s{sb}
            s_mul_i32 s{sa}, s{sa}, 1280
            s_mul_i32 s{sb}, s{sb}, 1280
            """)
        P(f"""
        v_mov_b32 v10, s56
        v_mov_b32 v9, s57
        v_mov_b32 v11, s58
        v_mov_b32 v12, s59
        v_mov_b32_dpp v10, v9 quad_perm:[0,1,2,3] row_mask:0x2 bank_mask:0xf
        s_movk_i32 s62, 1024
        v_mov_b32_dpp v10, v11 quad_perm:[0,1,2,3] row_mask:0x4 bank_mask:0xf
        v_mov_b32_dpp v10, v12 quad_perm:[0,1,2,3] row_mask:0x8 bank_mask:0xf
        v_lshl_add_u32 v{dst}, v{vN}, 4, v10
        """)
    def statconsts(ON, IX):
        P(f"""
        v_mov_b32 v{ON}, 0x3f803f80
        v_mov_b32 v{ON+1}, 0x3f803f80
        v_mov_b32 v{ON+2}, 0x3f803f80
        v_mov_b32 v{ON+3}, 0x3f803f80
        v_and_b32 v9, 1, v{vN}
        v_mul_u32_u24 v{IX}, 0xaaaa, v9
        v_or_b32 v{IX}, 0x4444, v{IX}
        v_lshl_or_b32 v{IX}, v{IX}, 16, v{IX}
        v_and_b32 v9, 3, v{vN}
        v_cmp_eq_u32 s[60:61], 1, v9
        v_cmp_eq_u32 s[50:51], 2, v9
        v_cmp_eq_u32 s[66:67], 3, v9
        v_lshrrev_b32 v9, 2, v{vN}
        v_cmp_eq_u32 s[68:69], v9, v{vQ}
        """)
    def statwrite(G, S, A):
        P(f"""
        v_cndmask_b32 v{G}, v{G}, v{G+1}, s[60:61]
        v_cndmask_b32 v{G}, v{G}, v{G+2}, s[50:51]
        v_cndmask_b32 v{G}, v{G}, v{G+3}, s[66:67]
        v_add_f32 v{G+1}, v{S}, v{S+1}
        s_mov_b64 exec, s[68:69]
        ds_write_b64 v{A}, {v(G,2)} offset:{L_PS}
        s_mov_b64 exec, -1
        """)
    P(f"""
    s_load_dwordx2 s[4:5], s[0:1], 0
    s_load_dwordx2 s[8:9], s[0:1], 96
    s_load_dwordx16 s[16:31], s[0:1], 40
    s_mov_b32 s10, {WS_SZ}
    s_mov_b32 s11, 0x20000
    v_lshrrev_b32 v{vW}, 6, v0
    s_cmp_ge_u32 s2, 256
    s_cbranch_scc1 L_end
    v_readfirstlane_b32 s{sWV}, v{vW}
    s_bfe_u32 s{sJ}, s2, 0x30003
    v_and_b32 v{vL}, 63, v0
    v_and_b32 v{vN}, 15, v0
    v_bfe_u32 v{vQ}, v0, 4, 2
    s_and_b32 s{sXCD}, s2, 7
    s_lshr_b32 s43, s2, 7
    s_lshl1_add_u32 s{sGRP}, s{sXCD}, s43
    s_sub_u32 s43, 32, s{sGRP}
    s_cmp_eq_u32 s{sGRP}, 0
    s_cselect_b32 s43, 16, s43
    s_bitcmp1_b32 s2, 6
    s_cselect_b32 s{sGRP}, s43, s{sGRP}
    s_mul_i32 s{sRHO}, s{sJ}, 5
    s_lshr_b32 s{sRHO}, s{sRHO}, 2
    s_and_b32 s{sHW}, s{sWV}, 3
    s_mov_b32 s{sC640}, {f2u(1.0/640)}
    v_lshlrev_b32 v{vL16}, 4, v{vL}
    s_cmp_ge_u32 s{sWV}, 4
    s_cbranch_scc1 L_W
    """)
    if OPT["cpre"]:
        P(f"""
        s_cmp_ge_u32 s{sWV}, 2
        s_cbranch_scc1 L_Mx
        s_getpc_b64 s[42:43]
        L_pc:
        v_lshlrev_b32 v10, 7, v0
        v_add_u32 v10, 896, v10
        v_min_u32 v10, L_end-L_pc, v10
        v_mov_b32 v11, s43
        v_add_co_u32 v10, vcc, s42, v10
        v_addc_co_u32 v11, vcc, 0, v11, vcc
        global_load_dword v15, v[10:11], off
        """)
    P(f"""
    L_Mx:
    v_lshrrev_b32 v9, 3, v{vL}
    s_lshl_b32 s47, s{sHW}, 4
    v_add_u32 v5, s47, v9
    v_mul_u32_u24 v5, 40960, v5
    v_xor_b32 v9, v9, v{vL}
    v_and_b32 v9, 7, v9
    v_lshl_add_u32 v5, v9, 4, v5
    v_add_u32 v7, {8*40960}, v5
    s_mul_i32 s50, s{sGRP}, 1280
    s_add_u32 s47, s50, 1280
    s_lshr_b32 s52, s{sWV}, 2
    s_mul_i32 s52, s52, 5
    s_add_u32 s48, s{sRHO}, s52
    s_cmp_ge_u32 s48, 10
    s_cselect_b32 s49, 10, 0
    s_sub_u32 s48, s48, s49
    s_lshl_b32 s48, s48, 7
    s_add_u32 s48, s48, s50
    s_mul_i32 s49, s{sHW}, 20480
    s_add_u32 s49, s49, {L_X}
    s_lshl_b32 s52, s52, 11
    s_add_u32 m0, s49, s52
    s_mov_b32 s6, {XB}
    s_mov_b32 s7, 0x20000
    s_mov_b32 s52, 5
    s_waitcnt lgkmcnt(0)
    """)
    stamp(P, 1)
    P(f"""
    s_cmp_ge_u32 s{sWV}, 4
    s_cbranch_scc1 L_H1
    L_xl:
    buffer_load_dwordx4 v5, s[4:7], s48 offen{xnt} lds
    s_add_u32 m0, m0, 1024
    s_add_u32 s51, s48, 128
    buffer_load_dwordx4 v7, s[4:7], s48 offen{xnt} lds
    s_add_u32 m0, m0, 1024
    s_cmp_eq_u32 s51, s47
    s_cselect_b32 s48, s50, s51
    s_sub_u32 s52, s52, 1
    s_cmp_lg_u32 s52, 0
    s_cbranch_scc1 L_xl
    s_cmp_ge_u32 s{sWV}, 4
    s_cbranch_scc1 L_H2
    s_cmp_lg_u32 s{sWV}, 3
    s_cbranch_scc1 L_M
    """)
    T = 32; K8 = 76; a_, b_, c_, d_ = 78, 79, 80, 81
    P(f"""
    L_W:
    s_cmp_eq_u32 s{sJ}, 0
    s_cselect_b32 s53, 8, s{sJ}
    s_lshl_b32 s54, s{sRHO}, 6
    v_and_b32 v26, 7, v{vN}
    v_lshl_add_u32 v26, v26, 3, s53
    v_lshrrev_b32 v{c_}, 3, v{vN}
    v_lshl_add_u32 v27, v{vQ}, 1, s54
    v_cvt_f32_u32 v{c_}, v{c_}
    s_cmp_ge_u32 s{sWV}, 4
    s_cselect_b32 s52, s{sHW}, 4
    v_mul_f32 v{c_}, {f2u(-0.25)}, v{c_}
    v_lshl_add_u32 v{a_}, s52, 6, v26
    v_mul_u32_u24 v{b_}, v{a_}, v27
    v_cvt_f32_u32 v{a_}, v{a_}
    v_cvt_f32_u32 v{b_}, v{b_}
    v_mul_f32 v{a_}, s{sC640}, v{a_}
    v_fma_f32 v{b_}, v{b_}, s{sC640}, v{c_}
    v_mul_f32 v{K8}, {f2u(8.0)}, v{a_}
    v_fract_f32 v{T}, v{b_}
    s_mul_i32 s55, s52, 5120
    v_add_f32 v{T+2}, v{T}, v{a_}
    v_add_f32 v{T+4}, v{T}, v{K8}
    v_add_f32 v{T+6}, v{T+2}, v{K8}
    v_cos_f32 v{K8}, v{K8}
    """)
    for i in range(4):
        P(f"v_sin_f32 v{T+2*i+1}, -v{T+2*i}")
        P(f"v_cos_f32 v{T+2*i}, v{T+2*i}")
    P(f"""
    v_add_f32 v{K8}, v{K8}, v{K8}
    v_add_u32 v{d_}, s55, v{vL16}
    v_mov_b32 v{K8+1}, v{K8}
    """)
    for kp in range(5):
        if kp:
            for c in (2*kp, 2*kp+1):
                for i in range(2):
                    P(f"v_pk_fma_f32 {v(T+4*c+2*i,2)}, {v(K8,2)}, {v(T+4*c-4+2*i,2)}, {v(T+4*c-8+2*i,2)} neg_lo:[0,0,1] neg_hi:[0,0,1]")
        pk = 84 + 4*(kp & 1)
        for i in range(4): P(f"v_cvt_pk_f16_f32 v{pk+i}, v{T+8*kp+2*i}, v{T+8*kp+2*i+1}")
        P(f"ds_write_b128 v{d_}, {v(pk,4)} offset:{L_W + 1024*kp}")
    P(f"""
    s_cmp_lt_u32 s{sWV}, 4
    s_cbranch_scc1 L_M
    """)
    XF = 16; G = 32; S = 36; ON = 40; IX = 44; PZ = 60
    P(f"""
    s_branch L_Mx
    L_H1:
    s_load_dword s{sTAG}, s[8:9], 0
    """)
    T = 64; F = 80; PZ = 152
    P(f"""
    v_lshrrev_b32 v9, 1, v{vN}
    v_lshl_add_u32 v9, s{sHW}, 3, v9
    v_and_b32 v11, 1, v{vN}
    v_lshl_add_u32 v10, v9, 1, v11
    v_cmp_eq_u32 vcc, 1, v10
    v_cndmask_b32 v9, v9, 32, vcc
    v_cndmask_b32 v11, v11, 0, vcc
    v_cvt_f32_u32 v9, v9
    v_cvt_f32_u32 v11, v11
    v_mul_f32 v9, {f2u(1.0/64)}, v9
    v_mul_f32 v11, {f2u(-0.25)}, v11
    v_lshlrev_b32 v10, 3, v{vQ}
    v_cvt_f32_u32 v10, v10
    v_cos_f32 v12, v9
    v_fma_f32 v{T}, v9, v10, v11
    v_add_f32 v10, {f2u(32.0)}, v10
    v_fma_f32 v{T+8}, v9, v10, v11
    v_add_f32 v{T+1}, v{T}, v9
    v_add_f32 v{T+9}, v{T+8}, v9
    v_cos_f32 v{T}, v{T}
    v_cos_f32 v{T+1}, v{T+1}
    v_cos_f32 v{T+8}, v{T+8}
    v_cos_f32 v{T+9}, v{T+9}
    v_add_f32 v12, v12, v12
    """)
    cheb2(P, T, 12)
    for i in range(8): P(f"v_cvt_pk_f16_f32 v{F+i}, v{T+2*i}, v{T+2*i+1}")
    P(f"""
    s_lshl_b32 s43, s{sHW}, 11
    s_add_u32 s43, s43, {L_F}
    v_add_u32 v9, s43, v{vL16}
    ds_write_b128 v9, {v(F,4)}
    ds_write_b128 v9, {v(F+4,4)} offset:1024
    """)
    consts()
    P(f"""
    v_mov_b32 v{PZ}, -1
    v_mov_b32 v{PZ+1}, -1
    v_mov_b32 v{PZ+2}, -1
    v_mov_b32 v{PZ+3}, -1
    v_mul_u32_u24 v150, 3456, v{vL}
    v_mul_u32_u24 v151, 1280, v{vL}
    """)
    rows4(107)
    P(f"""
    s_mul_i32 s53, s{sHW}, 5120
    s_mul_i32 s54, s{sHW}, 320
    s_and_b32 s63, s{sJ}, 3
    s_lshl2_add_u32 s63, s63, s{sHW}
    s_mul_i32 s64, s63, {40*3456}
    s_lshr_b32 s43, s{sIDX}, 2
    s_lshl_b32 s43, s43, 7
    s_add_u32 s64, s64, s43
    s_and_b32 s63, s63, 7
    s_mul_i32 s65, s63, {216*1280}
    s_sub_u32 s43, s{sIDX}, 108
    s_lshr_b32 s43, s43, 1
    s_lshl_b32 s43, s43, 7
    s_add_u32 s65, s65, s43
    s_lshl2_add_u32 s63, s{sIDX}, s{sHW}
    s_lshl_b32 s63, s63, 6
    s_add_u32 s63, s63, {ACT}
    """)
    N2 = OPT.get("pf2a", 1)
    def chores():
        P(f"""
        s_cmp_ge_u32 s{sJ}, 4
        s_cbranch_scc1 L_ch1
        """)
        P(f"s_add_u32 m0, s53, {L_XR}")
        for i in range(4):
            P(f"buffer_load_dwordx4 v{vL16}, s[4:7], s{56+i} offen lds")
            P("s_add_u32 m0, m0, 1024")
        P(f"""
        buffer_load_dwordx4 v107, s[4:7], s62 offen lds
        s_add_u32 m0, s54, {L_WR}
        s_mov_b64 exec, 0xfffff
        buffer_load_dwordx4 v{vL16}, s[16:19], s54 offen lds
        s_mov_b64 exec, -1
        """)
        for i in range(4): P(f"buffer_store_dwordx4 {v(PZ,4)}, v{vL16}, s[12:15], s{56+i} offen sc1")
        P(f"""
        buffer_store_dwordx4 {v(PZ,4)}, v107, s[12:15], s62 offen sc1
        s_waitcnt vmcnt(11)
        s_branch L_ch3
        L_ch1:
        s_cmp_ge_u32 s{sIDX}, 108
        s_cbranch_scc1 L_ch2
        s_mov_b64 exec, 15
        buffer_store_dwordx4 {v(PZ,4)}, v{vL16}, s[8:11], s63 offen sc1
        s_mov_b32 exec_lo, -1
        s_mov_b32 exec_hi, 0xff
        buffer_load_dword v253, v150, s[20:23], s64 offen{wnt}
        buffer_load_dword v253, v150, s[24:27], s64 offen{wnt}
        s_waitcnt vmcnt(3)
        s_branch L_ch3
        L_ch2:
        s_mov_b32 exec_hi, 0x3fffff
        """)
        for i in range(N2):
            P(f"buffer_load_dword v253, v151, s[28:31], s65 offen{wnt}")
            P(f"s_add_u32 s65, s65, {54*1280}")
        P(f"""
        s_waitcnt vmcnt({N2})
        L_ch3:
        s_mov_b64 exec, -1
        """)
    P(f"""
    v_xor_b32 v11, v{vQ}, v{vN}
    v_and_b32 v11, 7, v11
    v_lshlrev_b32 v11, 4, v11
    v_lshl_add_u32 v11, v{vN}, 7, v11
    v_add_u32 v11, s49, v11
    v_xor_b32 v12, 64, v11
    v_lshl_add_u32 v10, s{sHW}, 4, v{vN}
    v_lshlrev_b32 v10, 3, v10
    s_cmp_eq_u32 s{sJ}, 0
    s_cselect_b32 s55, {f2u(-8.0)}, 0
    v_mov_b32 v{S}, 0
    v_mov_b32 v{S+1}, 0
    v_mov_b32 v{S+2}, 0
    v_mov_b32 v{S+3}, 0
    """)
    P("""
    s_barrier
    s_branch L_xl
    L_H2:
    """)
    stamp(P, 2)
    statconsts(ON, IX)
    def hrd(b):
        x = XF + 8*(b & 1)
        P(f"s_waitcnt vmcnt({2*(9-b)})")
        P(f"ds_read_b128 {v(x,4)}, v11 offset:{2048*b}")
        P(f"ds_read_b128 {v(x+4,4)}, v12 offset:{2048*b}")
    def gram(b):
        x = XF + 8*(b & 1)
        P(f"v_mfma_f32_16x16x32_bf16 {v(G,4)}, {v(x,4)}, {v(x,4)}, {'0' if b==5 else v(G,4)}")
        P(f"v_smfmac_f32_16x16x64_bf16 {v(S,4)}, {v(ON,4)}, {v(x,8)}, v{IX}")
        P(f"v_mfma_f32_16x16x32_bf16 {v(G,4)}, {v(x+4,4)}, {v(x+4,4)}, {v(G,4)}")
    hrd(5); hrd(6)
    P("s_waitcnt lgkmcnt(2)"); gram(5)
    hrd(7)
    P("s_waitcnt lgkmcnt(2)"); gram(6)
    hrd(8)
    P("s_waitcnt lgkmcnt(2)"); gram(7)
    chores()
    P(f"""
    ds_read_b128 {v(XF+8,4)}, v11 offset:{2048*9}
    ds_read_b128 {v(XF+12,4)}, v12 offset:{2048*9}
    s_setprio 3
    s_barrier
    ds_read_b64 {v(46,2)}, v10 offset:{L_PS}
    s_waitcnt lgkmcnt(3)
    """)
    gram(8)
    P("s_waitcnt lgkmcnt(0)")
    gram(9)
    P(f"""
    v_add3_f32 v{S}, v{S}, v{S+1}, v47
    v_cndmask_b32 v{G}, v{G}, v{G+1}, s[60:61]
    v_mul_f32 v{S}, s{sC640}, v{S}
    v_cndmask_b32 v{G}, v{G}, v{G+2}, s[50:51]
    v_mul_f32 v{S+1}, v{S}, v{S}
    v_cndmask_b32 v{G}, v{G}, v{G+3}, s[66:67]
    v_add_f32 v{G}, v{G}, v46
    v_fma_f32 v{G}, v{G}, s{sC640}, -v{S+1}
    v_max_f32 v{G}, 0, v{G}
    """.replace(f"v_add3_f32 v{S}, v{S}, v{S+1}, v47", f"v_add_f32 v{S}, v{S}, v{S+1}\n    v_add_f32 v{S}, v{S}, v47"))
    for o in bf16_round(G) + [f"v_add_f32 v{G}, {f2u(1e-5)}, v{G}"] + bf16_round(G) + [f"v_sqrt_f32 v{G}, v{G}", f"v_mul_f32 v{S}, s55, v{S}"] + bf16_round(G): P(o)
    P(f"""
    v_rcp_f32 v{G}, v{G}
    s_mov_b64 exec, s[68:69]
    v_mul_f32 v{G+1}, v{S}, v{G}
    ds_write_b64 v10, {v(G,2)} offset:{L_PS+512}
    s_mov_b64 exec, -1
    """)
    P(f"""
    s_waitcnt lgkmcnt(0)
    s_barrier
    """)
    P("s_setprio 0")
    stamp(P, 3)
    tagcalc()
    P(f"""
    v_mov_b32 v16, s{ZP[0]}
    v_mov_b32 v17, s{ZP[1]}
    v_mov_b32 v18, s{ZP[2]}
    v_mov_b32 v19, s{ZP[3]}
    ds_write_b128 v13, v[16:19] offset:{L_ZP}
    ds_write2_b32 v13, v13, v14 offset0:0 offset1:1
    v_mov_b32 v9, -1
    ds_write_b32 v{vL4}, v9 offset:{L_LIST}
    s_cmp_ge_u32 s{sJ}, 4
    s_cbranch_scc1 L_hf
    """)
    T = 32
    P(f"""
    v_and_b32 v10, 7, v{vN}
    v_mul_u32_u24 v10, s{sSTR}, v10
    v_add_u32 v10, s{sTB}, v10
    v_sub_u32 v11, 2048, v10
    v_mov_b32 v12, 1024
    v_cmp_eq_u32 vcc, 0, v10
    v_cndmask_b32 v11, v11, v12, vcc
    v_cmp_lt_u32 vcc, 7, v{vN}
    v_cndmask_b32 v10, v10, v11, vcc
    v_and_b32 v11, 63, v10
    v_bfrev_b32 v12, 1
    v_cmp_gt_u32 vcc, 32, v11
    v_cndmask_b32 v12, 0, v12, vcc
    v_lshrrev_b32 v9, 1, v11
    s_add_u32 s49, s{sHW}, s{sJ}
    s_and_b32 s49, s49, 3
    s_lshl_b32 s49, s49, 3
    """)
    for h in range(2):
        P(f"""
        v_add_u32 v11, s49, v{vQ}
        v_mul_u32_u24 v11, v11, v10
        v_cvt_f32_u32 v11, v11
        v_mul_f32 v11, {f2u(1.0/2048)}, v11
        v_cos_f32 v{T+4}, v11
        v_sin_f32 v{T+5}, v11
        s_add_u32 s49, s49, 4
        v_cvt_pk_f16_f32 v{T+2*h}, v{T+4}, v{T+5}
        v_cvt_pk_f16_f32 v{T+2*h+1}, -v{T+5}, v{T+4}
        v_xor_b32 v{T+2*h}, v12, v{T+2*h}
        v_xor_b32 v{T+2*h+1}, v12, v{T+2*h+1}
        """)
    P(f"""
    s_cmp_lg_u32 s{sGRP}, 0
    s_cbranch_scc1 L_nofix
    """)
    for i in range(4):
        P(f"v_and_b32 v{T+i}, 0xffff, v{T+i}")
        P(f"v_lshlrev_b32 v{T+i}, v9, v{T+i}")
    P(f"""
    L_nofix:
    s_lshl_b32 s49, s{sHW}, 10
    v_add_u32 v11, s49, v{vL16}
    ds_write_b128 v11, {v(T,4)} offset:{L_CF}
    """)

    P("s_waitcnt vmcnt(5) lgkmcnt(0)")
    stamp(P, 4)
    P(f"""
    s_barrier
    s_branch L_prep
    L_hf:
    s_waitcnt lgkmcnt(0)
    """)
    stamp(P, 4)
    P(f"""
    s_barrier
    s_waitcnt vmcnt(2)
    s_cmp_lt_u32 s{sIDX}, 108
    s_cbranch_scc1 L_ffn
    s_barrier
    s_mov_b32 exec_hi, 0x3fffff
    """)
    for i in range(N2, 4):
        P(f"buffer_load_dword v253, v151, s[28:31], s65 offen{wnt}")
        P(f"s_add_u32 s65, s65, {54*1280}")
    P(f"""
    s_mov_b64 exec, -1
    s_branch L_noflag
    """)

    P.raw(".p2align 12")
    WR_ = 156; XL = 16; U = 56; AD = 96; C1 = 108; F = 116; G = 124; S = 128; ON = 132; IX = 136; T = 16
    ACC = 16; UF = 36; RH = 138; OF = 140; PZ = 152; ZV = 132
    SEC[0] = "m"
    P("L_M:")
    stamp(P, 2)
    P(f"""
    v_mul_u32_u24 v9, 10, v{vQ}
    v_and_b32 v10, 7, v{vN}
    v_lshl_add_u32 v11, v{vN}, 7, s49
    """)
    for c in range(0, 10, 2):
        P(f"""
        v_xor_b32 v12, v9, v10
        v_and_b32 v{AD+c}, 7, v12
        v_lshrrev_b32 v12, 3, v12
        v_lshl_add_u32 v{AD+c}, v{AD+c}, 4, v11
        v_lshl_add_u32 v{AD+c}, v12, 11, v{AD+c}
        v_xor_b32 v{AD+c+1}, 16, v{AD+c}
        """)
        if c < 8: P("v_add_u32 v9, 2, v9")
    statconsts(ON, IX)
    P(f"""
    v_mul_u32_u24 v9, s{sJ}, v{vQ}
    v_and_b32 v10, 1, v{vN}
    v_lshlrev_b32 v10, 1, v10
    v_sub_u32 v9, v9, v10
    v_cvt_f32_i32 v9, v9
    v_mul_f32 v9, {f2u(0.125)}, v9
    v_cos_f32 v9, v9
    v_and_b32 v10, 2, v{vN}
    v_lshlrev_b32 v10, 3, v10
    v_cvt_pk_bf16_f32 v9, v9, 0
    v_lshlrev_b32 v9, v10, v9
    v_lshrrev_b32 v10, 2, v{vN}
    s_and_b32 s43, s{sJ}, 1
    s_mul_i32 s43, s43, 0x80008000
    """)
    for i in range(4):
        P(f"v_cmp_eq_u32 vcc, {i}, v10")
        P(f"v_cndmask_b32 v{C1+i}, 0, v9, vcc")
        P(f"v_xor_b32 v{C1+4+i}, s43, v{C1+i}")
    P(f"""
    v_mul_u32_u24 v143, {HS}, v{vN}
    v_lshl_add_u32 v142, v{vW}, 5, v143
    v_lshl_add_u32 v142, v{vQ}, 3, v142
    v_lshl_add_u32 v143, v{vQ}, 4, v143
    v_lshlrev_b32 v144, 17, v{vQ}
    v_lshl_add_u32 v144, v{vN}, 4, v144
    v_lshlrev_b32 v145, 7, v{vQ}
    v_lshl_add_u32 v145, v{vN}, 2, v145
    s_mov_b32 s55, 0xfffefffe
    v_and_b32 v146, 3, v{vN}
    v_lshlrev_b32 v146, 2, v146
    v_mov_b32 v13, 0
    s_lshl_b32 s43, s{sHW}, 11
    s_add_u32 s43, s43, {L_F}
    v_add_u32 v149, s43, v{vL16}
    v_lshl_add_u32 v148, v{vW}, 4, v{vN}
    v_lshlrev_b32 v148, 3, v148
    s_lshl_b32 s52, s{sHW}, 19
    s_lshl_b32 s43, s{sGRP}, 11
    s_add_u32 s52, s52, s43
    s_lshl_b32 s43, s{sJ}, 8
    s_add_u32 s52, s52, s43
    s_add_u32 s52, s52, {ZM}
    s_add_u32 s53, s52, 65536
    s_lshl_b32 s54, s{sGRP}, 3
    s_add_u32 s54, s54, s{sJ}
    s_lshl_b32 s54, s54, 2
    s_add_u32 s54, s54, s{sHW}
    s_lshl_b32 s54, s54, 9
    s_add_u32 s54, s54, {ZT}
    v_mov_b32 v{S}, 0
    v_mov_b32 v{S+1}, 0
    v_mov_b32 v{S+2}, 0
    v_mov_b32 v{S+3}, 0
    v_mov_b32 v{OF+1}, 0
    """)
    P("s_barrier")
    for f in range(20):
        P(f"ds_read_b128 {v(WR_+4*f,4)}, v{vL16} offset:{L_W + 1024*f}")
    stamp(P, 13)
    P("s_waitcnt vmcnt(0)")
    stamp(P, 3)
    for c in range(10): P(f"ds_read_b128 {v(XL+4*c,4)}, v{AD+c}")
    for c in range(0, 10, 2):
        P(f"s_waitcnt lgkmcnt({8-c})")
        x = XL + 4*c
        P(f"v_mfma_f32_16x16x32_bf16 {v(G,4)}, {v(x,4)}, {v(x,4)}, {'0' if c==0 else v(G,4)}")
        P(f"v_smfmac_f32_16x16x64_bf16 {v(S,4)}, {v(ON,4)}, {v(x,8)}, v{IX}")
        P(f"v_mfma_f32_16x16x32_bf16 {v(G,4)}, {v(x+4,4)}, {v(x+4,4)}, {v(G,4)}")
    for c in range(10):
        P(f"v_mfma_f32_16x16x32_bf16 {v(U+4*c,4)}, {v(C1,4)}, {v(XL+4*c,4)}, 0")
        if c == 3: statwrite(G, S, 148)
    P(f"""
    s_setprio 2
    s_waitcnt lgkmcnt(0)
    s_barrier
    """)
    stamp(P, 12)
    for c in range(10): P(f"ds_read_b128 {v(XL+4*c,4)}, v{AD+c} offset:10240")
    for f in range(20, 25): P(f"ds_read_b128 {v(WR_+4*f,4)}, v{vL16} offset:{L_W + 1024*f}")
    CA1 = OPT.get("ca1", 7)
    for c in range(10):
        if c == CA1:
            P("s_barrier")
            P(f"ds_read_b64 {v(RH+1,2)}, v148 offset:{L_PS+512}".replace(v(RH+1,2), v(G,2)))
        P(f"s_waitcnt lgkmcnt({min(15, 14-c + (1 if c >= CA1 else 0))})")
        P(f"v_mfma_f32_16x16x32_bf16 {v(U+4*c,4)}, {v(C1+4,4)}, {v(XL+4*c,4)}, {v(U+4*c,4)}")
    P(f"""
    s_waitcnt lgkmcnt(0)
    v_mov_b32 v{RH}, v{G}
    v_mov_b32 v{RH+1}, v{G}
    v_mov_b32 v{OF}, v{G+1}
    """)
    def conv(kp):
        o = []
        for i in range(4):
            o.append(f"v_pk_fma_f32 {v(U+8*kp+2*i,2)}, {v(U+8*kp+2*i,2)}, {v(RH,2)}, {v(OF,2)}")
        for i in range(4):
            o.append(f"v_cvt_pk_f16_f32 v{UF+4*kp+i}, v{U+8*kp+2*i}, v{U+8*kp+2*i+1}")
        return o
    for o in conv(0): P(o)
    PK = 56
    for kp in range(5):
        nxt = conv(kp+1) if kp < 4 else []
        for t in range(5):
            P(f"v_mfma_f32_16x16x32_f16 {v(ACC+4*t,4)}, {v(UF+4*kp,4)}, {v(WR_+4*(5*t+kp),4)}, {'0' if kp==0 else v(ACC+4*t,4)}")
            for _ in range(2):
                if nxt: P(nxt.pop(0))
    stamp(P, 4)
    for t in range(5):
        P(f"v_cvt_pk_f16_f32 v{PK+2*t}, v{ACC+4*t}, v{ACC+4*t+1}")
        P(f"v_cvt_pk_f16_f32 v{PK+2*t+1}, v{ACC+4*t+2}, v{ACC+4*t+3}")
        P(f"ds_write_b64 v142, {v(PK+2*t,2)} offset:{L_HT + 16*t*HS}")
    P(f"""
    s_waitcnt lgkmcnt(0)
    s_barrier
    """)
    BF = 16; DC = 70; ZO = 92
    P(f"""
    ds_read_b128 {v(F,4)}, v149
    ds_read_b128 {v(F+4,4)}, v149 offset:1024
    """)
    for t in range(5):
        for kk in range(2):
            P(f"ds_read_b128 {v(BF+8*t+4*kk,4)}, v143 offset:{L_HT + 16*t*HS + 64*kk}")
    P(f"""
    ds_read_b128 {v(ZV,4)}, v13 offset:{L_ZP}
    ds_read_b32 v147, v146 offset:{L_ZP}
    ds_read_b32 v14, v13 offset:{L_TAG}
    """)
    for t in range(5):
        c = DC + 4*t
        P(f"s_waitcnt lgkmcnt({11-2*t if t < 2 else (7 if t == 2 else 0)})")
        P(f"v_mfma_f32_16x16x32_f16 {v(c,4)}, {v(F,4)}, {v(BF+8*t,4)}, 0")
        P(f"v_mfma_f32_16x16x32_f16 {v(c,4)}, {v(F+4,4)}, {v(BF+8*t+4,4)}, {v(c,4)}")
        if t >= 2:
            for u in range(2):
                P(f"v_cvt_pk_f16_f32 v{ZO+4*u+t-2}, v{DC+4*(t-2)+2*u}, v{DC+4*(t-2)+2*u+1}")
                if t >= 3: P(f"v_and_or_b32 v{ZO+4*u+t-3}, v{ZO+4*u+t-3}, s55, v{ZV+t-3}")
    for u in range(2):
        P(f"v_and_or_b32 v{ZO+4*u+2}, v{ZO+4*u+2}, s55, v{ZV+2}")
        P(f"v_cvt_pk_f16_f32 v{ZO+4*u+3}, v{DC+12+2*u}, v{DC+12+2*u+1}")
        P(f"v_and_or_b32 v{ZO+4*u+3}, v{ZO+4*u+3}, s55, v{ZV+3}")
        P(f"buffer_store_dwordx4 {v(ZO+4*u,4)}, v144, s[8:11], s{52+u} offen sc1")
    for u in range(2):
        P(f"v_cvt_pk_f16_f32 v{ZO+8+u}, v{DC+16+2*u}, v{DC+16+2*u+1}")
        P(f"v_and_or_b32 v{ZO+8+u}, v{ZO+8+u}, s55, v147")
        P(f"buffer_store_dword v{ZO+8+u}, v145, s[8:11], s54 offen offset:{64*u} sc1")
    P("s_setprio 0")
    stamp(P, 5)
    consts()
    P(f"""
    s_cmp_ge_u32 s{sJ}, 4
    s_cbranch_scc1 L_ffn
    """)
    for i in range(4): P(f"v_readfirstlane_b32 s{ZP[i]}, v{ZV+i}")
    P(f"""
    s_branch L_prep
    L_rare:
    """)
    P.raw(".p2align 12")

    SEC[0] = "p2"
    ZR = 16; CF = 80; AC = 96; YA = 112
    P(f"""
    L_prep:
    v_mov_b32 v5, 0
    v_mov_b32 v7, 0
    s_add_u32 s69, s{sWV}, -1
    s_cmp_lt_u32 s69, 3
    s_cbranch_scc1 L_b3
    s_cmp_eq_u32 s{sWV}, 0
    s_cbranch_scc1 L_ztail
    v_lshlrev_b32 v5, 11, v{vQ}
    v_lshrrev_b32 v10, 3, v{vN}
    s_add_u32 s49, s{sHW}, s{sJ}
    s_and_b32 s49, s49, 3
    v_lshl_add_u32 v10, s49, 1, v10
    v_lshl_add_u32 v5, v10, 8, v5
    v_and_b32 v9, 7, v{vN}
    v_lshl_add_u32 v5, v9, 4, v5
    v_add_u32 v7, 128, v5
    v_lshlrev_b32 v9, 3, v9
    s_lshl_b32 s49, s{sGRP}, 16
    s_add_u32 s49, s49, {ZM}
    s_mov_b32 s48, 13
    s_mov_b32 s51, 64
    s_branch L_zcom
    L_ztail:
    v_lshrrev_b32 v10, 1, v{vN}
    v_and_b32 v9, 1, v{vN}
    """)
    if OPT.get("tail", 0) == 0:
        P(f"""
        v_lshlrev_b32 v5, 14, v{vQ}
        v_lshl_add_u32 v5, v10, 11, v5
        v_lshl_add_u32 v5, v9, 4, v5
        v_add_u32 v7, 32, v5
        s_lshl_b32 s49, s{sGRP}, 6
        s_mov_b32 s48, 16
        """)
    else:
        P(f"""
        v_lshlrev_b32 v5, 9, v{vQ}
        v_lshl_add_u32 v5, v{vN}, 4, v5
        v_add_u32 v7, 256, v5
        s_lshl_b32 s49, s{sGRP}, 14
        s_mov_b32 s48, 11
        """)
    P(f"""
    v_lshlrev_b32 v9, 5, v9
    v_add_u32 v9, 256, v9
    s_add_u32 s49, s49, {ZT}
    s_mov_b32 s51, 8
    L_zcom:
    v_cmp_eq_u32 vcc, 0, v10
    v_cndmask_b32 v10, v10, 8, vcc
    v_add_u32 v9, v9, v10
    v_and_b32 v11, 1, v{vQ}
    v_mul_u32_u24 v11, {4*RS}, v11
    v_cmp_lt_u32 s[52:53], 1, v{vQ}
    s_movk_i32 s54, 320
    """)
    for u in range(4):
        P(f"v_sub_u32 v10, 640, v9")
        if u == 3:
            P(f"v_cmp_eq_u32 vcc, s54, v9")
            P(f"v_cndmask_b32 v10, v10, 0, vcc")
        P(f"""
        v_cndmask_b32 v10, v9, v10, s[52:53]
        v_lshrrev_b32 v12, 4, v10
        v_lshl_add_u32 v10, v12, 2, v10
        v_add_lshl_u32 v{YA+u}, v10, v11, 2
        """)
        if u < 3: P(f"v_add_u32 v9, s51, v9")
    P(f"s_lshl_b32 s50, s{sJ}, 1")
    for i in range(8):
        P(f"s_add_u32 s{58+i}, s50, {i}")
        P(f"s_and_b32 s{58+i}, s{58+i}, 7")
        P(f"s_lshl_b32 s{58+i}, s{58+i}, s48")
        P(f"s_add_u32 s{58+i}, s{58+i}, s49")
    P(f"""
    s_cmp_ge_u32 s{sWV}, 4
    s_cbranch_scc1 L_lnp
    L_b3:
    """)
    P("s_waitcnt vmcnt(0) lgkmcnt(0)")
    stamp(P, 6)
    P("s_barrier")
    stamp(P, 7)
    NZB = OPT.get("nzb", 0)
    P(f"""
    s_cmp_lt_u32 s69, 3
    s_cbranch_scc1 L_lnp
    s_mov_b32 s50, 0
    """)
    def zl(i):
        P(f"buffer_load_dwordx4 {v(ZR+8*i,4)}, v5, s[8:11], s{58+i} offen sc1")
        P(f"buffer_load_dwordx4 {v(ZR+8*i+4,4)}, v7, s[8:11], s{58+i} offen sc1")
    for i in range(8):
        zl(i)
        if i == 1:
            for k in range(4):
                P(f"ds_read_b128 {v(CF+4*k,4)}, v{vL16} offset:{L_CF + 1024*k}")
        if (NZB == 3 and i in (1, 3, 5)) or (NZB == 1 and i == 3) or (NZB == 2 and i in (3, 5)): P("s_barrier")
    P(f"""
    s_cmp_ge_u32 s{sWV}, 4
    s_cbranch_scc1 L_zg0
    L_lnp:
    """)
    WF = 116; HA = 126; HB = 136; XR = 146; SW = 154
    P(f"""
    s_mul_i32 s49, s{sHW}, 5120
    s_lshr_b32 s47, s{sWV}, 2
    s_lshl_b32 s48, s47, 11
    s_add_u32 s48, s48, s49
    s_add_u32 s48, s48, {L_XR}
    s_lshl_b32 s47, s47, 9
    s_add_u32 s47, s47, s49
    s_add_u32 s47, s47, {L_XR+4096}
    v_add_u32 v160, s48, v{vL16}
    v_add_u32 v161, s47, v{vL4}
    v_add_u32 v162, {L_WR}, v{vL16}
    v_add_u32 v163, {L_WR+1024}, v{vL4}
    """)
    P(f"""
    s_mul_i32 s49, s{sWV}, {RS*4}
    s_add_u32 s49, s49, {L_W}
    v_lshrrev_b32 v9, 1, v{vL}
    v_lshlrev_b32 v9, 4, v9
    v_lshl_add_u32 v9, v{vL}, 5, v9
    v_add_u32 v{XR}, s49, v9
    v_lshrrev_b32 v9, 3, v{vL}
    v_lshlrev_b32 v9, 4, v9
    v_lshl_add_u32 v9, v{vL}, 3, v9
    v_add_u32 v{XR+1}, s49, v9
    """)
    def pos(dst, c, mul):
        P(f"""
        v_mul_u32_u24 v9, {mul}, v{vL}
        v_sub_u32 v9, {c}, v9
        v_lshrrev_b32 v10, 4, v9
        v_lshl_add_u32 v9, v10, 2, v9
        v_lshl_add_u32 v{dst}, v9, 2, s49
        """)
    pos(XR+2, 632, 8); pos(XR+3, 640, 8); pos(XR+4, 128, 2); pos(XR+5, 127, 2)
    P(f"""
    s_mul_i32 s{sROW}, s{sWV}, s{sSTR}
    s_add_u32 s{sROW}, s{sROW}, s{sTB}
    s_sub_u32 s{sROWB}, 2048, s{sROW}
    s_cmp_eq_u32 s{sROW}, 0
    s_cselect_b32 s{sROWB}, 1024, s{sROWB}
    v_mov_b32 v9, s{sROW}
    v_mov_b32 v10, s{sROWB}
    v_cmp_lt_u32 vcc, 31, v{vL}
    v_cndmask_b32 v9, v9, v10, vcc
    v_lshlrev_b32 v{XR+6}, 6, v9
    v_lshrrev_b32 v9, 5, v{vL}
    v_lshl_add_u32 v9, v9, 3, v{vW}
    v_lshlrev_b32 v{XR+7}, 2, v9
    s_mul_i32 s56, s{sROW}, 1280
    s_mul_i32 s57, s{sROWB}, 1280
    s_mul_i32 s54, s{sIDX}, {KST}
    """)
    XT = 164
    P(f"""
    ds_read_b128 {v(XT,4)}, v162
    ds_read_b32 v{XT+4}, v163
    s_waitcnt lgkmcnt(0)
    """)
    def unpack(dst):
        for i in range(5):
            P(f"v_lshlrev_b32 v{dst+2*i}, 16, v{XT+i}")
            P(f"v_and_b32 v{dst+2*i+1}, 0xffff0000, v{XT+i}")
    unpack(WF)
    P(f"""
    ds_read_b128 {v(XT,4)}, v160
    ds_read_b32 v{XT+4}, v161
    v_pk_add_f32 {v(SW,2)}, {v(WF,2)}, {v(WF+2,2)}
    v_pk_add_f32 {v(SW,2)}, {v(SW,2)}, {v(WF+4,2)}
    v_pk_add_f32 {v(SW,2)}, {v(SW,2)}, {v(WF+6,2)}
    v_pk_add_f32 {v(SW,2)}, {v(SW,2)}, {v(WF+8,2)}
    v_add_f32 v{SW}, v{SW}, v{SW+1}
    s_waitcnt lgkmcnt(0)
    """)
    unpack(HA)
    P(f"""
    ds_read_b128 {v(XT,4)}, v160 offset:1024
    ds_read_b32 v{XT+4}, v161 offset:256
    """)
    for sh in (1, 2, 4, 8):
        P(f"v_add_f32_dpp v{SW}, v{SW}, v{SW} row_shr:{sh} row_mask:0xf bank_mask:0xf bound_ctrl:0")
    P(f"v_add_f32_dpp v{SW}, v{SW}, v{SW} row_bcast:15 row_mask:0xa bank_mask:0xf")
    P(f"v_add_f32_dpp v{SW}, v{SW}, v{SW} row_bcast:31 row_mask:0xc bank_mask:0xf")
    P("s_waitcnt lgkmcnt(0)")
    unpack(HB)
    P(f"""
    v_readlane_b32 s55, v{SW}, 63
    """)
    P(f"""
    s_cmp_ge_u32 s{sWV}, 4
    s_cbranch_scc1 L_b3
    s_cmp_lg_u32 s{sWV}, 0
    s_cbranch_scc1 L_y1
    L_zg0:
    s_waitcnt lgkmcnt(0)
    L_zgo:
    v_mov_b32 v10, 0
    """)
    for k in range(4):
        z = ZR + 16*k
        def mm(u):
            P(f"v_mfma_f32_16x16x32_f16 {v(AC+4*u,4)}, {v(CF+4*k,4)}, {v(y+4*u,4)}, {'0' if k==0 else v(AC+4*u,4)}")
            P(f"v_or3_b32 v10, v10, v{y+4*u}, v{y+4*u+1}")
            P(f"v_or3_b32 v10, v10, v{y+4*u+2}, v{y+4*u+3}")
        P(f"s_waitcnt vmcnt({12 - 4*k})")
        y = 176 + 16*(k & 1)
        for u in range(4):
            for l in range(4): P(f"v_xor_b32 v{y+4*u+l}, s{ZP[u]}, v{z+4*l+u}")
            if u: mm(u-1)
        mm(3)
    P(f"v_and_b32 v10, 0x10001, v10")
    P(f"v_cmp_ne_u32 vcc, 0, v10")
    spin_tail(P, 50, "L_zretry", "L_zok")
    stamp(P, 8)
    if OPT["stamps"] and not OPT.get("dbgm"): P("s_mov_b32 s96, s50")
    for u in range(4):
        for r in range(4):
            P(f"ds_write_b32 v{YA+u}, v{AC+4*u+r} offset:{L_W + r*RS*4}")
    P(f"""
    L_y1:
    s_waitcnt lgkmcnt(0)
    s_barrier
    """)
    stamp(P, 9)
    FW = 16; RV = 28; R1 = 36
    P(f"""
    ds_read_b128 {v(FW,4)}, v{XR}
    ds_read_b128 {v(FW+4,4)}, v{XR} offset:16
    ds_read_b64 {v(FW+8,2)}, v{XR+1} offset:2560
    ds_read_b32 v{R1}, v{XR+3}
    ds_read_b128 {v(RV+4,4)}, v{XR+2} offset:16
    ds_read_b128 {v(RV,4)}, v{XR+2}
    ds_read_b32 v{R1+1}, v{XR+4}
    ds_read_b32 v{R1+2}, v{XR+5}
    """)
    rev = [R1] + [RV+7-i for i in range(7)] + [R1+1, R1+2]
    P(f"""
    s_cmp_eq_u32 s{sROW}, 0
    s_cbranch_scc1 L_special
    L_specret:
    s_waitcnt lgkmcnt(5)
    v_writelane_b32 v{FW}, 0, 0
    """)
    A1, A2, A3, B1, B2, B3 = 40, 42, 44, 46, 48, 50
    def accum(Hr, i, a1, a2, a3):
        if i == 0:
            P(f"v_pk_mul_f32 {v(a2,2)}, {v(Hr,2)}, {v(Hr,2)}")
            P(f"v_pk_mul_f32 {v(a3,2)}, {v(Hr,2)}, {v(WF,2)}")
        else:
            P(f"v_pk_add_f32 {v(a1,2)}, {v(a1 if i>1 else Hr,2)}, {v(Hr+2*i,2)}")
            P(f"v_pk_fma_f32 {v(a2,2)}, {v(Hr+2*i,2)}, {v(Hr+2*i,2)}, {v(a2,2)}")
            P(f"v_pk_fma_f32 {v(a3,2)}, {v(Hr+2*i,2)}, {v(WF+2*i,2)}, {v(a3,2)}")
    for i in range(5):
        P(f"v_pk_add_f32 {v(HA+2*i,2)}, {v(HA+2*i,2)}, {v(FW+2*i,2)}")
        accum(HA, i, A1, A2, A3)
    P("s_waitcnt lgkmcnt(0)")
    P(f"v_writelane_b32 v{R1}, 0, 0")
    for i in range(5):
        P(f"v_add_f32 v{HB+2*i}, v{HB+2*i}, v{rev[2*i]}")
        P(f"v_add_f32 v{HB+2*i+1}, v{HB+2*i+1}, v{rev[2*i+1]}")
        accum(HB, i, B1, B2, B3)
    for r in (A1, A2, A3, B1, B2, B3): P(f"v_add_f32 v{r}, v{r}, v{r+1}")
    for x_, y_ in ((A1, B1), (A2, B2), (A3, B3)): P(f"v_permlane32_swap_b32 v{x_}, v{y_}")
    S1, S2, S3 = A1, A2, A3
    for x_, y_ in ((A1, B1), (A2, B2), (A3, B3)): P(f"v_add_f32 v{x_}, v{x_}, v{y_}")
    regs = [S1, S2, S3]
    for sh in (1, 2, 4, 8):
        for r in regs: P(f"v_add_f32_dpp v{r}, v{r}, v{r} row_shr:{sh} row_mask:0xf bank_mask:0xf bound_ctrl:0")
    for r in regs: P(f"v_add_f32_dpp v{r}, v{r}, v{r} row_bcast:15 row_mask:0xa bank_mask:0xf")
    MC = 52; TM = 46
    P(f"""
    v_mul_f32 v{MC}, s{sC640}, v{S1}
    v_mul_f32 v{TM}, v{MC}, v{MC}
    v_fma_f32 v{S2}, v{S2}, s{sC640}, -v{TM}
    v_max_f32 v{S2}, 0, v{S2}
    s_mov_b32 s47, 0xffff8000
    """)
    for o in bf16_round(S2) + bf16_round(MC): P(o)
    P(f"v_add_f32 v{S2}, {f2u(1e-5)}, v{S2}")
    for o in bf16_round(S2): P(o)
    P(f"v_sqrt_f32 v{S2}, v{S2}")
    P(f"v_fma_f32 v{S3}, -v{MC}, s55, v{S3}")
    for o in bf16_round(S2): P(o)
    P(f"""
    v_add_f32 v{MC+1}, 1.0, v{S2}
    v_rcp_f32 v{S2}, v{S2}
    v_rcp_f32 v{MC+1}, v{MC+1}
    v_mul_f32 v{S3}, v{S3}, v{S2}
    v_cvt_pk_bf16_f32 v{S3}, v{S3}, v{S3}
    v_ashrrev_i32 v{TM}, 31, v{S3}
    v_or_b32 v{TM}, 0x80000000, v{TM}
    v_xor_b32 v{S3}, v{S3}, v{TM}
    v_lshrrev_b32 v{S3}, 1, v{S3}
    v_bfi_b32 v{S3}, s47, v{S3}, v14
    s_brev_b32 exec_lo, 1
    s_brev_b32 exec_hi, 1
    ds_write_b32 v{XR+7}, v{S3} offset:{L_KREC}
    v_mov_b32 v{MC+2}, v14
    v_mov_b32 v{MC+3}, v14
    v_mul_f32 v{S1}, v{MC}, v{S2}
    v_add_f32 v{S2}, 1.0, v{S2}
    s_mov_b32 s47, {STATS}
    v_readlane_b32 s51, v{S1}, 31
    v_readlane_b32 s53, v{S1}, 63
    v_readlane_b32 s50, v{S2}, 31
    v_readlane_b32 s52, v{S2}, 63
    s_waitcnt lgkmcnt(0)
    s_barrier
    s_cmp_lg_u32 s{sWV}, 3
    s_cbranch_scc1 L_nokey
    s_mov_b64 exec, 15
    ds_read_b128 {v(56,4)}, v{vL16} offset:{L_KREC}
    s_add_u32 s49, s54, {KEYS}
    s_waitcnt lgkmcnt(0)
    buffer_store_dwordx4 {v(56,4)}, v{vL16}, s[8:11], s49 offen sc1
    s_brev_b32 exec_lo, 1
    s_brev_b32 exec_hi, 1
    L_nokey:
    buffer_store_dwordx4 {v(MC,4)}, v{XR+6}, s[8:11], s47 offen sc1
    s_mov_b64 exec, -1
    v_mov_b32 v{TM}, s51
    v_mov_b32 v{TM+1}, s53
    """)
    stamp(P, 10)
    for (Hr, sc, tm, so, o) in ((HA, 50, TM, 56, 16), (HB, 52, TM+1, 57, 24)):
        for i in range(10): P(f"v_fma_f32 v{Hr+i}, v{Hr+i}, s{sc}, -v{tm}")
        for i in range(5):
            P(f"v_cvt_pk_bf16_f32 v{o+i}, v{Hr+2*i}, v{Hr+2*i+1}")
            P(f"v_min_u32 v{o+i}, -2, v{o+i}")
        P(f"buffer_store_dwordx4 {v(o,4)}, v{vL16}, s[12:15], s{so} offen sc1")
        P(f"buffer_store_dword v{o+4}, v{vL4}, s[12:15], s{so} offen offset:1024 sc1")
    stamp(P, 11)
    P(f"""
    s_cmp_lg_u32 s{sWV}, 3
    s_cbranch_scc1 L_finp
    s_cmp_lg_u32 s2, 0
    s_cbranch_scc1 L_finp
    s_mov_b64 exec, 1
    buffer_store_dword v14, v5, s[8:11], 0 offen sc1
    L_finp:
    {"s_branch L_fin" if (OPT["stamps"] or OPT.get("padto")) else "s_endpgm"}
    """)
    RARE = Prog()
    P_main = P
    P = RARE
    P("L_zretry:")
    for i in range(8):
        P(f"buffer_load_dwordx4 {v(ZR+8*i,4)}, v5, s[8:11], s{58+i} offen sc1")
        P(f"buffer_load_dwordx4 {v(ZR+8*i+4,4)}, v7, s[8:11], s{58+i} offen sc1")
    P("s_branch L_zgo")
    P(f"""
    L_special:
    s_waitcnt lgkmcnt(0)
    v_readlane_b32 s49, v{FW}, 0
    s_mov_b32 exec_lo, 0
    s_mov_b32 exec_hi, 0xfffffe00
    v_swap_b32 v{FW}, v{rev[0]}
    s_mov_b32 exec_hi, 0xffffff00
    """)
    for i in range(1, 8): P(f"v_swap_b32 v{FW+i}, v{rev[i]}")
    P(f"""
    s_mov_b64 exec, -1
    v_swap_b32 v{FW+8}, v{rev[8]}
    v_swap_b32 v{FW+9}, v{rev[9]}
    v_writelane_b32 v{rev[0]}, s49, 40
    s_branch L_specret
    """)

    P = P_main
    k_ = P.lines.index("L_rare:") + 1
    P.lines[k_:k_] = RARE.lines
    SEC[0] = "ffn"
    BW = 48; AR = 112; A0 = 128
    KK = 16; ID = 24; K4 = 32; CB = 112
    P.raw(".p2align 12")
    P(f"""
    L_ffn:
    s_barrier
    s_cmp_lg_u32 s{sWV}, 0
    s_cbranch_scc1 L_noflag
    s_mul_i32 s49, s{sIDX}, {KST}
    s_add_u32 s49, s49, {FLAGS}
    s_mov_b64 exec, 1
    buffer_store_dword v14, v13, s[8:11], s49 offen sc1
    s_mov_b64 exec, -1
    L_noflag:
    s_cmp_ge_u32 s{sIDX}, 108
    s_cbranch_scc1 L_f2load
    """)
    P(f"""
    v_lshrrev_b32 v13, 1, v{vL}
    v_mul_u32_u24 v13, 3456, v13
    v_and_b32 v9, 1, v{vL}
    v_lshl_add_u32 v13, v9, 4, v13
    s_lshl_b32 s58, s{sIDX}, 5
    s_and_b32 s47, s{sJ}, 3
    s_mul_i32 s47, s47, 5
    s_mov_b32 s48, s{sWV}
    L_dma1:
    s_add_u32 s49, s48, s47
    s_cmp_ge_u32 s49, 20
    s_cselect_b32 s50, 20, 0
    s_sub_u32 s49, s49, s50
    s_lshr_b32 s50, s49, 2
    s_lshl_b32 s50, s50, 13
    s_and_b32 s51, s49, 3
    s_lshl_b32 s51, s51, 10
    s_add_u32 s50, s50, s51
    s_add_u32 m0, s50, {L_WT}
    s_mul_i32 s51, s49, {32*3456}
    s_add_u32 s51, s51, s58
    {"s_nop 0" if OPT.get("now") else f"buffer_load_dwordx4 v13, s[20:23], s51 offen lds"}
    s_add_u32 m0, m0, 4096
    s_add_u32 s48, s48, 8
    {"s_nop 0" if OPT.get("now") else f"buffer_load_dwordx4 v13, s[24:27], s51 offen lds"}
    s_cmp_lt_u32 s48, 20
    s_cbranch_scc1 L_dma1
    v_lshlrev_b32 v15, 9, v{vQ}
    v_lshl_add_u32 v15, v{vN}, 3, v15
    v_lshl_add_u32 v15, v{vW}, 13, v15
    s_waitcnt vmcnt(0)
    s_barrier
    s_cmp_ge_u32 s{sWV}, 5
    s_cbranch_scc1 L_tk
    """)
    for blk in range(4):
        for h in range(2):
            r = BW + 4*(2*blk + h)
            P(f"ds_read_b64_tr_b16 {v(r,2)}, v15 offset:{L_WT + 2048*blk + 256*h}")
            P(f"ds_read_b64_tr_b16 {v(r+2,2)}, v15 offset:{L_WT + 2048*blk + 256*h + 128}")
    for i in range(4): P(f"v_mov_b32 v{AR+i}, 0x3f803f80")
    P(f"""
    s_lshl_b32 s49, s{sWV}, 7
    v_lshl_add_u32 v13, v{vN}, 2, s49
    s_waitcnt lgkmcnt(0)
    """)
    for i in range(4):
        P(f"v_mfma_f32_16x16x32_bf16 {v(A0,4)}, {v(AR,4)}, {v(BW+4*i,4)}, {'0' if i==0 else v(A0,4)}")
        P(f"v_mfma_f32_16x16x32_bf16 {v(A0+4,4)}, {v(AR,4)}, {v(BW+16+4*i,4)}, {'0' if i==0 else v(A0+4,4)}")
    P(f"ds_write_b32 v13, v{A0} offset:{L_CS}")
    P(f"ds_write_b32 v13, v{A0+4} offset:{L_CS+64}")
    P("s_branch L_tk")
    P(f"""
    L_f2load:
    v_lshrrev_b32 v13, 2, v{vL}
    v_mul_u32_u24 v13, 1280, v13
    v_and_b32 v9, 3, v{vL}
    v_lshl_add_u32 v13, v9, 4, v13
    s_sub_u32 s58, s{sIDX}, 108
    s_lshl_b32 s58, s58, 6
    s_and_b32 s47, s{sJ}, 1
    s_mul_i32 s47, s47, 56
    s_mov_b32 s48, s{sWV}
    L_dma2:
    s_add_u32 s49, s48, s47
    s_cmp_ge_u32 s49, 112
    s_cselect_b32 s50, 112, 0
    s_sub_u32 s49, s49, s50
    s_lshl_b32 s50, s49, 10
    s_add_u32 m0, s50, {L_WT}
    s_mul_i32 s51, s49, {16*1280}
    s_add_u32 s51, s51, s58
    s_add_u32 s48, s48, 8
    {"s_nop 0" if OPT.get("now") else f"buffer_load_dwordx4 v13, s[28:31], s51 offen lds"}
    s_cmp_lt_u32 s48, 112
    s_cbranch_scc1 L_dma2
    v_lshlrev_b32 v15, 10, v{vQ}
    v_lshrrev_b32 v9, 2, v{vN}
    v_lshl_add_u32 v15, v9, 6, v15
    v_and_b32 v9, 3, v{vN}
    v_lshl_add_u32 v15, v9, 3, v15
    v_lshl_add_u32 v15, v{vW}, 14, v15
    s_waitcnt vmcnt(0)
    s_barrier
    s_cmp_ge_u32 s{sWV}, 7
    s_cbranch_scc1 L_tk
    """)
    for blk in range(4):
        for h in range(2):
            for ct in range(2):
                r = BW + 4*(4*blk + 2*h + ct)
                o = L_WT + 4096*blk + 512*h + 32*ct
                P(f"ds_read_b64_tr_b16 {v(r,2)}, v15 offset:{o}")
                P(f"ds_read_b64_tr_b16 {v(r+2,2)}, v15 offset:{o + 256}")
    P("L_tk:")
    stamp(P, 6)
    P(f"""
    v_bfe_u32 v9, v0, 4, 3
    v_lshlrev_b32 v9, 1, v9
    v_add_u32 v40, 1, v9
    v_sub_u32 v41, 32, v9
    v_sub_u32 v42, 32, v40
    v_cmp_eq_u32 vcc, 0, v9
    v_cndmask_b32 v41, v41, 16, vcc
    v_and_b32 v12, 128, v0
    v_cmp_ne_u32 vcc, 0, v12
    v_cndmask_b32 v9, v9, v41, vcc
    v_cndmask_b32 v40, v40, v42, vcc
    v_bfe_u32 v10, v0, 2, 2
    v_and_b32 v12, 1, v0
    v_lshl_add_u32 v10, v10, 1, v12
    v_lshlrev_b32 v10, 2, v10
    v_mov_b32 v11, 64
    v_cmp_eq_u32 vcc, 0, v9
    v_cndmask_b32 v11, v11, 32, vcc
    v_mad_u32_u24 v{ID}, v10, v11, v9
    v_lshl_add_u32 v{ID+4}, v10, 6, v40
    """)
    for i in range(1, 4):
        P(f"v_add_u32 v{ID+i}, v{ID+i-1}, v11")
        P(f"v_add_u32 v{ID+4+i}, 64, v{ID+3+i}")
    P(f"""
    v_and_b32 v12, 2, v0
    v_cmp_ne_u32 vcc, 0, v12
    """)
    for i in range(8):
        P(f"v_sub_u32 v9, 2048, v{ID+i}")
        P(f"v_cndmask_b32 v{ID+i}, v{ID+i}, v9, vcc")
    P(f"""
    v_mov_b32 v11, 1024
    v_cmp_eq_u32 vcc, 2, v0
    v_cndmask_b32 v{ID}, v{ID}, v11, vcc
    v_lshrrev_b32 v7, 2, v0
    v_mul_u32_u24 v7, {KST}, v7
    v_and_b32 v12, 3, v0
    v_lshl_add_u32 v7, v12, 4, v7
    s_mov_b32 s53, {KEYS + 64*KST}
    v_mov_b32 v12, 0
    v_lshrrev_b32 v5, 4, v0
    v_lshlrev_b32 v5, 2, v5
    v_lshlrev_b32 v15, 2, v{vN}
    v_lshlrev_b32 v43, 4, v{vQ}
    v_mov_b32 v13, 1
    s_mov_b32 s52, {KEYS}
    s_mov_b32 s51, 0x7fff8000
    s_cmp_eq_u32 s{sWV}, 6
    s_cbranch_scc1 L_pad0
    s_cmp_eq_u32 s{sWV}, 7
    s_cbranch_scc1 L_fchk
    s_cmp_ge_u32 s{sWV}, 4
    s_cbranch_scc1 L_tk2
    s_mov_b32 s50, 0
    """)
    stamp(P, 7)
    P(f"""
    L_kpoll:
    buffer_load_dwordx4 {v(KK,4)}, v7, s[8:11], s52 offen sc1
    buffer_load_dwordx4 {v(KK+4,4)}, v7, s[8:11], s53 offen sc1
    s_waitcnt vmcnt(0)
    v_bitop3_b32 v9, v{KK}, v{KK+1}, v14 bitop3:0x7e
    v_bitop3_b32 v10, v{KK+4}, v{KK+5}, v14 bitop3:0x7e
    v_bitop3_b32 v11, v{KK+2}, v{KK+6}, v14 bitop3:0x7e
    v_or3_b32 v10, v10, v9, v11
    v_and_b32 v10, 0x7fff, v10
    v_cmp_ne_u32 vcc, 0, v10
    """)
    spin_tail(P, 50, "L_kpoll", "L_kok")
    stamp(P, 8)
    if OPT["stamps"] and not OPT.get("dbgm"): P("s_mov_b32 s96, s50")
    for i in range(8):
        P(f"v_and_or_b32 v{KK+i}, v{KK+i}, s51, v{ID+i}")
    P(f"""
    v_max3_u32 v9, v{KK}, v{KK+1}, v{KK+2}
    v_max3_u32 v11, v{KK+3}, v{KK+4}, v{KK+5}
    v_max3_u32 v9, v9, v{KK+6}, v{KK+7}
    v_max_u32 v9, v9, v11
    v_max_u32_dpp v10, v9, v9 row_ror:1 row_mask:0xf bank_mask:0xf
    v_max_u32_dpp v10, v10, v10 row_ror:2 row_mask:0xf bank_mask:0xf
    v_max_u32_dpp v10, v10, v10 row_ror:4 row_mask:0xf bank_mask:0xf
    v_max_u32_dpp v10, v10, v10 row_ror:8 row_mask:0xf bank_mask:0xf
    ds_write_b32 v5, v10 offset:{L_GM}
    L_tk2:
    s_waitcnt lgkmcnt(0)
    s_barrier
    s_cmp_ge_u32 s{sWV}, 4
    s_cbranch_scc1 L_tk3
    """)
    def rank16(off, own):
        P(f"ds_read_b32 v{own}, v15 offset:{off}")
        P(f"ds_read_b128 {v(CB,4)}, v43 offset:{off}")
    def rank16b(own, acc):
        P("s_waitcnt lgkmcnt(0)")
        for i in range(4): P(f"v_sub_u32 v{CB+i}, v{own}, v{CB+i}")
        P(f"v_lshrrev_b32 v{acc}, 31, v{CB}")
        for i in range(1, 4): P(f"v_alignbit_b32 v{acc}, v{acc}, v{CB+i}, 31")
        P(f"""
        v_bcnt_u32_b32 v{acc}, v{acc}, 0
        v_mov_b32 v{CB}, v{acc}
        v_permlane16_swap_b32 v{acc}, v{CB}
        v_add_u32 v{acc}, v{acc}, v{CB}
        v_mov_b32 v{CB}, v{acc}
        v_permlane32_swap_b32 v{acc}, v{CB}
        v_add_u32 v{acc}, v{acc}, v{CB}
        """)
    rank16(L_GM, 10)
    rank16b(10, 11)
    P(f"""
    v_cmp_eq_u32 vcc, 7, v11
    s_ff1_i32_b64 s47, vcc
    v_readlane_b32 s48, v10, s47
    L_tkagain:
    v_mov_b32 v10, v9
    L_app:
    v_cmp_le_i32 vcc, s48, v10
    s_cbranch_vccz L_tk3
    s_mov_b64 exec, vcc
    ds_add_rtn_u32 v11, v12, v13
    s_mov_b64 exec, -1
    v_add_u32 v{K4+8}, -1, v10
    """)
    for i in range(8): P(f"v_sub_u32 v{K4+i}, v{K4+8}, v{KK+i}")
    P(f"""
    v_min3_u32 v{K4}, v{K4}, v{K4+1}, v{K4+2}
    v_min3_u32 v{K4+3}, v{K4+3}, v{K4+4}, v{K4+5}
    v_min3_u32 v{K4}, v{K4}, v{K4+6}, v{K4+7}
    v_min3_u32 v{K4}, v{K4}, v{K4+3}, v10
    s_waitcnt lgkmcnt(0)
    v_min_u32 v11, 16, v11
    v_lshlrev_b32 v11, 2, v11
    s_mov_b64 exec, vcc
    ds_write_b32 v11, v10 offset:{L_LIST}
    v_sub_u32 v10, v{K4+8}, v{K4}
    s_mov_b64 exec, -1
    s_branch L_app
    L_pad0:
    s_branch L_pad1
    L_fchk:
    s_cmp_lt_u32 s{sIDX}, 108
    s_cbranch_scc1 L_tk2
    v_mul_u32_u24 v11, {KST}, v{vL}
    s_mov_b32 s49, {FLAGS}
    s_mov_b32 s47, {FLAGS+64*KST}
    s_mov_b32 s50, 0
    L_dpoll:
    buffer_load_dword v9, v11, s[8:11], s49 offen sc1
    buffer_load_dword v10, v11, s[8:11], s47 offen sc1
    s_waitcnt vmcnt(0)
    v_bitop3_b32 v9, v9, v10, v14 bitop3:0x7e
    v_cmp_ne_u32 vcc, 0, v9
    """)
    spin_tail(P, 50, "L_dpoll", "L_dok")
    P("s_branch L_tk2")
    P(f"""
    L_tk3:
    s_waitcnt lgkmcnt(0)
    s_barrier
    ds_read_b32 v{K4+9}, v12
    """)
    rank16(L_LIST, 10)
    rank16b(10, 11)
    P(f"""
    v_cmp_gt_u32 vcc, 8, v11
    v_readfirstlane_b32 s47, v{K4+9}
    v_lshlrev_b32 v11, 2, v11
    s_mov_b64 exec, vcc
    ds_write_b32 v11, v10 offset:{L_SEL}
    s_mov_b64 exec, -1
    s_cmp_le_u32 s47, 16
    s_cbranch_scc1 L_tkdone
    ds_read_b32 v10, v12 offset:{L_SEL+28}
    s_waitcnt lgkmcnt(0)
    s_barrier
    v_readfirstlane_b32 s48, v10
    v_mov_b32 v11, -1
    ds_write_b32 v12, v12
    ds_write_b32 v15, v11 offset:{L_LIST}
    s_waitcnt lgkmcnt(0)
    s_barrier
    s_cmp_ge_u32 s{sWV}, 4
    s_cbranch_scc1 L_tk3
    s_branch L_tkagain
    L_pad1:
    s_branch L_pad2
    L_tkdone:
    s_cmp_ge_u32 s{sIDX}, 108
    s_cbranch_scc1 L_f2
    """)
    P(f"""
    s_cmp_eq_u32 s{sWV}, 5
    s_cbranch_scc1 L_f1fin
    s_cmp_gt_u32 s{sWV}, 5
    s_cbranch_scc1 L_fin2
    v_lshrrev_b32 v11, 1, v{vN}
    v_lshlrev_b32 v11, 2, v11
    ds_read_b32 v9, v11 offset:{L_SEL}
    v_and_b32 v10, 1, v{vN}
    v_lshl_add_u32 v10, v{vQ}, 1, v10
    v_lshlrev_b32 v10, 4, v10
    s_lshl_b32 s49, s{sWV}, 8
    s_movk_i32 s51, 1280
    v_lshlrev_b32 v15, 7, v{vQ}
    v_lshl_add_u32 v15, v{vN}, 2, v15
    v_lshl_add_u32 v15, v{vW}, 10, v15
    v_add_u32 v15, {L_RED}, v15
    s_waitcnt lgkmcnt(0)
    """)
    stamp(P, 10)
    P(f"""
    v_and_b32 v9, 2047, v9
    v_mad_u32_u24 v9, v9, s51, v10
    s_mov_b32 s50, 0
    L_gretry:
    buffer_load_dwordx4 {v(AR,4)}, v9, s[12:15], s49 offen sc1
    buffer_load_dwordx4 {v(AR+4,4)}, v9, s[12:15], s49 offen offset:128 sc1
    """)
    for b in range(2):
        P(f"s_waitcnt vmcnt({1-b})")
        for gu in range(2):
            for h in range(2):
                acc = A0 + 8*gu + 4*h
                P(f"v_mfma_f32_16x16x32_bf16 {v(acc,4)}, {v(AR+4*b,4)}, {v(BW+16*gu+8*b+4*h,4)}, {'0' if b==0 else v(acc,4)}")
            if b == 0 and gu == 0: P(f"v_max3_u32 v10, v{AR}, v{AR+1}, v{AR+2}")
            if b == 1 and gu == 0:
                P(f"v_max3_u32 v10, v10, v{AR+3}, v{AR+4}")
                P(f"v_max3_u32 v10, v10, v{AR+5}, v{AR+6}")
            if b == 1 and gu == 1: P(f"v_max_u32 v10, v10, v{AR+7}")
    P(f"v_cmp_eq_u32 vcc, -1, v10")
    spin_tail(P, 50, "L_gretry", "L_gok")
    stamp(P, 11)
    P(f"""
    v_add_f32 v{A0}, v{A0}, v{A0+5}
    v_add_f32 v{A0+2}, v{A0+2}, v{A0+7}
    ds_write2_b32 v15, v{A0}, v{A0+2} offset0:0 offset1:16
    v_add_f32 v{A0+8}, v{A0+8}, v{A0+13}
    v_add_f32 v{A0+10}, v{A0+10}, v{A0+15}
    ds_write2_b32 v15, v{A0+8}, v{A0+10} offset0:128 offset1:144
    s_waitcnt lgkmcnt(0)
    s_barrier
    s_branch L_fin
    L_pad2:
    s_branch L_pad3
    """)
    D = 16
    P(f"""
    L_f1fin:
    v_lshrrev_b32 v11, 3, v{vL}
    v_lshlrev_b32 v11, 2, v11
    ds_read_b32 v9, v11 offset:{L_SEL}
    v_and_b32 v13, 7, v{vL}
    v_lshlrev_b32 v13, 3, v13
    """)
    for w in range(5):
        P(f"ds_read_b64 {v(D+4*w,2)}, v13 offset:{L_CS+128*w}")
        P(f"ds_read_b64 {v(D+4*w+2,2)}, v13 offset:{L_CS+128*w+64}")
    P(f"""
    s_mov_b32 s49, {STATS}
    s_waitcnt lgkmcnt(10)
    v_and_b32 v9, 2047, v9
    v_lshlrev_b32 v9, 6, v9
    buffer_load_dwordx4 {v(40,4)}, v9, s[8:11], s49 offen sc1
    s_mov_b32 s50, 0
    v_lshlrev_b32 v13, 3, v{vL}
    s_waitcnt lgkmcnt(0)
    """)
    for w in range(1, 5):
        P(f"v_pk_add_f32 {v(D,2)}, {v(D,2)}, {v(D+4*w,2)}")
        P(f"v_pk_add_f32 {v(D+2,2)}, {v(D+2,2)}, {v(D+4*w+2,2)}")
    P(f"""
    s_branch L_swait
    L_sretry:
    buffer_load_dwordx4 {v(40,4)}, v9, s[8:11], s49 offen sc1
    L_swait:
    s_waitcnt vmcnt(0)
    v_cmp_ne_u32 vcc, v14, v42
    """)
    spin_tail(P, 50, "L_sretry", "L_sok")
    P(f"""
    s_lshl_b32 s49, s{sIDX}, 8
    s_add_u32 s49, s49, {ACT}
    v_mul_f32 v44, -v40, v{D}
    v_mul_f32 v45, -v40, v{D+1}
    v_mul_f32 v46, -v40, v{D+2}
    v_mul_f32 v47, -v40, v{D+3}
    v_mul_f32 v42, {f2u(-1.4426950408889634)}, v41
    v_mul_f32 v43, v41, v41
    s_barrier
    """)
    for w in range(5): P(f"ds_read_b64 {v(D+4*w,2)}, v13 offset:{L_RED+1024*w}")
    for w in range(5): P(f"ds_read_b64 {v(D+4*w+2,2)}, v13 offset:{L_RED+1024*w+512}")
    P(f"""
    s_waitcnt lgkmcnt(7)
    v_pk_add_f32 {v(44,2)}, {v(44,2)}, {v(D,2)}
    v_pk_add_f32 {v(D+4,2)}, {v(D+4,2)}, {v(D+8,2)}
    s_waitcnt lgkmcnt(5)
    v_pk_add_f32 {v(D+12,2)}, {v(D+12,2)}, {v(D+16,2)}
    v_pk_add_f32 {v(44,2)}, {v(44,2)}, {v(D+4,2)}
    v_pk_add_f32 {v(44,2)}, {v(44,2)}, {v(D+12,2)}
    v_mul_f32 v{D}, v42, v44
    v_mul_f32 v{D+1}, v42, v45
    v_exp_f32 v{D}, v{D}
    v_exp_f32 v{D+1}, v{D+1}
    s_waitcnt lgkmcnt(0)
    v_pk_add_f32 {v(46,2)}, {v(46,2)}, {v(D+2,2)}
    v_pk_add_f32 {v(D+6,2)}, {v(D+6,2)}, {v(D+10,2)}
    v_add_f32 v{D}, 1.0, v{D}
    v_add_f32 v{D+1}, 1.0, v{D+1}
    v_pk_add_f32 {v(D+14,2)}, {v(D+14,2)}, {v(D+18,2)}
    v_rcp_f32 v{D}, v{D}
    v_rcp_f32 v{D+1}, v{D+1}
    v_pk_add_f32 {v(46,2)}, {v(46,2)}, {v(D+6,2)}
    v_mul_f32 v44, v44, v43
    v_mul_f32 v45, v45, v43
    v_pk_add_f32 {v(46,2)}, {v(46,2)}, {v(D+14,2)}
    v_pk_mul_f32 {v(44,2)}, {v(44,2)}, {v(D,2)}
    v_pk_mul_f32 {v(44,2)}, {v(44,2)}, {v(46,2)}
    v_cvt_pk_bf16_f32 v44, v44, v45
    v_min_u32 v44, -2, v44
    buffer_store_dword v44, v{vL4}, s[8:11], s49 offen sc1
    s_branch L_fin
    L_pad3:
    s_branch L_pad4
    """)
    P(f"""
    L_f2:
    s_cmp_eq_u32 s{sWV}, 7
    s_cbranch_scc1 L_f2fin
    s_lshl_b32 s49, s{sWV}, 12
    s_add_u32 s49, s49, {ACT}
    s_mov_b32 s50, 0
    v_lshlrev_b32 v15, 8, v{vQ}
    v_lshl_add_u32 v15, v{vN}, 2, v15
    v_lshl_add_u32 v15, v{vW}, 10, v15
    v_add_u32 v15, {L_RED}, v15
    """)
    for i in range(4): P(f"v_mov_b32 v{AR+12+i}, 0")
    if OPT.get("adelay"): P("s_barrier")
    stamp(P, 10)
    P("L_a2:")
    for i in range(3):
        P(f"buffer_load_dwordx4 {v(AR+4*i,4)}, v{vL16}, s[8:11], s49 offen offset:{1024*i} sc1")
    P(f"""
    s_cmp_eq_u32 s{sWV}, 6
    s_cbranch_scc1 L_a3
    buffer_load_dwordx4 {v(AR+12,4)}, v{vL16}, s[8:11], s49 offen offset:3072 sc1
    L_a3:
    v_mov_b32 v10, 0
    """)
    for b in range(4):
        P(f"s_waitcnt vmcnt({max(0, 2-b)})")
        for h in range(2):
            for ct in range(2):
                acc = A0 + 8*ct + 4*h
                P(f"v_mfma_f32_16x16x32_bf16 {v(acc,4)}, {v(AR+4*b,4)}, {v(BW+16*b+8*h+4*ct,4)}, {'0' if b==0 else v(acc,4)}")
            P(f"v_max3_u32 v10, v10, v{AR+4*b+2*h}, v{AR+4*b+2*h+1}")
    P(f"v_cmp_eq_u32 vcc, -1, v10")
    spin_tail(P, 50, "L_a2", "L_a4")
    stamp(P, 11)
    if OPT["stamps"]: P("s_mov_b32 s94, s50")
    P(f"""
    v_add_f32 v{A0}, v{A0}, v{A0+5}
    v_add_f32 v{A0+2}, v{A0+2}, v{A0+7}
    ds_write2_b32 v15, v{A0}, v{A0+2} offset0:0 offset1:32
    v_add_f32 v{A0+8}, v{A0+8}, v{A0+13}
    v_add_f32 v{A0+10}, v{A0+10}, v{A0+15}
    ds_write2_b32 v15, v{A0+8}, v{A0+10} offset0:16 offset1:48
    s_waitcnt lgkmcnt(0)
    s_barrier
    s_branch L_fin
    L_pad4:
    s_branch L_tk2
    L_f2fin:
    v_lshrrev_b32 v11, 3, v{vL}
    v_lshlrev_b32 v11, 2, v11
    ds_read_b32 v9, v11 offset:{L_SEL}
    v_and_b32 v13, 7, v{vL}
    s_mov_b32 s50, 0
    s_waitcnt lgkmcnt(0)
    v_and_b32 v46, 2047, v9
    v_mul_u32_u24 v46, 1280, v46
    v_lshl_add_u32 v46, v13, 3, v46
    L_oretry:
    buffer_load_dwordx2 {v(44,2)}, v46, s[12:15], s58 offen sc1
    s_waitcnt vmcnt(0)
    v_max_u32 v10, v44, v45
    v_cmp_eq_u32 vcc, -1, v10
    """)
    spin_tail(P, 50, "L_oretry", "L_ook")
    if OPT.get("adelay"):
        P(f"s_sleep {OPT['adelay']}")
        P("s_barrier")
    O = 48
    P(f"""
    v_lshlrev_b32 v9, 1, v9
    v_ashrrev_i32 v10, 31, v9
    v_not_b32 v10, v10
    v_or_b32 v10, 0x80000000, v10
    v_xor_b32 v9, v9, v10
    v_and_b32 v9, 0xffff0000, v9
    v_mul_f32 v9, {f2u(-1.4426950408889634)}, v9
    v_exp_f32 v9, v9
    v_add_f32 v9, 1.0, v9
    v_rcp_f32 v47, v9
    v_lshlrev_b32 v{O}, 16, v44
    v_and_b32 v{O+1}, 0xffff0000, v44
    v_lshlrev_b32 v{O+2}, 16, v45
    v_and_b32 v{O+3}, 0xffff0000, v45
    s_barrier
    """)
    for w in range(7): P(f"ds_read_b128 {v(D+4*w,4)}, v{vL16} offset:{L_RED+1024*w}")
    def pk2(d, x):
        P(f"v_pk_add_f32 {v(d,2)}, {v(d,2)}, {v(x,2)}"); P(f"v_pk_add_f32 {v(d+2,2)}, {v(d+2,2)}, {v(x+2,2)}")
    P("s_waitcnt lgkmcnt(5)"); pk2(D, D+4)
    P("s_waitcnt lgkmcnt(3)"); pk2(D+8, D+12)
    P("s_waitcnt lgkmcnt(1)"); pk2(D+16, D+20); pk2(D, D+8)
    P("s_waitcnt lgkmcnt(0)"); pk2(D+16, D+24); pk2(D, D+16)
    for i in range(4): P(f"v_fma_f32 v{O+i}, v{D+i}, v47, v{O+i}")
    P(f"""
    v_cvt_pk_bf16_f32 v44, v{O}, v{O+1}
    v_cvt_pk_bf16_f32 v45, v{O+2}, v{O+3}
    buffer_store_dwordx2 {v(44,2)}, v46, s[12:15], s58 offen sc1
    L_fin:
    """)
    if OPT.get("padto"):
        if OPT.get("padwg") is not None:
            P(f"s_cmp_lg_u32 s2, {OPT['padwg']}")
            P("s_cbranch_scc1 L_fin2")
        if OPT.get("padfrom") == 999: P("s_memrealtime s[70:71]")
        P(f"""
        L_padt:
        s_memrealtime s[72:73]
        s_waitcnt lgkmcnt(0)
        s_sub_u32 s72, s72, s70
        s_cmp_lt_u32 s72, {OPT["padto"]}
        s_cbranch_scc1 L_padt
        """)
    P("L_fin2:")
    if OPT["stamps"]:
        P(f"""
        s_memrealtime s[{70+2*NST}:{71+2*NST}]
        s_waitcnt vmcnt(0)
        s_memrealtime s[{72+2*NST}:{73+2*NST}]
        s_waitcnt lgkmcnt(0)
        s_lshl_b32 s49, s2, 6
        s_lshl_b32 s50, s{sWV}, 14
        s_add_u32 s49, s49, s50
        s_add_u32 s49, s49, {ST_OFF}
        s_mov_b64 exec, 1
        v_mov_b32 v1, 0
        """)
        for i in range(NST+2):
            P(f"v_mov_b32 v2, s{70+2*i}")
            P(f"buffer_store_dword v2, v1, s[8:11], s49 offen offset:{4*i}")
    P("L_end:")
    P("s_endpgm")
    return name

def main(out):
    P = Prog()
    name = gen(P)
    body = P.finalize()
    hdr = f"""; fused 2D-DFT (two-stage MFMA) + LayerNorms + top-8 routed SwiGLU; written by a generator script of mine
; @launch grid=(256,1,1) block=(512,1,1) lds={L_END}
.amdgcn_target "amdgcn-amd-amdhsa--gfx950"
.text
"""
    d = f""".section .rodata,"a"
.p2align 6
.amdhsa_kernel {name}
  .amdhsa_next_free_vgpr 256
  .amdhsa_next_free_sgpr 102
  .amdhsa_accum_offset 256
  .amdhsa_group_segment_fixed_size 0
  .amdhsa_kernarg_size 104
  .amdhsa_user_sgpr_count 2
  .amdhsa_user_sgpr_kernarg_segment_ptr 1
  .amdhsa_system_sgpr_workgroup_id_x 1
.end_amdhsa_kernel
"""
    open(out, "w").write(hdr + body + d)

if __name__ == "__main__":
    for a_ in sys.argv[2:]:
        k, _, val = a_.partition("=")
        OPT[k] = int(val) if val else True
    main(sys.argv[1])
```

```python
import sys, struct
sys.path.insert(0, "work")
from asmlib import *

NAME = "sequential_preLN__spectral_fnet__moe_arch_mod__prompt"
XB = 2621440
FLAGS = 0x2c0000
KEYS = 0x8000
KST = 384
ACT = 0x18000
ZM = 0x20000
ZT = ZM + 0x200000
STATS = 0x2a0000
SEN1 = 0x1000
SEN2 = 0x2000
HINTMAX = 48
ST_OFF = 0x300000
WS_SZ = 0x400000
OOB = 0x1000000
SPIN = 1 << 16

L_MISC = 0
L_CNT = 0; L_TAG = 4; L_ZP = 16; L_SEL = 32; L_KREC = 64; L_GM = 128; L_LIST = 192
L_PS = 512
L_CS = 1024
L_RED = 2048
L_HT = 2048; HS = 144
L_CF = 13568
L_W = 17664
L_X = 43264
L_XR = 125184
L_WR = 145664
L_END = 146944
L_WT = 17664
RSB = 2576

sGRP, sJ, sWV, sSL, sXCD, sTB, sSTR, sROW, sROWB, sIDX, sRHO, sC640, sHW = 32, 33, 34, 36, 37, 38, 39, 40, 41, 35, 44, 45, 46
vN, vQ, vW, vL, vL4, vL16 = 1, 2, 3, 4, 6, 8
sTAG = 3; sZP = 100

OPT = dict(stamps=False, xnt=1, wnt=1, cpre=1, npre=5, tail=0, pf1=1)

def f2u(x): return "0x%08x" % struct.unpack("<I", struct.pack("<f", x))[0]
NST = 14
SEC = ["p1"]
def stamp(P, i):
    if OPT["stamps"]: P(f"s_memrealtime s[{70+2*i}:{71+2*i}]")
    if OPT.get("padfrom") == {"p1": 0, "m": 100, "p2": 200, "ffn": 300}[SEC[0]] + i and i: P("s_memrealtime s[70:71]")

def bf16_round(r):
    return [f"v_cvt_pk_bf16_f32 {v(r)}, {v(r)}, {v(r)}", f"v_lshlrev_b32 {v(r)}, 16, {v(r)}"]

def spin_tail(P, cnt, again, ok):
    P(f"""
    s_cbranch_vccnz {ok}_r
    {ok}:
    """)
    LATE.append(f"""
    {ok}_r:
    s_add_u32 s{cnt}, s{cnt}, 1
    s_cmp_gt_u32 s{cnt}, {SPIN}
    s_cbranch_scc1 {ok}
    s_branch {again}
    """)
LATE = []
def flush_late(P):
    for t in LATE: P(t)
    del LATE[:]

def cheb2(P, T, k):
    for i in range(2, 8):
        P(f"v_fma_f32 v{T+i}, v{k}, v{T+i-1}, -v{T+i-2}")
        P(f"v_fma_f32 v{T+8+i}, v{k}, v{T+8+i-1}, -v{T+8+i-2}")

def gen(P):
    name = NAME + "_kernel"
    xnt = " nt" if OPT["xnt"] else ""
    wnt = " nt" if OPT["wnt"] else ""
    P.raw(".p2align 12"); P.raw(".fill 0x340, 4, 0xbf810000")
    P.raw(f".globl {name}"); P.raw(".p2align 8"); P.raw(f".type {name},@function"); P.raw(f"{name}:")
    P("L_start:")
    stamp(P, 0)
    if OPT.get("padto"): P("s_memrealtime s[70:71]")
    def ptrs():
        P(f"""
        s_load_dwordx2 s[12:13], s[0:1], 80
        s_load_dwordx2 s[16:17], s[0:1], 48
        s_load_dwordx2 s[20:21], s[0:1], 56
        s_load_dwordx2 s[24:25], s[0:1], 64
        s_load_dwordx2 s[28:29], s[0:1], 72
        """)
    ZP = [66, 67, 42, 68]
    FIN = "s_branch L_fin" if (OPT["stamps"] or OPT.get("padto")) else "s_endpgm"
    MK = 24
    def tagcalc():
        P(f"""
        s_mul_i32 s{sTAG}, s{sTAG}, 0x9e3779b1
        s_add_u32 s{sTAG}, s{sTAG}, 0x7f4a7c15
        v_mov_b32 v14, s{sTAG}
        """)
        for i in range(3):
            P(f"s_bfe_u32 s43, s{sTAG}, {hex((2<<16) | (2*i))}")
            P(f"s_mul_i32 s43, s43, 0x8001")
            P(f"s_and_b32 s{ZP[i]}, s43, 0x10001")
        P(f"s_xor_b32 s68, s66, 0x10001")
    def consts():
        P(f"""
        s_mov_b64 s[12:13], s[26:27]
        s_mov_b64 s[16:17], s[18:19]
        s_mov_b64 s[28:29], s[24:25]
        s_mov_b64 s[24:25], s[22:23]
        s_mov_b32 s14, {XB}
        s_mov_b32 s15, 0x20000
        s_mov_b32 s18, 1280
        s_mov_b32 s19, 0x20000
        s_mov_b32 s22, {640*3456}
        s_mov_b32 s23, 0x20000
        s_mov_b32 s26, {640*3456}
        s_mov_b32 s27, 0x20000
        s_mov_b32 s30, {1728*1280}
        s_mov_b32 s31, 0x20000
        v_lshlrev_b32 v{vL4}, 2, v{vL}
        v_mov_b32 v13, 0
        s_and_b32 s43, s{sJ}, 3
        s_lshr_b32 s{sIDX}, s2, 6
        s_lshl3_add_u32 s{sIDX}, s{sIDX}, s{sXCD}
        s_lshl2_add_u32 s{sIDX}, s{sIDX}, s43
        s_cmp_eq_u32 s{sGRP}, 0
        s_cselect_b32 s{sSTR}, 32, 64
        s_lshl_b32 s{sTB}, s{sSTR}, 3
        s_mul_i32 s{sTB}, s{sTB}, s43
        s_add_u32 s{sTB}, s{sTB}, s{sGRP}
        """)
    def rows4(dst=92):
        for pr in range(2):
            sa, sb = 56 + 2*pr, 57 + 2*pr
            P(f"""
            s_add_u32 s{sa}, s{sHW}, {4*pr}
            s_mul_i32 s{sa}, s{sa}, s{sSTR}
            s_add_u32 s{sa}, s{sa}, s{sTB}
            s_sub_u32 s{sb}, 2048, s{sa}
            s_cmp_eq_u32 s{sa}, 0
            s_cselect_b32 s{sb}, 1024, s{sb}
            s_mul_i32 s{sa}, s{sa}, 1280
            s_mul_i32 s{sb}, s{sb}, 1280
            """)
        P(f"""
        v_mov_b32 v10, s56
        v_mov_b32 v9, s57
        v_mov_b32 v11, s58
        v_mov_b32 v12, s59
        v_mov_b32_dpp v10, v9 quad_perm:[0,1,2,3] row_mask:0x2 bank_mask:0xf
        s_movk_i32 s62, 1024
        v_mov_b32_dpp v10, v11 quad_perm:[0,1,2,3] row_mask:0x4 bank_mask:0xf
        v_mov_b32_dpp v10, v12 quad_perm:[0,1,2,3] row_mask:0x8 bank_mask:0xf
        v_lshl_add_u32 v{dst}, v{vN}, 4, v10
        """)
    P(f"""
    s_load_dwordx2 s[4:5], s[0:1], 0
    s_load_dwordx2 s[8:9], s[0:1], 96
    s_load_dwordx16 s[16:31], s[0:1], 40
    s_mov_b32 s10, {WS_SZ}
    s_mov_b32 s11, 0x20000
    v_lshrrev_b32 v{vW}, 6, v0
    s_cmp_ge_u32 s2, 256
    s_cbranch_scc1 L_end
    v_readfirstlane_b32 s{sWV}, v{vW}
    s_bfe_u32 s{sJ}, s2, 0x30003
    v_and_b32 v{vL}, 63, v0
    v_and_b32 v{vN}, 15, v0
    v_bfe_u32 v{vQ}, v0, 4, 2
    s_and_b32 s{sXCD}, s2, 7
    s_lshr_b32 s43, s2, 7
    s_lshl1_add_u32 s{sGRP}, s{sXCD}, s43
    s_sub_u32 s43, 32, s{sGRP}
    s_cmp_eq_u32 s{sGRP}, 0
    s_cselect_b32 s43, 16, s43
    s_bitcmp1_b32 s2, 6
    s_cselect_b32 s{sGRP}, s43, s{sGRP}
    s_mul_i32 s{sRHO}, s{sJ}, 5
    s_lshr_b32 s{sRHO}, s{sRHO}, 2
    s_and_b32 s{sHW}, s{sWV}, 3
    s_mov_b32 s{sC640}, {f2u(1.0/640)}
    v_lshlrev_b32 v{vL16}, 4, v{vL}
    s_cmp_ge_u32 s{sWV}, 4
    s_cbranch_scc1 L_W
    """)
    if OPT["cpre"]:
        P(f"""
        s_cmp_ge_u32 s{sWV}, 2
        s_cbranch_scc1 L_Mx
        s_cmp_ge_u32 s2, {OPT.get("cprewg", 32)}
        s_cbranch_scc1 L_Mx
        s_getpc_b64 s[42:43]
        L_pc:
        v_lshlrev_b32 v10, 7, v0
        v_add_u32 v10, 896, v10
        v_min_u32 v10, L_end-L_pc, v10
        v_mov_b32 v11, s43
        v_add_co_u32 v10, vcc, s42, v10
        v_addc_co_u32 v11, vcc, 0, v11, vcc
        global_load_dword v15, v[10:11], off
        """)
    P(f"""
    L_Mx:
    v_lshrrev_b32 v9, 3, v{vL}
    s_lshl_b32 s47, s{sHW}, 4
    v_add_u32 v5, s47, v9
    v_mul_u32_u24 v5, 40960, v5
    v_lshrrev_b32 v7, 2, v9
    v_and_or_b32 v9, v9, 6, v7
    v_xor_b32 v9, v9, v{vL}
    v_and_b32 v9, 7, v9
    v_lshl_add_u32 v5, v9, 4, v5
    v_xor_b32 v7, 16, v5
    v_add_u32 v7, {8*40960}, v7
    s_mul_i32 s50, s{sGRP}, 1280
    s_add_u32 s47, s50, 1280
    s_lshr_b32 s52, s{sWV}, 2
    s_mul_i32 s52, s52, 5
    s_add_u32 s48, s{sRHO}, s52
    s_cmp_ge_u32 s48, 10
    s_cselect_b32 s49, 10, 0
    s_sub_u32 s48, s48, s49
    s_lshl_b32 s48, s48, 7
    s_add_u32 s48, s48, s50
    s_mul_i32 s49, s{sHW}, 20480
    s_add_u32 s49, s49, {L_X}
    s_lshl_b32 s52, s52, 11
    s_add_u32 m0, s49, s52
    s_mov_b32 s6, {XB}
    s_mov_b32 s7, 0x20000
    s_mov_b32 s52, 5
    s_waitcnt lgkmcnt(0)
    """)
    stamp(P, 1)
    P(f"""
    s_cmp_lt_u32 s{sWV}, 4
    s_cbranch_scc1 L_xl
    s_load_dword s{sTAG}, s[8:9], 0
    s_barrier
    s_branch L_H1
    L_xl:
    buffer_load_dwordx4 v5, s[4:7], s48 offen{xnt} lds
    s_add_u32 m0, m0, 1024
    s_add_u32 s51, s48, 128
    buffer_load_dwordx4 v7, s[4:7], s48 offen{xnt} lds
    s_add_u32 m0, m0, 1024
    s_cmp_eq_u32 s51, s47
    s_cselect_b32 s48, s50, s51
    s_sub_u32 s52, s52, 1
    s_cmp_lg_u32 s52, 0
    s_cbranch_scc1 L_xl
    s_cmp_ge_u32 s{sWV}, 4
    s_cbranch_scc1 L_H2
    s_barrier
    s_branch L_M
    """)
    def wrow(dst, fill=None):
        T = 32; K8 = 76; a_, b_, c_, d_ = 78, 79, 80, 81
        P(f"""
        s_cmp_eq_u32 s{sJ}, 0
        s_cselect_b32 s53, 8, s{sJ}
        s_lshl_b32 s54, s{sRHO}, 6
        """)
        if dst is None: P(f"s_lshl_b32 s55, s{sHW}, 6"); P("s_add_u32 s53, s53, s55")
        else: P("s_add_u32 s53, s53, 256")
        P(f"""
        v_and_b32 v{a_}, 7, v{vN}
        v_lshl_add_u32 v{a_}, v{a_}, 3, s53
        v_lshrrev_b32 v{c_}, 3, v{vN}
        v_lshl_add_u32 v{b_}, v{vQ}, 1, s54
        v_cvt_f32_u32 v{c_}, v{c_}
        v_mul_u32_u24 v{b_}, v{a_}, v{b_}
        v_mul_f32 v{c_}, {f2u(-0.25)}, v{c_}
        v_cvt_f32_u32 v{a_}, v{a_}
        v_cvt_f32_u32 v{b_}, v{b_}
        v_mul_f32 v{a_}, s{sC640}, v{a_}
        v_fma_f32 v{b_}, v{b_}, s{sC640}, v{c_}
        v_mul_f32 v{K8}, {f2u(8.0)}, v{a_}
        v_fract_f32 v{T}, v{b_}
        v_add_f32 v{T+2}, v{T}, v{a_}
        v_add_f32 v{T+4}, v{T}, v{K8}
        v_add_f32 v{T+6}, v{T+2}, v{K8}
        v_cos_f32 v{K8}, v{K8}
        """)
        for i in range(4):
            P(f"v_sin_f32 v{T+2*i+1}, -v{T+2*i}")
            P(f"v_cos_f32 v{T+2*i}, v{T+2*i}")
        P(f"v_add_f32 v{K8}, v{K8}, v{K8}")
        if dst is None: P(f"s_mul_i32 s55, s{sHW}, 5120"); P(f"v_add_u32 v{d_}, s55, v{vL16}")
        P(f"v_mov_b32 v{K8+1}, v{K8}")
        for kp in range(5):
            if kp:
                for c in (2*kp, 2*kp+1):
                    for i in range(2):
                        P(f"v_pk_fma_f32 {v(T+4*c+2*i,2)}, {v(K8,2)}, {v(T+4*c-4+2*i,2)}, {v(T+4*c-8+2*i,2)} neg_lo:[0,0,1] neg_hi:[0,0,1]")
            pk = 84 + 4*(kp & 1) if dst is None else dst + 4*kp
            for i in range(4): P(f"v_cvt_pk_bf16_f32 v{pk+i}, v{T+8*kp+2*i}, v{T+8*kp+2*i+1}")
            if fill:
                for _ in range(2): P(fill.pop(0))
            if dst is None: P(f"ds_write_b128 v{d_}, {v(pk,4)} offset:{L_W + 1024*kp}")
    P("L_W:")
    wrow(None)
    PZ = 152; T = 64; F = 80
    P(f"""
    s_branch L_Mx
    L_H1:
    """)
    consts()
    P(f"""
    v_mov_b32 v{PZ}, -1
    v_mov_b32 v{PZ+1}, -1
    v_mov_b32 v{PZ+2}, -1
    v_mov_b32 v{PZ+3}, -1
    v_mul_u32_u24 v150, 3456, v{vL}
    v_mul_u32_u24 v151, 1280, v{vL}
    s_cmp_ge_u32 s{sJ}, 4
    s_cbranch_scc1 L_hs1
    """)
    rows4(107)
    P(f"""
    s_mul_i32 s53, s{sHW}, 5120
    s_mul_i32 s54, s{sHW}, 320
    s_branch L_xl
    """)
    P(f"""
    L_hs1:
    v_mov_b32 v107, 0
    s_and_b32 s63, s{sJ}, 3
    s_lshl2_add_u32 s63, s63, s{sHW}
    s_mul_i32 s64, s63, {40*3456}
    s_lshr_b32 s43, s{sIDX}, 2
    s_lshl_b32 s43, s43, 7
    s_add_u32 s64, s64, s43
    s_and_b32 s63, s63, 7
    s_mul_i32 s65, s63, {54*1280}
    s_sub_u32 s43, s{sIDX}, 108
    s_lshr_b32 s43, s43, 1
    s_lshl_b32 s43, s43, 7
    s_add_u32 s65, s65, s43
    s_lshl2_add_u32 s63, s{sIDX}, s{sHW}
    s_lshl_b32 s63, s63, 6
    s_add_u32 s63, s63, {ACT}
    s_branch L_xl
    L_H2:
    """)
    stamp(P, 2)
    P(f"""
    s_barrier
    s_cmp_ge_u32 s{sJ}, 4
    s_cbranch_scc1 L_hc1
    s_add_u32 m0, s53, {L_XR}
    """)
    for i in range(4):
        P(f"buffer_load_dwordx4 v{vL16}, s[4:7], s{56+i} offen lds")
        P("s_add_u32 m0, m0, 1024")
    P(f"""
    buffer_load_dwordx4 v107, s[4:7], s62 offen lds
    s_add_u32 m0, s54, {L_WR}
    s_mov_b64 exec, 0xfffff
    buffer_load_dwordx4 v{vL16}, s[16:19], s54 offen lds
    s_mov_b64 exec, -1
    """)
    NPB = OPT.get("npb", 5)
    pzs = [f"buffer_store_dwordx4 {v(PZ,4)}, v{vL16}, s[12:15], s{56+i} offen sc1" for i in range(4)] + [f"buffer_store_dwordx4 {v(PZ,4)}, v107, s[12:15], s62 offen sc1"]
    for o in pzs[:NPB]: P(o)
    P(f"""
    s_waitcnt vmcnt({6+NPB})
    s_barrier
    """)
    for o in pzs[NPB:]: P(o)
    P(f"""
    s_branch L_hs4
    L_hc1:
    s_cmp_ge_u32 s{sIDX}, 108
    s_cbranch_scc1 L_hs2
    s_mov_b64 exec, 15
    buffer_store_dwordx4 {v(PZ,4)}, v{vL16}, s[8:11], s63 offen sc1
    s_mov_b32 exec_lo, -1
    s_mov_b32 exec_hi, 0xff
    buffer_load_dword v253, v150, s[20:23], s64 offen{wnt}
    buffer_load_dword v253, v150, s[24:27], s64 offen{wnt}
    s_lshr_b32 s65, s2, 6
    s_and_b32 s43, s{sJ}, 3
    s_lshl2_add_u32 s65, s65, s43
    s_lshr_b32 s43, s{sHW}, 1
    s_lshl1_add_u32 s65, s65, s43
    s_mul_i32 s65, s65, {36*1280}
    s_and_b32 s43, s{sHW}, 1
    s_lshl1_add_u32 s43, s{sXCD}, s43
    s_lshl_b32 s43, s43, 7
    s_add_u32 s65, s65, s43
    s_add_u32 s65, s65, {864*1280 - 768}
    s_cmp_lt_u32 s{sXCD}, 3
    s_cselect_b32 s65, {OOB}, s65
    s_mov_b32 s64, 0xf
    s_waitcnt vmcnt(3)
    s_branch L_hs3
    L_hs2:
    s_mov_b32 exec_hi, 0x3fffff
    buffer_load_dword v253, v151, s[28:31], s65 offen{wnt}
    s_add_u32 s65, s65, {432*1280}
    s_mov_b32 s64, 0x3fffff
    s_waitcnt vmcnt(1)
    L_hs3:
    s_barrier
    L_hs4:
    s_mov_b64 exec, -1
    s_waitcnt lgkmcnt(0)
    """)
    stamp(P, 3)
    tagcalc()
    P(f"""
    v_mov_b32 v48, s{ZP[0]}
    v_mov_b32 v49, s{ZP[1]}
    v_mov_b32 v50, s{ZP[2]}
    v_mov_b32 v51, s{ZP[3]}
    ds_write_b128 v13, v[48:51] offset:{L_ZP}
    ds_write2_b32 v13, v13, v14 offset0:0 offset1:1
    ds_write_b32 v{vL4}, v{PZ} offset:{L_LIST}
    """)
    P(f"""
    s_cmp_ge_u32 s{sJ}, 4
    s_cbranch_scc1 L_hf
    s_waitcnt vmcnt(5) lgkmcnt(0)
    """)
    stamp(P, 4)
    P("s_barrier")
    T = 32
    P(f"""
    v_and_b32 v10, 7, v{vN}
    v_mul_u32_u24 v10, s{sSTR}, v10
    v_add_u32 v10, s{sTB}, v10
    v_sub_u32 v11, 2048, v10
    v_mov_b32 v12, 1024
    v_cmp_eq_u32 vcc, 0, v10
    v_cndmask_b32 v11, v11, v12, vcc
    v_cmp_lt_u32 vcc, 7, v{vN}
    v_cndmask_b32 v10, v10, v11, vcc
    v_and_b32 v11, 63, v10
    v_bfrev_b32 v12, 1
    v_cmp_gt_u32 vcc, 32, v11
    v_cndmask_b32 v12, 0, v12, vcc
    v_lshrrev_b32 v9, 1, v11
    s_lshl_b32 s49, s{sHW}, 3
    """)
    for h in range(2):
        P(f"""
        v_add_u32 v11, s49, v{vQ}
        v_mul_u32_u24 v11, v11, v10
        v_cvt_f32_u32 v11, v11
        v_mul_f32 v11, {f2u(1.0/2048)}, v11
        v_cos_f32 v{T+4}, v11
        v_sin_f32 v{T+5}, v11
        s_add_u32 s49, s49, 4
        v_cvt_pk_f16_f32 v{T+2*h}, v{T+4}, v{T+5}
        v_cvt_pk_f16_f32 v{T+2*h+1}, -v{T+5}, v{T+4}
        v_xor_b32 v{T+2*h}, v12, v{T+2*h}
        v_xor_b32 v{T+2*h+1}, v12, v{T+2*h+1}
        """)
    P(f"""
    s_cmp_lg_u32 s{sGRP}, 0
    s_cbranch_scc1 L_nofix
    """)
    for i in range(4):
        P(f"v_and_b32 v{T+i}, 0xffff, v{T+i}")
        P(f"v_lshlrev_b32 v{T+i}, v9, v{T+i}")
    P(f"""
    L_nofix:
    s_lshl_b32 s49, s{sHW}, 10
    v_add_u32 v11, s49, v{vL16}
    ds_write_b128 v11, {v(T,4)} offset:{L_CF}
    """)

    P(f"""
    s_branch L_prep
    L_hf:
    s_waitcnt lgkmcnt(0)
    """)
    stamp(P, 4)
    P(f"""
    s_barrier
    s_waitcnt vmcnt(2)
    s_barrier
    s_mov_b32 exec_hi, s64
    buffer_load_dword v253, v151, s[28:31], s65 offen{wnt}
    s_mov_b64 exec, -1
    s_branch L_noflag
    """)

    P.raw(".p2align 12")
    WR_ = 156; XL = 16; U = 56; AD = 96; C1 = 108; F = 116; G = 124; S = 128; ON = 132; IX = 136
    ACC = 16; RHO = 138; ZV = 150; PK = 36
    SEC[0] = "m"
    P("L_M:")
    stamp(P, 2)
    wq = [f"ds_read_b128 {v(WR_+4*f,4)}, v{vL16} offset:{L_W + 1024*f}" for f in range(20)]
    for o in wq: P(o)
    wrow(WR_ + 80)
    P(f"""
    v_mul_u32_u24 v9, 10, v{vQ}
    v_lshrrev_b32 v10, 1, v{vN}
    v_xor_b32 v10, v10, v{vN}
    v_bfe_u32 v10, v10, 2, 1
    v_and_or_b32 v10, v{vN}, 6, v10
    v_lshl_add_u32 v11, v{vN}, 7, s49
    """)
    for c in range(0, 10, 2):
        P(f"""
        v_xor_b32 v12, v9, v10
        v_and_b32 v{AD+c}, 7, v12
        v_lshrrev_b32 v12, 3, v12
        v_lshl_add_u32 v{AD+c}, v{AD+c}, 4, v11
        v_lshl_add_u32 v{AD+c}, v12, 11, v{AD+c}
        v_xor_b32 v{AD+c+1}, 16, v{AD+c}
        """)
        if c < 8: P("v_add_u32 v9, 2, v9")
    P(f"""
    v_mov_b32 v{ON}, 0x3f803f80
    v_mov_b32 v{ON+1}, 0x3f803f80
    v_mov_b32 v{ON+2}, 0x3f803f80
    v_mov_b32 v{ON+3}, 0x3f803f80
    v_and_b32 v9, 1, v{vN}
    v_mul_u32_u24 v{IX}, 0xaaaa, v9
    v_or_b32 v{IX}, 0x4444, v{IX}
    s_mov_b32 s60, 0x22222222
    s_mov_b32 s61, s60
    s_lshl_b64 s[62:63], s[60:61], 1
    s_lshl_b64 s[64:65], s[60:61], 2
    """)
    P(f"""
    v_mul_u32_u24 v9, s{sJ}, v{vQ}
    v_and_b32 v10, 1, v{vN}
    v_lshlrev_b32 v10, 1, v10
    v_sub_u32 v9, v9, v10
    v_cvt_f32_i32 v9, v9
    v_mul_f32 v9, {f2u(0.125)}, v9
    v_cos_f32 v9, v9
    v_and_b32 v10, 2, v{vN}
    v_lshlrev_b32 v10, 3, v10
    v_cvt_pk_bf16_f32 v9, v9, 0
    v_lshlrev_b32 v9, v10, v9
    v_lshrrev_b32 v10, 2, v{vN}
    s_and_b32 s43, s{sJ}, 1
    s_mul_i32 s43, s43, 0x80008000
    """)
    for i in range(4):
        P(f"v_cmp_eq_u32 vcc, {i}, v10")
        P(f"v_cndmask_b32 v{C1+i}, 0, v9, vcc")
        P(f"v_xor_b32 v{C1+4+i}, s43, v{C1+i}")
    P_ = P
    P = Prog(); T = 138
    P(f"""
    v_lshrrev_b32 v9, 1, v{vN}
    v_lshl_add_u32 v9, s{sHW}, 3, v9
    v_and_b32 v11, 1, v{vN}
    v_lshl_add_u32 v10, v9, 1, v11
    v_cmp_eq_u32 vcc, 1, v10
    v_cndmask_b32 v9, v9, 32, vcc
    v_cndmask_b32 v11, v11, 0, vcc
    v_cvt_f32_u32 v9, v9
    v_cvt_f32_u32 v11, v11
    v_mul_f32 v9, {f2u(1.0/64)}, v9
    v_mul_f32 v11, {f2u(-0.25)}, v11
    v_lshlrev_b32 v10, 3, v{vQ}
    v_cvt_f32_u32 v10, v10
    v_cos_f32 v12, v9
    v_fma_f32 v{T}, v9, v10, v11
    v_add_f32 v10, {f2u(32.0)}, v10
    v_fma_f32 v{T+8}, v9, v10, v11
    v_add_f32 v{T+1}, v{T}, v9
    v_add_f32 v{T+9}, v{T+8}, v9
    v_cos_f32 v{T}, v{T}
    v_cos_f32 v{T+1}, v{T+1}
    v_cos_f32 v{T+8}, v{T+8}
    v_cos_f32 v{T+9}, v{T+9}
    v_add_f32 v12, v12, v12
    """)
    cheb2(P, T, 12)
    for i in range(8): P(f"v_cvt_pk_f16_f32 v{F+i}, v{T+2*i}, v{T+2*i+1}")
    FG = list(P.lines)
    P = Prog()
    P(f"""
    v_mul_u32_u24 v143, {HS}, v{vN}
    v_lshl_add_u32 v142, v{vW}, 5, v143
    v_lshl_add_u32 v142, v{vQ}, 3, v142
    v_lshl_add_u32 v143, v{vQ}, 4, v143
    v_lshlrev_b32 v144, 17, v{vQ}
    v_lshl_add_u32 v144, v{vN}, 4, v144
    v_lshlrev_b32 v145, 15, v{vQ}
    v_lshl_add_u32 v145, v{vN}, 2, v145
    s_mov_b32 s55, 0xfffefffe
    v_and_b32 v146, 3, v{vN}
    v_lshlrev_b32 v146, 2, v146
    v_mov_b32 v13, 0
    s_lshl_b32 s52, s{sHW}, 19
    s_lshl_b32 s43, s{sGRP}, 11
    s_add_u32 s52, s52, s43
    s_lshl_b32 s43, s{sJ}, 8
    s_add_u32 s52, s52, s43
    s_lshr_b32 s56, s52, 2
    s_add_u32 s52, s52, {ZM}
    s_add_u32 s53, s52, 65536
    s_add_u32 s56, s56, {ZT}
    s_add_u32 s57, s56, 16384
    """)
    AB_ = list(P.lines)
    P = P_
    P(f"""
    v_mov_b32 v{S}, 0
    v_mov_b32 v{S+1}, 0
    v_mov_b32 v{S+2}, 0
    v_mov_b32 v{S+3}, 0
    """)
    stamp(P, 13)
    P("s_waitcnt vmcnt(0)")
    stamp(P, 3)
    def half(hi, fills, extra):
        for c in range(10): P(f"ds_read_b128 {v(XL+4*c,4)}, v{AD+c}" + (" offset:10240" if hi else ""))
        if not hi: P("s_barrier")
        for k in range(5):
            x = XL + 8*k
            fl = fills(k)
            mm = [f"v_mfma_f32_16x16x32_bf16 {v(U+8*k,4)}, {v(C1+4*hi,4)}, {v(x,4)}, {v(U+8*k,4) if hi else '0'}",
                  f"v_mfma_f32_16x16x32_bf16 {v(G,4)}, {v(x,4)}, {v(x,4)}, {'0' if (k==0 and not hi) else v(G,4)}",
                  f"v_mfma_f32_16x16x32_bf16 {v(U+8*k+4,4)}, {v(C1+4*hi,4)}, {v(x+4,4)}, {v(U+8*k+4,4) if hi else '0'}",
                  f"v_mfma_f32_16x16x32_bf16 {v(G,4)}, {v(x+4,4)}, {v(x+4,4)}, {v(G,4)}",
                  f"v_smfmac_f32_16x16x64_bf16 {v(S,4)}, {v(ON,4)}, {v(x,8)}, v{IX}"]
            for i, m in enumerate(mm):
                if i in (0, 2): P(f"s_waitcnt lgkmcnt({9 - 2*k - i//2})")
                P(m)
                for _ in range(2):
                    if i >= 2 and fl: P(fl.pop(0))
                    elif extra: P(extra.pop(0))
        for o in extra: P(o)
    half(0, lambda k: [], FG)
    P(f"""
    s_cmp_lg_u32 s{sJ}, 0
    s_cbranch_scc1 L_nooff
    v_add_f32 v9, v{S}, v{S+1}
    v_mul_f32 v9, {f2u(-8.0/320)}, v9
    """)
    for i in range(20): P(f"v_add_f32 v{U+2*i}, v{U+2*i}, v9")
    P(f"""
    L_nooff:
    s_setprio 2
    s_barrier
    """)
    stamp(P, 12)
    def cvt(k): return [f"v_cvt_pk_bf16_f32 v{U+8*k+i}, v{U+8*k+2*i}, v{U+8*k+2*i+1}" for i in range(4)]
    half(1, lambda k: cvt(k-1) if k else [], AB_)
    chain = cvt(4) + [f"v_add_f32 v{S}, v{S}, v{S+1}",
             f"v_cndmask_b32 v{G}, v{G}, v{G+1}, s[60:61]",
             f"v_mul_f32 v{S}, s{sC640}, v{S}",
             f"v_cndmask_b32 v{G}, v{G}, v{G+2}, s[62:63]",
             f"v_mul_f32 v{S}, v{S}, v{S}",
             f"v_cndmask_b32 v{G}, v{G}, v{G+3}, s[64:65]",
             f"v_fma_f32 v{G}, v{G}, s{sC640}, -v{S}",
             f"v_max_f32 v{G}, 0, v{G}"] + bf16_round(G) + [f"v_add_f32 v{G}, {f2u(1e-5)}, v{G}"] + bf16_round(G) + \
            [f"v_sqrt_f32 v{G}, v{G}", None] + bf16_round(G) + [f"v_rcp_f32 v{G}, v{G}", None, None] + \
            [f"v_mov_b32_dpp v{RHO+r}, v{G} row_newbcast:{4*q+r} row_mask:{hex(1<<q)} bank_mask:0xf" for q in range(4) for r in range(4)]
    n = 0
    for kp in range(5):
        for t in range(5):
            P(f"v_mfma_f32_16x16x32_bf16 {v(ACC+4*t,4)}, {v(U+8*kp,4)}, {v(WR_+4*(5*t+kp),4)}, {'0' if kp==0 else v(ACC+4*t,4)}")
            n += 1
            if n >= 3:
                for _ in range(2):
                    if chain:
                        o = chain.pop(0)
                        if o: P(o)
    assert not chain
    stamp(P, 4)
    for t in range(5):
        P(f"v_pk_mul_f32 {v(ACC+4*t,2)}, {v(ACC+4*t,2)}, {v(RHO,2)}")
        P(f"v_pk_mul_f32 {v(ACC+4*t+2,2)}, {v(ACC+4*t+2,2)}, {v(RHO+2,2)}")
        P(f"v_cvt_pk_f16_f32 v{PK+2*t}, v{ACC+4*t}, v{ACC+4*t+1}")
        P(f"v_cvt_pk_f16_f32 v{PK+2*t+1}, v{ACC+4*t+2}, v{ACC+4*t+3}")
        P(f"ds_write_b64 v142, {v(PK+2*t,2)} offset:{L_HT + 16*t*HS}")
    P(f"""
    s_waitcnt lgkmcnt(0)
    s_barrier
    ds_read_b128 {v(ZV,4)}, v13 offset:{L_ZP}
    ds_read_b32 v147, v146 offset:{L_ZP}
    ds_read_b32 v14, v13 offset:{L_TAG}
    """)
    BF = 16; DC = 70; ZO = 92
    for t in range(5):
        for kk in range(2):
            P(f"ds_read_b128 {v(BF+8*t+4*kk,4)}, v143 offset:{L_HT + 16*t*HS + 64*kk}")
    for t in range(5):
        c = DC + 4*t
        P(f"s_waitcnt lgkmcnt({8-2*t})")
        P(f"v_mfma_f32_16x16x32_f16 {v(c,4)}, {v(F,4)}, {v(BF+8*t,4)}, 0")
        P(f"v_mfma_f32_16x16x32_f16 {v(c,4)}, {v(F+4,4)}, {v(BF+8*t+4,4)}, {v(c,4)}")
        if t >= 2:
            for u in range(2):
                P(f"v_cvt_pk_f16_f32 v{ZO+4*u+t-2}, v{DC+4*(t-2)+2*u}, v{DC+4*(t-2)+2*u+1}")
                P(f"v_and_or_b32 v{ZO+4*u+t-2}, v{ZO+4*u+t-2}, s55, v{ZV+t-2}")
    for u in range(2):
        P(f"v_cvt_pk_f16_f32 v{ZO+4*u+3}, v{DC+12+2*u}, v{DC+12+2*u+1}")
        P(f"v_and_or_b32 v{ZO+4*u+3}, v{ZO+4*u+3}, s55, v{ZV+3}")
        P(f"buffer_store_dwordx4 {v(ZO+4*u,4)}, v144, s[8:11], s{52+u} offen sc1")
    for u in range(2):
        P(f"v_cvt_pk_f16_f32 v{ZO+8+u}, v{DC+16+2*u}, v{DC+16+2*u+1}")
        P(f"v_and_or_b32 v{ZO+8+u}, v{ZO+8+u}, s55, v147")
        P(f"buffer_store_dword v{ZO+8+u}, v145, s[8:11], s{56+u} offen sc1")
    P("s_setprio 0")
    stamp(P, 5)
    consts()
    P(f"""
    s_cmp_ge_u32 s{sJ}, 4
    s_cbranch_scc1 L_ffn
    """)
    for i in range(4): P(f"v_readfirstlane_b32 s{ZP[i]}, v{ZV+i}")
    P(f"""
    s_branch L_prep
    L_rare:
    """)
    P.raw(".p2align 12")

    SEC[0] = "p2"
    ZR = 16; CF = 80; AC = 96; YA = 112
    WF = 116; HA = 126; HB = 136; XR = 146; SW = 154; XT = 164
    P(f"""
    L_prep:
    v_mov_b32 v5, 0
    v_mov_b32 v7, 0
    s_add_u32 s69, s{sWV}, -2
    s_cmp_lt_u32 s69, 2
    s_cbranch_scc1 L_lnp
    s_cmp_lt_u32 s{sWV}, 2
    s_cbranch_scc1 L_ztail
    v_lshlrev_b32 v5, 11, v{vQ}
    v_lshrrev_b32 v10, 3, v{vN}
    s_add_u32 s49, s{sHW}, s{sJ}
    s_and_b32 s49, s49, 3
    v_lshl_add_u32 v10, s49, 1, v10
    v_lshl_add_u32 v5, v10, 8, v5
    v_and_b32 v9, 7, v{vN}
    v_lshl_add_u32 v5, v9, 4, v5
    v_add_u32 v7, 128, v5
    v_lshlrev_b32 v9, 3, v9
    s_lshl_b32 s58, s{sGRP}, 16
    s_add_u32 s58, s58, {ZM}
    s_movk_i32 s48, 8192
    v_mov_b32 v12, 256
    s_branch L_zcom
    L_ztail:
    v_lshrrev_b32 v10, 2, v{vN}
    v_lshl_add_u32 v10, s{sWV}, 2, v10
    v_and_b32 v9, 1, v{vN}
    v_lshlrev_b32 v5, 9, v{vQ}
    v_lshl_add_u32 v5, v{vN}, 4, v5
    v_lshl_add_u32 v5, s{sWV}, 8, v5
    s_lshl_b32 s58, s{sGRP}, 14
    s_add_u32 s58, s58, {ZT}
    s_movk_i32 s48, 2048
    v_lshlrev_b32 v9, 5, v9
    v_add_u32 v9, 256, v9
    v_mov_b32 v12, 32
    L_zcom:
    v_add_u32 v10, -1, v10
    v_and_b32 v10, 7, v10
    v_add3_u32 v9, v9, v10, 1
    v_and_b32 v11, 1, v{vQ}
    v_mul_u32_u24 v11, {4*RSB+16}, v11
    s_mov_b32 exec_lo, 0
    v_sub_u32 v9, 640, v9
    v_sub_u32 v12, 0, v12
    s_mov_b32 exec_lo, -1
    v_lshl_add_u32 v{YA}, v9, 2, v11
    v_add_u32 v{YA+1}, v{YA}, v12
    v_add_u32 v{YA+2}, v{YA+1}, v12
    v_add_u32 v{YA+3}, v{YA+2}, v12
    s_movk_i32 s49, 344
    v_cmp_eq_u32 vcc, s49, v9
    v_cndmask_b32 v{YA+3}, v{YA+3}, v11, vcc
    """)
    for i in range(1, 8): P(f"s_add_u32 s{58+i}, s{57+i}, s48")
    P(f"""
    L_lnp:
    s_mul_i32 s49, s{sHW}, 5120
    s_lshr_b32 s47, s{sWV}, 2
    s_lshl_b32 s48, s47, 11
    s_add_u32 s48, s48, s49
    s_add_u32 s48, s48, {L_XR}
    s_lshl_b32 s43, s47, 9
    s_add_u32 s43, s43, s49
    s_add_u32 s43, s43, {L_XR+4096}
    v_add_u32 v160, s48, v{vL16}
    v_add_u32 v161, s43, v{vL4}
    v_add_u32 v162, {L_WR}, v{vL16}
    v_add_u32 v163, {L_WR+1024}, v{vL4}
    ds_read_b128 {v(XT,4)}, v162
    ds_read_b32 v{XT+4}, v163
    ds_read_b128 {v(XT+46,4)}, v160
    ds_read_b32 v{XT+50}, v161
    ds_read_b128 {v(XT+52,4)}, v160 offset:1024
    ds_read_b32 v{XT+56}, v161 offset:256
    s_mul_i32 s49, s{sWV}, {RSB}
    s_lshl_b32 s47, s47, 4
    s_add_u32 s49, s49, s47
    s_add_u32 s49, s49, {L_W}
    v_lshl_add_u32 v{XR}, v{vL}, 5, s49
    v_lshl_add_u32 v{XR+1}, v{vL}, 3, s49
    s_lshl_b32 s49, s49, 1
    s_add_u32 s47, s49, 2528
    s_add_u32 s49, s49, 508
    v_sub_u32 v{XR+2}, s47, v{XR}
    v_sub_u32 v{XR+3}, s49, v{XR+1}
    s_mul_i32 s{sROW}, s{sWV}, s{sSTR}
    s_add_u32 s{sROW}, s{sROW}, s{sTB}
    s_sub_u32 s{sROWB}, 2048, s{sROW}
    s_cmp_eq_u32 s{sROW}, 0
    s_cselect_b32 s{sROWB}, 1024, s{sROWB}
    s_lshl_b32 s47, s{sROW}, 6
    s_lshl_b32 s48, s{sROWB}, 6
    v_mov_b32 v{XR+6}, s47
    v_writelane_b32 v{XR+6}, s48, 63
    v_lshrrev_b32 v9, 5, v{vL}
    v_lshl_add_u32 v9, v9, 3, v{vW}
    v_lshlrev_b32 v{XR+7}, 2, v9
    s_mul_i32 s56, s{sROW}, 1280
    s_mul_i32 s57, s{sROWB}, 1280
    s_mul_i32 s54, s{sIDX}, {KST}
    s_lshr_b32 s36, s2, 6
    s_lshl2_add_u32 s36, s36, s{sJ}
    s_lshl_b32 s43, s{sXCD}, 8
    s_lshl2_add_u32 s36, s36, s43
    s_add_u32 s36, s36, {SEN1}
    s_waitcnt lgkmcnt(0)
    """)
    def unpack(dst, src):
        o = []
        for i in range(5):
            o.append(f"v_lshlrev_b32 v{dst+2*i}, 16, v{src+i}")
            o.append(f"v_and_b32 v{dst+2*i+1}, 0xffff0000, v{src+i}")
        return o
    for o in unpack(WF, XT): P(o)
    P(f"""
    v_pk_add_f32 {v(SW,2)}, {v(WF,2)}, {v(WF+2,2)}
    v_pk_add_f32 {v(SW,2)}, {v(SW,2)}, {v(WF+4,2)}
    v_pk_add_f32 {v(SW,2)}, {v(SW,2)}, {v(WF+6,2)}
    v_pk_add_f32 {v(SW,2)}, {v(SW,2)}, {v(WF+8,2)}
    v_add_f32 v{SW}, v{SW}, v{SW+1}
    """)
    ux = unpack(HA, XT+46) + unpack(HB, XT+52)
    red = [f"v_add_f32_dpp v{SW}, v{SW}, v{SW} row_shr:{sh} row_mask:0xf bank_mask:0xf bound_ctrl:0" for sh in (1, 2, 4, 8)] + \
          [f"v_add_f32_dpp v{SW}, v{SW}, v{SW} row_bcast:15 row_mask:0xa bank_mask:0xf", f"v_add_f32_dpp v{SW}, v{SW}, v{SW} row_bcast:31 row_mask:0xc bank_mask:0xf"]
    for r_ in red:
        for _ in range(3): P(ux.pop(0))
        P(r_)
    for o in ux: P(o)
    P(f"""
    v_readlane_b32 s55, v{SW}, 63
    """)
    P(f"""
    s_waitcnt {"" if OPT.get("noack", 1) else "vmcnt(0) "}lgkmcnt(0)
    """)
    if OPT.get("zdelay"): P(f"s_sleep {OPT['zdelay']}")
    stamp(P, 6)
    P("s_barrier")
    stamp(P, 7)
    P(f"""
    s_cmp_lt_u32 s69, 2
    s_cbranch_scc1 L_y1
    s_mov_b32 s50, 0
    s_cmp_lt_u32 s{sWV}, 2
    s_cbranch_scc1 L_tl
    """)
    for i in range(8):
        P(f"buffer_load_dwordx4 {v(ZR+8*i,4)}, v5, s[8:11], s{58+i} offen sc1")
        P(f"buffer_load_dwordx4 {v(ZR+8*i+4,4)}, v7, s[8:11], s{58+i} offen sc1")
        if i == 1:
            for k in range(4): P(f"ds_read_b128 {v(CF+4*k,4)}, v{vL16} offset:{L_CF + 1024*k}")
    P(f"""
    s_waitcnt lgkmcnt(0)
    L_zgo:
    v_mov_b32 v10, 0
    """)
    for k in range(4):
        z = ZR + 16*k
        y = 176 + 16*(k & 1)
        def mm(u):
            P(f"v_mfma_f32_16x16x32_f16 {v(AC+4*u,4)}, {v(CF+4*k,4)}, {v(y+4*u,4)}, {'0' if k==0 else v(AC+4*u,4)}")
            P(f"v_or3_b32 v10, v10, v{y+4*u}, v{y+4*u+1}")
            P(f"v_or3_b32 v10, v10, v{y+4*u+2}, v{y+4*u+3}")
        P(f"s_waitcnt vmcnt({12 - 4*k})")
        for u in range(4):
            for l in range(4): P(f"v_xor_b32 v{y+4*u+l}, s{ZP[u]}, v{z+4*l+u}")
            if u: mm(u-1)
        mm(3)
    P(f"v_and_b32 v10, 0x10001, v10")
    P(f"v_cmp_ne_u32 vcc, 0, v10")
    spin_tail(P, 50, "L_zretry", "L_zok")
    stamp(P, 8)
    if OPT["stamps"]: P("s_add_u32 s96, s50, 1")
    for u in range(4):
        for r in range(4):
            P(f"ds_write_b32 v{YA+u}, v{AC+4*u+r} offset:{L_W + r*RSB}")
    P(f"""
    s_mov_b64 exec, -1
    L_y1:
    s_waitcnt lgkmcnt(0)
    s_barrier
    """)
    stamp(P, 9)
    FW = 16; RV = 28; R1 = 36
    P(f"""
    ds_read_b128 {v(FW,4)}, v{XR}
    ds_read_b128 {v(FW+4,4)}, v{XR} offset:16
    ds_read_b64 {v(FW+8,2)}, v{XR+1} offset:2048
    ds_read_b32 v{R1}, v{XR+2} offset:32
    ds_read_b128 {v(RV+4,4)}, v{XR+2} offset:16
    ds_read_b128 {v(RV,4)}, v{XR+2}
    ds_read2_b32 {v(R1+2,2)}, v{XR+3} offset0:1 offset1:0
    """)
    rev = [R1] + [RV+7-i for i in range(7)] + [R1+2, R1+3]
    P(f"""
    s_cmp_eq_u32 s{sROW}, 0
    s_cbranch_scc1 L_special
    L_specret:
    s_waitcnt lgkmcnt(4)
    v_writelane_b32 v{FW}, 0, 0
    """)
    A1, A2, A3, B1, B2, B3 = 40, 42, 44, 46, 48, 50
    def accum(Hr, i, a1, a2, a3):
        if i == 0:
            P(f"v_pk_mul_f32 {v(a2,2)}, {v(Hr,2)}, {v(Hr,2)}")
            P(f"v_pk_mul_f32 {v(a3,2)}, {v(Hr,2)}, {v(WF,2)}")
        else:
            P(f"v_pk_add_f32 {v(a1,2)}, {v(a1 if i>1 else Hr,2)}, {v(Hr+2*i,2)}")
            P(f"v_pk_fma_f32 {v(a2,2)}, {v(Hr+2*i,2)}, {v(Hr+2*i,2)}, {v(a2,2)}")
            P(f"v_pk_fma_f32 {v(a3,2)}, {v(Hr+2*i,2)}, {v(WF+2*i,2)}, {v(a3,2)}")
    for i in range(5):
        P(f"v_pk_add_f32 {v(HA+2*i,2)}, {v(HA+2*i,2)}, {v(FW+2*i,2)}")
        accum(HA, i, A1, A2, A3)
    P("s_waitcnt lgkmcnt(0)")
    P(f"v_writelane_b32 v{R1}, 0, 0")
    for i in range(5):
        P(f"v_add_f32 v{HB+2*i}, v{HB+2*i}, v{rev[2*i]}")
        P(f"v_add_f32 v{HB+2*i+1}, v{HB+2*i+1}, v{rev[2*i+1]}")
        accum(HB, i, B1, B2, B3)
    for r in (A1, A2, A3, B1, B2, B3): P(f"v_add_f32 v{r}, v{r}, v{r+1}")
    for x_, y_ in ((A1, B1), (A2, B2), (A3, B3)): P(f"v_permlane32_swap_b32 v{x_}, v{y_}")
    S1, S2, S3 = A1, A2, A3
    for x_, y_ in ((A1, B1), (A2, B2), (A3, B3)): P(f"v_add_f32 v{x_}, v{x_}, v{y_}")
    regs = [S1, S2, S3]
    for sh in (1, 2, 4, 8):
        for r in regs: P(f"v_add_f32_dpp v{r}, v{r}, v{r} row_shr:{sh} row_mask:0xf bank_mask:0xf bound_ctrl:0")
    for r in regs: P(f"v_add_f32_dpp v{r}, v{r}, v{r} row_bcast:15 row_mask:0xa bank_mask:0xf")
    MC = 52; TM = 46
    P(f"""
    v_mul_f32 v{MC}, s{sC640}, v{S1}
    v_mul_f32 v{TM}, v{MC}, v{MC}
    v_fma_f32 v{S2}, v{S2}, s{sC640}, -v{TM}
    v_max_f32 v{S2}, 0, v{S2}
    s_mov_b32 s47, 0xffff8000
    """)
    for o in bf16_round(S2) + bf16_round(MC): P(o)
    P(f"v_add_f32 v{S2}, {f2u(1e-5)}, v{S2}")
    for o in bf16_round(S2): P(o)
    P(f"v_sqrt_f32 v{S2}, v{S2}")
    P(f"v_fma_f32 v{S3}, -v{MC}, s55, v{S3}")
    for o in bf16_round(S2): P(o)
    P(f"""
    v_add_f32 v{MC+1}, 1.0, v{S2}
    v_rcp_f32 v{S2}, v{S2}
    v_rcp_f32 v{MC+1}, v{MC+1}
    v_mul_f32 v{S3}, v{S3}, v{S2}
    v_cvt_pk_bf16_f32 v{S3}, v{S3}, v{S3}
    v_ashrrev_i32 v{TM}, 31, v{S3}
    v_or_b32 v{TM}, 0x80000000, v{TM}
    v_xor_b32 v{S3}, v{S3}, v{TM}
    v_lshrrev_b32 v{S3}, 1, v{S3}
    v_bfi_b32 v{S3}, s47, v{S3}, v14
    s_brev_b32 exec_lo, 1
    s_brev_b32 exec_hi, 1
    ds_write_b32 v{XR+7}, v{S3} offset:{L_KREC}
    v_mov_b32 v{MC+2}, v14
    v_mov_b32 v{MC+3}, v14
    v_mul_f32 v{S1}, v{MC}, v{S2}
    v_add_f32 v{S2}, 1.0, v{S2}
    s_mov_b32 s47, {STATS}
    v_readlane_b32 s51, v{S1}, 31
    v_readlane_b32 s53, v{S1}, 63
    v_readlane_b32 s50, v{S2}, 31
    v_readlane_b32 s52, v{S2}, 63
    s_waitcnt lgkmcnt(0)
    s_barrier
    s_cmp_lg_u32 s{sWV}, 3
    s_cbranch_scc1 L_nokey
    s_mov_b64 exec, 15
    ds_read_b128 {v(56,4)}, v{vL16} offset:{L_KREC}
    s_add_u32 s49, s54, {KEYS}
    s_waitcnt lgkmcnt(0)
    buffer_store_dwordx4 {v(56,4)}, v{vL16}, s[8:11], s49 offen sc1
    {"s_mov_b64 exec, 1" if OPT.get("h1pos", 1) == 1 else ""}
    {"buffer_store_dword v14, v5, s[8:11], s36 offen" if OPT.get("h1pos", 1) == 1 else ""}
    s_brev_b32 exec_lo, 1
    s_brev_b32 exec_hi, 1
    L_nokey:
    buffer_store_dwordx4 {v(MC,4)}, v{XR+6}, s[8:11], s47 offen sc1
    s_mov_b64 exec, -1
    v_mov_b32 v{TM}, s51
    v_mov_b32 v{TM+1}, s53
    """)
    stamp(P, 10)
    for (Hr, sc, tm, so, o) in ((HA, 50, TM, 56, 16), (HB, 52, TM+1, 57, 24)):
        for i in range(10): P(f"v_fma_f32 v{Hr+i}, v{Hr+i}, s{sc}, -v{tm}")
        for i in range(5):
            P(f"v_cvt_pk_bf16_f32 v{o+i}, v{Hr+2*i}, v{Hr+2*i+1}")
            P(f"v_min_u32 v{o+i}, -2, v{o+i}")
        P(f"buffer_store_dwordx4 {v(o,4)}, v{vL16}, s[12:15], s{so} offen sc1")
        P(f"buffer_store_dword v{o+4}, v{vL4}, s[12:15], s{so} offen offset:1024 sc1")
    stamp(P, 11)
    P(f"""
    s_cmp_lg_u32 s{sWV}, 3
    s_cbranch_scc1 L_finp
    s_cmp_lg_u32 s2, 0
    s_cbranch_scc1 L_finp
    s_mov_b64 exec, 1
    buffer_store_dword v14, v5, s[8:11], 0 offen sc1
    L_finp:
    {"s_branch L_fin" if (OPT["stamps"] or OPT.get("padto")) else "s_endpgm"}
    """)
    P(f"""
    L_tl:
    """)
    for i in range(8): P(f"buffer_load_dwordx4 {v(ZR+4*i,4)}, v5, s[8:11], s{58+i} offen sc1")
    P(f"v_add_u32 v9, {L_CF}, v{vL16}")
    for k in range(4):
        P(f"ds_read2_b32 {v(CF+4*(k>>1)+2*(k&1),2)}, v9 offset0:0 offset1:2")
        P(f"ds_read2_b32 {v(CF+8+4*(k>>1)+2*(k&1),2)}, v9 offset0:1 offset1:3")
        if k < 3: P(f"v_add_u32 v9, 1024, v9")
    P("s_waitcnt lgkmcnt(0)")
    P("s_branch L_tgo")
    P("L_tretry:")
    for i in range(8): P(f"buffer_load_dwordx4 {v(ZR+4*i,4)}, v5, s[8:11], s{58+i} offen sc1")
    P(f"""
    L_tgo:
    v_mov_b32 v10, 0
    """)
    AB = 48
    for k in range(2):
        z = ZR + 16*k; y = 176 + 16*k
        P(f"s_waitcnt vmcnt({4 - 4*k})")
        def mt(u):
            P(f"v_mfma_f32_16x16x32_f16 {v(AC+4*u,4)}, {v(CF+4*k,4)}, {v(y+4*u,4)}, {'0' if k==0 else v(AC+4*u,4)}")
            P(f"v_or3_b32 v10, v10, v{y+4*u}, v{y+4*u+1}")
            P(f"v_mfma_f32_16x16x32_f16 {v(AB+4*u,4)}, {v(CF+8+4*k,4)}, {v(y+4*u,4)}, {'0' if k==0 else v(AB+4*u,4)}")
            P(f"v_or3_b32 v10, v10, v{y+4*u+2}, v{y+4*u+3}")
        for u in range(4):
            for l in range(4): P(f"v_xor_b32 v{y+4*u+l}, s{ZP[u]}, v{z+4*l+u}")
            if u: mt(u-1)
        mt(3)
    P(f"v_and_b32 v10, 0x10001, v10")
    P(f"v_cmp_ne_u32 vcc, 0, v10")
    spin_tail(P, 50, "L_tretry", "L_tok")
    for i in range(16):
        P(f"v_add_f32_dpp v{AC+i}, v{AB+i}, v{AC+i} quad_perm:[2,3,2,3] row_mask:0xf bank_mask:0xf")
    P(f"""
    s_mov_b32 exec_lo, 0x33333333
    s_mov_b32 exec_hi, 0x33333333
    s_branch L_zok
    """)
    flush_late(P)
    RARE = Prog()
    P_main = P
    P = RARE
    P("L_zretry:")
    for i in range(8):
        P(f"buffer_load_dwordx4 {v(ZR+8*i,4)}, v5, s[8:11], s{58+i} offen sc1")
        P(f"buffer_load_dwordx4 {v(ZR+8*i+4,4)}, v7, s[8:11], s{58+i} offen sc1")
    P("s_branch L_zgo")
    P(f"""
    L_special:
    s_waitcnt lgkmcnt(0)
    v_readlane_b32 s49, v{FW}, 0
    s_mov_b32 exec_lo, 0
    s_mov_b32 exec_hi, 0xfffffe00
    v_swap_b32 v{FW}, v{rev[0]}
    s_mov_b32 exec_hi, 0xffffff00
    """)
    for i in range(1, 8): P(f"v_swap_b32 v{FW+i}, v{rev[i]}")
    P(f"""
    s_mov_b64 exec, -1
    v_swap_b32 v{FW+8}, v{rev[8]}
    v_swap_b32 v{FW+9}, v{rev[9]}
    v_writelane_b32 v{rev[0]}, s49, 40
    s_branch L_specret
    """)

    P = P_main
    k_ = P.lines.index("L_rare:") + 1
    P.lines[k_:k_] = RARE.lines
    SEC[0] = "ffn"
    BW = 48; AR = 112; A0 = 128
    KK = 16; ID = 24; K4 = 32; CB = 112
    P.raw(".p2align 12")
    P(f"""
    L_ffn:
    s_barrier
    s_cmp_lg_u32 s{sWV}, 0
    s_cbranch_scc1 L_noflag
    s_mul_i32 s49, s{sIDX}, {KST}
    s_add_u32 s49, s49, {FLAGS}
    s_mov_b64 exec, 1
    buffer_store_dword v14, v13, s[8:11], s49 offen sc1
    s_mov_b64 exec, -1
    L_noflag:
    v_lshrrev_b32 v7, 2, v0
    v_mul_u32_u24 v7, {KST}, v7
    v_and_b32 v12, 3, v0
    v_lshl_add_u32 v7, v12, 4, v7
    s_mov_b32 s52, {KEYS}
    {"buffer_load_dword v253, v7, s[8:11], s52 offen sc1" if OPT.get("kwarm", 0) else ""}
    v_and_b32 v9, 1, v{vN}
    v_mul_u32_u24 v144, 0xaaaa, v9
    v_or_b32 v144, 0x4444, v144
    v_lshrrev_b32 v9, 1, v{vQ}
    v_and_b32 v10, 1, v{vQ}
    v_lshlrev_b32 v10, 2, v10
    v_lshl_add_u32 v145, v9, 4, v10
    v_and_b32 v9, 8, v{vN}
    v_bfe_u32 v10, v{vN}, 2, 1
    v_add3_u32 v145, v145, v9, v10
    v_and_b32 v146, 3, v{vN}
    """)
    P(f"""
    v_bfe_u32 v9, v0, 4, 3
    v_lshlrev_b32 v9, 1, v9
    v_add_u32 v40, 1, v9
    v_sub_u32 v41, 32, v9
    v_sub_u32 v42, 32, v40
    v_cmp_eq_u32 vcc, 0, v9
    v_cndmask_b32 v41, v41, 16, vcc
    v_and_b32 v12, 128, v0
    v_cmp_ne_u32 vcc, 0, v12
    v_cndmask_b32 v9, v9, v41, vcc
    v_cndmask_b32 v40, v40, v42, vcc
    v_bfe_u32 v10, v0, 2, 2
    v_and_b32 v12, 1, v0
    v_lshl_add_u32 v10, v10, 1, v12
    v_lshlrev_b32 v10, 2, v10
    v_mov_b32 v11, 64
    v_cmp_eq_u32 vcc, 0, v9
    v_cndmask_b32 v11, v11, 32, vcc
    v_mad_u32_u24 v{ID}, v10, v11, v9
    v_lshl_add_u32 v{ID+4}, v10, 6, v40
    """)
    for i in range(1, 4):
        P(f"v_add_u32 v{ID+i}, v{ID+i-1}, v11")
        P(f"v_add_u32 v{ID+4+i}, 64, v{ID+3+i}")
    P(f"""
    v_and_b32 v12, 2, v0
    v_cmp_ne_u32 vcc, 0, v12
    """)
    for i in range(8):
        P(f"v_sub_u32 v9, 2048, v{ID+i}")
        P(f"v_cndmask_b32 v{ID+i}, v{ID+i}, v9, vcc")
    P(f"""
    v_mov_b32 v11, 1024
    v_cmp_eq_u32 vcc, 2, v0
    v_cndmask_b32 v{ID}, v{ID}, v11, vcc
    s_mov_b32 s53, {KEYS + 64*KST}
    s_lshr_b32 s54, s2, 6
    s_and_b32 s43, s{sJ}, 3
    s_lshl2_add_u32 s54, s54, s43
    s_mov_b32 s55, {OOB}
    s_cmp_eq_u32 s54, 10
    s_cmov_b32 s55, {STATS}
    s_cmp_lt_u32 s54, 10
    s_cselect_b32 s54, s54, {OOB>>7}
    s_lshl_b32 s54, s54, 7
    v_mov_b32 v12, 0
    v_lshrrev_b32 v5, 4, v0
    v_lshlrev_b32 v5, 2, v5
    v_lshlrev_b32 v151, 2, v{vN}
    v_lshlrev_b32 v43, 4, v{vQ}
    v_lshrrev_b32 v147, 1, v{vN}
    v_lshrrev_b32 v9, 3, v{vL}
    s_cmp_ge_u32 s{sWV}, 5
    s_cselect_b64 vcc, -1, 0
    v_cndmask_b32 v147, v147, v9, vcc
    v_lshlrev_b32 v147, 2, v147
    v_and_b32 v148, 1, v{vN}
    v_lshl_add_u32 v148, v{vQ}, 1, v148
    v_lshlrev_b32 v148, 4, v148
    s_cmp_lt_u32 s{sIDX}, 108
    s_cselect_b32 s43, 7, 8
    v_lshlrev_b32 v149, s43, v{vQ}
    v_lshl_add_u32 v149, v{vN}, 2, v149
    v_lshl_add_u32 v149, v{vW}, 10, v149
    v_add_u32 v149, {L_RED}, v149
    s_lshl_b32 s56, s{sWV}, 8
    s_movk_i32 s57, 1280
    v_mov_b32 v152, 1
    s_mov_b32 s52, {KEYS}
    s_mov_b32 s59, 0x7fff8000
    """)
    P(f"""
    s_cmp_ge_u32 s{sIDX}, 108
    s_cbranch_scc1 L_f2load
    """)
    P(f"""
    v_lshrrev_b32 v13, 1, v{vL}
    v_mul_u32_u24 v13, 3456, v13
    v_and_b32 v9, 1, v{vL}
    v_lshl_add_u32 v13, v9, 4, v13
    s_lshl_b32 s58, s{sIDX}, 5
    s_and_b32 s47, s{sJ}, 3
    s_mul_i32 s47, s47, 5
    s_mov_b32 s48, s{sWV}
    L_dma1:
    s_add_u32 s49, s48, s47
    s_cmp_ge_u32 s49, 20
    s_cselect_b32 s50, 20, 0
    s_sub_u32 s49, s49, s50
    s_lshr_b32 s50, s49, 2
    s_lshl_b32 s50, s50, 13
    s_and_b32 s51, s49, 3
    s_lshl_b32 s51, s51, 10
    s_add_u32 s50, s50, s51
    s_add_u32 m0, s50, {L_WT}
    s_mul_i32 s51, s49, {32*3456}
    s_add_u32 s51, s51, s58
    {"s_nop 0" if OPT.get("now") else f"buffer_load_dwordx4 v13, s[20:23], s51 offen lds"}
    s_add_u32 m0, m0, 4096
    s_add_u32 s48, s48, 8
    {"s_nop 0" if OPT.get("now") else f"buffer_load_dwordx4 v13, s[24:27], s51 offen lds"}
    s_cmp_lt_u32 s48, 20
    s_cbranch_scc1 L_dma1
    v_lshlrev_b32 v15, 5, v145
    v_lshl_add_u32 v15, v146, 3, v15
    v_lshl_add_u32 v15, v{vW}, 13, v15
    s_waitcnt vmcnt(0)
    s_barrier
    s_cmp_ge_u32 s{sWV}, 5
    s_cbranch_scc1 L_tk
    """)
    for blk in range(4):
        for j in range(4):
            P(f"ds_read_b64_tr_b16 {v(BW+8*blk+2*j,2)}, v15 offset:{L_WT + 2048*blk + 32*(32*(j>>1) + 2*(j&1))}")
    for i in range(4): P(f"v_mov_b32 v{AR+i}, 0x3f803f80")
    P(f"""
    s_lshl_b32 s49, s{sWV}, 7
    v_lshl_add_u32 v13, v{vN}, 2, s49
    s_waitcnt lgkmcnt(0)
    """)
    for i in range(4):
        P(f"v_mfma_f32_16x16x32_bf16 {v(A0,4)}, {v(AR,4)}, {v(BW+4*i,4)}, {'0' if i==0 else v(A0,4)}")
        P(f"v_mfma_f32_16x16x32_bf16 {v(A0+4,4)}, {v(AR,4)}, {v(BW+16+4*i,4)}, {'0' if i==0 else v(A0+4,4)}")
    P(f"ds_write_b32 v13, v{A0} offset:{L_CS}")
    P(f"ds_write_b32 v13, v{A0+4} offset:{L_CS+64}")
    P("s_branch L_tk")
    P(f"""
    L_f2load:
    s_waitcnt vmcnt(0)
    s_barrier
    """)
    stamp(P, 9)
    P(f"""
    v_lshrrev_b32 v13, 2, v{vL}
    v_mul_u32_u24 v13, 1280, v13
    v_and_b32 v9, 3, v{vL}
    v_lshl_add_u32 v13, v9, 4, v13
    s_sub_u32 s58, s{sIDX}, 108
    s_lshl_b32 s58, s58, 6
    s_and_b32 s47, s{sJ}, 1
    s_mov_b32 s47, 0
    s_mov_b32 s48, s{sWV}
    L_dma2:
    s_add_u32 s49, s48, s47
    s_cmp_ge_u32 s49, 112
    s_cselect_b32 s50, 112, 0
    s_sub_u32 s49, s49, s50
    s_lshl_b32 s50, s49, 10
    s_add_u32 m0, s50, {L_WT}
    s_mul_i32 s51, s49, {16*1280}
    s_add_u32 s51, s51, s58
    s_add_u32 s48, s48, 8
    {"s_nop 0" if OPT.get("now") else f"buffer_load_dwordx4 v13, s[28:31], s51 offen lds"}
    s_cmp_lt_u32 s48, 112
    s_cbranch_scc1 L_dma2
    v_lshlrev_b32 v15, 6, v145
    v_lshl_add_u32 v15, v146, 3, v15
    v_lshl_add_u32 v15, v{vW}, 14, v15
    s_waitcnt vmcnt(0)
    s_barrier
    s_cmp_ge_u32 s{sWV}, 7
    s_cbranch_scc1 L_tk
    """)
    for blk in range(4):
        for ct in range(2):
            for j in range(4):
                P(f"ds_read_b64_tr_b16 {v(BW+16*blk+8*ct+2*j,2)}, v15 offset:{L_WT + 4096*blk + 32*ct + 64*(32*(j>>1) + 2*(j&1))}")
    P("L_tk:")
    stamp(P, 6)
    P(f"""
    s_cmp_eq_u32 s{sWV}, 6
    s_cbranch_scc1 L_pad0
    s_cmp_eq_u32 s{sWV}, 7
    s_cbranch_scc1 L_fchk
    L_tk1:
    s_barrier
    s_cmp_ge_u32 s{sWV}, 4
    s_cbranch_scc1 L_tk2
    s_mov_b32 s50, 0
    """)
    stamp(P, 7)
    P(f"""
    L_kpoll:
    buffer_load_dwordx4 {v(KK,4)}, v7, s[8:11], s52 offen sc1
    buffer_load_dwordx4 {v(KK+4,4)}, v7, s[8:11], s53 offen sc1
    s_waitcnt vmcnt(0)
    v_bitop3_b32 v9, v{KK}, v{KK+1}, v14 bitop3:0x7e
    v_bitop3_b32 v10, v{KK+4}, v{KK+5}, v14 bitop3:0x7e
    v_bitop3_b32 v11, v{KK+2}, v{KK+6}, v14 bitop3:0x7e
    v_or3_b32 v10, v10, v9, v11
    v_and_b32 v10, 0x7fff, v10
    v_cmp_ne_u32 vcc, 0, v10
    """)
    spin_tail(P, 50, "L_kpoll", "L_kok")
    stamp(P, 8)
    if OPT["stamps"] and not OPT.get("dbgm"): P("s_add_u32 s96, s50, 1")
    for i in range(8):
        P(f"v_and_or_b32 v{KK+i}, v{KK+i}, s59, v{ID+i}")
    P(f"""
    v_max3_u32 v9, v{KK}, v{KK+1}, v{KK+2}
    v_max3_u32 v11, v{KK+3}, v{KK+4}, v{KK+5}
    v_max3_u32 v9, v9, v{KK+6}, v{KK+7}
    v_max_u32 v9, v9, v11
    v_max_u32_dpp v10, v9, v9 row_ror:1 row_mask:0xf bank_mask:0xf
    v_max_u32_dpp v10, v10, v10 row_ror:2 row_mask:0xf bank_mask:0xf
    v_max_u32_dpp v10, v10, v10 row_ror:4 row_mask:0xf bank_mask:0xf
    v_max_u32_dpp v10, v10, v10 row_ror:8 row_mask:0xf bank_mask:0xf
    ds_write_b32 v5, v10 offset:{L_GM}
    L_tk2:
    s_waitcnt lgkmcnt(0)
    s_barrier
    s_cmp_ge_u32 s{sWV}, 4
    s_cbranch_scc1 L_tk3
    """)
    def rank16(off, own):
        P(f"ds_read_b32 v{own}, v151 offset:{off}")
        P(f"ds_read_b128 {v(CB,4)}, v43 offset:{off}")
    def rank16b(own, acc):
        P("s_waitcnt lgkmcnt(0)")
        for i in range(4): P(f"v_sub_u32 v{CB+i}, v{own}, v{CB+i}")
        P(f"v_lshrrev_b32 v{acc}, 31, v{CB}")
        for i in range(1, 4): P(f"v_alignbit_b32 v{acc}, v{acc}, v{CB+i}, 31")
        P(f"""
        v_bcnt_u32_b32 v{acc}, v{acc}, 0
        v_mov_b32 v{CB}, v{acc}
        v_permlane16_swap_b32 v{acc}, v{CB}
        v_add_u32 v{acc}, v{acc}, v{CB}
        v_mov_b32 v{CB}, v{acc}
        v_permlane32_swap_b32 v{acc}, v{CB}
        v_add_u32 v{acc}, v{acc}, v{CB}
        """)
    rank16(L_GM, 10)
    rank16b(10, 11)
    P(f"""
    v_cmp_eq_u32 vcc, 7, v11
    s_ff1_i32_b64 s47, vcc
    v_readlane_b32 s48, v10, s47
    L_tkagain:
    v_mov_b32 v10, v9
    L_app:
    v_cmp_le_i32 vcc, s48, v10
    s_cbranch_vccz L_tk3
    s_mov_b64 exec, vcc
    ds_add_rtn_u32 v11, v12, v152
    {"" if not OPT.get("touch", 1) else f"v_and_b32 v{K4}, 2047, v10"}
    {"" if not OPT.get("touch", 1) else f"v_lshlrev_b32 v{K4+1}, 6, v{K4}"}
    {"" if not OPT.get("touch", 1) else f"v_mul_u32_u24 v{K4}, 1280, v{K4}"}
    {"" if not OPT.get("touch", 1) else f"buffer_load_dword v253, v{K4+1}, s[8:11], s55 offen sc1"}
    {"" if not OPT.get("touch", 1) else f"buffer_load_dword v253, v{K4}, s[12:15], s54 offen sc1"}
    s_mov_b64 exec, -1
    v_add_u32 v{K4+8}, -1, v10
    """)
    for i in range(8): P(f"v_sub_u32 v{K4+i}, v{K4+8}, v{KK+i}")
    P(f"""
    v_min3_u32 v{K4}, v{K4}, v{K4+1}, v{K4+2}
    v_min3_u32 v{K4+3}, v{K4+3}, v{K4+4}, v{K4+5}
    v_min3_u32 v{K4}, v{K4}, v{K4+6}, v{K4+7}
    v_min3_u32 v{K4}, v{K4}, v{K4+3}, v10
    s_waitcnt lgkmcnt(0)
    v_min_u32 v11, 16, v11
    v_lshlrev_b32 v11, 2, v11
    s_mov_b64 exec, vcc
    ds_write_b32 v11, v10 offset:{L_LIST}
    v_sub_u32 v10, v{K4+8}, v{K4}
    s_mov_b64 exec, -1
    s_branch L_app
    """)
    flush_late(P)
    P(f"""
    L_pad0:
    s_branch L_pad1
    L_fchk:
    s_cmp_lt_u32 s{sIDX}, 108
    s_cbranch_scc1 L_dok
    v_mul_u32_u24 v11, {KST}, v{vL}
    s_mov_b32 s49, {FLAGS}
    s_mov_b32 s47, {FLAGS+64*KST}
    s_mov_b32 s50, 0
    L_dpoll:
    buffer_load_dword v9, v11, s[8:11], s49 offen sc1
    buffer_load_dword v10, v11, s[8:11], s47 offen sc1
    s_waitcnt vmcnt(0)
    v_bitop3_b32 v9, v9, v10, v14 bitop3:0x7e
    v_cmp_ne_u32 vcc, 0, v9
    """)
    spin_tail(P, 50, "L_dpoll", "L_dok")
    P(f"""
    s_lshl_b32 s49, s{sXCD}, 8
    s_add_u32 s49, s49, {SEN1}
    s_mov_b32 s50, 0
    s_mov_b64 exec, 0xffff
    L_h1:
    buffer_load_dword v10, v{vL4}, s[8:11], s49 offen sc1
    s_add_u32 s50, s50, 1
    s_cmp_gt_u32 s50, {HINTMAX}
    s_waitcnt vmcnt(0)
    v_cmp_ne_u32 vcc, v14, v10
    s_cbranch_scc1 L_h1_d
    s_cbranch_vccnz L_h1
    L_h1_d:
    s_mov_b64 exec, -1
    {"s_sleep %d" % OPT["kdelay"] if OPT.get("kdelay") else ""}
    s_branch L_tk1
    """)
    P(f"""
    L_tk3:
    s_waitcnt lgkmcnt(0)
    s_barrier
    ds_read_b32 v{K4+9}, v12
    """)
    rank16(L_LIST, 10)
    rank16b(10, 11)
    P(f"""
    v_cmp_gt_u32 vcc, 8, v11
    v_readfirstlane_b32 s47, v{K4+9}
    v_lshlrev_b32 v11, 2, v11
    s_mov_b64 exec, vcc
    ds_write_b32 v11, v10 offset:{L_SEL}
    s_mov_b64 exec, -1
    ds_read_b32 v150, v147 offset:{L_SEL}
    s_mov_b32 s50, 0
    s_cmp_le_u32 s47, 16
    s_cbranch_scc1 L_tkdone
    ds_read_b32 v10, v12 offset:{L_SEL+28}
    s_waitcnt lgkmcnt(0)
    s_barrier
    v_readfirstlane_b32 s48, v10
    v_mov_b32 v11, -1
    ds_write_b32 v12, v12
    ds_write_b32 v151, v11 offset:{L_LIST}
    s_waitcnt lgkmcnt(0)
    s_barrier
    s_cmp_ge_u32 s{sWV}, 4
    s_cbranch_scc1 L_tk3
    s_branch L_tkagain
    """)
    flush_late(P)
    P(f"""
    L_pad1:
    s_branch L_pad2
    L_tkdone:
    s_cmp_ge_u32 s{sIDX}, 108
    s_cbranch_scc1 L_f2
    """)
    P(f"""
    s_cmp_eq_u32 s{sWV}, 5
    s_cbranch_scc1 L_f1fin
    s_cmp_gt_u32 s{sWV}, 5
    s_cbranch_scc1 L_fin2
    s_waitcnt lgkmcnt(0)
    """)
    stamp(P, 10)
    P(f"""
    v_and_b32 v9, 2047, v150
    v_mad_u32_u24 v9, v9, s57, v148
    L_gretry:
    buffer_load_dwordx4 {v(AR,4)}, v9, s[12:15], s56 offen sc1
    buffer_load_dwordx4 {v(AR+4,4)}, v9, s[12:15], s56 offen offset:128 sc1
    """)
    for i in range(8): P(f"v_mov_b32 v{A0+i}, 0")
    for b in range(2):
        P(f"s_waitcnt vmcnt({1-b})")
        for gu in range(2):
            P(f"v_smfmac_f32_16x16x64_bf16 {v(A0+4*gu,4)}, {v(AR+4*b,4)}, {v(BW+16*gu+8*b,8)}, v144")
        if b == 0: P(f"v_max3_u32 v10, v{AR}, v{AR+1}, v{AR+2}")
    P(f"""
    v_max3_u32 v10, v10, v{AR+3}, v{AR+4}
    v_max3_u32 v10, v10, v{AR+5}, v{AR+6}
    v_max_u32 v10, v10, v{AR+7}
    v_cmp_eq_u32 vcc, -1, v10
    """)
    spin_tail(P, 50, "L_gretry", "L_gok")
    stamp(P, 11)
    P(f"""
    v_add_f32 v{A0}, v{A0}, v{A0+1}
    v_add_f32 v{A0+2}, v{A0+2}, v{A0+3}
    ds_write2_b32 v149, v{A0}, v{A0+2} offset0:0 offset1:16
    v_add_f32 v{A0+4}, v{A0+4}, v{A0+5}
    v_add_f32 v{A0+6}, v{A0+6}, v{A0+7}
    ds_write2_b32 v149, v{A0+4}, v{A0+6} offset0:128 offset1:144
    s_waitcnt lgkmcnt(0)
    s_barrier
    {FIN}
    """)
    flush_late(P)
    P(f"""
    L_pad2:
    s_branch L_pad3
    """)
    D = 16
    P(f"""
    L_f1fin:
    s_mov_b32 s49, {STATS}
    s_waitcnt lgkmcnt(0)
    v_and_b32 v9, 2047, v150
    v_lshlrev_b32 v9, 6, v9
    buffer_load_dwordx4 {v(40,4)}, v9, s[8:11], s49 offen sc1
    v_and_b32 v13, 7, v{vL}
    v_lshlrev_b32 v13, 3, v13
    """)
    for w in range(5):
        P(f"ds_read_b64 {v(D+4*w,2)}, v13 offset:{L_CS+128*w}")
        P(f"ds_read_b64 {v(D+4*w+2,2)}, v13 offset:{L_CS+128*w+64}")
    P(f"""
    v_lshlrev_b32 v13, 3, v{vL}
    s_waitcnt lgkmcnt(0)
    """)
    for w in range(1, 5):
        P(f"v_pk_add_f32 {v(D,2)}, {v(D,2)}, {v(D+4*w,2)}")
        P(f"v_pk_add_f32 {v(D+2,2)}, {v(D+2,2)}, {v(D+4*w+2,2)}")
    P(f"""
    s_branch L_swait
    L_sretry:
    buffer_load_dwordx4 {v(40,4)}, v9, s[8:11], s49 offen sc1
    L_swait:
    s_waitcnt vmcnt(0)
    v_cmp_ne_u32 vcc, v14, v42
    """)
    spin_tail(P, 50, "L_sretry", "L_sok")
    P(f"""
    s_lshl_b32 s49, s{sIDX}, 8
    s_add_u32 s49, s49, {ACT}
    s_lshr_b32 s47, s2, 6
    s_and_b32 s43, s{sJ}, 3
    s_lshl2_add_u32 s47, s47, s43
    s_lshl_b32 s43, s{sXCD}, 8
    s_lshl2_add_u32 s47, s47, s43
    s_add_u32 s47, s47, {SEN2}
    v_mul_f32 v44, -v40, v{D}
    v_mul_f32 v45, -v40, v{D+1}
    v_mul_f32 v46, -v40, v{D+2}
    v_mul_f32 v47, -v40, v{D+3}
    v_mul_f32 v42, {f2u(-1.4426950408889634)}, v41
    v_mul_f32 v43, v41, v41
    s_barrier
    """)
    for w in range(5): P(f"ds_read_b64 {v(D+4*w,2)}, v13 offset:{L_RED+1024*w}")
    for w in range(5): P(f"ds_read_b64 {v(D+4*w+2,2)}, v13 offset:{L_RED+1024*w+512}")
    P(f"""
    s_waitcnt lgkmcnt(7)
    v_pk_add_f32 {v(44,2)}, {v(44,2)}, {v(D,2)}
    v_pk_add_f32 {v(D+4,2)}, {v(D+4,2)}, {v(D+8,2)}
    s_waitcnt lgkmcnt(5)
    v_pk_add_f32 {v(D+12,2)}, {v(D+12,2)}, {v(D+16,2)}
    v_pk_add_f32 {v(44,2)}, {v(44,2)}, {v(D+4,2)}
    v_pk_add_f32 {v(44,2)}, {v(44,2)}, {v(D+12,2)}
    v_mul_f32 v{D}, v42, v44
    v_mul_f32 v{D+1}, v42, v45
    v_exp_f32 v{D}, v{D}
    v_exp_f32 v{D+1}, v{D+1}
    s_waitcnt lgkmcnt(0)
    v_pk_add_f32 {v(46,2)}, {v(46,2)}, {v(D+2,2)}
    v_pk_add_f32 {v(D+6,2)}, {v(D+6,2)}, {v(D+10,2)}
    v_add_f32 v{D}, 1.0, v{D}
    v_add_f32 v{D+1}, 1.0, v{D+1}
    v_pk_add_f32 {v(D+14,2)}, {v(D+14,2)}, {v(D+18,2)}
    v_rcp_f32 v{D}, v{D}
    v_rcp_f32 v{D+1}, v{D+1}
    v_pk_add_f32 {v(46,2)}, {v(46,2)}, {v(D+6,2)}
    v_mul_f32 v44, v44, v43
    v_mul_f32 v45, v45, v43
    v_pk_add_f32 {v(46,2)}, {v(46,2)}, {v(D+14,2)}
    v_pk_mul_f32 {v(44,2)}, {v(44,2)}, {v(D,2)}
    v_pk_mul_f32 {v(44,2)}, {v(44,2)}, {v(46,2)}
    v_cvt_pk_bf16_f32 v44, v44, v45
    v_min_u32 v44, -2, v44
    buffer_store_dword v44, v{vL4}, s[8:11], s49 offen sc1
    s_mov_b64 exec, 1
    buffer_store_dword v14, v12, s[8:11], s47 offen
    {FIN}
    """)
    flush_late(P)
    P(f"""
    L_pad3:
    s_branch L_pad4
    """)
    P(f"""
    L_f2:
    s_cmp_eq_u32 s{sWV}, 7
    s_cbranch_scc1 L_f2fin
    s_lshl_b32 s49, s{sWV}, 12
    s_add_u32 s49, s49, {ACT}
    """)
    for i in range(4): P(f"v_mov_b32 v{AR+12+i}, 0")
    P("s_barrier")
    stamp(P, 10)
    P("L_a2:")
    for i in range(3):
        P(f"buffer_load_dwordx4 {v(AR+4*i,4)}, v{vL16}, s[8:11], s49 offen offset:{1024*i} sc1")
    P(f"""
    s_cmp_eq_u32 s{sWV}, 6
    s_cbranch_scc1 L_a3
    buffer_load_dwordx4 {v(AR+12,4)}, v{vL16}, s[8:11], s49 offen offset:3072 sc1
    L_a3:
    v_mov_b32 v10, 0
    """)
    for i in range(8): P(f"v_mov_b32 v{A0+i}, 0")
    for b in range(4):
        if b < 3: P(f"s_waitcnt vmcnt({2-b})")
        for ct in range(2):
            P(f"v_smfmac_f32_16x16x64_bf16 {v(A0+4*ct,4)}, {v(AR+4*b,4)}, {v(BW+16*b+8*ct,8)}, v144")
            P(f"v_max3_u32 v10, v10, v{AR+4*b+2*ct}, v{AR+4*b+2*ct+1}")
    P(f"v_cmp_eq_u32 vcc, -1, v10")
    spin_tail(P, 50, "L_a2", "L_a4")
    stamp(P, 11)
    if OPT["stamps"]: P("s_add_u32 s94, s50, 1")
    P(f"""
    v_add_f32 v{A0}, v{A0}, v{A0+1}
    v_add_f32 v{A0+2}, v{A0+2}, v{A0+3}
    ds_write2_b32 v149, v{A0}, v{A0+2} offset0:0 offset1:32
    v_add_f32 v{A0+4}, v{A0+4}, v{A0+5}
    v_add_f32 v{A0+6}, v{A0+6}, v{A0+7}
    ds_write2_b32 v149, v{A0+4}, v{A0+6} offset0:16 offset1:48
    s_waitcnt lgkmcnt(0)
    s_barrier
    {FIN}
    """)
    flush_late(P)
    P(f"""
    L_pad4:
    s_branch L_tk1
    L_f2fin:
    v_and_b32 v13, 7, v{vL}
    s_waitcnt lgkmcnt(0)
    v_and_b32 v46, 2047, v150
    v_mul_u32_u24 v46, 1280, v46
    v_lshl_add_u32 v46, v13, 3, v46
    L_oretry:
    buffer_load_dwordx2 {v(44,2)}, v46, s[12:15], s58 offen sc1
    s_waitcnt vmcnt(0)
    v_max_u32 v10, v44, v45
    v_cmp_eq_u32 vcc, -1, v10
    """)
    spin_tail(P, 50, "L_oretry", "L_ook")
    P(f"""
    s_lshl_b32 s49, s{sXCD}, 8
    s_add_u32 s49, s49, {SEN2}
    s_mov_b32 s50, 0
    s_mov_b64 exec, 0xfff
    L_h2:
    buffer_load_dword v10, v{vL4}, s[8:11], s49 offen sc1
    s_add_u32 s50, s50, 1
    s_cmp_gt_u32 s50, {HINTMAX}
    s_waitcnt vmcnt(0)
    v_cmp_ne_u32 vcc, v14, v10
    s_cbranch_scc1 L_h2_d
    s_cbranch_vccnz L_h2
    L_h2_d:
    s_mov_b64 exec, -1
    s_barrier
    """)
    O = 48
    P(f"""
    v_lshlrev_b32 v9, 1, v150
    v_ashrrev_i32 v10, 31, v9
    v_not_b32 v10, v10
    v_or_b32 v10, 0x80000000, v10
    v_xor_b32 v9, v9, v10
    v_and_b32 v9, 0xffff0000, v9
    v_mul_f32 v9, {f2u(-1.4426950408889634)}, v9
    v_exp_f32 v9, v9
    v_add_f32 v9, 1.0, v9
    v_rcp_f32 v47, v9
    v_lshlrev_b32 v{O}, 16, v44
    v_and_b32 v{O+1}, 0xffff0000, v44
    v_lshlrev_b32 v{O+2}, 16, v45
    v_and_b32 v{O+3}, 0xffff0000, v45
    s_barrier
    """)
    for w in range(7): P(f"ds_read_b128 {v(D+4*w,4)}, v{vL16} offset:{L_RED+1024*w}")
    def pk2(d, x):
        P(f"v_pk_add_f32 {v(d,2)}, {v(d,2)}, {v(x,2)}"); P(f"v_pk_add_f32 {v(d+2,2)}, {v(d+2,2)}, {v(x+2,2)}")
    P("s_waitcnt lgkmcnt(5)"); pk2(D, D+4)
    P("s_waitcnt lgkmcnt(3)"); pk2(D+8, D+12)
    P("s_waitcnt lgkmcnt(1)"); pk2(D+16, D+20); pk2(D, D+8)
    P("s_waitcnt lgkmcnt(0)"); pk2(D+16, D+24); pk2(D, D+16)
    for i in range(4): P(f"v_fma_f32 v{O+i}, v{D+i}, v47, v{O+i}")
    P(f"""
    v_cvt_pk_bf16_f32 v44, v{O}, v{O+1}
    v_cvt_pk_bf16_f32 v45, v{O+2}, v{O+3}
    buffer_store_dwordx2 {v(44,2)}, v46, s[12:15], s58 offen{" sc1" if OPT.get("fsc1", 0) else ""}
    L_fin:
    """)
    if OPT.get("padto"):
        if OPT.get("padwg") is not None:
            P(f"s_cmp_lg_u32 s2, {OPT['padwg']}")
            P("s_cbranch_scc1 L_fin2")
        if OPT.get("padfrom") == 999: P("s_memrealtime s[70:71]")
        P(f"""
        L_padt:
        s_memrealtime s[72:73]
        s_waitcnt lgkmcnt(0)
        s_sub_u32 s72, s72, s70
        s_cmp_lt_u32 s72, {OPT["padto"]}
        s_cbranch_scc1 L_padt
        """)
    P("L_fin2:")
    if OPT["stamps"]:
        P(f"""
        s_memrealtime s[{70+2*NST}:{71+2*NST}]
        s_waitcnt vmcnt(0)
        s_memrealtime s[{72+2*NST}:{73+2*NST}]
        s_waitcnt lgkmcnt(0)
        s_lshl_b32 s49, s2, 6
        s_lshl_b32 s50, s{sWV}, 14
        s_add_u32 s49, s49, s50
        s_add_u32 s49, s49, {ST_OFF}
        s_mov_b64 exec, 1
        v_mov_b32 v1, 0
        """)
        for i in range(NST+2):
            P(f"v_mov_b32 v2, s{70+2*i}")
            P(f"buffer_store_dword v2, v1, s[8:11], s49 offen offset:{4*i}")
    P("L_end:")
    P("s_endpgm")
    flush_late(P)
    return name

def main(out):
    P = Prog()
    name = gen(P)
    body = P.finalize()
    hdr = f"""; fused 2D-DFT (two-stage MFMA) + LayerNorms + top-8 routed SwiGLU; written by a generator script of mine
; @launch grid=(256,1,1) block=(512,1,1) lds={L_END}
.amdgcn_target "amdgcn-amd-amdhsa--gfx950"
.text
"""
    d = f""".section .rodata,"a"
.p2align 6
.amdhsa_kernel {name}
  .amdhsa_next_free_vgpr 256
  .amdhsa_next_free_sgpr 102
  .amdhsa_accum_offset 256
  .amdhsa_group_segment_fixed_size 0
  .amdhsa_kernarg_size 104
  .amdhsa_user_sgpr_count 2
  .amdhsa_user_sgpr_kernarg_segment_ptr 1
  .amdhsa_system_sgpr_workgroup_id_x 1
.end_amdhsa_kernel
"""
    open(out, "w").write(hdr + body + d)

if __name__ == "__main__":
    for a_ in sys.argv[2:]:
        k, _, val = a_.partition("=")
        OPT[k] = int(val) if val else True
    main(sys.argv[1])
```

```python
import sys, struct
sys.path.insert(0, "work")
from asmlib import *

NAME = "sequential_preLN__spectral_fnet__moe_arch_mod__prompt"
XB = 2621440
FLAGS = 0x2c0000
KEYS = 0x8000
KST = 384
ACT = 0x18000
ZM = 0x20000
ZT = ZM + 0x200000
STATS = 0x2a0000
SEN1 = 0x1000
SEN2 = 0x2000
HINTMAX = 48
ST_OFF = 0x300000
WS_SZ = 0x400000
OOB = 0x1000000
SPIN = 1 << 16

L_MISC = 0
L_CNT = 0; L_TAG = 4; L_ZP = 16; L_SEL = 32; L_KREC = 64; L_GM = 128; L_LIST = 192
L_PS = 512
L_CS = 1024
L_RED = 2048
L_HT = 2048; HS = 144
L_CF = 13568
L_W = 17664
L_X = 43264
L_XR = 125184
L_WR = 145664
L_END = 146944
L_WT = 17664
RSB = 2576

sGRP, sJ, sWV, sSL, sXCD, sTB, sSTR, sROW, sROWB, sIDX, sRHO, sC640, sHW = 32, 33, 34, 36, 37, 38, 39, 40, 41, 35, 44, 45, 46
vN, vQ, vW, vL, vL4, vL16 = 1, 2, 3, 4, 6, 8
sTAG = 3; sZP = 100

OPT = dict(stamps=False, xnt=0, wnt=0, cpre=1, npre=5, tail=0, pf1=1)

def f2u(x): return "0x%08x" % struct.unpack("<I", struct.pack("<f", x))[0]
NST = 14
SEC = ["p1"]
def stamp(P, i):
    if OPT["stamps"]: P(f"s_memrealtime s[{70+2*i}:{71+2*i}]")
    if OPT.get("padfrom") == {"p1": 0, "m": 100, "p2": 200, "ffn": 300}[SEC[0]] + i and i: P("s_memrealtime s[70:71]")

def bf16_round(r):
    return [f"v_cvt_pk_bf16_f32 {v(r)}, {v(r)}, {v(r)}", f"v_lshlrev_b32 {v(r)}, 16, {v(r)}"]

def spin_tail(P, cnt, again, ok):
    P(f"""
    s_cbranch_vccnz {ok}_r
    {ok}:
    """)
    LATE.append(f"""
    {ok}_r:
    s_add_u32 s{cnt}, s{cnt}, 1
    s_cmp_gt_u32 s{cnt}, {SPIN}
    s_cbranch_scc1 {ok}
    s_branch {again}
    """)
LATE = []
def flush_late(P):
    for t in LATE: P(t)
    del LATE[:]

def cheb2(P, T, k):
    for i in range(2, 8):
        P(f"v_fma_f32 v{T+i}, v{k}, v{T+i-1}, -v{T+i-2}")
        P(f"v_fma_f32 v{T+8+i}, v{k}, v{T+8+i-1}, -v{T+8+i-2}")

def gen(P):
    global KST
    KST = OPT.get("kst", 64)
    name = NAME + "_kernel"
    xnt = " nt" if OPT["xnt"] else ""
    wnt = " nt" if OPT["wnt"] else ""
    P.raw(".p2align 12"); P.raw(".fill 0x340, 4, 0xbf810000")
    P.raw(f".globl {name}"); P.raw(".p2align 8"); P.raw(f".type {name},@function"); P.raw(f"{name}:")
    P("L_start:")
    stamp(P, 0)
    if OPT.get("padto"): P("s_memrealtime s[70:71]")
    def ptrs():
        P(f"""
        s_load_dwordx2 s[12:13], s[0:1], 80
        s_load_dwordx2 s[16:17], s[0:1], 48
        s_load_dwordx2 s[20:21], s[0:1], 56
        s_load_dwordx2 s[24:25], s[0:1], 64
        s_load_dwordx2 s[28:29], s[0:1], 72
        """)
    ZP = [66, 67, 42, 68]
    FIN = "s_branch L_fin" if (OPT["stamps"] or OPT.get("padto")) else "s_endpgm"
    MK = 24
    def tagcalc():
        P(f"""
        s_mul_i32 s{sTAG}, s{sTAG}, 0x9e3779b1
        s_add_u32 s{sTAG}, s{sTAG}, 0x7f4a7c15
        v_mov_b32 v14, s{sTAG}
        """)
        for i in range(3):
            P(f"s_bfe_u32 s43, s{sTAG}, {hex((2<<16) | (2*i))}")
            P(f"s_mul_i32 s43, s43, 0x8001")
            P(f"s_and_b32 s{ZP[i]}, s43, 0x10001")
        P(f"s_xor_b32 s68, s66, 0x10001")
    def consts():
        P(f"""
        s_mov_b64 s[12:13], s[26:27]
        s_mov_b64 s[16:17], s[18:19]
        s_mov_b64 s[28:29], s[24:25]
        s_mov_b64 s[24:25], s[22:23]
        s_mov_b32 s14, {XB}
        s_mov_b32 s15, 0x20000
        s_mov_b32 s18, 1280
        s_mov_b32 s19, 0x20000
        s_mov_b32 s22, {640*3456}
        s_mov_b32 s23, 0x20000
        s_mov_b32 s26, {640*3456}
        s_mov_b32 s27, 0x20000
        s_mov_b32 s30, {1728*1280}
        s_mov_b32 s31, 0x20000
        v_lshlrev_b32 v{vL4}, 2, v{vL}
        v_mov_b32 v13, 0
        s_and_b32 s43, s{sJ}, 3
        s_lshr_b32 s{sIDX}, s2, 6
        s_lshl3_add_u32 s{sIDX}, s{sIDX}, s{sXCD}
        s_lshl2_add_u32 s{sIDX}, s{sIDX}, s43
        s_cmp_eq_u32 s{sGRP}, 0
        s_cselect_b32 s{sSTR}, 32, 64
        s_lshl_b32 s{sTB}, s{sSTR}, 3
        s_mul_i32 s{sTB}, s{sTB}, s43
        s_add_u32 s{sTB}, s{sTB}, s{sGRP}
        """)
    def rows4(dst=92):
        for pr in range(2):
            sa, sb = 56 + 2*pr, 57 + 2*pr
            P(f"""
            s_add_u32 s{sa}, s{sHW}, {4*pr}
            s_mul_i32 s{sa}, s{sa}, s{sSTR}
            s_add_u32 s{sa}, s{sa}, s{sTB}
            s_sub_u32 s{sb}, 2048, s{sa}
            s_cmp_eq_u32 s{sa}, 0
            s_cselect_b32 s{sb}, 1024, s{sb}
            s_mul_i32 s{sa}, s{sa}, 1280
            s_mul_i32 s{sb}, s{sb}, 1280
            """)
        P(f"""
        v_mov_b32 v10, s56
        v_mov_b32 v9, s57
        v_mov_b32 v11, s58
        v_mov_b32 v12, s59
        v_mov_b32_dpp v10, v9 quad_perm:[0,1,2,3] row_mask:0x2 bank_mask:0xf
        s_movk_i32 s62, 1024
        v_mov_b32_dpp v10, v11 quad_perm:[0,1,2,3] row_mask:0x4 bank_mask:0xf
        v_mov_b32_dpp v10, v12 quad_perm:[0,1,2,3] row_mask:0x8 bank_mask:0xf
        v_lshl_add_u32 v{dst}, v{vN}, 4, v10
        """)
    P(f"""
    s_load_dwordx2 s[4:5], s[0:1], 0
    s_load_dwordx2 s[8:9], s[0:1], 96
    s_load_dwordx16 s[16:31], s[0:1], 40
    s_mov_b32 s10, {WS_SZ}
    s_mov_b32 s11, 0x20000
    v_lshrrev_b32 v{vW}, 6, v0
    s_cmp_ge_u32 s2, 256
    s_cbranch_scc1 L_end
    v_readfirstlane_b32 s{sWV}, v{vW}
    s_bfe_u32 s{sJ}, s2, 0x30003
    v_and_b32 v{vL}, 63, v0
    v_and_b32 v{vN}, 15, v0
    v_bfe_u32 v{vQ}, v0, 4, 2
    s_and_b32 s{sXCD}, s2, 7
    s_lshr_b32 s43, s2, 7
    s_lshl1_add_u32 s{sGRP}, s{sXCD}, s43
    s_sub_u32 s43, 32, s{sGRP}
    s_cmp_eq_u32 s{sGRP}, 0
    s_cselect_b32 s43, 16, s43
    s_bitcmp1_b32 s2, 6
    s_cselect_b32 s{sGRP}, s43, s{sGRP}
    s_mul_i32 s{sRHO}, s{sJ}, 5
    s_lshr_b32 s{sRHO}, s{sRHO}, 2
    s_and_b32 s{sHW}, s{sWV}, 3
    s_mov_b32 s{sC640}, {f2u(1.0/640)}
    v_lshlrev_b32 v{vL16}, 4, v{vL}
    s_cmp_ge_u32 s{sWV}, 4
    s_cbranch_scc1 L_W
    """)
    if OPT["cpre"]:
        P(f"""
        s_cmp_ge_u32 s{sWV}, 2
        s_cbranch_scc1 L_Mx
        s_cmp_ge_u32 s2, {OPT.get("cprewg", 32)}
        s_cbranch_scc1 L_Mx
        s_getpc_b64 s[42:43]
        L_pc:
        v_lshlrev_b32 v10, 7, v0
        v_add_u32 v10, 896, v10
        v_min_u32 v10, L_end-L_pc, v10
        v_mov_b32 v11, s43
        v_add_co_u32 v10, vcc, s42, v10
        v_addc_co_u32 v11, vcc, 0, v11, vcc
        global_load_dword v15, v[10:11], off
        """)
    P(f"""
    L_Mx:
    v_lshrrev_b32 v9, 3, v{vL}
    s_lshl_b32 s47, s{sHW}, 4
    v_add_u32 v5, s47, v9
    v_mul_u32_u24 v5, 40960, v5
    v_lshrrev_b32 v7, 2, v9
    v_and_or_b32 v9, v9, 6, v7
    v_xor_b32 v9, v9, v{vL}
    v_and_b32 v9, 7, v9
    v_lshl_add_u32 v5, v9, 4, v5
    v_xor_b32 v7, 16, v5
    v_add_u32 v7, {8*40960}, v7
    s_mul_i32 s50, s{sGRP}, 1280
    s_add_u32 s47, s50, 1280
    s_lshr_b32 s52, s{sWV}, 2
    s_mul_i32 s52, s52, 5
    s_add_u32 s48, s{sRHO}, s52
    s_cmp_ge_u32 s48, 10
    s_cselect_b32 s49, 10, 0
    s_sub_u32 s48, s48, s49
    s_lshl_b32 s48, s48, 7
    s_add_u32 s48, s48, s50
    s_mul_i32 s49, s{sHW}, 20480
    s_add_u32 s49, s49, {L_X}
    s_lshl_b32 s52, s52, 11
    s_add_u32 m0, s49, s52
    s_mov_b32 s6, {XB}
    s_mov_b32 s7, 0x20000
    s_mov_b32 s52, 5
    s_waitcnt lgkmcnt(0)
    """)
    stamp(P, 1)
    P(f"""
    s_cmp_lt_u32 s{sWV}, 4
    s_cbranch_scc1 L_xl
    s_load_dword s{sTAG}, s[8:9], 0
    s_barrier
    s_branch L_H1
    L_xl:
    buffer_load_dwordx4 v5, s[4:7], s48 offen{xnt} lds
    s_add_u32 m0, m0, 1024
    s_add_u32 s51, s48, 128
    buffer_load_dwordx4 v7, s[4:7], s48 offen{xnt} lds
    s_add_u32 m0, m0, 1024
    s_cmp_eq_u32 s51, s47
    s_cselect_b32 s48, s50, s51
    s_sub_u32 s52, s52, 1
    s_cmp_lg_u32 s52, 0
    s_cbranch_scc1 L_xl
    s_cmp_ge_u32 s{sWV}, 4
    s_cbranch_scc1 L_H2
    s_barrier
    s_branch L_M
    """)
    def wrow(dst, fill=None):
        T = 32; K8 = 76; a_, b_, c_, d_ = 78, 79, 80, 81
        P(f"""
        s_cmp_eq_u32 s{sJ}, 0
        s_cselect_b32 s53, 8, s{sJ}
        s_lshl_b32 s54, s{sRHO}, 6
        """)
        if dst is None: P(f"s_lshl_b32 s55, s{sHW}, 6"); P("s_add_u32 s53, s53, s55")
        else: P("s_add_u32 s53, s53, 256")
        P(f"""
        v_and_b32 v{a_}, 7, v{vN}
        v_lshl_add_u32 v{a_}, v{a_}, 3, s53
        v_lshrrev_b32 v{c_}, 3, v{vN}
        v_lshl_add_u32 v{b_}, v{vQ}, 1, s54
        v_cvt_f32_u32 v{c_}, v{c_}
        v_mul_u32_u24 v{b_}, v{a_}, v{b_}
        v_mul_f32 v{c_}, {f2u(-0.25)}, v{c_}
        v_cvt_f32_u32 v{a_}, v{a_}
        v_cvt_f32_u32 v{b_}, v{b_}
        v_mul_f32 v{a_}, s{sC640}, v{a_}
        v_fma_f32 v{b_}, v{b_}, s{sC640}, v{c_}
        v_mul_f32 v{K8}, {f2u(8.0)}, v{a_}
        v_fract_f32 v{T}, v{b_}
        v_add_f32 v{T+2}, v{T}, v{a_}
        v_add_f32 v{T+4}, v{T}, v{K8}
        v_add_f32 v{T+6}, v{T+2}, v{K8}
        v_cos_f32 v{K8}, v{K8}
        """)
        for i in range(4):
            P(f"v_sin_f32 v{T+2*i+1}, -v{T+2*i}")
            P(f"v_cos_f32 v{T+2*i}, v{T+2*i}")
        P(f"v_add_f32 v{K8}, v{K8}, v{K8}")
        if dst is None: P(f"s_mul_i32 s55, s{sHW}, 5120"); P(f"v_add_u32 v{d_}, s55, v{vL16}")
        P(f"v_mov_b32 v{K8+1}, v{K8}")
        for kp in range(5):
            if kp:
                for c in (2*kp, 2*kp+1):
                    for i in range(2):
                        P(f"v_pk_fma_f32 {v(T+4*c+2*i,2)}, {v(K8,2)}, {v(T+4*c-4+2*i,2)}, {v(T+4*c-8+2*i,2)} neg_lo:[0,0,1] neg_hi:[0,0,1]")
            pk = 84 + 4*(kp & 1) if dst is None else dst + 4*kp
            for i in range(4): P(f"v_cvt_pk_bf16_f32 v{pk+i}, v{T+8*kp+2*i}, v{T+8*kp+2*i+1}")
            if fill:
                for _ in range(2): P(fill.pop(0))
            if dst is None: P(f"ds_write_b128 v{d_}, {v(pk,4)} offset:{L_W + 1024*kp}")
    P("L_W:")
    wrow(None)
    PZ = 152; T = 64; F = 80
    P(f"""
    s_branch L_Mx
    L_H1:
    """)
    consts()
    P(f"""
    v_mov_b32 v{PZ}, -1
    v_mov_b32 v{PZ+1}, -1
    v_mov_b32 v{PZ+2}, -1
    v_mov_b32 v{PZ+3}, -1
    v_mul_u32_u24 v150, 3456, v{vL}
    v_mul_u32_u24 v151, 1280, v{vL}
    s_cmp_ge_u32 s{sJ}, 4
    s_cbranch_scc1 L_hs1
    """)
    rows4(107)
    P(f"""
    s_mul_i32 s53, s{sHW}, 5120
    s_mul_i32 s54, s{sHW}, 320
    s_branch L_xl
    """)
    P(f"""
    L_hs1:
    v_mov_b32 v107, 0
    s_and_b32 s63, s{sJ}, 3
    s_lshl2_add_u32 s63, s63, s{sHW}
    s_mul_i32 s64, s63, {40*3456}
    s_lshr_b32 s43, s{sIDX}, 2
    s_lshl_b32 s43, s43, 7
    s_add_u32 s64, s64, s43
    s_and_b32 s63, s63, 7
    s_mul_i32 s65, s63, {54*1280}
    s_sub_u32 s43, s{sIDX}, 108
    s_lshr_b32 s43, s43, 1
    s_lshl_b32 s43, s43, 7
    s_add_u32 s65, s65, s43
    s_lshl2_add_u32 s63, s{sIDX}, s{sHW}
    s_lshl_b32 s63, s63, 6
    s_add_u32 s63, s63, {ACT}
    s_branch L_xl
    L_H2:
    """)
    stamp(P, 2)
    P(f"""
    s_barrier
    s_cmp_ge_u32 s{sJ}, 4
    s_cbranch_scc1 L_hc1
    s_add_u32 m0, s53, {L_XR}
    """)
    for i in range(4):
        P(f"buffer_load_dwordx4 v{vL16}, s[4:7], s{56+i} offen lds")
        P("s_add_u32 m0, m0, 1024")
    P(f"""
    buffer_load_dwordx4 v107, s[4:7], s62 offen lds
    s_add_u32 m0, s54, {L_WR}
    s_mov_b64 exec, 0xfffff
    buffer_load_dwordx4 v{vL16}, s[16:19], s54 offen lds
    s_mov_b64 exec, -1
    """)
    NPB = OPT.get("npb", 0)
    pzs = [f"buffer_store_dwordx4 {v(PZ,4)}, v{vL16}, s[12:15], s{56+i} offen sc1" for i in range(4)] + [f"buffer_store_dwordx4 {v(PZ,4)}, v107, s[12:15], s62 offen sc1"]
    for o in pzs[:NPB]: P(o)
    P(f"""
    s_waitcnt vmcnt({6+NPB})
    s_barrier
    """)
    for o in pzs[NPB:]: P(o)
    P(f"""
    s_branch L_hs4
    L_hc1:
    s_cmp_ge_u32 s{sIDX}, 108
    s_cbranch_scc1 L_hs2
    s_mov_b64 exec, 15
    buffer_store_dwordx4 {v(PZ,4)}, v{vL16}, s[8:11], s63 offen sc1
    s_mov_b32 exec_lo, -1
    s_mov_b32 exec_hi, 0xff
    buffer_load_dword v253, v150, s[20:23], s64 offen{wnt}
    buffer_load_dword v253, v150, s[24:27], s64 offen{wnt}
    s_lshr_b32 s65, s2, 6
    s_and_b32 s43, s{sJ}, 3
    s_lshl2_add_u32 s65, s65, s43
    s_lshr_b32 s43, s{sHW}, 1
    s_lshl1_add_u32 s65, s65, s43
    s_mul_i32 s65, s65, {36*1280}
    s_and_b32 s43, s{sHW}, 1
    s_lshl1_add_u32 s43, s{sXCD}, s43
    s_lshl_b32 s43, s43, 7
    s_add_u32 s65, s65, s43
    s_add_u32 s65, s65, {864*1280 - 768}
    s_cmp_lt_u32 s{sXCD}, 3
    s_cselect_b32 s65, {OOB}, s65
    s_mov_b32 s64, 0xf
    s_waitcnt vmcnt(3)
    s_branch L_hs3
    L_hs2:
    s_mov_b32 exec_hi, 0x3fffff
    buffer_load_dword v253, v151, s[28:31], s65 offen{wnt}
    s_add_u32 s65, s65, {432*1280}
    s_mov_b32 s64, 0x3fffff
    s_waitcnt vmcnt(1)
    L_hs3:
    s_barrier
    L_hs4:
    s_mov_b64 exec, -1
    s_waitcnt lgkmcnt(0)
    """)
    stamp(P, 3)
    tagcalc()
    P(f"""
    v_mov_b32 v48, s{ZP[0]}
    v_mov_b32 v49, s{ZP[1]}
    v_mov_b32 v50, s{ZP[2]}
    v_mov_b32 v51, s{ZP[3]}
    ds_write_b128 v13, v[48:51] offset:{L_ZP}
    ds_write2_b32 v13, v13, v14 offset0:0 offset1:1
    ds_write_b32 v{vL4}, v{PZ} offset:{L_LIST}
    """)
    P(f"""
    s_cmp_ge_u32 s{sJ}, 4
    s_cbranch_scc1 L_hf
    s_waitcnt vmcnt(5) lgkmcnt(0)
    """)
    stamp(P, 4)
    P("s_barrier")
    T = 32
    P(f"""
    v_and_b32 v10, 7, v{vN}
    v_mul_u32_u24 v10, s{sSTR}, v10
    v_add_u32 v10, s{sTB}, v10
    v_sub_u32 v11, 2048, v10
    v_mov_b32 v12, 1024
    v_cmp_eq_u32 vcc, 0, v10
    v_cndmask_b32 v11, v11, v12, vcc
    v_cmp_lt_u32 vcc, 7, v{vN}
    v_cndmask_b32 v10, v10, v11, vcc
    v_and_b32 v11, 63, v10
    v_bfrev_b32 v12, 1
    v_cmp_gt_u32 vcc, 32, v11
    v_cndmask_b32 v12, 0, v12, vcc
    v_lshrrev_b32 v9, 1, v11
    s_lshl_b32 s49, s{sHW}, 3
    """)
    for h in range(2):
        P(f"""
        v_add_u32 v11, s49, v{vQ}
        v_mul_u32_u24 v11, v11, v10
        v_cvt_f32_u32 v11, v11
        v_mul_f32 v11, {f2u(1.0/2048)}, v11
        v_cos_f32 v{T+4}, v11
        v_sin_f32 v{T+5}, v11
        s_add_u32 s49, s49, 4
        v_cvt_pk_f16_f32 v{T+2*h}, v{T+4}, v{T+5}
        v_cvt_pk_f16_f32 v{T+2*h+1}, -v{T+5}, v{T+4}
        v_xor_b32 v{T+2*h}, v12, v{T+2*h}
        v_xor_b32 v{T+2*h+1}, v12, v{T+2*h+1}
        """)
    P(f"""
    s_cmp_lg_u32 s{sGRP}, 0
    s_cbranch_scc1 L_nofix
    """)
    for i in range(4):
        P(f"v_and_b32 v{T+i}, 0xffff, v{T+i}")
        P(f"v_lshlrev_b32 v{T+i}, v9, v{T+i}")
    P(f"""
    L_nofix:
    s_lshl_b32 s49, s{sHW}, 10
    v_add_u32 v11, s49, v{vL16}
    ds_write_b128 v11, {v(T,4)} offset:{L_CF}
    """)

    P(f"""
    s_branch L_prep
    L_hf:
    s_waitcnt lgkmcnt(0)
    """)
    stamp(P, 4)
    P(f"""
    s_barrier
    s_waitcnt vmcnt(2)
    s_barrier
    s_mov_b32 exec_hi, s64
    buffer_load_dword v253, v151, s[28:31], s65 offen{wnt}
    s_mov_b64 exec, -1
    s_branch L_noflag
    """)

    P.raw(".p2align 12")
    WR_ = 156; XL = 16; U = 56; AD = 96; C1 = 108; F = 116; G = 124; S = 128; ON = 132; IX = 136
    ACC = 16; RHO = 138; ZV = 150; PK = 36
    SEC[0] = "m"
    P("L_M:")
    stamp(P, 2)
    wq = [f"ds_read_b128 {v(WR_+4*f,4)}, v{vL16} offset:{L_W + 1024*f}" for f in range(20)]
    for o in wq: P(o)
    wrow(WR_ + 80)
    P(f"""
    v_mul_u32_u24 v9, 10, v{vQ}
    v_lshrrev_b32 v10, 1, v{vN}
    v_xor_b32 v10, v10, v{vN}
    v_bfe_u32 v10, v10, 2, 1
    v_and_or_b32 v10, v{vN}, 6, v10
    v_lshl_add_u32 v11, v{vN}, 7, s49
    """)
    for c in range(0, 10, 2):
        P(f"""
        v_xor_b32 v12, v9, v10
        v_and_b32 v{AD+c}, 7, v12
        v_lshrrev_b32 v12, 3, v12
        v_lshl_add_u32 v{AD+c}, v{AD+c}, 4, v11
        v_lshl_add_u32 v{AD+c}, v12, 11, v{AD+c}
        v_xor_b32 v{AD+c+1}, 16, v{AD+c}
        """)
        if c < 8: P("v_add_u32 v9, 2, v9")
    P(f"""
    v_mov_b32 v{ON}, 0x3f803f80
    v_mov_b32 v{ON+1}, 0x3f803f80
    v_mov_b32 v{ON+2}, 0x3f803f80
    v_mov_b32 v{ON+3}, 0x3f803f80
    v_and_b32 v9, 1, v{vN}
    v_mul_u32_u24 v{IX}, 0xaaaa, v9
    v_or_b32 v{IX}, 0x4444, v{IX}
    s_mov_b32 s60, 0x22222222
    s_mov_b32 s61, s60
    s_lshl_b64 s[62:63], s[60:61], 1
    s_lshl_b64 s[64:65], s[60:61], 2
    """)
    P(f"""
    v_mul_u32_u24 v9, s{sJ}, v{vQ}
    v_and_b32 v10, 1, v{vN}
    v_lshlrev_b32 v10, 1, v10
    v_sub_u32 v9, v9, v10
    v_cvt_f32_i32 v9, v9
    v_mul_f32 v9, {f2u(0.125)}, v9
    v_cos_f32 v9, v9
    v_and_b32 v10, 2, v{vN}
    v_lshlrev_b32 v10, 3, v10
    v_cvt_pk_bf16_f32 v9, v9, 0
    v_lshlrev_b32 v9, v10, v9
    v_lshrrev_b32 v10, 2, v{vN}
    s_and_b32 s43, s{sJ}, 1
    s_mul_i32 s43, s43, 0x80008000
    """)
    for i in range(4):
        P(f"v_cmp_eq_u32 vcc, {i}, v10")
        P(f"v_cndmask_b32 v{C1+i}, 0, v9, vcc")
        P(f"v_xor_b32 v{C1+4+i}, s43, v{C1+i}")
    P_ = P
    P = Prog(); T = 138
    P(f"""
    v_lshrrev_b32 v9, 1, v{vN}
    v_lshl_add_u32 v9, s{sHW}, 3, v9
    v_and_b32 v11, 1, v{vN}
    v_lshl_add_u32 v10, v9, 1, v11
    v_cmp_eq_u32 vcc, 1, v10
    v_cndmask_b32 v9, v9, 32, vcc
    v_cndmask_b32 v11, v11, 0, vcc
    v_cvt_f32_u32 v9, v9
    v_cvt_f32_u32 v11, v11
    v_mul_f32 v9, {f2u(1.0/64)}, v9
    v_mul_f32 v11, {f2u(-0.25)}, v11
    v_lshlrev_b32 v10, 3, v{vQ}
    v_cvt_f32_u32 v10, v10
    v_cos_f32 v12, v9
    v_fma_f32 v{T}, v9, v10, v11
    v_add_f32 v10, {f2u(32.0)}, v10
    v_fma_f32 v{T+8}, v9, v10, v11
    v_add_f32 v{T+1}, v{T}, v9
    v_add_f32 v{T+9}, v{T+8}, v9
    v_cos_f32 v{T}, v{T}
    v_cos_f32 v{T+1}, v{T+1}
    v_cos_f32 v{T+8}, v{T+8}
    v_cos_f32 v{T+9}, v{T+9}
    v_add_f32 v12, v12, v12
    """)
    cheb2(P, T, 12)
    for i in range(8): P(f"v_cvt_pk_f16_f32 v{F+i}, v{T+2*i}, v{T+2*i+1}")
    FG = list(P.lines)
    P = Prog()
    P(f"""
    v_mul_u32_u24 v143, {HS}, v{vN}
    v_lshl_add_u32 v142, v{vW}, 5, v143
    v_lshl_add_u32 v142, v{vQ}, 3, v142
    v_lshl_add_u32 v143, v{vQ}, 4, v143
    v_lshlrev_b32 v144, 17, v{vQ}
    v_lshl_add_u32 v144, v{vN}, 4, v144
    v_lshlrev_b32 v145, 15, v{vQ}
    v_lshl_add_u32 v145, v{vN}, 2, v145
    s_mov_b32 s55, 0xfffefffe
    v_and_b32 v146, 3, v{vN}
    v_lshlrev_b32 v146, 2, v146
    v_mov_b32 v13, 0
    s_lshl_b32 s52, s{sHW}, 19
    s_lshl_b32 s43, s{sGRP}, 11
    s_add_u32 s52, s52, s43
    s_lshl_b32 s43, s{sJ}, 8
    s_add_u32 s52, s52, s43
    s_lshr_b32 s56, s52, 2
    s_add_u32 s52, s52, {ZM}
    s_add_u32 s53, s52, 65536
    s_add_u32 s56, s56, {ZT}
    s_add_u32 s57, s56, 16384
    """)
    AB_ = list(P.lines)
    P = P_
    P(f"""
    v_mov_b32 v{S}, 0
    v_mov_b32 v{S+1}, 0
    v_mov_b32 v{S+2}, 0
    v_mov_b32 v{S+3}, 0
    """)
    stamp(P, 13)
    P("s_waitcnt vmcnt(0)")
    stamp(P, 3)
    def half(hi, fills, extra):
        for c in range(10): P(f"ds_read_b128 {v(XL+4*c,4)}, v{AD+c}" + (" offset:10240" if hi else ""))
        if not hi: P("s_barrier")
        for k in range(5):
            x = XL + 8*k
            fl = fills(k)
            mm = [f"v_mfma_f32_16x16x32_bf16 {v(U+8*k,4)}, {v(C1+4*hi,4)}, {v(x,4)}, {v(U+8*k,4) if hi else '0'}",
                  f"v_mfma_f32_16x16x32_bf16 {v(G,4)}, {v(x,4)}, {v(x,4)}, {'0' if (k==0 and not hi) else v(G,4)}",
                  f"v_mfma_f32_16x16x32_bf16 {v(U+8*k+4,4)}, {v(C1+4*hi,4)}, {v(x+4,4)}, {v(U+8*k+4,4) if hi else '0'}",
                  f"v_mfma_f32_16x16x32_bf16 {v(G,4)}, {v(x+4,4)}, {v(x+4,4)}, {v(G,4)}",
                  f"v_smfmac_f32_16x16x64_bf16 {v(S,4)}, {v(ON,4)}, {v(x,8)}, v{IX}"]
            for i, m in enumerate(mm):
                if i in (0, 2): P(f"s_waitcnt lgkmcnt({9 - 2*k - i//2})")
                P(m)
                for _ in range(2):
                    if i >= 2 and fl: P(fl.pop(0))
                    elif extra: P(extra.pop(0))
        for o in extra: P(o)
    half(0, lambda k: [], FG)
    P(f"""
    s_cmp_lg_u32 s{sJ}, 0
    s_cbranch_scc1 L_nooff
    v_add_f32 v9, v{S}, v{S+1}
    v_mul_f32 v9, {f2u(-8.0/320)}, v9
    """)
    for i in range(20): P(f"v_add_f32 v{U+2*i}, v{U+2*i}, v9")
    P(f"""
    L_nooff:
    s_setprio 2
    s_barrier
    """)
    stamp(P, 12)
    def cvt(k): return [f"v_cvt_pk_bf16_f32 v{U+8*k+i}, v{U+8*k+2*i}, v{U+8*k+2*i+1}" for i in range(4)]
    half(1, lambda k: cvt(k-1) if k else [], AB_)
    chain = cvt(4) + [f"v_add_f32 v{S}, v{S}, v{S+1}",
             f"v_cndmask_b32 v{G}, v{G}, v{G+1}, s[60:61]",
             f"v_mul_f32 v{S}, s{sC640}, v{S}",
             f"v_cndmask_b32 v{G}, v{G}, v{G+2}, s[62:63]",
             f"v_mul_f32 v{S}, v{S}, v{S}",
             f"v_cndmask_b32 v{G}, v{G}, v{G+3}, s[64:65]",
             f"v_fma_f32 v{G}, v{G}, s{sC640}, -v{S}",
             f"v_max_f32 v{G}, 0, v{G}"] + bf16_round(G) + [f"v_add_f32 v{G}, {f2u(1e-5)}, v{G}"] + bf16_round(G) + \
            [f"v_sqrt_f32 v{G}, v{G}", None] + bf16_round(G) + [f"v_rcp_f32 v{G}, v{G}", None, None] + \
            [f"v_mov_b32_dpp v{RHO+r}, v{G} row_newbcast:{4*q+r} row_mask:{hex(1<<q)} bank_mask:0xf" for q in range(4) for r in range(4)]
    n = 0
    for kp in range(5):
        for t in range(5):
            P(f"v_mfma_f32_16x16x32_bf16 {v(ACC+4*t,4)}, {v(U+8*kp,4)}, {v(WR_+4*(5*t+kp),4)}, {'0' if kp==0 else v(ACC+4*t,4)}")
            n += 1
            if n >= 3:
                for _ in range(2):
                    if chain:
                        o = chain.pop(0)
                        if o: P(o)
    assert not chain
    stamp(P, 4)
    for t in range(5):
        P(f"v_pk_mul_f32 {v(ACC+4*t,2)}, {v(ACC+4*t,2)}, {v(RHO,2)}")
        P(f"v_pk_mul_f32 {v(ACC+4*t+2,2)}, {v(ACC+4*t+2,2)}, {v(RHO+2,2)}")
        P(f"v_cvt_pk_f16_f32 v{PK+2*t}, v{ACC+4*t}, v{ACC+4*t+1}")
        P(f"v_cvt_pk_f16_f32 v{PK+2*t+1}, v{ACC+4*t+2}, v{ACC+4*t+3}")
        P(f"ds_write_b64 v142, {v(PK+2*t,2)} offset:{L_HT + 16*t*HS}")
    P(f"""
    s_waitcnt lgkmcnt(0)
    s_barrier
    ds_read_b128 {v(ZV,4)}, v13 offset:{L_ZP}
    ds_read_b32 v147, v146 offset:{L_ZP}
    ds_read_b32 v14, v13 offset:{L_TAG}
    """)
    BF = 16; DC = 70; ZO = 92
    for t in range(5):
        for kk in range(2):
            P(f"ds_read_b128 {v(BF+8*t+4*kk,4)}, v143 offset:{L_HT + 16*t*HS + 64*kk}")
    for t in range(5):
        c = DC + 4*t
        P(f"s_waitcnt lgkmcnt({8-2*t})")
        P(f"v_mfma_f32_16x16x32_f16 {v(c,4)}, {v(F,4)}, {v(BF+8*t,4)}, 0")
        P(f"v_mfma_f32_16x16x32_f16 {v(c,4)}, {v(F+4,4)}, {v(BF+8*t+4,4)}, {v(c,4)}")
        if t >= 2:
            for u in range(2):
                P(f"v_cvt_pk_f16_f32 v{ZO+4*u+t-2}, v{DC+4*(t-2)+2*u}, v{DC+4*(t-2)+2*u+1}")
                P(f"v_and_or_b32 v{ZO+4*u+t-2}, v{ZO+4*u+t-2}, s55, v{ZV+t-2}")
    for u in range(2):
        P(f"v_cvt_pk_f16_f32 v{ZO+4*u+3}, v{DC+12+2*u}, v{DC+12+2*u+1}")
        P(f"v_and_or_b32 v{ZO+4*u+3}, v{ZO+4*u+3}, s55, v{ZV+3}")
        P(f"buffer_store_dwordx4 {v(ZO+4*u,4)}, v144, s[8:11], s{52+u} offen sc1")
    for u in range(2):
        P(f"v_cvt_pk_f16_f32 v{ZO+8+u}, v{DC+16+2*u}, v{DC+16+2*u+1}")
        P(f"v_and_or_b32 v{ZO+8+u}, v{ZO+8+u}, s55, v147")
        P(f"buffer_store_dword v{ZO+8+u}, v145, s[8:11], s{56+u} offen sc1")
    P("s_setprio 0")
    stamp(P, 5)
    consts()
    P(f"""
    s_cmp_ge_u32 s{sJ}, 4
    s_cbranch_scc1 L_ffn
    """)
    for i in range(4): P(f"v_readfirstlane_b32 s{ZP[i]}, v{ZV+i}")
    P(f"""
    s_branch L_prep
    L_rare:
    """)
    P.raw(".p2align 12")

    SEC[0] = "p2"
    ZR = 16; CF = 80; AC = 96; YA = 112
    WF = 116; HA = 126; HB = 136; XR = 146; SW = 154; XT = 164
    P(f"""
    L_prep:
    v_mov_b32 v5, 0
    v_mov_b32 v7, 0
    s_add_u32 s69, s{sWV}, -2
    s_cmp_lt_u32 s69, 2
    s_cbranch_scc1 L_lnp
    s_cmp_lt_u32 s{sWV}, 2
    s_cbranch_scc1 L_ztail
    v_lshlrev_b32 v5, 11, v{vQ}
    v_lshrrev_b32 v10, 3, v{vN}
    s_add_u32 s49, s{sHW}, s{sJ}
    s_and_b32 s49, s49, 3
    v_lshl_add_u32 v10, s49, 1, v10
    v_lshl_add_u32 v5, v10, 8, v5
    v_and_b32 v9, 7, v{vN}
    v_lshl_add_u32 v5, v9, 4, v5
    v_add_u32 v7, 128, v5
    v_lshlrev_b32 v9, 3, v9
    s_lshl_b32 s58, s{sGRP}, 16
    s_add_u32 s58, s58, {ZM}
    s_movk_i32 s48, 8192
    v_mov_b32 v12, 256
    s_branch L_zcom
    L_ztail:
    v_lshrrev_b32 v10, 2, v{vN}
    v_lshl_add_u32 v10, s{sWV}, 2, v10
    v_and_b32 v9, 1, v{vN}
    v_lshlrev_b32 v5, 9, v{vQ}
    v_lshl_add_u32 v5, v{vN}, 4, v5
    v_lshl_add_u32 v5, s{sWV}, 8, v5
    s_lshl_b32 s58, s{sGRP}, 14
    s_add_u32 s58, s58, {ZT}
    s_movk_i32 s48, 2048
    v_lshlrev_b32 v9, 5, v9
    v_add_u32 v9, 256, v9
    v_mov_b32 v12, 32
    L_zcom:
    v_add_u32 v10, -1, v10
    v_and_b32 v10, 7, v10
    v_add3_u32 v9, v9, v10, 1
    v_and_b32 v11, 1, v{vQ}
    v_mul_u32_u24 v11, {4*RSB+16}, v11
    s_mov_b32 exec_lo, 0
    v_sub_u32 v9, 640, v9
    v_sub_u32 v12, 0, v12
    s_mov_b32 exec_lo, -1
    v_lshl_add_u32 v{YA}, v9, 2, v11
    v_add_u32 v{YA+1}, v{YA}, v12
    v_add_u32 v{YA+2}, v{YA+1}, v12
    v_add_u32 v{YA+3}, v{YA+2}, v12
    s_movk_i32 s49, 344
    v_cmp_eq_u32 vcc, s49, v9
    v_cndmask_b32 v{YA+3}, v{YA+3}, v11, vcc
    """)
    for i in range(1, 8): P(f"s_add_u32 s{58+i}, s{57+i}, s48")
    P(f"""
    L_lnp:
    s_mul_i32 s49, s{sHW}, 5120
    s_lshr_b32 s47, s{sWV}, 2
    s_lshl_b32 s48, s47, 11
    s_add_u32 s48, s48, s49
    s_add_u32 s48, s48, {L_XR}
    s_lshl_b32 s43, s47, 9
    s_add_u32 s43, s43, s49
    s_add_u32 s43, s43, {L_XR+4096}
    v_add_u32 v160, s48, v{vL16}
    v_add_u32 v161, s43, v{vL4}
    v_add_u32 v162, {L_WR}, v{vL16}
    v_add_u32 v163, {L_WR+1024}, v{vL4}
    ds_read_b128 {v(XT,4)}, v162
    ds_read_b32 v{XT+4}, v163
    ds_read_b128 {v(XT+46,4)}, v160
    ds_read_b32 v{XT+50}, v161
    ds_read_b128 {v(XT+52,4)}, v160 offset:1024
    ds_read_b32 v{XT+56}, v161 offset:256
    s_mul_i32 s49, s{sWV}, {RSB}
    s_lshl_b32 s47, s47, 4
    s_add_u32 s49, s49, s47
    s_add_u32 s49, s49, {L_W}
    v_lshl_add_u32 v{XR}, v{vL}, 5, s49
    v_lshl_add_u32 v{XR+1}, v{vL}, 3, s49
    s_lshl_b32 s49, s49, 1
    s_add_u32 s47, s49, 2528
    s_add_u32 s49, s49, 508
    v_sub_u32 v{XR+2}, s47, v{XR}
    v_sub_u32 v{XR+3}, s49, v{XR+1}
    s_mul_i32 s{sROW}, s{sWV}, s{sSTR}
    s_add_u32 s{sROW}, s{sROW}, s{sTB}
    s_sub_u32 s{sROWB}, 2048, s{sROW}
    s_cmp_eq_u32 s{sROW}, 0
    s_cselect_b32 s{sROWB}, 1024, s{sROWB}
    s_lshl_b32 s47, s{sROW}, 6
    s_lshl_b32 s48, s{sROWB}, 6
    v_mov_b32 v{XR+6}, s47
    v_writelane_b32 v{XR+6}, s48, 63
    v_lshrrev_b32 v9, 5, v{vL}
    v_lshl_add_u32 v9, v9, 3, v{vW}
    v_lshlrev_b32 v{XR+7}, 2, v9
    s_mul_i32 s56, s{sROW}, 1280
    s_mul_i32 s57, s{sROWB}, 1280
    s_mul_i32 s54, s{sIDX}, {KST}
    s_lshr_b32 s36, s2, 6
    s_lshl2_add_u32 s36, s36, s{sJ}
    s_lshl_b32 s43, s{sXCD}, 8
    s_lshl2_add_u32 s36, s36, s43
    s_add_u32 s36, s36, {SEN1}
    s_waitcnt lgkmcnt(0)
    """)
    def unpack(dst, src):
        o = []
        for i in range(5):
            o.append(f"v_lshlrev_b32 v{dst+2*i}, 16, v{src+i}")
            o.append(f"v_and_b32 v{dst+2*i+1}, 0xffff0000, v{src+i}")
        return o
    for o in unpack(WF, XT): P(o)
    P(f"""
    v_pk_add_f32 {v(SW,2)}, {v(WF,2)}, {v(WF+2,2)}
    v_pk_add_f32 {v(SW,2)}, {v(SW,2)}, {v(WF+4,2)}
    v_pk_add_f32 {v(SW,2)}, {v(SW,2)}, {v(WF+6,2)}
    v_pk_add_f32 {v(SW,2)}, {v(SW,2)}, {v(WF+8,2)}
    v_add_f32 v{SW}, v{SW}, v{SW+1}
    """)
    ux = unpack(HA, XT+46) + unpack(HB, XT+52)
    red = [f"v_add_f32_dpp v{SW}, v{SW}, v{SW} row_shr:{sh} row_mask:0xf bank_mask:0xf bound_ctrl:0" for sh in (1, 2, 4, 8)] + \
          [f"v_add_f32_dpp v{SW}, v{SW}, v{SW} row_bcast:15 row_mask:0xa bank_mask:0xf", f"v_add_f32_dpp v{SW}, v{SW}, v{SW} row_bcast:31 row_mask:0xc bank_mask:0xf"]
    for r_ in red:
        for _ in range(3): P(ux.pop(0))
        P(r_)
    for o in ux: P(o)
    P(f"""
    v_readlane_b32 s55, v{SW}, 63
    """)
    P(f"""
    s_waitcnt {"" if OPT.get("noack", 1) else "vmcnt(0) "}lgkmcnt(0)
    """)
    if OPT.get("zdelay"): P(f"s_sleep {OPT['zdelay']}")
    stamp(P, 6)
    P("s_barrier")
    stamp(P, 7)
    P(f"""
    s_cmp_lt_u32 s69, 2
    s_cbranch_scc1 L_y1
    s_mov_b32 s50, 0
    s_cmp_lt_u32 s{sWV}, 2
    s_cbranch_scc1 L_tl
    """)
    for i in range(8):
        P(f"buffer_load_dwordx4 {v(ZR+8*i,4)}, v5, s[8:11], s{58+i} offen sc1")
        P(f"buffer_load_dwordx4 {v(ZR+8*i+4,4)}, v7, s[8:11], s{58+i} offen sc1")
        if i == 1:
            for k in range(4): P(f"ds_read_b128 {v(CF+4*k,4)}, v{vL16} offset:{L_CF + 1024*k}")
    P(f"""
    s_waitcnt lgkmcnt(0)
    L_zgo:
    v_mov_b32 v10, 0
    """)
    for k in range(4):
        z = ZR + 16*k
        y = 176 + 16*(k & 1)
        def mm(u):
            P(f"v_mfma_f32_16x16x32_f16 {v(AC+4*u,4)}, {v(CF+4*k,4)}, {v(y+4*u,4)}, {'0' if k==0 else v(AC+4*u,4)}")
            P(f"v_or3_b32 v10, v10, v{y+4*u}, v{y+4*u+1}")
            P(f"v_or3_b32 v10, v10, v{y+4*u+2}, v{y+4*u+3}")
        P(f"s_waitcnt vmcnt({12 - 4*k})")
        for u in range(4):
            for l in range(4): P(f"v_xor_b32 v{y+4*u+l}, s{ZP[u]}, v{z+4*l+u}")
            if u: mm(u-1)
        mm(3)
    P(f"v_and_b32 v10, 0x10001, v10")
    P(f"v_cmp_ne_u32 vcc, 0, v10")
    spin_tail(P, 50, "L_zretry", "L_zok")
    stamp(P, 8)
    if OPT["stamps"]: P("s_add_u32 s96, s50, 1")
    for u in range(4):
        for r in range(4):
            P(f"ds_write_b32 v{YA+u}, v{AC+4*u+r} offset:{L_W + r*RSB}")
    P(f"""
    s_mov_b64 exec, -1
    L_y1:
    s_waitcnt lgkmcnt(0)
    s_barrier
    """)
    stamp(P, 9)
    FW = 16; RV = 28; R1 = 36
    P(f"""
    ds_read_b128 {v(FW,4)}, v{XR}
    ds_read_b128 {v(FW+4,4)}, v{XR} offset:16
    ds_read_b64 {v(FW+8,2)}, v{XR+1} offset:2048
    ds_read_b32 v{R1}, v{XR+2} offset:32
    ds_read_b128 {v(RV+4,4)}, v{XR+2} offset:16
    ds_read_b128 {v(RV,4)}, v{XR+2}
    ds_read2_b32 {v(R1+2,2)}, v{XR+3} offset0:1 offset1:0
    """)
    rev = [R1] + [RV+7-i for i in range(7)] + [R1+2, R1+3]
    P(f"""
    s_cmp_eq_u32 s{sROW}, 0
    s_cbranch_scc1 L_special
    L_specret:
    s_waitcnt lgkmcnt(4)
    v_writelane_b32 v{FW}, 0, 0
    """)
    A1, A2, A3, B1, B2, B3 = 40, 42, 44, 46, 48, 50
    def accum(Hr, i, a1, a2, a3):
        if i == 0:
            P(f"v_pk_mul_f32 {v(a2,2)}, {v(Hr,2)}, {v(Hr,2)}")
            P(f"v_pk_mul_f32 {v(a3,2)}, {v(Hr,2)}, {v(WF,2)}")
        else:
            P(f"v_pk_add_f32 {v(a1,2)}, {v(a1 if i>1 else Hr,2)}, {v(Hr+2*i,2)}")
            P(f"v_pk_fma_f32 {v(a2,2)}, {v(Hr+2*i,2)}, {v(Hr+2*i,2)}, {v(a2,2)}")
            P(f"v_pk_fma_f32 {v(a3,2)}, {v(Hr+2*i,2)}, {v(WF+2*i,2)}, {v(a3,2)}")
    for i in range(5):
        P(f"v_pk_add_f32 {v(HA+2*i,2)}, {v(HA+2*i,2)}, {v(FW+2*i,2)}")
        accum(HA, i, A1, A2, A3)
    P("s_waitcnt lgkmcnt(0)")
    P(f"v_writelane_b32 v{R1}, 0, 0")
    for i in range(5):
        P(f"v_add_f32 v{HB+2*i}, v{HB+2*i}, v{rev[2*i]}")
        P(f"v_add_f32 v{HB+2*i+1}, v{HB+2*i+1}, v{rev[2*i+1]}")
        accum(HB, i, B1, B2, B3)
    for r in (A1, A2, A3, B1, B2, B3): P(f"v_add_f32 v{r}, v{r}, v{r+1}")
    for x_, y_ in ((A1, B1), (A2, B2), (A3, B3)): P(f"v_permlane32_swap_b32 v{x_}, v{y_}")
    S1, S2, S3 = A1, A2, A3
    for x_, y_ in ((A1, B1), (A2, B2), (A3, B3)): P(f"v_add_f32 v{x_}, v{x_}, v{y_}")
    regs = [S1, S2, S3]
    for sh in (1, 2, 4, 8):
        for r in regs: P(f"v_add_f32_dpp v{r}, v{r}, v{r} row_shr:{sh} row_mask:0xf bank_mask:0xf bound_ctrl:0")
    for r in regs: P(f"v_add_f32_dpp v{r}, v{r}, v{r} row_bcast:15 row_mask:0xa bank_mask:0xf")
    MC = 52; TM = 46
    if OPT.get("h1pos", 1) == 0:
        P(f"""
        s_cmp_lg_u32 s{sWV}, 2
        s_cbranch_scc1 L_nohint
        s_mov_b64 exec, 1
        buffer_store_dword v14, v5, s[8:11], s36 offen
        s_mov_b64 exec, -1
        L_nohint:
        """)
    P(f"""
    v_mul_f32 v{MC}, s{sC640}, v{S1}
    v_mul_f32 v{TM}, v{MC}, v{MC}
    v_fma_f32 v{S2}, v{S2}, s{sC640}, -v{TM}
    v_max_f32 v{S2}, 0, v{S2}
    s_mov_b32 s47, 0xffff8000
    """)
    for o in bf16_round(S2) + bf16_round(MC): P(o)
    P(f"v_add_f32 v{S2}, {f2u(1e-5)}, v{S2}")
    for o in bf16_round(S2): P(o)
    P(f"v_sqrt_f32 v{S2}, v{S2}")
    P(f"v_fma_f32 v{S3}, -v{MC}, s55, v{S3}")
    for o in bf16_round(S2): P(o)
    P(f"""
    v_add_f32 v{MC+1}, 1.0, v{S2}
    v_rcp_f32 v{S2}, v{S2}
    v_rcp_f32 v{MC+1}, v{MC+1}
    v_mul_f32 v{S3}, v{S3}, v{S2}
    v_cvt_pk_bf16_f32 v{S3}, v{S3}, v{S3}
    v_ashrrev_i32 v{TM}, 31, v{S3}
    v_or_b32 v{TM}, 0x80000000, v{TM}
    v_xor_b32 v{S3}, v{S3}, v{TM}
    v_lshrrev_b32 v{S3}, 1, v{S3}
    v_bfi_b32 v{S3}, s47, v{S3}, v14
    s_brev_b32 exec_lo, 1
    s_brev_b32 exec_hi, 1
    ds_write_b32 v{XR+7}, v{S3} offset:{L_KREC}
    v_mov_b32 v{MC+2}, v14
    v_mov_b32 v{MC+3}, v14
    v_mul_f32 v{S1}, v{MC}, v{S2}
    v_add_f32 v{S2}, 1.0, v{S2}
    s_mov_b32 s47, {STATS}
    v_readlane_b32 s51, v{S1}, 31
    v_readlane_b32 s53, v{S1}, 63
    v_readlane_b32 s50, v{S2}, 31
    v_readlane_b32 s52, v{S2}, 63
    s_waitcnt lgkmcnt(0)
    s_barrier
    s_cmp_lg_u32 s{sWV}, 3
    s_cbranch_scc1 L_nokey
    s_mov_b64 exec, 15
    ds_read_b128 {v(56,4)}, v{vL16} offset:{L_KREC}
    s_add_u32 s49, s54, {KEYS}
    s_waitcnt lgkmcnt(0)
    {"buffer_store_dword v14, v5, s[8:11], s36 offen" if OPT.get("h1pos", 1) == 2 else ""}
    buffer_store_dwordx4 {v(56,4)}, v{vL16}, s[8:11], s49 offen sc1
    {"s_mov_b64 exec, 1" if OPT.get("h1pos", 1) == 1 else ""}
    {"buffer_store_dword v14, v5, s[8:11], s36 offen" if OPT.get("h1pos", 1) == 1 else ""}
    s_brev_b32 exec_lo, 1
    s_brev_b32 exec_hi, 1
    L_nokey:
    buffer_store_dwordx4 {v(MC,4)}, v{XR+6}, s[8:11], s47 offen sc1
    s_mov_b64 exec, -1
    v_mov_b32 v{TM}, s51
    v_mov_b32 v{TM+1}, s53
    """)
    stamp(P, 10)
    for (Hr, sc, tm, so, o) in ((HA, 50, TM, 56, 16), (HB, 52, TM+1, 57, 24)):
        for i in range(10): P(f"v_fma_f32 v{Hr+i}, v{Hr+i}, s{sc}, -v{tm}")
        for i in range(5):
            P(f"v_cvt_pk_bf16_f32 v{o+i}, v{Hr+2*i}, v{Hr+2*i+1}")
            P(f"v_min_u32 v{o+i}, -2, v{o+i}")
        P(f"buffer_store_dwordx4 {v(o,4)}, v{vL16}, s[12:15], s{so} offen sc1")
        P(f"buffer_store_dword v{o+4}, v{vL4}, s[12:15], s{so} offen offset:1024 sc1")
    stamp(P, 11)
    P(f"""
    s_cmp_lg_u32 s{sWV}, 3
    s_cbranch_scc1 L_finp
    s_cmp_lg_u32 s2, 0
    s_cbranch_scc1 L_finp
    s_mov_b64 exec, 1
    buffer_store_dword v14, v5, s[8:11], 0 offen sc1
    L_finp:
    {"s_branch L_fin" if (OPT["stamps"] or OPT.get("padto")) else "s_endpgm"}
    """)
    P(f"""
    L_tl:
    """)
    for i in range(8): P(f"buffer_load_dwordx4 {v(ZR+4*i,4)}, v5, s[8:11], s{58+i} offen sc1")
    P(f"v_add_u32 v9, {L_CF}, v{vL16}")
    for k in range(4):
        P(f"ds_read2_b32 {v(CF+4*(k>>1)+2*(k&1),2)}, v9 offset0:0 offset1:2")
        P(f"ds_read2_b32 {v(CF+8+4*(k>>1)+2*(k&1),2)}, v9 offset0:1 offset1:3")
        if k < 3: P(f"v_add_u32 v9, 1024, v9")
    P("s_waitcnt lgkmcnt(0)")
    P("s_branch L_tgo")
    P("L_tretry:")
    for i in range(8): P(f"buffer_load_dwordx4 {v(ZR+4*i,4)}, v5, s[8:11], s{58+i} offen sc1")
    P(f"""
    L_tgo:
    v_mov_b32 v10, 0
    """)
    AB = 48
    for k in range(2):
        z = ZR + 16*k; y = 176 + 16*k
        P(f"s_waitcnt vmcnt({4 - 4*k})")
        def mt(u):
            P(f"v_mfma_f32_16x16x32_f16 {v(AC+4*u,4)}, {v(CF+4*k,4)}, {v(y+4*u,4)}, {'0' if k==0 else v(AC+4*u,4)}")
            P(f"v_or3_b32 v10, v10, v{y+4*u}, v{y+4*u+1}")
            P(f"v_mfma_f32_16x16x32_f16 {v(AB+4*u,4)}, {v(CF+8+4*k,4)}, {v(y+4*u,4)}, {'0' if k==0 else v(AB+4*u,4)}")
            P(f"v_or3_b32 v10, v10, v{y+4*u+2}, v{y+4*u+3}")
        for u in range(4):
            for l in range(4): P(f"v_xor_b32 v{y+4*u+l}, s{ZP[u]}, v{z+4*l+u}")
            if u: mt(u-1)
        mt(3)
    P(f"v_and_b32 v10, 0x10001, v10")
    P(f"v_cmp_ne_u32 vcc, 0, v10")
    spin_tail(P, 50, "L_tretry", "L_tok")
    for i in range(16):
        P(f"v_add_f32_dpp v{AC+i}, v{AB+i}, v{AC+i} quad_perm:[2,3,2,3] row_mask:0xf bank_mask:0xf")
    P(f"""
    s_mov_b32 exec_lo, 0x33333333
    s_mov_b32 exec_hi, 0x33333333
    s_branch L_zok
    """)
    flush_late(P)
    RARE = Prog()
    P_main = P
    P = RARE
    P("L_zretry:")
    for i in range(8):
        P(f"buffer_load_dwordx4 {v(ZR+8*i,4)}, v5, s[8:11], s{58+i} offen sc1")
        P(f"buffer_load_dwordx4 {v(ZR+8*i+4,4)}, v7, s[8:11], s{58+i} offen sc1")
    P("s_branch L_zgo")
    P(f"""
    L_special:
    s_waitcnt lgkmcnt(0)
    v_readlane_b32 s49, v{FW}, 0
    s_mov_b32 exec_lo, 0
    s_mov_b32 exec_hi, 0xfffffe00
    v_swap_b32 v{FW}, v{rev[0]}
    s_mov_b32 exec_hi, 0xffffff00
    """)
    for i in range(1, 8): P(f"v_swap_b32 v{FW+i}, v{rev[i]}")
    P(f"""
    s_mov_b64 exec, -1
    v_swap_b32 v{FW+8}, v{rev[8]}
    v_swap_b32 v{FW+9}, v{rev[9]}
    v_writelane_b32 v{rev[0]}, s49, 40
    s_branch L_specret
    """)

    P = P_main
    k_ = P.lines.index("L_rare:") + 1
    P.lines[k_:k_] = RARE.lines
    SEC[0] = "ffn"
    BW = 48; AR = 112; A0 = 128
    KK = 16; ID = 24; K4 = 32; CB = 112
    P.raw(".p2align 12")
    P(f"""
    L_ffn:
    s_barrier
    s_cmp_lg_u32 s{sWV}, 0
    s_cbranch_scc1 L_noflag
    s_mul_i32 s49, s{sIDX}, {KST}
    s_add_u32 s49, s49, {FLAGS}
    s_mov_b64 exec, 1
    buffer_store_dword v14, v13, s[8:11], s49 offen sc1
    s_mov_b64 exec, -1
    L_noflag:
    v_lshrrev_b32 v7, 2, v0
    v_mul_u32_u24 v7, {KST}, v7
    v_and_b32 v12, 3, v0
    v_lshl_add_u32 v7, v12, 4, v7
    s_mov_b32 s52, {KEYS}
    {"buffer_load_dword v253, v7, s[8:11], s52 offen sc1" if OPT.get("kwarm", 0) else ""}
    v_and_b32 v9, 1, v{vN}
    v_mul_u32_u24 v144, 0xaaaa, v9
    v_or_b32 v144, 0x4444, v144
    v_lshrrev_b32 v9, 1, v{vQ}
    v_and_b32 v10, 1, v{vQ}
    v_lshlrev_b32 v10, 2, v10
    v_lshl_add_u32 v145, v9, 4, v10
    v_and_b32 v9, 8, v{vN}
    v_bfe_u32 v10, v{vN}, 2, 1
    v_add3_u32 v145, v145, v9, v10
    v_and_b32 v146, 3, v{vN}
    """)
    P(f"""
    v_bfe_u32 v9, v0, 4, 3
    v_lshlrev_b32 v9, 1, v9
    v_add_u32 v40, 1, v9
    v_sub_u32 v41, 32, v9
    v_sub_u32 v42, 32, v40
    v_cmp_eq_u32 vcc, 0, v9
    v_cndmask_b32 v41, v41, 16, vcc
    v_and_b32 v12, 128, v0
    v_cmp_ne_u32 vcc, 0, v12
    v_cndmask_b32 v9, v9, v41, vcc
    v_cndmask_b32 v40, v40, v42, vcc
    v_bfe_u32 v10, v0, 2, 2
    v_and_b32 v12, 1, v0
    v_lshl_add_u32 v10, v10, 1, v12
    v_lshlrev_b32 v10, 2, v10
    v_mov_b32 v11, 64
    v_cmp_eq_u32 vcc, 0, v9
    v_cndmask_b32 v11, v11, 32, vcc
    v_mad_u32_u24 v{ID}, v10, v11, v9
    v_lshl_add_u32 v{ID+4}, v10, 6, v40
    """)
    for i in range(1, 4):
        P(f"v_add_u32 v{ID+i}, v{ID+i-1}, v11")
        P(f"v_add_u32 v{ID+4+i}, 64, v{ID+3+i}")
    P(f"""
    v_and_b32 v12, 2, v0
    v_cmp_ne_u32 vcc, 0, v12
    """)
    for i in range(8):
        P(f"v_sub_u32 v9, 2048, v{ID+i}")
        P(f"v_cndmask_b32 v{ID+i}, v{ID+i}, v9, vcc")
    P(f"""
    v_mov_b32 v11, 1024
    v_cmp_eq_u32 vcc, 2, v0
    v_cndmask_b32 v{ID}, v{ID}, v11, vcc
    s_mov_b32 s53, {KEYS + 64*KST}
    s_lshr_b32 s54, s2, 6
    s_and_b32 s43, s{sJ}, 3
    s_lshl2_add_u32 s54, s54, s43
    s_mov_b32 s55, {OOB}
    s_cmp_eq_u32 s54, 10
    s_cmov_b32 s55, {STATS}
    s_cmp_lt_u32 s54, 10
    s_cselect_b32 s54, s54, {OOB>>7}
    s_lshl_b32 s54, s54, 7
    v_mov_b32 v12, 0
    v_lshrrev_b32 v5, 4, v0
    v_lshlrev_b32 v5, 2, v5
    v_lshlrev_b32 v151, 2, v{vN}
    v_lshlrev_b32 v43, 4, v{vQ}
    v_lshrrev_b32 v147, 1, v{vN}
    v_lshrrev_b32 v9, 3, v{vL}
    s_cmp_ge_u32 s{sWV}, 5
    s_cselect_b64 vcc, -1, 0
    v_cndmask_b32 v147, v147, v9, vcc
    v_lshlrev_b32 v147, 2, v147
    v_and_b32 v148, 1, v{vN}
    v_lshl_add_u32 v148, v{vQ}, 1, v148
    v_lshlrev_b32 v148, 4, v148
    s_cmp_lt_u32 s{sIDX}, 108
    s_cselect_b32 s43, 7, 8
    v_lshlrev_b32 v149, s43, v{vQ}
    v_lshl_add_u32 v149, v{vN}, 2, v149
    v_lshl_add_u32 v149, v{vW}, 10, v149
    v_add_u32 v149, {L_RED}, v149
    s_lshl_b32 s56, s{sWV}, 8
    s_movk_i32 s57, 1280
    v_mov_b32 v152, 1
    s_mov_b32 s52, {KEYS}
    s_mov_b32 s59, 0x7fff8000
    """)
    P(f"""
    s_cmp_ge_u32 s{sIDX}, 108
    s_cbranch_scc1 L_f2load
    """)
    P(f"""
    v_lshrrev_b32 v13, 1, v{vL}
    v_mul_u32_u24 v13, 3456, v13
    v_and_b32 v9, 1, v{vL}
    v_lshl_add_u32 v13, v9, 4, v13
    s_lshl_b32 s58, s{sIDX}, 5
    s_and_b32 s47, s{sJ}, 3
    s_mul_i32 s47, s47, 5
    s_mov_b32 s48, s{sWV}
    L_dma1:
    s_add_u32 s49, s48, s47
    s_cmp_ge_u32 s49, 20
    s_cselect_b32 s50, 20, 0
    s_sub_u32 s49, s49, s50
    s_lshr_b32 s50, s49, 2
    s_lshl_b32 s50, s50, 13
    s_and_b32 s51, s49, 3
    s_lshl_b32 s51, s51, 10
    s_add_u32 s50, s50, s51
    s_add_u32 m0, s50, {L_WT}
    s_mul_i32 s51, s49, {32*3456}
    s_add_u32 s51, s51, s58
    {"s_nop 0" if OPT.get("now") else f"buffer_load_dwordx4 v13, s[20:23], s51 offen lds"}
    s_add_u32 m0, m0, 4096
    s_add_u32 s48, s48, 8
    {"s_nop 0" if OPT.get("now") else f"buffer_load_dwordx4 v13, s[24:27], s51 offen lds"}
    s_cmp_lt_u32 s48, 20
    s_cbranch_scc1 L_dma1
    v_lshlrev_b32 v15, 5, v145
    v_lshl_add_u32 v15, v146, 3, v15
    v_lshl_add_u32 v15, v{vW}, 13, v15
    s_waitcnt vmcnt(0)
    s_barrier
    s_cmp_ge_u32 s{sWV}, 5
    s_cbranch_scc1 L_tk
    """)
    for blk in range(4):
        for j in range(4):
            P(f"ds_read_b64_tr_b16 {v(BW+8*blk+2*j,2)}, v15 offset:{L_WT + 2048*blk + 32*(32*(j>>1) + 2*(j&1))}")
    for i in range(4): P(f"v_mov_b32 v{AR+i}, 0x3f803f80")
    P(f"""
    s_lshl_b32 s49, s{sWV}, 7
    v_lshl_add_u32 v13, v{vN}, 2, s49
    s_waitcnt lgkmcnt(0)
    """)
    for i in range(4):
        P(f"v_mfma_f32_16x16x32_bf16 {v(A0,4)}, {v(AR,4)}, {v(BW+4*i,4)}, {'0' if i==0 else v(A0,4)}")
        P(f"v_mfma_f32_16x16x32_bf16 {v(A0+4,4)}, {v(AR,4)}, {v(BW+16+4*i,4)}, {'0' if i==0 else v(A0+4,4)}")
    P(f"ds_write_b32 v13, v{A0} offset:{L_CS}")
    P(f"ds_write_b32 v13, v{A0+4} offset:{L_CS+64}")
    P("s_branch L_tk")
    P(f"""
    L_f2load:
    s_waitcnt vmcnt(0)
    s_barrier
    """)
    stamp(P, 9)
    P(f"""
    v_lshrrev_b32 v13, 2, v{vL}
    v_mul_u32_u24 v13, 1280, v13
    v_and_b32 v9, 3, v{vL}
    v_lshl_add_u32 v13, v9, 4, v13
    s_sub_u32 s58, s{sIDX}, 108
    s_lshl_b32 s58, s58, 6
    s_and_b32 s47, s{sJ}, 1
    s_mov_b32 s47, 0
    s_mov_b32 s48, s{sWV}
    L_dma2:
    s_add_u32 s49, s48, s47
    s_cmp_ge_u32 s49, 112
    s_cselect_b32 s50, 112, 0
    s_sub_u32 s49, s49, s50
    s_lshl_b32 s50, s49, 10
    s_add_u32 m0, s50, {L_WT}
    s_mul_i32 s51, s49, {16*1280}
    s_add_u32 s51, s51, s58
    s_add_u32 s48, s48, 8
    {"s_nop 0" if OPT.get("now") else f"buffer_load_dwordx4 v13, s[28:31], s51 offen lds"}
    s_cmp_lt_u32 s48, 112
    s_cbranch_scc1 L_dma2
    v_lshlrev_b32 v15, 6, v145
    v_lshl_add_u32 v15, v146, 3, v15
    v_lshl_add_u32 v15, v{vW}, 14, v15
    s_waitcnt vmcnt(0)
    s_barrier
    s_cmp_ge_u32 s{sWV}, 7
    s_cbranch_scc1 L_tk
    """)
    for blk in range(4):
        for ct in range(2):
            for j in range(4):
                P(f"ds_read_b64_tr_b16 {v(BW+16*blk+8*ct+2*j,2)}, v15 offset:{L_WT + 4096*blk + 32*ct + 64*(32*(j>>1) + 2*(j&1))}")
    P("L_tk:")
    stamp(P, 6)
    P(f"""
    s_cmp_eq_u32 s{sWV}, 6
    s_cbranch_scc1 L_pad0
    s_cmp_eq_u32 s{sWV}, 7
    s_cbranch_scc1 L_fchk
    L_tk1:
    s_barrier
    s_cmp_ge_u32 s{sWV}, 4
    s_cbranch_scc1 L_tk2
    s_mov_b32 s50, 0
    """)
    stamp(P, 7)
    P(f"""
    L_kpoll:
    buffer_load_dwordx4 {v(KK,4)}, v7, s[8:11], s52 offen sc1
    buffer_load_dwordx4 {v(KK+4,4)}, v7, s[8:11], s53 offen sc1
    s_waitcnt vmcnt(0)
    v_bitop3_b32 v9, v{KK}, v{KK+1}, v14 bitop3:0x7e
    v_bitop3_b32 v10, v{KK+4}, v{KK+5}, v14 bitop3:0x7e
    v_bitop3_b32 v11, v{KK+2}, v{KK+6}, v14 bitop3:0x7e
    v_or3_b32 v10, v10, v9, v11
    v_and_b32 v10, 0x7fff, v10
    v_cmp_ne_u32 vcc, 0, v10
    """)
    spin_tail(P, 50, "L_kpoll", "L_kok")
    stamp(P, 8)
    if OPT["stamps"] and not OPT.get("dbgm"): P("s_add_u32 s96, s50, 1")
    for i in range(8):
        P(f"v_and_or_b32 v{KK+i}, v{KK+i}, s59, v{ID+i}")
    P(f"""
    v_max3_u32 v9, v{KK}, v{KK+1}, v{KK+2}
    v_max3_u32 v11, v{KK+3}, v{KK+4}, v{KK+5}
    v_max3_u32 v9, v9, v{KK+6}, v{KK+7}
    v_max_u32 v9, v9, v11
    v_max_u32_dpp v10, v9, v9 row_ror:1 row_mask:0xf bank_mask:0xf
    v_max_u32_dpp v10, v10, v10 row_ror:2 row_mask:0xf bank_mask:0xf
    v_max_u32_dpp v10, v10, v10 row_ror:4 row_mask:0xf bank_mask:0xf
    v_max_u32_dpp v10, v10, v10 row_ror:8 row_mask:0xf bank_mask:0xf
    ds_write_b32 v5, v10 offset:{L_GM}
    L_tk2:
    s_waitcnt lgkmcnt(0)
    s_barrier
    s_cmp_ge_u32 s{sWV}, 4
    s_cbranch_scc1 L_tk3
    """)
    def rank16(off, own):
        P(f"ds_read_b32 v{own}, v151 offset:{off}")
        P(f"ds_read_b128 {v(CB,4)}, v43 offset:{off}")
    def rank16b(own, acc):
        P("s_waitcnt lgkmcnt(0)")
        for i in range(4): P(f"v_sub_u32 v{CB+i}, v{own}, v{CB+i}")
        P(f"v_lshrrev_b32 v{acc}, 31, v{CB}")
        for i in range(1, 4): P(f"v_alignbit_b32 v{acc}, v{acc}, v{CB+i}, 31")
        P(f"""
        v_bcnt_u32_b32 v{acc}, v{acc}, 0
        v_mov_b32 v{CB}, v{acc}
        v_permlane16_swap_b32 v{acc}, v{CB}
        v_add_u32 v{acc}, v{acc}, v{CB}
        v_mov_b32 v{CB}, v{acc}
        v_permlane32_swap_b32 v{acc}, v{CB}
        v_add_u32 v{acc}, v{acc}, v{CB}
        """)
    rank16(L_GM, 10)
    rank16b(10, 11)
    P(f"""
    v_cmp_eq_u32 vcc, 7, v11
    s_ff1_i32_b64 s47, vcc
    v_readlane_b32 s48, v10, s47
    L_tkagain:
    v_mov_b32 v10, v9
    L_app:
    v_cmp_le_i32 vcc, s48, v10
    s_cbranch_vccz L_tk3
    s_mov_b64 exec, vcc
    ds_add_rtn_u32 v11, v12, v152
    {"" if not OPT.get("touch", 1) else f"v_and_b32 v{K4}, 2047, v10"}
    {"" if not OPT.get("touch", 1) else f"v_lshlrev_b32 v{K4+1}, 6, v{K4}"}
    {"" if not OPT.get("touch", 1) else f"v_mul_u32_u24 v{K4}, 1280, v{K4}"}
    {"" if not OPT.get("touch", 1) else f"buffer_load_dword v253, v{K4+1}, s[8:11], s55 offen sc1"}
    {"" if not OPT.get("touch", 1) else f"buffer_load_dword v253, v{K4}, s[12:15], s54 offen sc1"}
    s_mov_b64 exec, -1
    v_add_u32 v{K4+8}, -1, v10
    """)
    for i in range(8): P(f"v_sub_u32 v{K4+i}, v{K4+8}, v{KK+i}")
    P(f"""
    v_min3_u32 v{K4}, v{K4}, v{K4+1}, v{K4+2}
    v_min3_u32 v{K4+3}, v{K4+3}, v{K4+4}, v{K4+5}
    v_min3_u32 v{K4}, v{K4}, v{K4+6}, v{K4+7}
    v_min3_u32 v{K4}, v{K4}, v{K4+3}, v10
    s_waitcnt lgkmcnt(0)
    v_min_u32 v11, 16, v11
    v_lshlrev_b32 v11, 2, v11
    s_mov_b64 exec, vcc
    ds_write_b32 v11, v10 offset:{L_LIST}
    v_sub_u32 v10, v{K4+8}, v{K4}
    s_mov_b64 exec, -1
    s_branch L_app
    """)
    flush_late(P)
    P(f"""
    L_pad0:
    s_branch L_pad1
    L_fchk:
    s_cmp_lt_u32 s{sIDX}, 108
    s_cbranch_scc1 L_dok
    v_mul_u32_u24 v11, {KST}, v{vL}
    s_mov_b32 s49, {FLAGS}
    s_mov_b32 s47, {FLAGS+64*KST}
    s_mov_b32 s50, 0
    L_dpoll:
    buffer_load_dword v9, v11, s[8:11], s49 offen sc1
    buffer_load_dword v10, v11, s[8:11], s47 offen sc1
    s_waitcnt vmcnt(0)
    v_bitop3_b32 v9, v9, v10, v14 bitop3:0x7e
    v_cmp_ne_u32 vcc, 0, v9
    """)
    spin_tail(P, 50, "L_dpoll", "L_dok")
    P(f"""
    s_lshl_b32 s49, s{sXCD}, 8
    s_add_u32 s49, s49, {SEN1}
    s_mov_b32 s50, 0
    s_mov_b64 exec, 0xffff
    L_h1:
    buffer_load_dword v10, v{vL4}, s[8:11], s49 offen sc1
    s_add_u32 s50, s50, 1
    s_cmp_gt_u32 s50, {HINTMAX}
    s_waitcnt vmcnt(0)
    v_cmp_ne_u32 vcc, v14, v10
    s_cbranch_scc1 L_h1_d
    s_cbranch_vccnz L_h1
    L_h1_d:
    s_mov_b64 exec, -1
    {"s_sleep %d" % OPT["kdelay"] if OPT.get("kdelay") else ""}
    s_branch L_tk1
    """)
    P(f"""
    L_tk3:
    s_waitcnt lgkmcnt(0)
    s_barrier
    ds_read_b32 v{K4+9}, v12
    """)
    rank16(L_LIST, 10)
    rank16b(10, 11)
    P(f"""
    v_cmp_gt_u32 vcc, 8, v11
    v_readfirstlane_b32 s47, v{K4+9}
    v_lshlrev_b32 v11, 2, v11
    s_mov_b64 exec, vcc
    ds_write_b32 v11, v10 offset:{L_SEL}
    s_mov_b64 exec, -1
    ds_read_b32 v150, v147 offset:{L_SEL}
    s_mov_b32 s50, 0
    s_cmp_le_u32 s47, 16
    s_cbranch_scc1 L_tkdone
    ds_read_b32 v10, v12 offset:{L_SEL+28}
    s_waitcnt lgkmcnt(0)
    s_barrier
    v_readfirstlane_b32 s48, v10
    v_mov_b32 v11, -1
    ds_write_b32 v12, v12
    ds_write_b32 v151, v11 offset:{L_LIST}
    s_waitcnt lgkmcnt(0)
    s_barrier
    s_cmp_ge_u32 s{sWV}, 4
    s_cbranch_scc1 L_tk3
    s_branch L_tkagain
    """)
    flush_late(P)
    P(f"""
    L_pad1:
    s_branch L_pad2
    L_tkdone:
    s_cmp_ge_u32 s{sIDX}, 108
    s_cbranch_scc1 L_f2
    """)
    P(f"""
    s_cmp_eq_u32 s{sWV}, 5
    s_cbranch_scc1 L_f1fin
    s_cmp_gt_u32 s{sWV}, 5
    s_cbranch_scc1 L_fin2
    s_waitcnt lgkmcnt(0)
    """)
    stamp(P, 10)
    P(f"""
    v_and_b32 v9, 2047, v150
    v_mad_u32_u24 v9, v9, s57, v148
    L_gretry:
    buffer_load_dwordx4 {v(AR,4)}, v9, s[12:15], s56 offen sc1
    buffer_load_dwordx4 {v(AR+4,4)}, v9, s[12:15], s56 offen offset:128 sc1
    """)
    for i in range(8): P(f"v_mov_b32 v{A0+i}, 0")
    for b in range(2):
        P(f"s_waitcnt vmcnt({1-b})")
        for gu in range(2):
            P(f"v_smfmac_f32_16x16x64_bf16 {v(A0+4*gu,4)}, {v(AR+4*b,4)}, {v(BW+16*gu+8*b,8)}, v144")
        if b == 0: P(f"v_max3_u32 v10, v{AR}, v{AR+1}, v{AR+2}")
    P(f"""
    v_max3_u32 v10, v10, v{AR+3}, v{AR+4}
    v_max3_u32 v10, v10, v{AR+5}, v{AR+6}
    v_max_u32 v10, v10, v{AR+7}
    v_cmp_eq_u32 vcc, -1, v10
    """)
    spin_tail(P, 50, "L_gretry", "L_gok")
    stamp(P, 11)
    P(f"""
    v_add_f32 v{A0}, v{A0}, v{A0+1}
    v_add_f32 v{A0+2}, v{A0+2}, v{A0+3}
    ds_write2_b32 v149, v{A0}, v{A0+2} offset0:0 offset1:16
    v_add_f32 v{A0+4}, v{A0+4}, v{A0+5}
    v_add_f32 v{A0+6}, v{A0+6}, v{A0+7}
    ds_write2_b32 v149, v{A0+4}, v{A0+6} offset0:128 offset1:144
    s_waitcnt lgkmcnt(0)
    s_barrier
    {FIN}
    """)
    flush_late(P)
    P(f"""
    L_pad2:
    s_branch L_pad3
    """)
    D = 16
    P(f"""
    L_f1fin:
    s_mov_b32 s49, {STATS}
    s_waitcnt lgkmcnt(0)
    v_and_b32 v9, 2047, v150
    v_lshlrev_b32 v9, 6, v9
    buffer_load_dwordx4 {v(40,4)}, v9, s[8:11], s49 offen sc1
    v_and_b32 v13, 7, v{vL}
    v_lshlrev_b32 v13, 3, v13
    """)
    for w in range(5):
        P(f"ds_read_b64 {v(D+4*w,2)}, v13 offset:{L_CS+128*w}")
        P(f"ds_read_b64 {v(D+4*w+2,2)}, v13 offset:{L_CS+128*w+64}")
    P(f"""
    v_lshlrev_b32 v13, 3, v{vL}
    s_waitcnt lgkmcnt(0)
    """)
    for w in range(1, 5):
        P(f"v_pk_add_f32 {v(D,2)}, {v(D,2)}, {v(D+4*w,2)}")
        P(f"v_pk_add_f32 {v(D+2,2)}, {v(D+2,2)}, {v(D+4*w+2,2)}")
    P(f"""
    s_branch L_swait
    L_sretry:
    buffer_load_dwordx4 {v(40,4)}, v9, s[8:11], s49 offen sc1
    L_swait:
    s_waitcnt vmcnt(0)
    v_cmp_ne_u32 vcc, v14, v42
    """)
    spin_tail(P, 50, "L_sretry", "L_sok")
    P(f"""
    s_lshl_b32 s49, s{sIDX}, 8
    s_add_u32 s49, s49, {ACT}
    s_lshr_b32 s47, s2, 6
    s_and_b32 s43, s{sJ}, 3
    s_lshl2_add_u32 s47, s47, s43
    s_lshl_b32 s43, s{sXCD}, 8
    s_lshl2_add_u32 s47, s47, s43
    s_add_u32 s47, s47, {SEN2}
    v_mul_f32 v44, -v40, v{D}
    v_mul_f32 v45, -v40, v{D+1}
    v_mul_f32 v46, -v40, v{D+2}
    v_mul_f32 v47, -v40, v{D+3}
    v_mul_f32 v42, {f2u(-1.4426950408889634)}, v41
    v_mul_f32 v43, v41, v41
    s_barrier
    """)
    for w in range(5): P(f"ds_read_b64 {v(D+4*w,2)}, v13 offset:{L_RED+1024*w}")
    for w in range(5): P(f"ds_read_b64 {v(D+4*w+2,2)}, v13 offset:{L_RED+1024*w+512}")
    P(f"""
    s_waitcnt lgkmcnt(7)
    v_pk_add_f32 {v(44,2)}, {v(44,2)}, {v(D,2)}
    v_pk_add_f32 {v(D+4,2)}, {v(D+4,2)}, {v(D+8,2)}
    s_waitcnt lgkmcnt(5)
    v_pk_add_f32 {v(D+12,2)}, {v(D+12,2)}, {v(D+16,2)}
    v_pk_add_f32 {v(44,2)}, {v(44,2)}, {v(D+4,2)}
    v_pk_add_f32 {v(44,2)}, {v(44,2)}, {v(D+12,2)}
    v_mul_f32 v{D}, v42, v44
    v_mul_f32 v{D+1}, v42, v45
    v_exp_f32 v{D}, v{D}
    v_exp_f32 v{D+1}, v{D+1}
    s_waitcnt lgkmcnt(0)
    v_pk_add_f32 {v(46,2)}, {v(46,2)}, {v(D+2,2)}
    v_pk_add_f32 {v(D+6,2)}, {v(D+6,2)}, {v(D+10,2)}
    v_add_f32 v{D}, 1.0, v{D}
    v_add_f32 v{D+1}, 1.0, v{D+1}
    v_pk_add_f32 {v(D+14,2)}, {v(D+14,2)}, {v(D+18,2)}
    v_rcp_f32 v{D}, v{D}
    v_rcp_f32 v{D+1}, v{D+1}
    v_pk_add_f32 {v(46,2)}, {v(46,2)}, {v(D+6,2)}
    v_mul_f32 v44, v44, v43
    v_mul_f32 v45, v45, v43
    v_pk_add_f32 {v(46,2)}, {v(46,2)}, {v(D+14,2)}
    v_pk_mul_f32 {v(44,2)}, {v(44,2)}, {v(D,2)}
    v_pk_mul_f32 {v(44,2)}, {v(44,2)}, {v(46,2)}
    v_cvt_pk_bf16_f32 v44, v44, v45
    v_min_u32 v44, -2, v44
    {"buffer_store_dword v14, v12, s[8:11], s47 offen" if OPT.get("h2pos", 1) == 2 else ""}
    buffer_store_dword v44, v{vL4}, s[8:11], s49 offen sc1
    s_mov_b64 exec, 1
    {"buffer_store_dword v14, v12, s[8:11], s47 offen" if OPT.get("h2pos", 1) == 1 else ""}
    {FIN}
    """)
    flush_late(P)
    P(f"""
    L_pad3:
    s_branch L_pad4
    """)
    P(f"""
    L_f2:
    s_cmp_eq_u32 s{sWV}, 7
    s_cbranch_scc1 L_f2fin
    s_lshl_b32 s49, s{sWV}, 12
    s_add_u32 s49, s49, {ACT}
    """)
    for i in range(4): P(f"v_mov_b32 v{AR+12+i}, 0")
    P("s_barrier")
    stamp(P, 10)
    P("L_a2:")
    for i in range(3):
        P(f"buffer_load_dwordx4 {v(AR+4*i,4)}, v{vL16}, s[8:11], s49 offen offset:{1024*i} sc1")
    P(f"""
    s_cmp_eq_u32 s{sWV}, 6
    s_cbranch_scc1 L_a3
    buffer_load_dwordx4 {v(AR+12,4)}, v{vL16}, s[8:11], s49 offen offset:3072 sc1
    L_a3:
    v_mov_b32 v10, 0
    """)
    for i in range(8): P(f"v_mov_b32 v{A0+i}, 0")
    for b in range(4):
        if b < 3: P(f"s_waitcnt vmcnt({2-b})")
        for ct in range(2):
            P(f"v_smfmac_f32_16x16x64_bf16 {v(A0+4*ct,4)}, {v(AR+4*b,4)}, {v(BW+16*b+8*ct,8)}, v144")
            P(f"v_max3_u32 v10, v10, v{AR+4*b+2*ct}, v{AR+4*b+2*ct+1}")
    P(f"v_cmp_eq_u32 vcc, -1, v10")
    spin_tail(P, 50, "L_a2", "L_a4")
    stamp(P, 11)
    if OPT["stamps"]: P("s_add_u32 s94, s50, 1")
    P(f"""
    v_add_f32 v{A0}, v{A0}, v{A0+1}
    v_add_f32 v{A0+2}, v{A0+2}, v{A0+3}
    ds_write2_b32 v149, v{A0}, v{A0+2} offset0:0 offset1:32
    v_add_f32 v{A0+4}, v{A0+4}, v{A0+5}
    v_add_f32 v{A0+6}, v{A0+6}, v{A0+7}
    ds_write2_b32 v149, v{A0+4}, v{A0+6} offset0:16 offset1:48
    s_waitcnt lgkmcnt(0)
    s_barrier
    {FIN}
    """)
    flush_late(P)
    P(f"""
    L_pad4:
    s_branch L_tk1
    L_f2fin:
    v_and_b32 v13, 7, v{vL}
    s_waitcnt lgkmcnt(0)
    v_and_b32 v46, 2047, v150
    v_mul_u32_u24 v46, 1280, v46
    v_lshl_add_u32 v46, v13, 3, v46
    L_oretry:
    buffer_load_dwordx2 {v(44,2)}, v46, s[12:15], s58 offen sc1
    s_waitcnt vmcnt(0)
    v_max_u32 v10, v44, v45
    v_cmp_eq_u32 vcc, -1, v10
    """)
    spin_tail(P, 50, "L_oretry", "L_ook")
    P(f"""
    s_lshl_b32 s49, s{sXCD}, 8
    s_add_u32 s49, s49, {SEN2}
    s_mov_b32 s50, 0
    s_mov_b64 exec, 0xfff
    L_h2:
    buffer_load_dword v10, v{vL4}, s[8:11], s49 offen sc1
    s_add_u32 s50, s50, 1
    s_cmp_gt_u32 s50, {HINTMAX}
    s_waitcnt vmcnt(0)
    v_cmp_ne_u32 vcc, v14, v10
    s_cbranch_scc1 L_h2_d
    s_cbranch_vccnz L_h2
    L_h2_d:
    s_mov_b64 exec, -1
    s_barrier
    """)
    O = 48
    P(f"""
    v_lshlrev_b32 v9, 1, v150
    v_ashrrev_i32 v10, 31, v9
    v_not_b32 v10, v10
    v_or_b32 v10, 0x80000000, v10
    v_xor_b32 v9, v9, v10
    v_and_b32 v9, 0xffff0000, v9
    v_mul_f32 v9, {f2u(-1.4426950408889634)}, v9
    v_exp_f32 v9, v9
    v_add_f32 v9, 1.0, v9
    v_rcp_f32 v47, v9
    v_lshlrev_b32 v{O}, 16, v44
    v_and_b32 v{O+1}, 0xffff0000, v44
    v_lshlrev_b32 v{O+2}, 16, v45
    v_and_b32 v{O+3}, 0xffff0000, v45
    s_barrier
    """)
    for w in range(7): P(f"ds_read_b128 {v(D+4*w,4)}, v{vL16} offset:{L_RED+1024*w}")
    def pk2(d, x):
        P(f"v_pk_add_f32 {v(d,2)}, {v(d,2)}, {v(x,2)}"); P(f"v_pk_add_f32 {v(d+2,2)}, {v(d+2,2)}, {v(x+2,2)}")
    P("s_waitcnt lgkmcnt(5)"); pk2(D, D+4)
    P("s_waitcnt lgkmcnt(3)"); pk2(D+8, D+12)
    P("s_waitcnt lgkmcnt(1)"); pk2(D+16, D+20); pk2(D, D+8)
    P("s_waitcnt lgkmcnt(0)"); pk2(D+16, D+24); pk2(D, D+16)
    for i in range(4): P(f"v_fma_f32 v{O+i}, v{D+i}, v47, v{O+i}")
    P(f"""
    v_cvt_pk_bf16_f32 v44, v{O}, v{O+1}
    v_cvt_pk_bf16_f32 v45, v{O+2}, v{O+3}
    buffer_store_dwordx2 {v(44,2)}, v46, s[12:15], s58 offen{" sc1" if OPT.get("fsc1", 0) else ""}
    L_fin:
    """)
    if OPT.get("padto"):
        if OPT.get("padwg") is not None:
            P(f"s_cmp_lg_u32 s2, {OPT['padwg']}")
            P("s_cbranch_scc1 L_fin2")
        if OPT.get("padfrom") == 999: P("s_memrealtime s[70:71]")
        P(f"""
        L_padt:
        s_memrealtime s[72:73]
        s_waitcnt lgkmcnt(0)
        s_sub_u32 s72, s72, s70
        s_cmp_lt_u32 s72, {OPT["padto"]}
        s_cbranch_scc1 L_padt
        """)
    P("L_fin2:")
    if OPT["stamps"]:
        P(f"""
        s_memrealtime s[{70+2*NST}:{71+2*NST}]
        s_waitcnt vmcnt(0)
        s_memrealtime s[{72+2*NST}:{73+2*NST}]
        s_waitcnt lgkmcnt(0)
        s_lshl_b32 s49, s2, 6
        s_lshl_b32 s50, s{sWV}, 14
        s_add_u32 s49, s49, s50
        s_add_u32 s49, s49, {ST_OFF}
        s_mov_b64 exec, 1
        v_mov_b32 v1, 0
        """)
        for i in range(NST+2):
            P(f"v_mov_b32 v2, s{70+2*i}")
            P(f"buffer_store_dword v2, v1, s[8:11], s49 offen offset:{4*i}")
    P("L_end:")
    P("s_endpgm")
    flush_late(P)
    return name

def main(out):
    P = Prog()
    name = gen(P)
    body = P.finalize()
    hdr = f"""; fused 2D-DFT (two-stage MFMA) + LayerNorms + top-8 routed SwiGLU; written by a generator script of mine
; @launch grid=(256,1,1) block=(512,1,1) lds={L_END}
.amdgcn_target "amdgcn-amd-amdhsa--gfx950"
.text
"""
    d = f""".section .rodata,"a"
.p2align 6
.amdhsa_kernel {name}
  .amdhsa_next_free_vgpr 256
  .amdhsa_next_free_sgpr 102
  .amdhsa_accum_offset 256
  .amdhsa_group_segment_fixed_size 0
  .amdhsa_kernarg_size 104
  .amdhsa_user_sgpr_count 2
  .amdhsa_user_sgpr_kernarg_segment_ptr 1
  .amdhsa_system_sgpr_workgroup_id_x 1
.end_amdhsa_kernel
"""
    open(out, "w").write(hdr + body + d)

if __name__ == "__main__":
    for a_ in sys.argv[2:]:
        k, _, val = a_.partition("=")
        OPT[k] = int(val) if val else True
    main(sys.argv[1])
```

```python
import sys, struct
sys.path.insert(0, "work")
from asmlib import *

NAME = "sequential_preLN__spectral_fnet__moe_arch_mod__prompt"
XB = 2621440
FLAGS = 0x2c0000
KEYS = 0x8000
KST = 384
ACT = 0x18000
ZM = 0x20000
ZT = ZM + 0x200000
STATS = 0x2a0000
SEN1 = 0x1000
SEN2 = 0x2000
HINTMAX = 48
ST_OFF = 0x300000
WS_SZ = 0x400000
OOB = 0x1000000
SPIN = 1 << 16

L_MISC = 0
L_CNT = 0; L_TAG = 4; L_ZP = 16; L_SEL = 32; L_KREC = 64; L_GM = 128; L_LIST = 192
L_PS = 512
L_CS = 1024
L_RED = 2048
L_HT = 2048; HS = 128
L_CF = 13568
L_W = 17664
L_X = 43264
L_XR = 125184
XP = 1284
L_WR = 145920
L_PART = 17664
L_WF = 24576
L_RM = 512
L_END = 147200
L_WT = 17664
RSB = 2576

sGRP, sJ, sWV, sSL, sXCD, sTB, sSTR, sROW, sROWB, sIDX, sRHO, sC640, sHW = 32, 33, 34, 36, 37, 38, 39, 40, 41, 35, 44, 45, 46
vN, vQ, vW, vL, vL4, vL16 = 1, 2, 3, 4, 6, 8
sTAG = 3; sZP = 100

OPT = dict(stamps=False, xnt=0, wnt=0, cpre=1, npre=5, tail=0, pf1=1)

def f2u(x): return "0x%08x" % struct.unpack("<I", struct.pack("<f", x))[0]
NST = 14
SEC = ["p1"]
def stamp(P, i):
    if OPT["stamps"]: P(f"s_memrealtime s[{70+2*i}:{71+2*i}]")
    if OPT.get("padfrom") == {"p1": 0, "m": 100, "p2": 200, "ffn": 300}[SEC[0]] + i and i: P("s_memrealtime s[70:71]")

def bf16_round(r):
    return [f"v_cvt_pk_bf16_f32 {v(r)}, {v(r)}, {v(r)}", f"v_lshlrev_b32 {v(r)}, 16, {v(r)}"]

def spin_tail(P, cnt, again, ok):
    P(f"""
    s_cbranch_vccnz {ok}_r
    {ok}:
    """)
    LATE.append(f"""
    {ok}_r:
    s_add_u32 s{cnt}, s{cnt}, 1
    s_cmp_gt_u32 s{cnt}, {SPIN}
    s_cbranch_scc1 {ok}
    s_branch {again}
    """)
LATE = []
def flush_late(P):
    for t in LATE: P(t)
    del LATE[:]

def cheb2(P, T, k):
    for i in range(2, 8):
        P(f"v_fma_f32 v{T+i}, v{k}, v{T+i-1}, -v{T+i-2}")
        P(f"v_fma_f32 v{T+8+i}, v{k}, v{T+8+i-1}, -v{T+8+i-2}")

def gen(P):
    global KST
    KST = OPT.get("kst", 64)
    name = NAME + "_kernel"
    xnt = " nt" if OPT["xnt"] else ""
    wnt = " nt" if OPT["wnt"] else ""
    P.raw(".p2align 12"); P.raw(".fill 0x340, 4, 0xbf810000")
    P.raw(f".globl {name}"); P.raw(".p2align 8"); P.raw(f".type {name},@function"); P.raw(f"{name}:")
    P("L_start:")
    stamp(P, 0)
    if OPT.get("padto"): P("s_memrealtime s[70:71]")
    def ptrs():
        P(f"""
        s_load_dwordx2 s[12:13], s[0:1], 80
        s_load_dwordx2 s[16:17], s[0:1], 48
        s_load_dwordx2 s[20:21], s[0:1], 56
        s_load_dwordx2 s[24:25], s[0:1], 64
        s_load_dwordx2 s[28:29], s[0:1], 72
        """)
    ZP = [66, 67, 42, 68]
    FIN = "s_branch L_fin" if (OPT["stamps"] or OPT.get("padto")) else "s_endpgm"
    MK = 24
    def tagcalc():
        P(f"""
        s_mul_i32 s{sTAG}, s{sTAG}, 0x9e3779b1
        s_add_u32 s{sTAG}, s{sTAG}, 0x7f4a7c15
        v_mov_b32 v14, s{sTAG}
        """)
        for i in range(3):
            P(f"s_bfe_u32 s43, s{sTAG}, {hex((2<<16) | (2*i))}")
            P(f"s_mul_i32 s43, s43, 0x8001")
            P(f"s_and_b32 s{ZP[i]}, s43, 0x10001")
        P(f"s_xor_b32 s68, s66, 0x10001")
    def consts():
        P(f"""
        s_mov_b64 s[12:13], s[26:27]
        s_mov_b64 s[16:17], s[18:19]
        s_mov_b64 s[28:29], s[24:25]
        s_mov_b64 s[24:25], s[22:23]
        s_mov_b32 s14, {XB}
        s_mov_b32 s15, 0x20000
        s_mov_b32 s18, 1280
        s_mov_b32 s19, 0x20000
        s_mov_b32 s22, {640*3456}
        s_mov_b32 s23, 0x20000
        s_mov_b32 s26, {640*3456}
        s_mov_b32 s27, 0x20000
        s_mov_b32 s30, {1728*1280}
        s_mov_b32 s31, 0x20000
        v_lshlrev_b32 v{vL4}, 2, v{vL}
        v_mov_b32 v13, 0
        s_and_b32 s43, s{sJ}, 3
        s_lshr_b32 s{sIDX}, s2, 6
        s_lshl3_add_u32 s{sIDX}, s{sIDX}, s{sXCD}
        s_lshl2_add_u32 s{sIDX}, s{sIDX}, s43
        s_cmp_eq_u32 s{sGRP}, 0
        s_cselect_b32 s{sSTR}, 32, 64
        s_lshl_b32 s{sTB}, s{sSTR}, 3
        s_mul_i32 s{sTB}, s{sTB}, s43
        s_add_u32 s{sTB}, s{sTB}, s{sGRP}
        """)
    def rows4(dst=92):
        for pr in range(2):
            sa, sb = 56 + 2*pr, 57 + 2*pr
            P(f"""
            s_add_u32 s{sa}, s{sHW}, {4*pr}
            s_mul_i32 s{sa}, s{sa}, s{sSTR}
            s_add_u32 s{sa}, s{sa}, s{sTB}
            s_sub_u32 s{sb}, 2048, s{sa}
            s_cmp_eq_u32 s{sa}, 0
            s_cselect_b32 s{sb}, 1024, s{sb}
            s_mul_i32 s{sa}, s{sa}, 1280
            s_mul_i32 s{sb}, s{sb}, 1280
            """)
        P(f"""
        v_mov_b32 v10, s56
        v_mov_b32 v9, s57
        v_mov_b32 v11, s58
        v_mov_b32 v12, s59
        v_mov_b32_dpp v10, v9 quad_perm:[0,1,2,3] row_mask:0x2 bank_mask:0xf
        s_movk_i32 s62, 1024
        v_mov_b32_dpp v10, v11 quad_perm:[0,1,2,3] row_mask:0x4 bank_mask:0xf
        v_mov_b32_dpp v10, v12 quad_perm:[0,1,2,3] row_mask:0x8 bank_mask:0xf
        v_lshl_add_u32 v{dst}, v{vN}, 4, v10
        """)
    P(f"""
    s_load_dwordx2 s[4:5], s[0:1], 0
    s_load_dwordx2 s[8:9], s[0:1], 96
    s_load_dwordx16 s[16:31], s[0:1], 40
    s_mov_b32 s10, {WS_SZ}
    s_mov_b32 s11, 0x20000
    v_lshrrev_b32 v{vW}, 6, v0
    s_cmp_ge_u32 s2, 256
    s_cbranch_scc1 L_end
    v_readfirstlane_b32 s{sWV}, v{vW}
    s_bfe_u32 s{sJ}, s2, 0x30003
    v_and_b32 v{vL}, 63, v0
    v_and_b32 v{vN}, 15, v0
    v_bfe_u32 v{vQ}, v0, 4, 2
    s_and_b32 s{sXCD}, s2, 7
    s_lshr_b32 s43, s2, 7
    s_lshl1_add_u32 s{sGRP}, s{sXCD}, s43
    s_sub_u32 s43, 32, s{sGRP}
    s_cmp_eq_u32 s{sGRP}, 0
    s_cselect_b32 s43, 16, s43
    s_bitcmp1_b32 s2, 6
    s_cselect_b32 s{sGRP}, s43, s{sGRP}
    s_mul_i32 s{sRHO}, s{sJ}, 5
    s_lshr_b32 s{sRHO}, s{sRHO}, 2
    s_and_b32 s{sHW}, s{sWV}, 3
    s_mov_b32 s{sC640}, {f2u(1.0/640)}
    v_lshlrev_b32 v{vL16}, 4, v{vL}
    s_cmp_ge_u32 s{sWV}, 4
    s_cbranch_scc1 L_W
    """)
    if OPT["cpre"]:
        P(f"""
        s_cmp_ge_u32 s{sWV}, 3
        s_cbranch_scc1 L_Mx
        s_cmp_ge_u32 s2, {OPT.get("cprewg", 32)}
        s_cbranch_scc1 L_Mx
        s_getpc_b64 s[42:43]
        L_pc:
        v_lshlrev_b32 v10, 7, v0
        v_add_u32 v10, 896, v10
        v_min_u32 v10, L_last-L_pc, v10
        v_mov_b32 v11, s43
        v_add_co_u32 v10, vcc, s42, v10
        v_addc_co_u32 v11, vcc, 0, v11, vcc
        global_load_dword v15, v[10:11], off
        """)
    P(f"""
    L_Mx:
    v_lshrrev_b32 v9, 3, v{vL}
    s_lshl_b32 s47, s{sHW}, 4
    v_add_u32 v5, s47, v9
    v_mul_u32_u24 v5, 40960, v5
    v_lshrrev_b32 v7, 2, v9
    v_and_or_b32 v9, v9, 6, v7
    v_xor_b32 v9, v9, v{vL}
    v_and_b32 v9, 7, v9
    v_lshl_add_u32 v5, v9, 4, v5
    v_xor_b32 v7, 16, v5
    v_add_u32 v7, {8*40960}, v7
    s_mul_i32 s50, s{sGRP}, 1280
    s_add_u32 s47, s50, 1280
    s_lshr_b32 s52, s{sWV}, 2
    s_mul_i32 s52, s52, 5
    s_add_u32 s48, s{sRHO}, s52
    s_cmp_ge_u32 s48, 10
    s_cselect_b32 s49, 10, 0
    s_sub_u32 s48, s48, s49
    s_lshl_b32 s48, s48, 7
    s_add_u32 s48, s48, s50
    s_mul_i32 s49, s{sHW}, 20480
    s_add_u32 s49, s49, {L_X}
    s_lshl_b32 s52, s52, 11
    s_add_u32 m0, s49, s52
    s_mov_b32 s6, {XB}
    s_mov_b32 s7, 0x20000
    s_mov_b32 s52, 5
    s_waitcnt lgkmcnt(0)
    """)
    stamp(P, 1)
    P(f"""
    s_cmp_lt_u32 s{sWV}, 4
    s_cbranch_scc1 L_xl
    s_load_dword s{sTAG}, s[8:9], 0
    s_barrier
    s_branch L_H1
    L_xl:
    buffer_load_dwordx4 v5, s[4:7], s48 offen{xnt} lds
    s_add_u32 m0, m0, 1024
    s_add_u32 s51, s48, 128
    buffer_load_dwordx4 v7, s[4:7], s48 offen{xnt} lds
    s_add_u32 m0, m0, 1024
    s_cmp_eq_u32 s51, s47
    s_cselect_b32 s48, s50, s51
    s_sub_u32 s52, s52, 1
    s_cmp_lg_u32 s52, 0
    s_cbranch_scc1 L_xl
    s_cmp_ge_u32 s{sWV}, 4
    s_cbranch_scc1 L_H2
    s_barrier
    s_branch L_M
    """)
    def wrow(dst, fill=None):
        T = 32; K8 = 76; a_, b_, c_, d_ = 78, 79, 80, 81
        P(f"""
        s_cmp_eq_u32 s{sJ}, 0
        s_cselect_b32 s53, 8, s{sJ}
        s_lshl_b32 s54, s{sRHO}, 6
        """)
        if dst is None: P(f"s_lshl_b32 s55, s{sHW}, 6"); P("s_add_u32 s53, s53, s55")
        else: P("s_add_u32 s53, s53, 256")
        P(f"""
        v_and_b32 v{a_}, 7, v{vN}
        v_lshl_add_u32 v{a_}, v{a_}, 3, s53
        v_lshrrev_b32 v{c_}, 3, v{vN}
        v_lshl_add_u32 v{b_}, v{vQ}, 1, s54
        v_cvt_f32_u32 v{c_}, v{c_}
        v_mul_u32_u24 v{b_}, v{a_}, v{b_}
        v_mul_f32 v{c_}, {f2u(-0.25)}, v{c_}
        v_cvt_f32_u32 v{a_}, v{a_}
        v_cvt_f32_u32 v{b_}, v{b_}
        v_mul_f32 v{a_}, s{sC640}, v{a_}
        v_fma_f32 v{b_}, v{b_}, s{sC640}, v{c_}
        v_mul_f32 v{K8}, {f2u(8.0)}, v{a_}
        v_fract_f32 v{T}, v{b_}
        v_add_f32 v{T+2}, v{T}, v{a_}
        v_add_f32 v{T+4}, v{T}, v{K8}
        v_add_f32 v{T+6}, v{T+2}, v{K8}
        v_cos_f32 v{K8}, v{K8}
        """)
        for i in range(4):
            P(f"v_sin_f32 v{T+2*i+1}, -v{T+2*i}")
            P(f"v_cos_f32 v{T+2*i}, v{T+2*i}")
        P(f"v_add_f32 v{K8}, v{K8}, v{K8}")
        if dst is None: P(f"s_mul_i32 s55, s{sHW}, 5120"); P(f"v_add_u32 v{d_}, s55, v{vL16}")
        P(f"v_mov_b32 v{K8+1}, v{K8}")
        for kp in range(5):
            if kp:
                for c in (2*kp, 2*kp+1):
                    for i in range(2):
                        P(f"v_pk_fma_f32 {v(T+4*c+2*i,2)}, {v(K8,2)}, {v(T+4*c-4+2*i,2)}, {v(T+4*c-8+2*i,2)} neg_lo:[0,0,1] neg_hi:[0,0,1]")
            pk = 84 + 4*(kp & 1) if dst is None else dst + 4*kp
            for i in range(4): P(f"v_cvt_pk_bf16_f32 v{pk+i}, v{T+8*kp+2*i}, v{T+8*kp+2*i+1}")
            if fill:
                for _ in range(2): P(fill.pop(0))
            if dst is None: P(f"ds_write_b128 v{d_}, {v(pk,4)} offset:{L_W + 1024*kp}")
    P("L_W:")
    wrow(None)
    PZ = 152; T = 64; F = 80
    P(f"""
    s_branch L_Mx
    L_H1:
    """)
    consts()
    P(f"""
    v_mov_b32 v{PZ}, -1
    v_mov_b32 v{PZ+1}, -1
    v_mov_b32 v{PZ+2}, -1
    v_mov_b32 v{PZ+3}, -1
    v_mul_u32_u24 v150, 3456, v{vL}
    v_mul_u32_u24 v151, 1280, v{vL}
    s_cmp_ge_u32 s{sJ}, 4
    s_cbranch_scc1 L_hs1
    """)
    rows4(107)
    P(f"""
    s_mul_i32 s53, s{sHW}, {XP}
    s_mul_i32 s54, s{sHW}, 320
    s_branch L_xl
    """)
    P(f"""
    L_hs1:
    v_mov_b32 v107, 0
    s_and_b32 s63, s{sJ}, 3
    s_lshl2_add_u32 s63, s63, s{sHW}
    s_mul_i32 s64, s63, {40*3456}
    s_lshr_b32 s43, s{sIDX}, 2
    s_lshl_b32 s43, s43, 7
    s_add_u32 s64, s64, s43
    s_and_b32 s63, s63, 7
    s_mul_i32 s65, s63, {54*1280}
    s_sub_u32 s43, s{sIDX}, 108
    s_lshr_b32 s43, s43, 1
    s_lshl_b32 s43, s43, 7
    s_add_u32 s65, s65, s43
    s_lshl2_add_u32 s63, s{sIDX}, s{sHW}
    s_lshl_b32 s63, s63, 6
    s_add_u32 s63, s63, {ACT}
    s_branch L_xl
    L_H2:
    """)
    stamp(P, 2)
    P(f"""
    s_barrier
    s_cmp_ge_u32 s{sJ}, 4
    s_cbranch_scc1 L_hc1
    """)
    for i in range(4):
        P(f"s_add_u32 m0, s53, {L_XR + XP*[0, 8, 4, 12][i]}")
        P(f"buffer_load_dwordx4 v{vL16}, s[4:7], s{56+i} offen lds")
    P("s_mov_b64 exec, 0xffff")
    for i in range(4):
        P(f"s_add_u32 m0, s53, {L_XR + XP*[0, 8, 4, 12][i]}")
        P(f"buffer_load_dwordx4 v{vL16}, s[4:7], s{56+i} offen offset:1024 lds")
    P(f"""
    s_add_u32 m0, s54, {L_WR}
    s_mov_b64 exec, 0xfffff
    buffer_load_dwordx4 v{vL16}, s[16:19], s54 offen lds
    s_mov_b64 exec, -1
    """)
    NPB = OPT.get("npb", 0)
    pzs = [f"buffer_store_dwordx4 {v(PZ,4)}, v{vL16}, s[12:15], s{56+i} offen sc1" for i in range(4)] + [f"buffer_store_dwordx4 {v(PZ,4)}, v107, s[12:15], s62 offen sc1"]
    for o in pzs[:NPB]: P(o)
    P(f"""
    s_waitcnt vmcnt({9+NPB})
    s_barrier
    """)
    for o in pzs[NPB:]: P(o)
    P(f"""
    s_branch L_hs4
    L_hc1:
    s_cmp_ge_u32 s{sIDX}, 108
    s_cbranch_scc1 L_hs2
    s_mov_b64 exec, 15
    buffer_store_dwordx4 {v(PZ,4)}, v{vL16}, s[8:11], s63 offen sc1
    s_mov_b32 exec_lo, -1
    s_mov_b32 exec_hi, 0xff
    buffer_load_dword v253, v150, s[20:23], s64 offen{wnt}
    buffer_load_dword v253, v150, s[24:27], s64 offen{wnt}
    s_lshr_b32 s65, s2, 6
    s_and_b32 s43, s{sJ}, 3
    s_lshl2_add_u32 s65, s65, s43
    s_lshr_b32 s43, s{sHW}, 1
    s_lshl1_add_u32 s65, s65, s43
    s_mul_i32 s65, s65, {36*1280}
    s_and_b32 s43, s{sHW}, 1
    s_lshl1_add_u32 s43, s{sXCD}, s43
    s_lshl_b32 s43, s43, 7
    s_add_u32 s65, s65, s43
    s_add_u32 s65, s65, {864*1280 - 768}
    s_cmp_lt_u32 s{sXCD}, 3
    s_cselect_b32 s65, {OOB}, s65
    s_mov_b32 s64, 0xf
    s_waitcnt vmcnt(3)
    s_branch L_hs3
    L_hs2:
    s_mov_b32 exec_hi, 0x3fffff
    buffer_load_dword v253, v151, s[28:31], s65 offen{wnt}
    s_add_u32 s65, s65, {432*1280}
    s_mov_b32 s64, 0x3fffff
    s_waitcnt vmcnt(1)
    L_hs3:
    s_barrier
    L_hs4:
    s_mov_b64 exec, -1
    s_waitcnt lgkmcnt(0)
    """)
    stamp(P, 3)
    tagcalc()
    P(f"""
    v_mov_b32 v48, s{ZP[0]}
    v_mov_b32 v49, s{ZP[1]}
    v_mov_b32 v50, s{ZP[2]}
    v_mov_b32 v51, s{ZP[3]}
    ds_write_b128 v13, v[48:51] offset:{L_ZP}
    ds_write2_b32 v13, v13, v14 offset0:0 offset1:1
    ds_write_b32 v{vL4}, v{PZ} offset:{L_LIST}
    """)
    P(f"""
    s_cmp_ge_u32 s{sJ}, 4
    s_cbranch_scc1 L_hf
    s_waitcnt vmcnt(5) lgkmcnt(0)
    """)
    stamp(P, 4)
    P("s_barrier")
    T = 32
    P(f"""
    v_and_b32 v10, 7, v{vN}
    v_mul_u32_u24 v10, s{sSTR}, v10
    v_add_u32 v10, s{sTB}, v10
    v_sub_u32 v11, 2048, v10
    v_mov_b32 v12, 1024
    v_cmp_eq_u32 vcc, 0, v10
    v_cndmask_b32 v11, v11, v12, vcc
    v_cmp_lt_u32 vcc, 7, v{vN}
    v_cndmask_b32 v10, v10, v11, vcc
    v_and_b32 v11, 63, v10
    v_bfrev_b32 v12, 1
    v_cmp_gt_u32 vcc, 32, v11
    v_cndmask_b32 v12, 0, v12, vcc
    v_lshrrev_b32 v9, 1, v11
    s_lshl_b32 s49, s{sHW}, 3
    """)
    for h in range(2):
        P(f"""
        v_add_u32 v11, s49, v{vQ}
        v_mul_u32_u24 v11, v11, v10
        v_cvt_f32_u32 v11, v11
        v_mul_f32 v11, {f2u(1.0/2048)}, v11
        v_cos_f32 v{T+4}, v11
        v_sin_f32 v{T+5}, v11
        s_add_u32 s49, s49, 4
        v_cvt_pk_f16_f32 v{T+2*h}, v{T+4}, v{T+5}
        v_cvt_pk_f16_f32 v{T+2*h+1}, -v{T+5}, v{T+4}
        v_xor_b32 v{T+2*h}, v12, v{T+2*h}
        v_xor_b32 v{T+2*h+1}, v12, v{T+2*h+1}
        """)
    P(f"""
    s_cmp_lg_u32 s{sGRP}, 0
    s_cbranch_scc1 L_nofix
    """)
    for i in range(4):
        P(f"v_and_b32 v{T+i}, 0xffff, v{T+i}")
        P(f"v_lshlrev_b32 v{T+i}, v9, v{T+i}")
    P(f"""
    L_nofix:
    s_lshl_b32 s49, s{sHW}, 10
    v_add_u32 v11, s49, v{vL16}
    ds_write_b128 v11, {v(T,4)} offset:{L_CF}
    """)

    P(f"""
    s_branch L_prep
    L_hf:
    s_waitcnt lgkmcnt(0)
    """)
    stamp(P, 4)
    P(f"""
    s_barrier
    s_waitcnt vmcnt(2)
    s_barrier
    s_mov_b32 exec_hi, s64
    buffer_load_dword v253, v151, s[28:31], s65 offen{wnt}
    s_mov_b64 exec, -1
    s_branch L_noflag
    """)

    P.raw(".p2align 12")
    WR_ = 156; XL = 16; U = 56; AD = 96; C1 = 108; F = 116; G = 124; S = 128; ON = 132; IX = 136
    ACC = 16; RHO = 138; ZV = 150; PK = 36
    SEC[0] = "m"
    P("L_M:")
    stamp(P, 2)
    wq = [f"ds_read_b128 {v(WR_+4*f,4)}, v{vL16} offset:{L_W + 1024*f}" for f in range(20)]
    for o in wq: P(o)
    wrow(WR_ + 80)
    P(f"""
    v_mul_u32_u24 v9, 10, v{vQ}
    v_lshrrev_b32 v10, 1, v{vN}
    v_xor_b32 v10, v10, v{vN}
    v_bfe_u32 v10, v10, 2, 1
    v_and_or_b32 v10, v{vN}, 6, v10
    v_lshl_add_u32 v11, v{vN}, 7, s49
    """)
    for c in range(0, 10, 2):
        P(f"""
        v_xor_b32 v12, v9, v10
        v_and_b32 v{AD+c}, 7, v12
        v_lshrrev_b32 v12, 3, v12
        v_lshl_add_u32 v{AD+c}, v{AD+c}, 4, v11
        v_lshl_add_u32 v{AD+c}, v12, 11, v{AD+c}
        v_xor_b32 v{AD+c+1}, 16, v{AD+c}
        """)
        if c < 8: P("v_add_u32 v9, 2, v9")
    P(f"""
    v_mov_b32 v{ON}, 0x3f803f80
    v_mov_b32 v{ON+1}, 0x3f803f80
    v_mov_b32 v{ON+2}, 0x3f803f80
    v_mov_b32 v{ON+3}, 0x3f803f80
    v_and_b32 v9, 1, v{vN}
    v_mul_u32_u24 v{IX}, 0xaaaa, v9
    v_or_b32 v{IX}, 0x4444, v{IX}
    s_mov_b32 s60, 0x22222222
    s_mov_b32 s61, s60
    s_lshl_b64 s[62:63], s[60:61], 1
    s_lshl_b64 s[64:65], s[60:61], 2
    """)
    P(f"""
    v_mul_u32_u24 v9, s{sJ}, v{vQ}
    v_and_b32 v10, 1, v{vN}
    v_lshlrev_b32 v10, 1, v10
    v_sub_u32 v9, v9, v10
    v_cvt_f32_i32 v9, v9
    v_mul_f32 v9, {f2u(0.125)}, v9
    v_cos_f32 v9, v9
    v_and_b32 v10, 2, v{vN}
    v_lshlrev_b32 v10, 3, v10
    v_cvt_pk_bf16_f32 v9, v9, 0
    v_lshlrev_b32 v9, v10, v9
    v_lshrrev_b32 v10, 2, v{vN}
    s_and_b32 s43, s{sJ}, 1
    s_mul_i32 s43, s43, 0x80008000
    """)
    for i in range(4):
        P(f"v_cmp_eq_u32 vcc, {i}, v10")
        P(f"v_cndmask_b32 v{C1+i}, 0, v9, vcc")
        P(f"v_xor_b32 v{C1+4+i}, s43, v{C1+i}")
    P_ = P
    P = Prog(); T = 138
    P(f"""
    v_lshrrev_b32 v9, 1, v{vN}
    v_lshl_add_u32 v9, s{sHW}, 3, v9
    v_and_b32 v11, 1, v{vN}
    v_lshl_add_u32 v10, v9, 1, v11
    v_cmp_eq_u32 vcc, 1, v10
    v_cndmask_b32 v9, v9, 32, vcc
    v_cndmask_b32 v11, v11, 0, vcc
    v_cvt_f32_u32 v9, v9
    v_cvt_f32_u32 v11, v11
    v_mul_f32 v9, {f2u(1.0/64)}, v9
    v_mul_f32 v11, {f2u(-0.25)}, v11
    v_lshlrev_b32 v10, 3, v{vQ}
    v_cvt_f32_u32 v10, v10
    v_cos_f32 v12, v9
    v_fma_f32 v{T}, v9, v10, v11
    v_add_f32 v10, {f2u(32.0)}, v10
    v_fma_f32 v{T+8}, v9, v10, v11
    v_add_f32 v{T+1}, v{T}, v9
    v_add_f32 v{T+9}, v{T+8}, v9
    v_cos_f32 v{T}, v{T}
    v_cos_f32 v{T+1}, v{T+1}
    v_cos_f32 v{T+8}, v{T+8}
    v_cos_f32 v{T+9}, v{T+9}
    v_add_f32 v12, v12, v12
    """)
    cheb2(P, T, 12)
    for i in range(8): P(f"v_cvt_pk_f16_f32 v{F+i}, v{T+2*i}, v{T+2*i+1}")
    FG = list(P.lines)
    P = Prog()
    P(f"""
    v_and_b32 v148, 7, v{vN}
    v_lshlrev_b32 v148, 4, v148
    v_lshl_add_u32 v148, v{vN}, 7, v148
    v_lshlrev_b32 v142, 5, v{vW}
    v_lshl_add_u32 v142, v{vQ}, 3, v142
    v_xor_b32 v142, v142, v148
    v_lshlrev_b32 v143, 4, v{vQ}
    v_xor_b32 v143, v143, v148
    v_xor_b32 v148, 64, v143
    v_lshlrev_b32 v144, 17, v{vQ}
    v_lshl_add_u32 v144, v{vN}, 4, v144
    v_lshlrev_b32 v145, 15, v{vQ}
    v_lshl_add_u32 v145, v{vN}, 2, v145
    s_mov_b32 s55, 0xfffefffe
    v_and_b32 v146, 3, v{vN}
    v_lshlrev_b32 v146, 2, v146
    v_mov_b32 v13, 0
    s_lshl_b32 s52, s{sHW}, 19
    s_lshl_b32 s43, s{sGRP}, 11
    s_add_u32 s52, s52, s43
    s_lshl_b32 s43, s{sJ}, 8
    s_add_u32 s52, s52, s43
    s_lshr_b32 s56, s52, 2
    s_add_u32 s52, s52, {ZM}
    s_add_u32 s53, s52, 65536
    s_add_u32 s56, s56, {ZT}
    s_add_u32 s57, s56, 16384
    """)
    AB_ = list(P.lines)
    P = P_
    P(f"""
    v_mov_b32 v{S}, 0
    v_mov_b32 v{S+1}, 0
    v_mov_b32 v{S+2}, 0
    v_mov_b32 v{S+3}, 0
    """)
    stamp(P, 13)
    P("s_waitcnt vmcnt(0)")
    stamp(P, 3)
    def half(hi, fills, extra):
        for c in range(10): P(f"ds_read_b128 {v(XL+4*c,4)}, v{AD+c}" + (" offset:10240" if hi else ""))
        if not hi: P("s_barrier")
        for k in range(5):
            x = XL + 8*k
            fl = fills(k)
            mm = [f"v_mfma_f32_16x16x32_bf16 {v(U+8*k,4)}, {v(C1+4*hi,4)}, {v(x,4)}, {v(U+8*k,4) if hi else '0'}",
                  f"v_mfma_f32_16x16x32_bf16 {v(G,4)}, {v(x,4)}, {v(x,4)}, {'0' if (k==0 and not hi) else v(G,4)}",
                  f"v_mfma_f32_16x16x32_bf16 {v(U+8*k+4,4)}, {v(C1+4*hi,4)}, {v(x+4,4)}, {v(U+8*k+4,4) if hi else '0'}",
                  f"v_mfma_f32_16x16x32_bf16 {v(G,4)}, {v(x+4,4)}, {v(x+4,4)}, {v(G,4)}",
                  f"v_smfmac_f32_16x16x64_bf16 {v(S,4)}, {v(ON,4)}, {v(x,8)}, v{IX}"]
            for i, m in enumerate(mm):
                if i in (0, 2): P(f"s_waitcnt lgkmcnt({9 - 2*k - i//2})")
                P(m)
                for _ in range(2):
                    if i >= 2 and fl: P(fl.pop(0))
                    elif extra: P(extra.pop(0))
        for o in extra: P(o)
    half(0, lambda k: [], FG)
    P(f"""
    s_cmp_lg_u32 s{sJ}, 0
    s_cbranch_scc1 L_nooff
    v_add_f32 v9, v{S}, v{S+1}
    v_mul_f32 v9, {f2u(-8.0/320)}, v9
    """)
    for i in range(20): P(f"v_add_f32 v{U+2*i}, v{U+2*i}, v9")
    P(f"""
    L_nooff:
    s_setprio 2
    s_barrier
    """)
    stamp(P, 12)
    def cvt(k): return [f"v_cvt_pk_bf16_f32 v{U+8*k+i}, v{U+8*k+2*i}, v{U+8*k+2*i+1}" for i in range(4)]
    half(1, lambda k: cvt(k-1) if k else [], AB_)
    chain = cvt(4) + [f"v_add_f32 v{S}, v{S}, v{S+1}",
             f"v_cndmask_b32 v{G}, v{G}, v{G+1}, s[60:61]",
             f"v_mul_f32 v{S}, s{sC640}, v{S}",
             f"v_cndmask_b32 v{G}, v{G}, v{G+2}, s[62:63]",
             f"v_mul_f32 v{S}, v{S}, v{S}",
             f"v_cndmask_b32 v{G}, v{G}, v{G+3}, s[64:65]",
             f"v_fma_f32 v{G}, v{G}, s{sC640}, -v{S}",
             f"v_max_f32 v{G}, 0, v{G}"] + bf16_round(G) + [f"v_add_f32 v{G}, {f2u(1e-5)}, v{G}"] + bf16_round(G) + \
            [f"v_sqrt_f32 v{G}, v{G}", None] + bf16_round(G) + [f"v_rcp_f32 v{G}, v{G}", None, None] + \
            [f"v_mov_b32_dpp v{RHO+r}, v{G} row_newbcast:{4*q+r} row_mask:{hex(1<<q)} bank_mask:0xf" for q in range(4) for r in range(4)]
    n = 0
    for kp in range(5):
        for t in range(5):
            P(f"v_mfma_f32_16x16x32_bf16 {v(ACC+4*t,4)}, {v(U+8*kp,4)}, {v(WR_+4*(5*t+kp),4)}, {'0' if kp==0 else v(ACC+4*t,4)}")
            n += 1
            if n >= 3:
                for _ in range(2):
                    if chain:
                        o = chain.pop(0)
                        if o: P(o)
    assert not chain
    stamp(P, 4)
    for t in range(5):
        P(f"v_pk_mul_f32 {v(ACC+4*t,2)}, {v(ACC+4*t,2)}, {v(RHO,2)}")
        P(f"v_pk_mul_f32 {v(ACC+4*t+2,2)}, {v(ACC+4*t+2,2)}, {v(RHO+2,2)}")
        P(f"v_cvt_pk_f16_f32 v{PK+2*t}, v{ACC+4*t}, v{ACC+4*t+1}")
        P(f"v_cvt_pk_f16_f32 v{PK+2*t+1}, v{ACC+4*t+2}, v{ACC+4*t+3}")
        P(f"ds_write_b64 v142, {v(PK+2*t,2)} offset:{L_HT + 16*t*HS}")
    P(f"""
    s_waitcnt lgkmcnt(0)
    s_barrier
    """)
    BF = 16; DC = 70; ZO = 92
    for t in range(5):
        for kk in range(2):
            P(f"ds_read_b128 {v(BF+8*t+4*kk,4)}, v{148 if kk else 143} offset:{L_HT + 16*t*HS}")
        if t == 2: P(f"ds_read_b128 {v(ZV,4)}, v13 offset:{L_ZP}")
    P(f"ds_read_b32 v147, v146 offset:{L_ZP}")
    P(f"ds_read_b32 v14, v13 offset:{L_TAG}")
    for t in range(5):
        c = DC + 4*t
        P(f"s_waitcnt lgkmcnt({[11, 9, 6, 4, 0][t]})")
        P(f"v_mfma_f32_16x16x32_f16 {v(c,4)}, {v(F,4)}, {v(BF+8*t,4)}, 0")
        P(f"v_mfma_f32_16x16x32_f16 {v(c,4)}, {v(F+4,4)}, {v(BF+8*t+4,4)}, {v(c,4)}")
        if t >= 2:
            for u in range(2):
                P(f"v_cvt_pk_f16_f32 v{ZO+4*u+t-2}, v{DC+4*(t-2)+2*u}, v{DC+4*(t-2)+2*u+1}")
                P(f"v_and_or_b32 v{ZO+4*u+t-2}, v{ZO+4*u+t-2}, s55, v{ZV+t-2}")
    for u in range(2):
        P(f"v_cvt_pk_f16_f32 v{ZO+4*u+3}, v{DC+12+2*u}, v{DC+12+2*u+1}")
        P(f"v_and_or_b32 v{ZO+4*u+3}, v{ZO+4*u+3}, s55, v{ZV+3}")
        P(f"buffer_store_dwordx4 {v(ZO+4*u,4)}, v144, s[8:11], s{52+u} offen sc1")
    for u in range(2):
        P(f"v_cvt_pk_f16_f32 v{ZO+8+u}, v{DC+16+2*u}, v{DC+16+2*u+1}")
        P(f"v_and_or_b32 v{ZO+8+u}, v{ZO+8+u}, s55, v147")
        P(f"buffer_store_dword v{ZO+8+u}, v145, s[8:11], s{56+u} offen sc1")
    P("s_setprio 0")
    stamp(P, 5)
    consts()
    P(f"""
    s_cmp_ge_u32 s{sJ}, 4
    s_cbranch_scc1 L_ffn
    """)
    for i in range(4): P(f"v_readfirstlane_b32 s{ZP[i]}, v{ZV+i}")
    P(f"""
    s_branch L_prep
    L_rare:
    """)
    P.raw(".p2align 12")

    SEC[0] = "p2"
    ZR = 16; CF = 80; AC = 96; X1 = 112; DL = 128; W1 = 144; W2 = 152; PH = 160; YT = 176; GS = 208; AB = 48
    aX1, aX2, aW1, aW2, aSP, aG, aS = 224, 225, 226, 227, 228, 230, 231
    P(f"""
    L_prep:
    v_mov_b32 v5, 0
    v_mov_b32 v7, 0
    s_add_u32 s69, s{sWV}, -2
    s_cmp_lt_u32 s69, 2
    s_cbranch_scc1 L_pub0
    s_cmp_lt_u32 s{sWV}, 2
    s_cbranch_scc1 L_ztail
    v_lshlrev_b32 v5, 11, v{vQ}
    v_lshrrev_b32 v10, 3, v{vN}
    s_add_u32 s49, s{sHW}, s{sJ}
    s_and_b32 s49, s49, 3
    v_lshl_add_u32 v10, s49, 1, v10
    v_lshl_add_u32 v5, v10, 8, v5
    v_and_b32 v9, 7, v{vN}
    v_lshl_add_u32 v5, v9, 4, v5
    v_add_u32 v7, 128, v5
    v_lshrrev_b32 v10, 1, v{vQ}
    v_lshl_add_u32 v10, s49, 1, v10
    v_and_b32 v9, 1, v{vQ}
    v_lshlrev_b32 v9, 5, v9
    s_lshl_b32 s58, s{sGRP}, 16
    s_add_u32 s58, s58, {ZM}
    s_movk_i32 s48, 8192
    s_add_u32 s51, s{sHW}, 2
    s_branch L_zcom
    L_ztail:
    v_lshl_add_u32 v10, s{sWV}, 2, v{vQ}
    v_lshlrev_b32 v5, 9, v{vQ}
    v_lshl_add_u32 v5, v{vN}, 4, v5
    v_lshl_add_u32 v5, s{sWV}, 8, v5
    s_lshl_b32 s58, s{sGRP}, 14
    s_add_u32 s58, s58, {ZT}
    s_movk_i32 s48, 2048
    v_mov_b32 v9, 256
    s_mov_b32 s51, s{sWV}
    L_zcom:
    """)
    for i in range(1, 8): P(f"s_add_u32 s{58+i}, s{57+i}, s48")
    P(f"""
    s_mul_i32 s{sROW}, s{sWV}, s{sSTR}
    s_add_u32 s{sROW}, s{sROW}, s{sTB}
    s_sub_u32 s{sROWB}, 2048, s{sROW}
    s_cmp_eq_u32 s{sROW}, 0
    s_cselect_b32 s{sROWB}, 1024, s{sROWB}
    s_mul_i32 s56, s{sROW}, 1280
    s_mul_i32 s57, s{sROWB}, 1280
    s_mul_i32 s49, s{sWV}, {XP}
    s_add_u32 s49, s49, {L_XR}
    v_add_u32 v233, s49, v{vL4}
    v_lshlrev_b32 v234, 3, v{vW}
    s_cmp_eq_u32 s{sTB}, 0
    s_cselect_b32 s47, 0, 8
    v_add_u32 v10, -1, v10
    v_and_b32 v10, 7, v10
    v_add3_u32 v9, v9, v10, 1
    v_lshlrev_b32 v9, 1, v9
    v_and_b32 v10, 7, v{vN}
    v_mov_b32 v11, s47
    v_cmp_ne_u32 vcc, 0, v10
    v_cndmask_b32 v11, v11, 8, vcc
    v_xor_b32 v11, v11, v{vN}
    s_movk_i32 s49, {XP}
    v_mad_u32_u24 v{aX1}, v{vN}, s49, v9
    v_add_u32 v{aX1}, {L_XR}, v{aX1}
    v_mul_u32_u24 v11, s49, v11
    v_add_u32 v11, {L_XR}, v11
    v_sub_u32 v10, {1280-432}, v9
    v_add_u32 v{aX2}, v11, v10
    s_lshl_b32 s49, s51, 8
    v_lshl_add_u32 v{aW1}, v{vQ}, 4, s49
    s_mul_i32 s51, s51, 768
    s_add_u32 s51, s51, {L_PART}
    v_lshl_add_u32 v{aG}, v{vN}, 4, s51
    v_lshl_add_u32 v{aS}, v{vN}, 3, s51
    v_mov_b32 v12, 0x3f803f80
    v_cmp_eq_u32 vcc, 1, v{vN}
    v_cndmask_b32 v12, 0, v12, vcc
    """)
    P(f"""
    s_cmp_lt_u32 s{sWV}, 2
    s_cbranch_scc1 L_tprep
    """)
    def wmask(on):
        if on: P("s_mov_b32 exec_lo, 0x10001"); P("s_mov_b32 exec_hi, 0x10001")
        else: P("s_mov_b64 exec, -1")
    off = [128*u + 16*r for u in range(4) for r in range(4)]
    for i in range(16):
        P(f"ds_read_u16_d16_hi v{X1+i}, v{aX1} offset:{off[i]}")
        P(f"ds_read_u16_d16_hi v{DL+i}, v{aX2} offset:{432-off[i]}")
        P(f"v_mov_b32 v{W1+i}, v12")
    P("s_waitcnt lgkmcnt(0)")
    for i_ in range(8): P(f"v_pk_add_f32 {v(DL+2*i_,2)}, {v(DL+2*i_,2)}, {v(X1+2*i_,2)} neg_lo:[0,1] neg_hi:[0,1]")
    stamp(P, 6)
    if OPT.get("zdelay"): P(f"s_sleep {OPT['zdelay']}")
    P("s_barrier")
    stamp(P, 7)
    P("s_mov_b32 s50, 0")
    for i in range(8):
        P(f"buffer_load_dwordx4 {v(ZR+8*i,4)}, v5, s[8:11], s{58+i} offen sc1")
        P(f"buffer_load_dwordx4 {v(ZR+8*i+4,4)}, v7, s[8:11], s{58+i} offen sc1")
        if i == 1:
            for k in range(4): P(f"ds_read_b128 {v(CF+4*k,4)}, v{vL16} offset:{L_CF + 1024*k}")
            wmask(1)
            for k in range(4): P(f"ds_read_b128 {v(W1+4*k,4)}, v{aW1} offset:{L_WF + 64*k}")
            wmask(0)
    P(f"""
    s_waitcnt lgkmcnt(0)
    L_zgo:
    v_mov_b32 v10, 0
    """)
    for k in range(4):
        z = ZR + 16*k
        y = YT + 16*(k & 1)
        chk = []
        def mm(u):
            P(f"v_mfma_f32_16x16x32_f16 {v(AC+4*u,4)}, {v(y+4*u,4)}, {v(CF+4*k,4)}, {v(X1+4*u,4) if k==0 else v(AC+4*u,4)}")
            o = [f"v_or3_b32 v10, v10, v{y+4*u}, v{y+4*u+1}", f"v_or3_b32 v10, v10, v{y+4*u+2}, v{y+4*u+3}"]
            if k == 3: chk.extend(o)
            else:
                for x_ in o: P(x_)
        P(f"s_waitcnt vmcnt({12 - 4*k})")
        for u in range(4):
            for l in range(4): P(f"v_xor_b32 v{y+4*u+l}, s{ZP[u]}, v{z+4*l+u}")
            if u: mm(u-1)
        mm(3)
        for x_ in chk: P(x_)
    P(f"v_and_b32 v10, 0x10001, v10")
    P(f"v_cmp_ne_u32 vcc, 0, v10")
    spin_tail(P, 50, "L_zretry", "L_zok")
    stamp(P, 8)
    if OPT["stamps"]: P("s_add_u32 s96, s50, 1")
    def stat_mm(side, f, first):
        p = PH + 8*side + 4*f; w = (W2 if side else W1) + 4*f
        g = GS + 8*side
        P(f"v_mfma_f32_16x16x32_bf16 {v(g,4)}, {v(p,4)}, {v(p,4)}, {'0' if first else v(g,4)}")
        P(f"v_mfma_f32_16x16x32_bf16 {v(g+4,4)}, {v(w,4)}, {v(p,4)}, {'0' if first else v(g+4,4)}")
    for f in range(2):
        for i in range(4): P(f"v_cvt_pk_bf16_f32 v{PH+4*f+i}, v{AC+8*f+2*i}, v{AC+8*f+2*i+1}")
        for i in range(4): P(f"v_pk_add_f32 {v(AC+8*f+2*i,2)}, {v(AC+8*f+2*i,2)}, {v(DL+8*f+2*i,2)}")
        stat_mm(0, f, f == 0)
        for i in range(4): P(f"v_cvt_pk_bf16_f32 v{PH+8+4*f+i}, v{AC+8*f+2*i}, v{AC+8*f+2*i+1}")
        if f == 1: stat_mm(1, 0, True)
    stat_mm(1, 1, False)
    def partw():
        P(f"""
        s_mov_b32 exec_lo, 0x00f0000f
        s_mov_b32 exec_hi, 0xf0000f00
        ds_write_b128 v{aG}, {v(GS,4)}
        ds_write_b128 v{aG}, {v(GS+8,4)} offset:384
        s_mov_b64 exec, 0xffff
        ds_write_b64 v{aS}, {v(GS+4,2)} offset:256
        ds_write_b64 v{aS}, {v(GS+12,2)} offset:640
        s_mov_b64 exec, -1
        s_waitcnt lgkmcnt(0)
        s_barrier
        """)
    partw()
    stamp(P, 9)
    for i in range(16):
        P(f"ds_write_b16{'_d16_hi' if i & 1 else ''} v{aX1}, v{PH+i//2} offset:{off[i]}")
        P(f"ds_write_b16{'_d16_hi' if i & 1 else ''} v{aX2}, v{PH+8+i//2} offset:{432-off[i]}")
    HA = 16; HB = 26; XT = 40; RM = 52
    P(f"""
    L_out:
    s_waitcnt lgkmcnt(0)
    s_barrier
    ds_read2st64_b32 {v(XT,2)}, v233 offset0:0 offset1:1
    ds_read2st64_b32 {v(XT+2,2)}, v233 offset0:2 offset1:3
    ds_read_b32 v{XT+4}, v233 offset:1024
    ds_read_b64 {v(RM,2)}, v234 offset:{L_RM}
    v_add_u32 v232, {8*XP}, v233
    ds_read2st64_b32 {v(XT+6,2)}, v232 offset0:0 offset1:1
    ds_read2st64_b32 {v(XT+8,2)}, v232 offset0:2 offset1:3
    ds_read_b32 v{XT+10}, v232 offset:1024
    ds_read_b64 {v(RM+2,2)}, v234 offset:{L_RM+64}
    """)
    for (Hr, src, rm, so, o, w_) in ((HA, XT, RM, 56, 56, 4), (HB, XT+6, RM+2, 57, 64, 0)):
        P(f"s_waitcnt lgkmcnt({w_})")
        for i in range(5):
            P(f"v_lshlrev_b32 v{Hr+2*i}, 16, v{src+i}")
            P(f"v_and_b32 v{Hr+2*i+1}, 0xffff0000, v{src+i}")
        for i in range(10): P(f"v_fma_f32 v{Hr+i}, v{Hr+i}, v{rm}, -v{rm+1}")
        for i in range(5):
            P(f"v_cvt_pk_bf16_f32 v{o+i}, v{Hr+2*i}, v{Hr+2*i+1}")
            P(f"v_min_u32 v{o+i}, -2, v{o+i}")
            P(f"buffer_store_dword v{o+i}, v{vL4}, s[12:15], s{so} offen offset:{256*i} sc1")
    stamp(P, 11)
    P(f"""
    s_cmp_lg_u32 s{sWV}, 3
    s_cbranch_scc1 L_finp
    s_cmp_lg_u32 s2, 0
    s_cbranch_scc1 L_finp
    s_mov_b64 exec, 1
    buffer_store_dword v14, v5, s[8:11], 0 offen sc1
    L_finp:
    {FIN}
    """)
    LATE_Z = list(LATE); del LATE[:]
    S1, S2, S3, MC, TM = 40, 36, 41, 44, 48
    P(f"""
    L_pub0:
    s_cmp_eq_u32 s{sWV}, 2
    s_cbranch_scc1 L_idle
    s_barrier
    s_mul_i32 s{sROW}, s{sWV}, s{sSTR}
    s_add_u32 s{sROW}, s{sROW}, s{sTB}
    s_sub_u32 s{sROWB}, 2048, s{sROW}
    s_cmp_eq_u32 s{sROW}, 0
    s_cselect_b32 s{sROWB}, 1024, s{sROWB}
    s_mul_i32 s56, s{sROW}, 1280
    s_mul_i32 s57, s{sROWB}, 1280
    s_mul_i32 s49, s{sWV}, {XP}
    s_add_u32 s49, s49, {L_XR}
    v_add_u32 v233, s49, v{vL4}
    v_lshlrev_b32 v234, 3, v{vW}
    s_cmp_eq_u32 s{sTB}, 0
    s_cselect_b32 s47, 0, 8
    v_add_u32 v9, {L_WR}, v{vL16}
    v_add_u32 v10, {L_WR+1024}, v{vL4}
    ds_read_b128 {v(16,4)}, v9
    ds_read_b32 v20, v10
    v_lshrrev_b32 v22, 2, v{vL}
    v_and_b32 v23, 7, v22
    v_mov_b32 v11, s47
    v_cmp_ne_u32 vcc, 0, v23
    v_cndmask_b32 v11, v11, 8, vcc
    v_and_b32 v24, 1, v{vL}
    v_mul_u32_u24 v11, v11, v24
    v_xor_b32 v11, v11, v22
    v_and_b32 v24, 3, v{vL}
    v_mul_u32_u24 v24, 384, v24
    v_lshl_add_u32 v26, v11, 3, v24
    v_lshl_add_u32 v25, v11, 4, v24
    v_and_b32 v11, 3, v11
    v_lshl_add_u32 v25, v11, 2, v25
    v_mul_u32_u24 v23, s{sSTR}, v23
    v_add_u32 v23, s{sTB}, v23
    v_sub_u32 v9, 2048, v23
    v_mov_b32 v10, 1024
    v_cmp_eq_u32 vcc, 0, v23
    v_cndmask_b32 v9, v9, v10, vcc
    v_cmp_lt_u32 vcc, 31, v{vL}
    v_cndmask_b32 v23, v23, v9, vcc
    v_lshlrev_b32 v23, 6, v23
    v_lshlrev_b32 v27, 3, v22
    v_mov_b32 v{MC+2}, v14
    v_mov_b32 v{MC+3}, v14
    s_mul_i32 s54, s{sIDX}, {KST}
    s_add_u32 s54, s54, {KEYS}
    s_lshr_b32 s36, s2, 6
    s_lshl2_add_u32 s36, s36, s{sJ}
    s_lshl_b32 s43, s{sXCD}, 8
    s_lshl2_add_u32 s36, s36, s43
    s_add_u32 s36, s36, {SEN1}
    s_mov_b32 s47, 0xffff8000
    s_mov_b32 s48, {STATS}
    s_mov_b32 s49, 0x3f803f80
    v_mov_b32 v21, 0
    s_waitcnt lgkmcnt(0)
    """)
    for i in range(5): P(f"v_dot2c_f32_bf16 v21, s49, v{16+i}")
    for sh in (1, 2, 4, 8): P(f"v_add_f32_dpp v21, v21, v21 row_shr:{sh} row_mask:0xf bank_mask:0xf bound_ctrl:0")
    P(f"""
    v_add_f32_dpp v21, v21, v21 row_bcast:15 row_mask:0xa bank_mask:0xf
    v_add_f32_dpp v21, v21, v21 row_bcast:31 row_mask:0xc bank_mask:0xf
    v_readlane_b32 s55, v21, 63
    s_setprio 3
    s_barrier
    """)
    stamp(P, 9)
    for i in range(3):
        P(f"ds_read_b32 v{36+i}, v25 offset:{L_PART + 1536*i}")
        P(f"ds_read_b64 {v(30+2*i,2)}, v26 offset:{L_PART + 1536*i + 256}")
    P(f"""
    s_waitcnt lgkmcnt(2)
    v_add_f32 v36, v36, v37
    v_pk_add_f32 {v(30,2)}, {v(30,2)}, {v(32,2)}
    s_waitcnt lgkmcnt(0)
    v_add_f32 v{S2}, v36, v38
    v_add_f32 v{S1}, v31, v35
    v_add_f32 v{S3}, v30, v34
    """)
    for qp in ("[1,0,3,2]", "[2,3,0,1]"):
        for r in (S2, S1, S3): P(f"v_add_f32_dpp v{r}, v{r}, v{r} quad_perm:{qp} row_mask:0xf bank_mask:0xf")
    P(f"""
    v_mul_f32 v{MC}, s{sC640}, v{S1}
    v_mul_f32 v{TM}, v{MC}, v{MC}
    v_fma_f32 v{S2}, v{S2}, s{sC640}, -v{TM}
    v_max_f32 v{S2}, 0, v{S2}
    """)
    for o in bf16_round(S2): P(o)
    P(f"v_add_f32 v{S2}, {f2u(1e-5)}, v{S2}")
    for o in bf16_round(S2): P(o)
    P(f"v_sqrt_f32 v{S2}, v{S2}")
    for o in bf16_round(MC): P(o)
    for o in bf16_round(S2): P(o)
    P(f"""
    v_rcp_f32 v{TM+2}, v{S2}
    v_fma_f32 v{S3}, -v{MC}, s55, v{S3}
    v_mul_f32 v{S3}, v{S3}, v{TM+2}
    v_cvt_pk_bf16_f32 v{S3}, v{S3}, v{S3}
    v_ashrrev_i32 v{TM}, 31, v{S3}
    v_or_b32 v{TM}, 0x80000000, v{TM}
    v_xor_b32 v{S3}, v{S3}, v{TM}
    v_lshrrev_b32 v{S3}, 1, v{S3}
    v_bfi_b32 v{S3}, s47, v{S3}, v14
    s_mov_b32 exec_lo, 0x11111111
    s_mov_b32 exec_hi, 0x11111111
    {"buffer_store_dword v14, v5, s[8:11], s36 offen" if OPT.get("h1pos", 1) == 2 else ""}
    buffer_store_dword v{S3}, v{vL}, s[8:11], s54 offen sc1
    {"buffer_store_dword v14, v5, s[8:11], s36 offen" if OPT.get("h1pos", 1) == 3 else ""}
    """)
    stamp(P, 10)
    P(f"""
    v_add_f32 v{MC+1}, 1.0, v{S2}
    v_mul_f32 v{TM+3}, v{MC}, v{TM+2}
    v_add_f32 v{TM+2}, 1.0, v{TM+2}
    v_rcp_f32 v{MC+1}, v{MC+1}
    ds_write_b64 v27, {v(TM+2,2)} offset:{L_RM}
    buffer_store_dwordx4 {v(MC,4)}, v23, s[8:11], s48 offen sc1
    s_mov_b64 exec, 1
    {"buffer_store_dword v14, v5, s[8:11], s36 offen" if OPT.get("h1pos", 1) == 1 else ""}
    s_mov_b64 exec, -1
    s_setprio 0
    s_branch L_out
    """)
    P_keep = P; P = Prog()
    P(f"""
    L_idle:
    s_mov_b32 s49, {L_WR}
    v_add_u32 v9, s{sJ}, v{vQ}
    v_and_b32 v9, 3, v9
    v_bfe_u32 v10, v{vL}, 1, 1
    v_lshl_add_u32 v9, v9, 1, v10
    v_add_u32 v9, -1, v9
    v_and_b32 v9, 7, v9
    v_and_b32 v10, 1, v{vL}
    v_lshl_add_u32 v9, v10, 5, v9
    v_and_b32 v10, 4, v{vL}
    v_lshl_add_u32 v9, v10, 5, v9
    v_lshlrev_b32 v9, 1, v9
    v_add_u32 v16, {L_WR+2}, v9
    v_sub_u32 v17, {L_WR+1278}, v9
    v_mov_b32 v18, 16
    v_and_b32 v10, 8, v{vL}
    v_cmp_ne_u32 vcc, 0, v10
    v_cndmask_b32 v16, v16, v17, vcc
    v_cndmask_b32 v18, v18, -16, vcc
    v_lshrrev_b32 v9, 4, v{vL}
    v_and_b32 v10, 3, v{vL}
    v_lshl_add_u32 v9, v9, 2, v10
    v_add_u32 v9, -1, v9
    v_and_b32 v9, 7, v9
    v_lshlrev_b32 v9, 1, v9
    v_add_u32 v19, {L_WR+514}, v9
    v_sub_u32 v17, {L_WR+766}, v9
    v_cndmask_b32 v19, v19, v17, vcc
    """)
    for i in range(8):
        m = 8*(i >> 2) + (i & 3)
        P(f"v_mad_i32_i24 v20, v18, {m}, v16")
        P(f"ds_read_u16 v{24+i}, v20")
    for i in range(8):
        m = (i >> 1) + 4*(i & 1)
        P(f"v_mad_i32_i24 v20, v18, {m}, v19")
        if i == 7: P(f"v_writelane_b32 v20, s49, 8")
        P(f"ds_read_u16 v{32+i}, v20")
    P("s_waitcnt lgkmcnt(0)")
    for i in range(8): P(f"v_lshl_or_b32 v{40+i}, v{25+2*i}, 16, v{24+2*i}")
    P(f"""
    ds_write_b128 v{vL16}, {v(40,4)} offset:{L_WF+512}
    s_mov_b32 exec_hi, 0
    ds_write_b128 v{vL16}, {v(44,4)} offset:{L_WF}
    s_mov_b64 exec, -1
    s_waitcnt lgkmcnt(0)
    s_barrier
    s_mul_i32 s{sROW}, s{sWV}, s{sSTR}
    s_add_u32 s{sROW}, s{sROW}, s{sTB}
    s_sub_u32 s{sROWB}, 2048, s{sROW}
    s_cmp_eq_u32 s{sROW}, 0
    s_cselect_b32 s{sROWB}, 1024, s{sROWB}
    s_mul_i32 s56, s{sROW}, 1280
    s_mul_i32 s57, s{sROWB}, 1280
    s_mul_i32 s49, s{sWV}, {XP}
    s_add_u32 s49, s49, {L_XR}
    v_add_u32 v233, s49, v{vL4}
    v_lshlrev_b32 v234, 3, v{vW}
    s_cmp_eq_u32 s{sTB}, 0
    s_cselect_b32 s47, 0, 8
    s_barrier
    s_branch L_out
    """)
    IDLE = list(P.lines); P = P_keep
    RARE = Prog()
    P_main = P
    P = RARE
    toff = [16*u + 64*ih for u in range(4) for ih in range(2)]
    P(f"""
    L_tprep:
    s_movk_i32 s49, 528
    v_cmp_eq_u32 s[52:53], s49, v9
    v_add_u32 v{aSP}, {432-toff[7]}, v{aX2}
    v_cndmask_b32 v{aSP}, v{aSP}, v11, s[52:53]
    """)
    for i in range(8):
        P(f"ds_read_u16_d16_hi v{X1+4*(i>>1)+(i&1)}, v{aX1} offset:{toff[i]}")
    for i in range(8):
        if i < 7: P(f"ds_read_u16_d16_hi v{DL+i}, v{aX2} offset:{432-toff[i]}")
        else: P(f"ds_read_u16_d16_hi v{DL+i}, v{aSP}")
    for i in range(4):
        P(f"v_mov_b32 v{W1+i}, v12"); P(f"v_mov_b32 v{W2+i}, v12")
        P(f"v_mov_b32 v{X1+4*i+2}, 0"); P(f"v_mov_b32 v{X1+4*i+3}, 0")
    P("s_waitcnt lgkmcnt(0)")
    P(f"v_mov_b32 v{DL+8}, v{DL+7}")
    for u in range(4): P(f"v_pk_add_f32 {v(DL+2*u,2)}, {v(DL+2*u,2)}, {v(X1+4*u,2)} neg_lo:[0,1] neg_hi:[0,1]")
    stamp(P, 6)
    P("s_barrier")
    stamp(P, 7)
    for i in range(8): P(f"buffer_load_dwordx4 {v(ZR+4*i,4)}, v5, s[8:11], s{58+i} offen sc1")
    P("s_mov_b32 s50, 0")
    P(f"v_add_u32 v9, {L_CF}, v{vL16}")
    for k in range(4):
        P(f"ds_read2_b32 {v(CF+4*(k>>1)+2*(k&1),2)}, v9 offset0:0 offset1:2")
        P(f"ds_read2_b32 {v(CF+8+4*(k>>1)+2*(k&1),2)}, v9 offset0:1 offset1:3")
        if k < 3: P(f"v_add_u32 v9, 1024, v9")
    wmask(1)
    P(f"ds_read_b128 {v(W1,4)}, v{aW1} offset:{L_WF}")
    P(f"ds_read_b128 {v(W2,4)}, v{aW1} offset:{L_WF+128}")
    wmask(0)
    P("s_branch L_tgo")
    P("L_tretry:")
    for i in range(8): P(f"buffer_load_dwordx4 {v(ZR+4*i,4)}, v5, s[8:11], s{58+i} offen sc1")
    P(f"""
    L_tgo:
    v_mov_b32 v10, 0
    s_waitcnt lgkmcnt(0)
    """)
    for k in range(2):
        z = ZR + 16*k; y = YT + 16*k
        P(f"s_waitcnt vmcnt({4 - 4*k})")
        def mt(u):
            P(f"v_mfma_f32_16x16x32_f16 {v(AC+4*u,4)}, {v(y+4*u,4)}, {v(CF+4*k,4)}, {v(X1+4*u,4) if k==0 else v(AC+4*u,4)}")
            P(f"v_or3_b32 v10, v10, v{y+4*u}, v{y+4*u+1}")
            P(f"v_mfma_f32_16x16x32_f16 {v(AB+4*u,4)}, {v(y+4*u,4)}, {v(CF+8+4*k,4)}, {'0' if k==0 else v(AB+4*u,4)}")
            P(f"v_or3_b32 v10, v10, v{y+4*u+2}, v{y+4*u+3}")
        for u in range(4):
            for l in range(4): P(f"v_xor_b32 v{y+4*u+l}, s{ZP[u]}, v{z+4*l+u}")
            if u: mt(u-1)
        mt(3)
    P(f"v_and_b32 v10, 0x10001, v10")
    P(f"v_cmp_ne_u32 vcc, 0, v10")
    spin_tail(P, 50, "L_tretry", "L_tok")
    stamp(P, 8)
    for u in range(4): P(f"v_pk_add_f32 {v(AC+4*u,2)}, {v(AC+4*u,2)}, {v(AB+4*u+2,2)}")
    for u in range(4): P(f"v_cvt_pk_bf16_f32 v{PH+u}, v{AC+4*u}, v{AC+4*u+1}")
    for u in range(4): P(f"v_pk_add_f32 {v(AC+4*u,2)}, {v(AC+4*u,2)}, {v(DL+2*u,2)}")
    P(f"v_cndmask_b32 v{AC+13}, v{AC+13}, v{DL+8}, s[52:53]")
    stat_mm(0, 0, True)
    for u in range(4): P(f"v_cvt_pk_bf16_f32 v{PH+8+u}, v{AC+4*u}, v{AC+4*u+1}")
    stat_mm(1, 0, True)
    partw()
    stamp(P, 9)
    for i in range(8):
        P(f"ds_write_b16{'_d16_hi' if i & 1 else ''} v{aX1}, v{PH+i//2} offset:{toff[i]}")
        if i < 7: P(f"ds_write_b16{'_d16_hi' if i & 1 else ''} v{aX2}, v{PH+8+i//2} offset:{432-toff[i]}")
        else: P(f"ds_write_b16_d16_hi v{aSP}, v{PH+11}")
    P("s_branch L_out")
    flush_late(P)
    TAILC = list(RARE.lines)
    RARE = Prog(); P = RARE
    P("L_zretry:")
    for i in range(8):
        P(f"buffer_load_dwordx4 {v(ZR+8*i,4)}, v5, s[8:11], s{58+i} offen sc1")
        P(f"buffer_load_dwordx4 {v(ZR+8*i+4,4)}, v7, s[8:11], s{58+i} offen sc1")
    P("s_branch L_zgo")
    for t_ in LATE_Z: P(t_)
    P = P_main
    k_ = P.lines.index("L_rare:") + 1
    P.lines[k_:k_] = RARE.lines
    k_ = P.lines.index("L_M:") - 1
    P.lines[k_:k_] = TAILC
    SEC[0] = "ffn"
    BW = 48; AR = 112; A0 = 128
    KK = 16; ID = 24; K4 = 32; CB = 112
    P.raw(".p2align 12")
    P(f"""
    L_ffn:
    s_barrier
    s_cmp_lg_u32 s{sWV}, 0
    s_cbranch_scc1 L_noflag
    s_mul_i32 s49, s{sIDX}, {KST}
    s_add_u32 s49, s49, {FLAGS}
    s_mov_b64 exec, 1
    buffer_store_dword v14, v13, s[8:11], s49 offen sc1
    s_mov_b64 exec, -1
    L_noflag:
    v_lshrrev_b32 v7, 2, v0
    v_mul_u32_u24 v7, {KST}, v7
    v_and_b32 v12, 3, v0
    v_lshl_add_u32 v7, v12, 4, v7
    s_mov_b32 s52, {KEYS}
    {"buffer_load_dword v253, v7, s[8:11], s52 offen sc1" if OPT.get("kwarm", 0) else ""}
    v_and_b32 v9, 1, v{vN}
    v_mul_u32_u24 v144, 0xaaaa, v9
    v_or_b32 v144, 0x4444, v144
    v_lshrrev_b32 v9, 1, v{vQ}
    v_and_b32 v10, 1, v{vQ}
    v_lshlrev_b32 v10, 2, v10
    v_lshl_add_u32 v145, v9, 4, v10
    v_and_b32 v9, 8, v{vN}
    v_bfe_u32 v10, v{vN}, 2, 1
    v_add3_u32 v145, v145, v9, v10
    v_and_b32 v146, 3, v{vN}
    """)
    P(f"""
    v_bfe_u32 v9, v0, 4, 3
    v_lshlrev_b32 v9, 1, v9
    v_add_u32 v40, 1, v9
    v_sub_u32 v41, 32, v9
    v_sub_u32 v42, 32, v40
    v_cmp_eq_u32 vcc, 0, v9
    v_cndmask_b32 v41, v41, 16, vcc
    v_and_b32 v12, 128, v0
    v_cmp_ne_u32 vcc, 0, v12
    v_cndmask_b32 v9, v9, v41, vcc
    v_cndmask_b32 v40, v40, v42, vcc
    v_bfe_u32 v10, v0, 2, 2
    v_and_b32 v12, 1, v0
    v_lshl_add_u32 v10, v10, 1, v12
    v_lshlrev_b32 v10, 2, v10
    v_mov_b32 v11, 64
    v_cmp_eq_u32 vcc, 0, v9
    v_cndmask_b32 v11, v11, 32, vcc
    v_mad_u32_u24 v{ID}, v10, v11, v9
    v_lshl_add_u32 v{ID+4}, v10, 6, v40
    """)
    for i in range(1, 4):
        P(f"v_add_u32 v{ID+i}, v{ID+i-1}, v11")
        P(f"v_add_u32 v{ID+4+i}, 64, v{ID+3+i}")
    P(f"""
    v_and_b32 v12, 2, v0
    v_cmp_ne_u32 vcc, 0, v12
    """)
    for i in range(8):
        P(f"v_sub_u32 v9, 2048, v{ID+i}")
        P(f"v_cndmask_b32 v{ID+i}, v{ID+i}, v9, vcc")
    P(f"""
    v_mov_b32 v11, 1024
    v_cmp_eq_u32 vcc, 2, v0
    v_cndmask_b32 v{ID}, v{ID}, v11, vcc
    s_mov_b32 s53, {KEYS + 64*KST}
    s_lshr_b32 s54, s2, 6
    s_and_b32 s43, s{sJ}, 3
    s_lshl2_add_u32 s54, s54, s43
    s_mov_b32 s55, {OOB}
    s_cmp_eq_u32 s54, 10
    s_cmov_b32 s55, {STATS}
    s_cmp_lt_u32 s54, 10
    s_cselect_b32 s54, s54, {OOB>>7}
    s_lshl_b32 s54, s54, 7
    v_mov_b32 v12, 0
    v_lshrrev_b32 v5, 4, v0
    v_lshlrev_b32 v5, 2, v5
    v_lshlrev_b32 v151, 2, v{vN}
    v_lshlrev_b32 v43, 4, v{vQ}
    v_lshrrev_b32 v147, 1, v{vN}
    v_lshrrev_b32 v9, 3, v{vL}
    s_cmp_ge_u32 s{sWV}, 5
    s_cselect_b64 vcc, -1, 0
    v_cndmask_b32 v147, v147, v9, vcc
    v_lshlrev_b32 v147, 2, v147
    v_and_b32 v148, 1, v{vN}
    v_lshl_add_u32 v148, v{vQ}, 1, v148
    v_lshlrev_b32 v148, 4, v148
    s_cmp_lt_u32 s{sIDX}, 108
    s_cselect_b32 s43, 7, 8
    v_lshlrev_b32 v149, s43, v{vQ}
    v_lshl_add_u32 v149, v{vN}, 2, v149
    v_lshl_add_u32 v149, v{vW}, 10, v149
    v_add_u32 v149, {L_RED}, v149
    s_lshl_b32 s56, s{sWV}, 8
    s_movk_i32 s57, 1280
    v_mov_b32 v152, 1
    v_mov_b32 v153, 0x7fff
    s_mov_b32 s52, {KEYS}
    s_mov_b32 s59, 0x7fff8000
    """)
    P(f"""
    s_cmp_ge_u32 s{sIDX}, 108
    s_cbranch_scc1 L_f2load
    """)
    P(f"""
    v_lshrrev_b32 v13, 1, v{vL}
    v_mul_u32_u24 v13, 3456, v13
    v_and_b32 v9, 1, v{vL}
    v_lshl_add_u32 v13, v9, 4, v13
    s_lshl_b32 s58, s{sIDX}, 5
    s_and_b32 s47, s{sJ}, 3
    s_mul_i32 s47, s47, 5
    s_mov_b32 s48, s{sWV}
    L_dma1:
    s_add_u32 s49, s48, s47
    s_cmp_ge_u32 s49, 20
    s_cselect_b32 s50, 20, 0
    s_sub_u32 s49, s49, s50
    s_lshr_b32 s50, s49, 2
    s_lshl_b32 s50, s50, 13
    s_and_b32 s51, s49, 3
    s_lshl_b32 s51, s51, 10
    s_add_u32 s50, s50, s51
    s_add_u32 m0, s50, {L_WT}
    s_mul_i32 s51, s49, {32*3456}
    s_add_u32 s51, s51, s58
    {"s_nop 0" if OPT.get("now") else f"buffer_load_dwordx4 v13, s[20:23], s51 offen lds"}
    s_add_u32 m0, m0, 4096
    s_add_u32 s48, s48, 8
    {"s_nop 0" if OPT.get("now") else f"buffer_load_dwordx4 v13, s[24:27], s51 offen lds"}
    s_cmp_lt_u32 s48, 20
    s_cbranch_scc1 L_dma1
    v_lshlrev_b32 v15, 5, v145
    v_lshl_add_u32 v15, v146, 3, v15
    v_lshl_add_u32 v15, v{vW}, 13, v15
    s_waitcnt vmcnt(0)
    s_barrier
    """)
    P("s_branch L_tk")
    P(f"""
    L_f2load:
    s_waitcnt vmcnt(0)
    s_barrier
    """)
    stamp(P, 9)
    P(f"""
    v_lshrrev_b32 v13, 2, v{vL}
    v_mul_u32_u24 v13, 1280, v13
    v_and_b32 v9, 3, v{vL}
    v_lshl_add_u32 v13, v9, 4, v13
    s_sub_u32 s58, s{sIDX}, 108
    s_lshl_b32 s58, s58, 6
    s_and_b32 s47, s{sJ}, 1
    s_mov_b32 s47, 0
    s_mov_b32 s48, s{sWV}
    L_dma2:
    s_add_u32 s49, s48, s47
    s_cmp_ge_u32 s49, 112
    s_cselect_b32 s50, 112, 0
    s_sub_u32 s49, s49, s50
    s_lshl_b32 s50, s49, 10
    s_add_u32 m0, s50, {L_WT}
    s_mul_i32 s51, s49, {16*1280}
    s_add_u32 s51, s51, s58
    s_add_u32 s48, s48, 8
    {"s_nop 0" if OPT.get("now") else f"buffer_load_dwordx4 v13, s[28:31], s51 offen lds"}
    s_cmp_lt_u32 s48, 112
    s_cbranch_scc1 L_dma2
    v_lshlrev_b32 v15, 6, v145
    v_lshl_add_u32 v15, v146, 3, v15
    v_lshl_add_u32 v15, v{vW}, 14, v15
    s_cmp_lg_u32 s{sWV}, 0
    s_cbranch_scc1 L_dok
    v_mul_u32_u24 v11, {KST}, v{vL}
    s_mov_b32 s49, {FLAGS}
    s_mov_b32 s47, {FLAGS+64*KST}
    s_mov_b32 s50, 0
    L_dpoll:
    buffer_load_dword v9, v11, s[8:11], s49 offen sc1
    buffer_load_dword v10, v11, s[8:11], s47 offen sc1
    s_waitcnt vmcnt(0)
    v_bitop3_b32 v9, v9, v10, v14 bitop3:0x7e
    v_cmp_ne_u32 vcc, 0, v9
    """)
    spin_tail(P, 50, "L_dpoll", "L_dok")
    P(f"""
    s_waitcnt vmcnt(0)
    s_barrier
    """)
    P("L_tk:")
    stamp(P, 6)
    P(f"""
    s_cmp_eq_u32 s{sWV}, 6
    s_cbranch_scc1 L_pad0
    s_cmp_eq_u32 s{sWV}, 7
    s_cbranch_scc1 L_fchk
    s_cmp_ge_u32 s{sIDX}, 108
    s_cbranch_scc1 L_tk1
    s_cmp_eq_u32 s{sWV}, 5
    s_cbranch_scc1 L_tk1
    """)
    for blk in range(4):
        for j in range(4):
            P(f"ds_read_b64_tr_b16 {v(BW+8*blk+2*j,2)}, v15 offset:{L_WT + 2048*blk + 32*(32*(j>>1) + 2*(j&1))}")
    for i in range(4): P(f"v_mov_b32 v{AR+i}, 0x3f803f80")
    P(f"""
    s_lshl_b32 s49, s{sWV}, 7
    v_lshl_add_u32 v13, v{vN}, 2, s49
    s_waitcnt lgkmcnt(0)
    """)
    for i in range(4):
        P(f"v_mfma_f32_16x16x32_bf16 {v(A0,4)}, {v(AR,4)}, {v(BW+4*i,4)}, {'0' if i==0 else v(A0,4)}")
        P(f"v_mfma_f32_16x16x32_bf16 {v(A0+4,4)}, {v(AR,4)}, {v(BW+16+4*i,4)}, {'0' if i==0 else v(A0+4,4)}")
    P(f"ds_write_b32 v13, v{A0} offset:{L_CS}")
    P(f"ds_write_b32 v13, v{A0+4} offset:{L_CS+64}")
    P(f"""
    L_tk1:
    s_barrier
    s_cmp_ge_u32 s{sWV}, 4
    s_cbranch_scc1 L_tk2
    s_mov_b32 s50, 0
    """)
    stamp(P, 7)
    P(f"""
    L_kpoll:
    buffer_load_dwordx4 {v(KK,4)}, v7, s[8:11], s52 offen sc1
    buffer_load_dwordx4 {v(KK+4,4)}, v7, s[8:11], s53 offen sc1
    s_waitcnt vmcnt(1)
    v_max3_u32 v10, v{KK}, v{KK+1}, v{KK+2}
    v_bitop3_b32 v40, v{KK}, v{KK+1}, v14 bitop3:0x7e
    v_bitop3_b32 v41, v{KK+2}, v{KK+3}, v14 bitop3:0x7e
    s_waitcnt vmcnt(0)
    v_max3_u32 v11, v{KK+3}, v{KK+4}, v{KK+5}
    v_max3_u32 v10, v10, v{KK+6}, v{KK+7}
    v_max_u32 v10, v10, v11
    v_bitop3_b32 v42, v{KK+4}, v{KK+5}, v14 bitop3:0x7e
    v_bitop3_b32 v11, v{KK+6}, v{KK+7}, v14 bitop3:0x7e
    v_max_u32_dpp v10, v10, v10 row_ror:1 row_mask:0xf bank_mask:0xf
    v_or3_b32 v40, v40, v41, v42
    v_bitop3_b32 v40, v40, v11, v153 bitop3:0xa8
    v_max_u32_dpp v10, v10, v10 row_ror:2 row_mask:0xf bank_mask:0xf
    v_cmp_ne_u32 vcc, 0, v40
    v_and_or_b32 v{KK}, v{KK}, s59, v{ID}
    v_max_u32_dpp v10, v10, v10 row_ror:4 row_mask:0xf bank_mask:0xf
    """)
    spin_tail(P, 50, "L_kpoll", "L_kok")
    stamp(P, 8)
    if OPT["stamps"]: P("s_add_u32 s96, s50, 1")
    P(f"""
    v_and_or_b32 v{KK+1}, v{KK+1}, s59, v{ID+1}
    v_max_u32_dpp v10, v10, v10 row_ror:8 row_mask:0xf bank_mask:0xf
    v_and_or_b32 v10, v10, s59, v5
    ds_write_b32 v5, v10 offset:{L_GM}
    """)
    for i in range(2, 8): P(f"v_and_or_b32 v{KK+i}, v{KK+i}, s59, v{ID+i}")
    P(f"""
    L_tk2:
    s_waitcnt lgkmcnt(0)
    s_barrier
    s_cmp_ge_u32 s{sWV}, 4
    s_cbranch_scc1 L_tk3
    """)
    def rank16(off, own):
        P(f"ds_read_b32 v{own}, v151 offset:{off}")
        P(f"ds_read_b128 {v(CB,4)}, v43 offset:{off}")
    def rank16b(own, acc):
        P("s_waitcnt lgkmcnt(0)")
        for i in range(4): P(f"v_sub_u32 v{CB+i}, v{own}, v{CB+i}")
        P(f"v_lshrrev_b32 v{acc}, 31, v{CB}")
        for i in range(1, 4): P(f"v_alignbit_b32 v{acc}, v{acc}, v{CB+i}, 31")
        P(f"""
        v_bcnt_u32_b32 v{acc}, v{acc}, 0
        v_mov_b32 v{CB}, v{acc}
        v_permlane16_swap_b32 v{acc}, v{CB}
        v_add_u32 v{acc}, v{acc}, v{CB}
        v_mov_b32 v{CB}, v{acc}
        v_permlane32_swap_b32 v{acc}, v{CB}
        v_add_u32 v{acc}, v{acc}, v{CB}
        """)
    rank16(L_GM, 10)
    P(f"""
    v_max3_u32 v9, v{KK}, v{KK+1}, v{KK+2}
    v_max3_u32 v11, v{KK+3}, v{KK+4}, v{KK+5}
    v_max3_u32 v9, v9, v{KK+6}, v{KK+7}
    v_max_u32 v9, v9, v11
    """)
    rank16b(10, 11)
    P(f"""
    v_cmp_eq_u32 vcc, 7, v11
    s_ff1_i32_b64 s47, vcc
    v_readlane_b32 s48, v10, s47
    s_and_b32 s48, s48, s59
    L_tkagain:
    v_mov_b32 v10, v9
    L_app:
    v_cmp_le_i32 vcc, s48, v10
    s_cbranch_vccz L_tk3
    s_mov_b64 exec, vcc
    ds_add_rtn_u32 v11, v12, v152
    {"" if not OPT.get("touch", 1) else f"v_and_b32 v{K4}, 2047, v10"}
    {"" if not OPT.get("touch", 1) else f"v_lshlrev_b32 v{K4+1}, 6, v{K4}"}
    {"" if not OPT.get("touch", 1) else f"v_mul_u32_u24 v{K4}, 1280, v{K4}"}
    {"" if not OPT.get("touch", 1) else f"buffer_load_dword v253, v{K4+1}, s[8:11], s55 offen sc1"}
    {"" if not OPT.get("touch", 1) else f"buffer_load_dword v253, v{K4}, s[12:15], s54 offen sc1"}
    s_mov_b64 exec, -1
    v_add_u32 v{K4+8}, -1, v10
    """)
    for i in range(8): P(f"v_sub_u32 v{K4+i}, v{K4+8}, v{KK+i}")
    P(f"""
    v_min3_u32 v{K4}, v{K4}, v{K4+1}, v{K4+2}
    v_min3_u32 v{K4+3}, v{K4+3}, v{K4+4}, v{K4+5}
    v_min3_u32 v{K4}, v{K4}, v{K4+6}, v{K4+7}
    v_min3_u32 v{K4}, v{K4}, v{K4+3}, v10
    s_waitcnt lgkmcnt(0)
    v_min_u32 v11, 16, v11
    v_lshlrev_b32 v11, 2, v11
    s_mov_b64 exec, vcc
    ds_write_b32 v11, v10 offset:{L_LIST}
    v_sub_u32 v10, v{K4+8}, v{K4}
    s_mov_b64 exec, -1
    s_branch L_app
    """)
    flush_late(P)
    P(f"""
    L_pad0:
    s_branch L_pad1
    L_fchk:
    """)
    P(f"""
    s_lshl_b32 s49, s{sXCD}, 8
    s_add_u32 s49, s49, {SEN1}
    s_mov_b32 s50, 0
    s_mov_b64 exec, 0xffff
    L_h1:
    buffer_load_dword v10, v{vL4}, s[8:11], s49 offen sc1
    s_add_u32 s50, s50, 1
    s_cmp_gt_u32 s50, {HINTMAX}
    s_waitcnt vmcnt(0)
    v_cmp_ne_u32 vcc, v14, v10
    s_cbranch_scc1 L_h1_d
    s_cbranch_vccnz L_h1
    L_h1_d:
    s_mov_b64 exec, -1
    {"s_sleep %d" % OPT["kdelay"] if OPT.get("kdelay") else ""}
    s_branch L_tk1
    """)
    P(f"""
    L_tk3:
    s_waitcnt lgkmcnt(0)
    s_barrier
    ds_read_b32 v{K4+9}, v12
    """)
    rank16(L_LIST, 10)
    rank16b(10, 11)
    P(f"""
    v_cmp_gt_u32 vcc, 8, v11
    v_readfirstlane_b32 s47, v{K4+9}
    v_lshlrev_b32 v11, 2, v11
    s_mov_b64 exec, vcc
    ds_write_b32 v11, v10 offset:{L_SEL}
    s_mov_b64 exec, -1
    ds_read_b32 v150, v147 offset:{L_SEL}
    s_mov_b32 s50, 0
    s_cmp_le_u32 s47, 16
    s_cbranch_scc1 L_tkdone
    ds_read_b32 v10, v12 offset:{L_SEL+28}
    s_waitcnt lgkmcnt(0)
    s_barrier
    v_readfirstlane_b32 s48, v10
    v_mov_b32 v11, -1
    ds_write_b32 v12, v12
    ds_write_b32 v151, v11 offset:{L_LIST}
    s_waitcnt lgkmcnt(0)
    s_barrier
    s_cmp_ge_u32 s{sWV}, 4
    s_cbranch_scc1 L_tk3
    s_branch L_tkagain
    """)
    flush_late(P)
    P(f"""
    L_pad1:
    s_branch L_pad2
    L_tkdone:
    s_cmp_ge_u32 s{sIDX}, 108
    s_cbranch_scc1 L_f2
    """)
    P(f"""
    s_cmp_eq_u32 s{sWV}, 5
    s_cbranch_scc1 L_f1fin
    s_cmp_gt_u32 s{sWV}, 5
    s_cbranch_scc1 L_fin2
    s_waitcnt lgkmcnt(0)
    """)
    stamp(P, 10)
    P(f"""
    v_and_b32 v9, 2047, v150
    v_mad_u32_u24 v9, v9, s57, v148
    L_gretry:
    buffer_load_dwordx4 {v(AR,4)}, v9, s[12:15], s56 offen sc1
    buffer_load_dwordx4 {v(AR+4,4)}, v9, s[12:15], s56 offen offset:128 sc1
    """)
    for i in range(8): P(f"v_mov_b32 v{A0+i}, 0")
    for b in range(2):
        P(f"s_waitcnt vmcnt({1-b})")
        for gu in range(2):
            P(f"v_smfmac_f32_16x16x64_bf16 {v(A0+4*gu,4)}, {v(AR+4*b,4)}, {v(BW+16*gu+8*b,8)}, v144")
        if b == 0: P(f"v_max3_u32 v10, v{AR}, v{AR+1}, v{AR+2}")
    P(f"""
    v_max3_u32 v10, v10, v{AR+3}, v{AR+4}
    v_max3_u32 v10, v10, v{AR+5}, v{AR+6}
    v_max_u32 v10, v10, v{AR+7}
    v_cmp_eq_u32 vcc, -1, v10
    """)
    spin_tail(P, 50, "L_gretry", "L_gok")
    stamp(P, 11)
    P(f"""
    v_add_f32 v{A0}, v{A0}, v{A0+1}
    v_add_f32 v{A0+2}, v{A0+2}, v{A0+3}
    ds_write2_b32 v149, v{A0}, v{A0+2} offset0:0 offset1:16
    v_add_f32 v{A0+4}, v{A0+4}, v{A0+5}
    v_add_f32 v{A0+6}, v{A0+6}, v{A0+7}
    ds_write2_b32 v149, v{A0+4}, v{A0+6} offset0:128 offset1:144
    s_waitcnt lgkmcnt(0)
    s_barrier
    {FIN}
    """)
    flush_late(P)
    P(f"""
    L_pad2:
    s_branch L_pad3
    """)
    D = 16
    P(f"""
    L_f1fin:
    s_mov_b32 s49, {STATS}
    s_waitcnt lgkmcnt(0)
    v_and_b32 v9, 2047, v150
    v_lshlrev_b32 v9, 6, v9
    buffer_load_dwordx4 {v(40,4)}, v9, s[8:11], s49 offen sc1
    v_and_b32 v13, 7, v{vL}
    v_lshlrev_b32 v13, 3, v13
    """)
    for w in range(5):
        P(f"ds_read_b64 {v(D+4*w,2)}, v13 offset:{L_CS+128*w}")
        P(f"ds_read_b64 {v(D+4*w+2,2)}, v13 offset:{L_CS+128*w+64}")
    P(f"""
    v_lshlrev_b32 v13, 3, v{vL}
    s_waitcnt lgkmcnt(0)
    """)
    for w in range(1, 5):
        P(f"v_pk_add_f32 {v(D,2)}, {v(D,2)}, {v(D+4*w,2)}")
        P(f"v_pk_add_f32 {v(D+2,2)}, {v(D+2,2)}, {v(D+4*w+2,2)}")
    P(f"""
    s_branch L_swait
    L_sretry:
    buffer_load_dwordx4 {v(40,4)}, v9, s[8:11], s49 offen sc1
    L_swait:
    s_waitcnt vmcnt(0)
    v_cmp_ne_u32 vcc, v14, v42
    """)
    spin_tail(P, 50, "L_sretry", "L_sok")
    P(f"""
    s_lshl_b32 s49, s{sIDX}, 8
    s_add_u32 s49, s49, {ACT}
    s_lshr_b32 s47, s2, 6
    s_and_b32 s43, s{sJ}, 3
    s_lshl2_add_u32 s47, s47, s43
    s_lshl_b32 s43, s{sXCD}, 8
    s_lshl2_add_u32 s47, s47, s43
    s_add_u32 s47, s47, {SEN2}
    v_mul_f32 v44, -v40, v{D}
    v_mul_f32 v45, -v40, v{D+1}
    v_mul_f32 v46, -v40, v{D+2}
    v_mul_f32 v47, -v40, v{D+3}
    v_mul_f32 v42, {f2u(-1.4426950408889634)}, v41
    v_mul_f32 v43, v41, v41
    s_barrier
    """)
    for w in range(5): P(f"ds_read_b64 {v(D+4*w,2)}, v13 offset:{L_RED+1024*w}")
    for w in range(5): P(f"ds_read_b64 {v(D+4*w+2,2)}, v13 offset:{L_RED+1024*w+512}")
    P(f"""
    s_waitcnt lgkmcnt(7)
    v_pk_add_f32 {v(44,2)}, {v(44,2)}, {v(D,2)}
    v_pk_add_f32 {v(D+4,2)}, {v(D+4,2)}, {v(D+8,2)}
    s_waitcnt lgkmcnt(5)
    v_pk_add_f32 {v(D+12,2)}, {v(D+12,2)}, {v(D+16,2)}
    v_pk_add_f32 {v(44,2)}, {v(44,2)}, {v(D+4,2)}
    v_pk_add_f32 {v(44,2)}, {v(44,2)}, {v(D+12,2)}
    v_mul_f32 v{D}, v42, v44
    v_mul_f32 v{D+1}, v42, v45
    v_exp_f32 v{D}, v{D}
    v_exp_f32 v{D+1}, v{D+1}
    s_waitcnt lgkmcnt(0)
    v_pk_add_f32 {v(46,2)}, {v(46,2)}, {v(D+2,2)}
    v_pk_add_f32 {v(D+6,2)}, {v(D+6,2)}, {v(D+10,2)}
    v_add_f32 v{D}, 1.0, v{D}
    v_add_f32 v{D+1}, 1.0, v{D+1}
    v_pk_add_f32 {v(D+14,2)}, {v(D+14,2)}, {v(D+18,2)}
    v_rcp_f32 v{D}, v{D}
    v_rcp_f32 v{D+1}, v{D+1}
    v_pk_add_f32 {v(46,2)}, {v(46,2)}, {v(D+6,2)}
    v_mul_f32 v44, v44, v43
    v_mul_f32 v45, v45, v43
    v_pk_add_f32 {v(46,2)}, {v(46,2)}, {v(D+14,2)}
    v_pk_mul_f32 {v(44,2)}, {v(44,2)}, {v(D,2)}
    v_pk_mul_f32 {v(44,2)}, {v(44,2)}, {v(46,2)}
    v_cvt_pk_bf16_f32 v44, v44, v45
    v_min_u32 v44, -2, v44
    {"buffer_store_dword v14, v12, s[8:11], s47 offen" if OPT.get("h2pos", 1) == 2 else ""}
    buffer_store_dword v44, v{vL4}, s[8:11], s49 offen sc1
    s_mov_b64 exec, 1
    {"buffer_store_dword v14, v12, s[8:11], s47 offen" if OPT.get("h2pos", 1) == 1 else ""}
    {FIN}
    """)
    flush_late(P)
    P(f"""
    L_pad3:
    s_branch L_pad4
    """)
    P(f"""
    L_f2:
    s_cmp_eq_u32 s{sWV}, 7
    s_cbranch_scc1 L_f2fin
    s_lshl_b32 s49, s{sWV}, 12
    s_add_u32 s49, s49, {ACT}
    """)
    for blk in range(4):
        for ct in range(2):
            for j in range(4):
                P(f"ds_read_b64_tr_b16 {v(BW+16*blk+8*ct+2*j,2)}, v15 offset:{L_WT + 4096*blk + 32*ct + 64*(32*(j>>1) + 2*(j&1))}")
    for i in range(4): P(f"v_mov_b32 v{AR+12+i}, 0")
    P("s_waitcnt lgkmcnt(0)")
    P("s_barrier")
    stamp(P, 10)
    P("L_a2:")
    for i in range(3):
        P(f"buffer_load_dwordx4 {v(AR+4*i,4)}, v{vL16}, s[8:11], s49 offen offset:{1024*i} sc1")
    P(f"""
    s_cmp_eq_u32 s{sWV}, 6
    s_cbranch_scc1 L_a3
    buffer_load_dwordx4 {v(AR+12,4)}, v{vL16}, s[8:11], s49 offen offset:3072 sc1
    L_a3:
    v_mov_b32 v10, 0
    """)
    for i in range(8): P(f"v_mov_b32 v{A0+i}, 0")
    for b in range(4):
        if b < 3: P(f"s_waitcnt vmcnt({2-b})")
        for ct in range(2):
            P(f"v_smfmac_f32_16x16x64_bf16 {v(A0+4*ct,4)}, {v(AR+4*b,4)}, {v(BW+16*b+8*ct,8)}, v144")
            P(f"v_max3_u32 v10, v10, v{AR+4*b+2*ct}, v{AR+4*b+2*ct+1}")
    P(f"v_cmp_eq_u32 vcc, -1, v10")
    spin_tail(P, 50, "L_a2", "L_a4")
    stamp(P, 11)
    if OPT["stamps"]: P("s_add_u32 s94, s50, 1")
    P(f"""
    v_add_f32 v{A0}, v{A0}, v{A0+1}
    v_add_f32 v{A0+2}, v{A0+2}, v{A0+3}
    ds_write2_b32 v149, v{A0}, v{A0+2} offset0:0 offset1:32
    v_add_f32 v{A0+4}, v{A0+4}, v{A0+5}
    v_add_f32 v{A0+6}, v{A0+6}, v{A0+7}
    ds_write2_b32 v149, v{A0+4}, v{A0+6} offset0:16 offset1:48
    s_waitcnt lgkmcnt(0)
    s_barrier
    {FIN}
    """)
    flush_late(P)
    P(f"""
    L_pad4:
    s_branch L_tk1
    L_f2fin:
    v_and_b32 v13, 7, v{vL}
    s_waitcnt lgkmcnt(0)
    v_and_b32 v46, 2047, v150
    v_mul_u32_u24 v46, 1280, v46
    v_lshl_add_u32 v46, v13, 3, v46
    L_oretry:
    buffer_load_dwordx2 {v(44,2)}, v46, s[12:15], s58 offen sc1
    s_waitcnt vmcnt(0)
    v_max_u32 v10, v44, v45
    v_cmp_eq_u32 vcc, -1, v10
    """)
    spin_tail(P, 50, "L_oretry", "L_ook")
    P(f"""
    s_lshl_b32 s49, s{sXCD}, 8
    s_add_u32 s49, s49, {SEN2}
    s_mov_b32 s50, 0
    s_mov_b64 exec, 0xfff
    L_h2:
    buffer_load_dword v10, v{vL4}, s[8:11], s49 offen sc1
    s_add_u32 s50, s50, 1
    s_cmp_gt_u32 s50, {HINTMAX}
    s_waitcnt vmcnt(0)
    v_cmp_ne_u32 vcc, v14, v10
    s_cbranch_scc1 L_h2_d
    s_cbranch_vccnz L_h2
    L_h2_d:
    s_mov_b64 exec, -1
    s_barrier
    """)
    O = 48
    P(f"""
    v_lshlrev_b32 v9, 1, v150
    v_ashrrev_i32 v10, 31, v9
    v_not_b32 v10, v10
    v_or_b32 v10, 0x80000000, v10
    v_xor_b32 v9, v9, v10
    v_and_b32 v9, 0xffff0000, v9
    v_mul_f32 v9, {f2u(-1.4426950408889634)}, v9
    v_exp_f32 v9, v9
    v_add_f32 v9, 1.0, v9
    v_rcp_f32 v47, v9
    v_lshlrev_b32 v{O}, 16, v44
    v_and_b32 v{O+1}, 0xffff0000, v44
    v_lshlrev_b32 v{O+2}, 16, v45
    v_and_b32 v{O+3}, 0xffff0000, v45
    s_barrier
    """)
    for w in range(7): P(f"ds_read_b128 {v(D+4*w,4)}, v{vL16} offset:{L_RED+1024*w}")
    def pk2(d, x):
        P(f"v_pk_add_f32 {v(d,2)}, {v(d,2)}, {v(x,2)}"); P(f"v_pk_add_f32 {v(d+2,2)}, {v(d+2,2)}, {v(x+2,2)}")
    P("s_waitcnt lgkmcnt(5)"); pk2(D, D+4)
    P("s_waitcnt lgkmcnt(3)"); pk2(D+8, D+12)
    P("s_waitcnt lgkmcnt(1)"); pk2(D+16, D+20); pk2(D, D+8)
    P("s_waitcnt lgkmcnt(0)"); pk2(D+16, D+24); pk2(D, D+16)
    for i in range(4): P(f"v_fma_f32 v{O+i}, v{D+i}, v47, v{O+i}")
    P(f"""
    v_cvt_pk_bf16_f32 v44, v{O}, v{O+1}
    v_cvt_pk_bf16_f32 v45, v{O+2}, v{O+3}
    buffer_store_dwordx2 {v(44,2)}, v46, s[12:15], s58 offen{" sc1" if OPT.get("fsc1", 0) else ""}
    L_fin:
    """)
    if OPT.get("padto"):
        if OPT.get("padwg") is not None:
            P(f"s_cmp_lg_u32 s2, {OPT['padwg']}")
            P("s_cbranch_scc1 L_fin2")
        if OPT.get("padrole") == 1:
            P(f"s_cmp_ge_u32 s{sIDX}, 108"); P("s_cbranch_scc1 L_fin2")
        if OPT.get("padrole") == 2:
            P(f"s_cmp_lt_u32 s{sIDX}, 108"); P("s_cbranch_scc1 L_fin2")
        if OPT.get("padfrom") == 999: P("s_memrealtime s[70:71]")
        P(f"""
        L_padt:
        s_memrealtime s[72:73]
        s_waitcnt lgkmcnt(0)
        s_sub_u32 s72, s72, s70
        s_cmp_lt_u32 s72, {OPT["padto"]}
        s_cbranch_scc1 L_padt
        """)
    P("L_fin2:")
    if OPT["stamps"]:
        P(f"""
        s_memrealtime s[{70+2*NST}:{71+2*NST}]
        s_waitcnt vmcnt(0)
        s_memrealtime s[{72+2*NST}:{73+2*NST}]
        s_waitcnt lgkmcnt(0)
        s_lshl_b32 s49, s2, 6
        s_lshl_b32 s50, s{sWV}, 14
        s_add_u32 s49, s49, s50
        s_add_u32 s49, s49, {ST_OFF}
        s_mov_b64 exec, 1
        v_mov_b32 v1, 0
        """)
        for i in range(NST+2):
            P(f"v_mov_b32 v2, s{70+2*i}")
            P(f"buffer_store_dword v2, v1, s[8:11], s49 offen offset:{4*i}")
    P("L_end:")
    P("s_endpgm")
    flush_late(P)
    for l_ in IDLE: P.raw(l_)
    P("L_last:")
    P("s_endpgm")
    return name

def main(out):
    P = Prog()
    name = gen(P)
    body = P.finalize()
    hdr = f"""; fused 2D-DFT (two-stage MFMA) + LayerNorms + top-8 routed SwiGLU; written by a generator script of mine
; @launch grid=(256,1,1) block=(512,1,1) lds={L_END}
.amdgcn_target "amdgcn-amd-amdhsa--gfx950"
.text
"""
    d = f""".section .rodata,"a"
.p2align 6
.amdhsa_kernel {name}
  .amdhsa_next_free_vgpr 256
  .amdhsa_next_free_sgpr 102
  .amdhsa_accum_offset 256
  .amdhsa_group_segment_fixed_size 0
  .amdhsa_kernarg_size 104
  .amdhsa_user_sgpr_count 2
  .amdhsa_user_sgpr_kernarg_segment_ptr 1
  .amdhsa_system_sgpr_workgroup_id_x 1
.end_amdhsa_kernel
"""
    open(out, "w").write(hdr + body + d)

if __name__ == "__main__":
    for a_ in sys.argv[2:]:
        k, _, val = a_.partition("=")
        OPT[k] = int(val) if val else True
    main(sys.argv[1])
```

```python
import sys, struct
sys.path.insert(0, "work")
from asmlib import *

NAME = "sequential_preLN__spectral_fnet__moe_arch_mod__prompt"
XB = 2621440
FLAGS = 0x2c0000
KEYS = 0x8000
KST = 384
ACT = 0x18000
ZM = 0x20000
ZT = ZM + 0x200000
STATS = 0x2a0000
SEN1 = 0x1000
SEN2 = 0x2000
HINTMAX = 48
ST_OFF = 0x300000
WS_SZ = 0x400000
OOB = 0x1000000
SPIN = 1 << 16

L_MISC = 0
L_CNT = 0; L_TAG = 4; L_ZP = 16; L_SEL = 32; L_KREC = 64; L_GM = 128; L_LIST = 192
L_PS = 512
L_CS = 1024
L_RED = 2048
L_HT = 2048; HS = 128
L_CF = 13568
L_W = 17664
L_X = 43264
L_XR = 125184
XP = 1284
L_WR = 145920
L_PART = 17664
L_WF = 24576
L_RM = 512
L_END = 147200
L_WT = 17664
RSB = 2576

sGRP, sJ, sWV, sSL, sXCD, sTB, sSTR, sROW, sROWB, sIDX, sRHO, sC640, sHW = 32, 33, 34, 36, 37, 38, 39, 40, 41, 35, 44, 45, 46
vN, vQ, vW, vL, vL4, vL16 = 1, 2, 3, 4, 6, 8
sTAG = 3; sZP = 100

OPT = dict(stamps=False, xnt=0, wnt=0, cpre=1, npre=5, tail=0, pf1=1)

def f2u(x): return "0x%08x" % struct.unpack("<I", struct.pack("<f", x))[0]
NST = 14
SEC = ["p1"]
def stamp(P, i):
    if OPT["stamps"]: P(f"s_memrealtime s[{70+2*i}:{71+2*i}]")
    if OPT.get("padfrom") == {"p1": 0, "m": 100, "p2": 200, "ffn": 300}[SEC[0]] + i and i: P("s_memrealtime s[70:71]")

def bf16_round(r):
    return [f"v_cvt_pk_bf16_f32 {v(r)}, {v(r)}, {v(r)}", f"v_lshlrev_b32 {v(r)}, 16, {v(r)}"]

def spin_tail(P, cnt, again, ok):
    P(f"""
    s_cbranch_vccnz {ok}_r
    {ok}:
    """)
    LATE.append(f"""
    {ok}_r:
    s_add_u32 s{cnt}, s{cnt}, 1
    s_cmp_gt_u32 s{cnt}, {SPIN}
    s_cbranch_scc1 {ok}
    s_branch {again}
    """)
LATE = []
def flush_late(P):
    for t in LATE: P(t)
    del LATE[:]

def cheb2(P, T, k):
    for i in range(2, 8):
        P(f"v_fma_f32 v{T+i}, v{k}, v{T+i-1}, -v{T+i-2}")
        P(f"v_fma_f32 v{T+8+i}, v{k}, v{T+8+i-1}, -v{T+8+i-2}")

def gen(P):
    global KST
    KST = OPT.get("kst", 64)
    name = NAME + "_kernel"
    xnt = " nt" if OPT["xnt"] else ""
    wnt = " nt" if OPT["wnt"] else ""
    P.raw(".p2align 12"); P.raw(".fill 0x340, 4, 0xbf810000")
    P.raw(f".globl {name}"); P.raw(".p2align 8"); P.raw(f".type {name},@function"); P.raw(f"{name}:")
    P("L_start:")
    stamp(P, 0)
    if OPT.get("padto"): P("s_memrealtime s[70:71]")
    def ptrs():
        P(f"""
        s_load_dwordx2 s[12:13], s[0:1], 80
        s_load_dwordx2 s[16:17], s[0:1], 48
        s_load_dwordx2 s[20:21], s[0:1], 56
        s_load_dwordx2 s[24:25], s[0:1], 64
        s_load_dwordx2 s[28:29], s[0:1], 72
        """)
    ZP = [66, 67, 42, 68]
    FIN = "s_branch L_fin" if (OPT["stamps"] or OPT.get("padto")) else "s_endpgm"
    MK = 24
    def tagcalc():
        P(f"""
        s_mul_i32 s{sTAG}, s{sTAG}, 0x9e3779b1
        s_add_u32 s{sTAG}, s{sTAG}, 0x7f4a7c15
        v_mov_b32 v14, s{sTAG}
        """)
        for i in range(3):
            P(f"s_bfe_u32 s43, s{sTAG}, {hex((2<<16) | (2*i))}")
            P(f"s_mul_i32 s43, s43, 0x8001")
            P(f"s_and_b32 s{ZP[i]}, s43, 0x10001")
        P(f"s_xor_b32 s68, s66, 0x10001")
    def consts():
        P(f"""
        s_mov_b64 s[12:13], s[26:27]
        s_mov_b64 s[16:17], s[18:19]
        s_mov_b64 s[28:29], s[24:25]
        s_mov_b64 s[24:25], s[22:23]
        s_mov_b32 s14, {XB}
        s_mov_b32 s15, 0x20000
        s_mov_b32 s18, 1280
        s_mov_b32 s19, 0x20000
        s_mov_b32 s22, {640*3456}
        s_mov_b32 s23, 0x20000
        s_mov_b32 s26, {640*3456}
        s_mov_b32 s27, 0x20000
        s_mov_b32 s30, {1728*1280}
        s_mov_b32 s31, 0x20000
        v_lshlrev_b32 v{vL4}, 2, v{vL}
        v_mov_b32 v13, 0
        s_and_b32 s43, s{sJ}, 3
        s_lshr_b32 s{sIDX}, s2, 6
        s_lshl3_add_u32 s{sIDX}, s{sIDX}, s{sXCD}
        s_lshl2_add_u32 s{sIDX}, s{sIDX}, s43
        s_cmp_eq_u32 s{sGRP}, 0
        s_cselect_b32 s{sSTR}, 32, 64
        s_lshl_b32 s{sTB}, s{sSTR}, 3
        s_mul_i32 s{sTB}, s{sTB}, s43
        s_add_u32 s{sTB}, s{sTB}, s{sGRP}
        """)
    def rows4(dst=92):
        for pr in range(2):
            sa, sb = 56 + 2*pr, 57 + 2*pr
            P(f"""
            s_add_u32 s{sa}, s{sHW}, {4*pr}
            s_mul_i32 s{sa}, s{sa}, s{sSTR}
            s_add_u32 s{sa}, s{sa}, s{sTB}
            s_sub_u32 s{sb}, 2048, s{sa}
            s_cmp_eq_u32 s{sa}, 0
            s_cselect_b32 s{sb}, 1024, s{sb}
            s_mul_i32 s{sa}, s{sa}, 1280
            s_mul_i32 s{sb}, s{sb}, 1280
            """)
        P(f"""
        v_mov_b32 v10, s56
        v_mov_b32 v9, s57
        v_mov_b32 v11, s58
        v_mov_b32 v12, s59
        v_mov_b32_dpp v10, v9 quad_perm:[0,1,2,3] row_mask:0x2 bank_mask:0xf
        s_movk_i32 s62, 1024
        v_mov_b32_dpp v10, v11 quad_perm:[0,1,2,3] row_mask:0x4 bank_mask:0xf
        v_mov_b32_dpp v10, v12 quad_perm:[0,1,2,3] row_mask:0x8 bank_mask:0xf
        v_lshl_add_u32 v{dst}, v{vN}, 4, v10
        """)
    P(f"""
    s_load_dwordx2 s[4:5], s[0:1], 0
    s_load_dwordx2 s[8:9], s[0:1], 96
    s_load_dwordx16 s[16:31], s[0:1], 40
    s_mov_b32 s10, {WS_SZ}
    s_mov_b32 s11, 0x20000
    v_lshrrev_b32 v{vW}, 6, v0
    s_cmp_ge_u32 s2, 256
    s_cbranch_scc1 L_end
    v_readfirstlane_b32 s{sWV}, v{vW}
    s_bfe_u32 s{sJ}, s2, 0x30003
    v_and_b32 v{vL}, 63, v0
    v_and_b32 v{vN}, 15, v0
    v_bfe_u32 v{vQ}, v0, 4, 2
    s_and_b32 s{sXCD}, s2, 7
    s_lshr_b32 s43, s2, 7
    s_lshl1_add_u32 s{sGRP}, s{sXCD}, s43
    s_sub_u32 s43, 32, s{sGRP}
    s_cmp_eq_u32 s{sGRP}, 0
    s_cselect_b32 s43, 16, s43
    s_bitcmp1_b32 s2, 6
    s_cselect_b32 s{sGRP}, s43, s{sGRP}
    s_mul_i32 s{sRHO}, s{sJ}, 5
    s_lshr_b32 s{sRHO}, s{sRHO}, 2
    s_and_b32 s{sHW}, s{sWV}, 3
    s_mov_b32 s{sC640}, {f2u(1.0/640)}
    v_lshlrev_b32 v{vL16}, 4, v{vL}
    s_cmp_ge_u32 s{sWV}, 4
    s_cbranch_scc1 L_W
    """)
    if OPT["cpre"]:
        P(f"""
        s_cmp_ge_u32 s{sWV}, 3
        s_cbranch_scc1 L_Mx
        s_cmp_ge_u32 s2, {OPT.get("cprewg", 32)}
        s_cbranch_scc1 L_Mx
        s_getpc_b64 s[42:43]
        L_pc:
        v_lshlrev_b32 v10, 7, v0
        v_add_u32 v10, 896, v10
        v_min_u32 v10, L_last-L_pc, v10
        v_mov_b32 v11, s43
        v_add_co_u32 v10, vcc, s42, v10
        v_addc_co_u32 v11, vcc, 0, v11, vcc
        global_load_dword v15, v[10:11], off
        """)
    P(f"""
    L_Mx:
    v_lshrrev_b32 v9, 3, v{vL}
    s_lshl_b32 s47, s{sHW}, 4
    v_add_u32 v5, s47, v9
    v_mul_u32_u24 v5, 40960, v5
    v_lshrrev_b32 v7, 2, v9
    v_and_or_b32 v9, v9, 6, v7
    v_xor_b32 v9, v9, v{vL}
    v_and_b32 v9, 7, v9
    v_lshl_add_u32 v5, v9, 4, v5
    v_xor_b32 v7, 16, v5
    v_add_u32 v7, {8*40960}, v7
    s_mul_i32 s50, s{sGRP}, 1280
    s_add_u32 s47, s50, 1280
    s_lshr_b32 s52, s{sWV}, 2
    s_mul_i32 s52, s52, 5
    s_add_u32 s48, s{sRHO}, s52
    s_cmp_ge_u32 s48, 10
    s_cselect_b32 s49, 10, 0
    s_sub_u32 s48, s48, s49
    s_lshl_b32 s48, s48, 7
    s_add_u32 s48, s48, s50
    s_mul_i32 s49, s{sHW}, 20480
    s_add_u32 s49, s49, {L_X}
    s_lshl_b32 s52, s52, 11
    s_add_u32 m0, s49, s52
    s_mov_b32 s6, {XB}
    s_mov_b32 s7, 0x20000
    s_mov_b32 s52, 5
    s_waitcnt lgkmcnt(0)
    """)
    stamp(P, 1)
    P(f"""
    s_cmp_lt_u32 s{sWV}, 4
    s_cbranch_scc1 L_xl
    s_load_dword s{sTAG}, s[8:9], 0
    s_barrier
    s_branch L_H1
    L_xl:
    buffer_load_dwordx4 v5, s[4:7], s48 offen{xnt} lds
    s_add_u32 m0, m0, 1024
    s_add_u32 s51, s48, 128
    buffer_load_dwordx4 v7, s[4:7], s48 offen{xnt} lds
    s_add_u32 m0, m0, 1024
    s_cmp_eq_u32 s51, s47
    s_cselect_b32 s48, s50, s51
    s_sub_u32 s52, s52, 1
    s_cmp_lg_u32 s52, 0
    s_cbranch_scc1 L_xl
    s_cmp_ge_u32 s{sWV}, 4
    s_cbranch_scc1 L_H2
    s_barrier
    s_branch L_M
    """)
    def wrow(dst, fill=None):
        T = 32; K8 = 76; a_, b_, c_, d_ = 78, 79, 80, 81
        P(f"""
        s_cmp_eq_u32 s{sJ}, 0
        s_cselect_b32 s53, 8, s{sJ}
        s_lshl_b32 s54, s{sRHO}, 6
        """)
        if dst is None: P(f"s_lshl_b32 s55, s{sHW}, 6"); P("s_add_u32 s53, s53, s55")
        else: P("s_add_u32 s53, s53, 256")
        P(f"""
        v_and_b32 v{a_}, 7, v{vN}
        v_lshl_add_u32 v{a_}, v{a_}, 3, s53
        v_lshrrev_b32 v{c_}, 3, v{vN}
        v_lshl_add_u32 v{b_}, v{vQ}, 1, s54
        v_cvt_f32_u32 v{c_}, v{c_}
        v_mul_u32_u24 v{b_}, v{a_}, v{b_}
        v_mul_f32 v{c_}, {f2u(-0.25)}, v{c_}
        v_cvt_f32_u32 v{a_}, v{a_}
        v_cvt_f32_u32 v{b_}, v{b_}
        v_mul_f32 v{a_}, s{sC640}, v{a_}
        v_fma_f32 v{b_}, v{b_}, s{sC640}, v{c_}
        v_mul_f32 v{K8}, {f2u(8.0)}, v{a_}
        v_fract_f32 v{T}, v{b_}
        v_add_f32 v{T+2}, v{T}, v{a_}
        v_add_f32 v{T+4}, v{T}, v{K8}
        v_add_f32 v{T+6}, v{T+2}, v{K8}
        v_cos_f32 v{K8}, v{K8}
        """)
        for i in range(4):
            P(f"v_sin_f32 v{T+2*i+1}, -v{T+2*i}")
            P(f"v_cos_f32 v{T+2*i}, v{T+2*i}")
        P(f"v_add_f32 v{K8}, v{K8}, v{K8}")
        if dst is None: P(f"s_mul_i32 s55, s{sHW}, 5120"); P(f"v_add_u32 v{d_}, s55, v{vL16}")
        P(f"v_mov_b32 v{K8+1}, v{K8}")
        for kp in range(5):
            if kp:
                for c in (2*kp, 2*kp+1):
                    for i in range(2):
                        P(f"v_pk_fma_f32 {v(T+4*c+2*i,2)}, {v(K8,2)}, {v(T+4*c-4+2*i,2)}, {v(T+4*c-8+2*i,2)} neg_lo:[0,0,1] neg_hi:[0,0,1]")
            pk = 84 + 4*(kp & 1) if dst is None else dst + 4*kp
            for i in range(4): P(f"v_cvt_pk_bf16_f32 v{pk+i}, v{T+8*kp+2*i}, v{T+8*kp+2*i+1}")
            if fill:
                for _ in range(2): P(fill.pop(0))
            if dst is None: P(f"ds_write_b128 v{d_}, {v(pk,4)} offset:{L_W + 1024*kp}")
    P("L_W:")
    wrow(None)
    PZ = 152; T = 64; F = 80
    P(f"""
    s_branch L_Mx
    L_H1:
    """)
    consts()
    P(f"""
    v_mov_b32 v{PZ}, -1
    v_mov_b32 v{PZ+1}, -1
    v_mov_b32 v{PZ+2}, -1
    v_mov_b32 v{PZ+3}, -1
    v_mul_u32_u24 v150, 3456, v{vL}
    v_mul_u32_u24 v151, 1280, v{vL}
    s_cmp_ge_u32 s{sJ}, 4
    s_cbranch_scc1 L_hs1
    """)
    rows4(107)
    P(f"""
    s_mul_i32 s53, s{sHW}, {XP}
    s_mul_i32 s54, s{sHW}, 320
    s_branch L_xl
    """)
    P(f"""
    L_hs1:
    v_mov_b32 v107, 0
    s_and_b32 s63, s{sJ}, 3
    s_lshl2_add_u32 s63, s63, s{sHW}
    s_mul_i32 s64, s63, {40*3456}
    s_lshr_b32 s43, s{sIDX}, 2
    s_lshl_b32 s43, s43, 7
    s_add_u32 s64, s64, s43
    s_and_b32 s63, s63, 7
    s_mul_i32 s65, s63, {54*1280}
    s_sub_u32 s43, s{sIDX}, 108
    s_lshr_b32 s43, s43, 1
    s_lshl_b32 s43, s43, 7
    s_add_u32 s65, s65, s43
    s_lshl2_add_u32 s63, s{sIDX}, s{sHW}
    s_lshl_b32 s63, s63, 6
    s_add_u32 s63, s63, {ACT}
    s_branch L_xl
    L_H2:
    """)
    stamp(P, 2)
    P(f"""
    s_barrier
    s_cmp_ge_u32 s{sJ}, 4
    s_cbranch_scc1 L_hc1
    """)
    for i in range(4):
        P(f"s_add_u32 m0, s53, {L_XR + XP*[0, 8, 4, 12][i]}")
        P(f"buffer_load_dwordx4 v{vL16}, s[4:7], s{56+i} offen lds")
    P("s_mov_b64 exec, 0xffff")
    for i in range(4):
        P(f"s_add_u32 m0, s53, {L_XR + XP*[0, 8, 4, 12][i]}")
        P(f"buffer_load_dwordx4 v{vL16}, s[4:7], s{56+i} offen offset:1024 lds")
    P(f"""
    s_add_u32 m0, s54, {L_WR}
    s_mov_b64 exec, 0xfffff
    buffer_load_dwordx4 v{vL16}, s[16:19], s54 offen lds
    s_mov_b64 exec, -1
    """)
    NPB = OPT.get("npb", 0)
    pzs = [f"buffer_store_dwordx4 {v(PZ,4)}, v{vL16}, s[12:15], s{56+i} offen sc1" for i in range(4)] + [f"buffer_store_dwordx4 {v(PZ,4)}, v107, s[12:15], s62 offen sc1"]
    for o in pzs[:NPB]: P(o)
    P(f"""
    s_waitcnt vmcnt({9+NPB})
    s_barrier
    """)
    for o in pzs[NPB:]: P(o)
    P(f"""
    s_branch L_hs4
    L_hc1:
    s_cmp_ge_u32 s{sIDX}, 108
    s_cbranch_scc1 L_hs2
    s_mov_b64 exec, 15
    buffer_store_dwordx4 {v(PZ,4)}, v{vL16}, s[8:11], s63 offen sc1
    s_mov_b32 exec_lo, -1
    s_mov_b32 exec_hi, 0xff
    buffer_load_dword v253, v150, s[20:23], s64 offen{wnt}
    buffer_load_dword v253, v150, s[24:27], s64 offen{wnt}
    s_lshr_b32 s65, s2, 6
    s_and_b32 s43, s{sJ}, 3
    s_lshl2_add_u32 s65, s65, s43
    s_lshr_b32 s43, s{sHW}, 1
    s_lshl1_add_u32 s65, s65, s43
    s_mul_i32 s65, s65, {36*1280}
    s_and_b32 s43, s{sHW}, 1
    s_lshl1_add_u32 s43, s{sXCD}, s43
    s_lshl_b32 s43, s43, 7
    s_add_u32 s65, s65, s43
    s_add_u32 s65, s65, {864*1280 - 768}
    s_cmp_lt_u32 s{sXCD}, 3
    s_cselect_b32 s65, {OOB}, s65
    s_mov_b32 s64, 0xf
    s_waitcnt vmcnt(3)
    s_branch L_hs3
    L_hs2:
    s_mov_b32 exec_hi, 0x3fffff
    buffer_load_dword v253, v151, s[28:31], s65 offen{wnt}
    s_add_u32 s65, s65, {432*1280}
    s_mov_b32 s64, 0x3fffff
    s_waitcnt vmcnt(1)
    L_hs3:
    s_barrier
    L_hs4:
    s_mov_b64 exec, -1
    s_waitcnt lgkmcnt(0)
    """)
    stamp(P, 3)
    tagcalc()
    P(f"""
    v_mov_b32 v48, s{ZP[0]}
    v_mov_b32 v49, s{ZP[1]}
    v_mov_b32 v50, s{ZP[2]}
    v_mov_b32 v51, s{ZP[3]}
    ds_write_b128 v13, v[48:51] offset:{L_ZP}
    ds_write2_b32 v13, v13, v14 offset0:0 offset1:1
    ds_write_b32 v{vL4}, v{PZ} offset:{L_LIST}
    """)
    P(f"""
    s_cmp_ge_u32 s{sJ}, 4
    s_cbranch_scc1 L_hf
    s_waitcnt vmcnt(5) lgkmcnt(0)
    """)
    stamp(P, 4)
    P("s_barrier")
    T = 32
    P(f"""
    v_and_b32 v10, 7, v{vN}
    v_mul_u32_u24 v10, s{sSTR}, v10
    v_add_u32 v10, s{sTB}, v10
    v_sub_u32 v11, 2048, v10
    v_mov_b32 v12, 1024
    v_cmp_eq_u32 vcc, 0, v10
    v_cndmask_b32 v11, v11, v12, vcc
    v_cmp_lt_u32 vcc, 7, v{vN}
    v_cndmask_b32 v10, v10, v11, vcc
    v_and_b32 v11, 63, v10
    v_bfrev_b32 v12, 1
    v_cmp_gt_u32 vcc, 32, v11
    v_cndmask_b32 v12, 0, v12, vcc
    v_lshrrev_b32 v9, 1, v11
    s_lshl_b32 s49, s{sHW}, 3
    """)
    for h in range(2):
        P(f"""
        v_add_u32 v11, s49, v{vQ}
        v_mul_u32_u24 v11, v11, v10
        v_cvt_f32_u32 v11, v11
        v_mul_f32 v11, {f2u(1.0/2048)}, v11
        v_cos_f32 v{T+4}, v11
        v_sin_f32 v{T+5}, v11
        s_add_u32 s49, s49, 4
        v_cvt_pk_f16_f32 v{T+2*h}, v{T+4}, v{T+5}
        v_cvt_pk_f16_f32 v{T+2*h+1}, -v{T+5}, v{T+4}
        v_xor_b32 v{T+2*h}, v12, v{T+2*h}
        v_xor_b32 v{T+2*h+1}, v12, v{T+2*h+1}
        """)
    P(f"""
    s_cmp_lg_u32 s{sGRP}, 0
    s_cbranch_scc1 L_nofix
    """)
    for i in range(4):
        P(f"v_and_b32 v{T+i}, 0xffff, v{T+i}")
        P(f"v_lshlrev_b32 v{T+i}, v9, v{T+i}")
    P(f"""
    L_nofix:
    s_lshl_b32 s49, s{sHW}, 10
    v_add_u32 v11, s49, v{vL16}
    ds_write_b128 v11, {v(T,4)} offset:{L_CF}
    """)

    P(f"""
    s_branch L_prep
    L_hf:
    s_waitcnt lgkmcnt(0)
    """)
    stamp(P, 4)
    P(f"""
    s_barrier
    s_waitcnt vmcnt(2)
    s_barrier
    s_mov_b32 exec_hi, s64
    buffer_load_dword v253, v151, s[28:31], s65 offen{wnt}
    s_mov_b64 exec, -1
    s_branch L_noflag
    """)

    P.raw(".p2align 12")
    WR_ = 156; XL = 16; U = 56; AD = 96; C1 = 108; F = 116; G = 124; S = 128; ON = 132; IX = 136
    ACC = 16; RHO = 138; ZV = 150; PK = 36
    SEC[0] = "m"
    P("L_M:")
    stamp(P, 2)
    wq = [f"ds_read_b128 {v(WR_+4*f,4)}, v{vL16} offset:{L_W + 1024*f}" for f in range(20)]
    for o in wq: P(o)
    wrow(WR_ + 80)
    P(f"""
    v_mul_u32_u24 v9, 10, v{vQ}
    v_lshrrev_b32 v10, 1, v{vN}
    v_xor_b32 v10, v10, v{vN}
    v_bfe_u32 v10, v10, 2, 1
    v_and_or_b32 v10, v{vN}, 6, v10
    v_lshl_add_u32 v11, v{vN}, 7, s49
    """)
    for c in range(0, 10, 2):
        P(f"""
        v_xor_b32 v12, v9, v10
        v_and_b32 v{AD+c}, 7, v12
        v_lshrrev_b32 v12, 3, v12
        v_lshl_add_u32 v{AD+c}, v{AD+c}, 4, v11
        v_lshl_add_u32 v{AD+c}, v12, 11, v{AD+c}
        v_xor_b32 v{AD+c+1}, 16, v{AD+c}
        """)
        if c < 8: P("v_add_u32 v9, 2, v9")
    P(f"""
    v_mov_b32 v{ON}, 0x3f803f80
    v_mov_b32 v{ON+1}, 0x3f803f80
    v_mov_b32 v{ON+2}, 0x3f803f80
    v_mov_b32 v{ON+3}, 0x3f803f80
    v_and_b32 v9, 1, v{vN}
    v_mul_u32_u24 v{IX}, 0xaaaa, v9
    v_or_b32 v{IX}, 0x4444, v{IX}
    s_mov_b32 s60, 0x22222222
    s_mov_b32 s61, s60
    s_lshl_b64 s[62:63], s[60:61], 1
    s_lshl_b64 s[64:65], s[60:61], 2
    """)
    P(f"""
    v_mul_u32_u24 v9, s{sJ}, v{vQ}
    v_and_b32 v10, 1, v{vN}
    v_lshlrev_b32 v10, 1, v10
    v_sub_u32 v9, v9, v10
    v_cvt_f32_i32 v9, v9
    v_mul_f32 v9, {f2u(0.125)}, v9
    v_cos_f32 v9, v9
    v_and_b32 v10, 2, v{vN}
    v_lshlrev_b32 v10, 3, v10
    v_cvt_pk_bf16_f32 v9, v9, 0
    v_lshlrev_b32 v9, v10, v9
    v_lshrrev_b32 v10, 2, v{vN}
    s_and_b32 s43, s{sJ}, 1
    s_mul_i32 s43, s43, 0x80008000
    """)
    for i in range(4):
        P(f"v_cmp_eq_u32 vcc, {i}, v10")
        P(f"v_cndmask_b32 v{C1+i}, 0, v9, vcc")
        P(f"v_xor_b32 v{C1+4+i}, s43, v{C1+i}")
    P_ = P
    P = Prog(); T = 138
    P(f"""
    v_lshrrev_b32 v9, 1, v{vN}
    v_lshl_add_u32 v9, s{sHW}, 3, v9
    v_and_b32 v11, 1, v{vN}
    v_lshl_add_u32 v10, v9, 1, v11
    v_cmp_eq_u32 vcc, 1, v10
    v_cndmask_b32 v9, v9, 32, vcc
    v_cndmask_b32 v11, v11, 0, vcc
    v_cvt_f32_u32 v9, v9
    v_cvt_f32_u32 v11, v11
    v_mul_f32 v9, {f2u(1.0/64)}, v9
    v_mul_f32 v11, {f2u(-0.25)}, v11
    v_lshlrev_b32 v10, 3, v{vQ}
    v_cvt_f32_u32 v10, v10
    v_cos_f32 v12, v9
    v_fma_f32 v{T}, v9, v10, v11
    v_add_f32 v10, {f2u(32.0)}, v10
    v_fma_f32 v{T+8}, v9, v10, v11
    v_add_f32 v{T+1}, v{T}, v9
    v_add_f32 v{T+9}, v{T+8}, v9
    v_cos_f32 v{T}, v{T}
    v_cos_f32 v{T+1}, v{T+1}
    v_cos_f32 v{T+8}, v{T+8}
    v_cos_f32 v{T+9}, v{T+9}
    v_add_f32 v12, v12, v12
    """)
    cheb2(P, T, 12)
    for i in range(8): P(f"v_cvt_pk_f16_f32 v{F+i}, v{T+2*i}, v{T+2*i+1}")
    FG = list(P.lines)
    P = Prog()
    P(f"""
    v_and_b32 v148, 7, v{vN}
    v_lshlrev_b32 v148, 4, v148
    v_lshl_add_u32 v148, v{vN}, 7, v148
    v_lshlrev_b32 v142, 5, v{vW}
    v_lshl_add_u32 v142, v{vQ}, 3, v142
    v_xor_b32 v142, v142, v148
    v_lshlrev_b32 v143, 4, v{vQ}
    v_xor_b32 v143, v143, v148
    v_xor_b32 v148, 64, v143
    v_lshlrev_b32 v144, 17, v{vQ}
    v_lshl_add_u32 v144, v{vN}, 4, v144
    v_lshlrev_b32 v145, 15, v{vQ}
    v_lshl_add_u32 v145, v{vN}, 2, v145
    s_mov_b32 s55, 0xfffefffe
    v_and_b32 v146, 3, v{vN}
    v_lshlrev_b32 v146, 2, v146
    v_mov_b32 v13, 0
    s_lshl_b32 s52, s{sHW}, 19
    s_lshl_b32 s43, s{sGRP}, 11
    s_add_u32 s52, s52, s43
    s_lshl_b32 s43, s{sJ}, 8
    s_add_u32 s52, s52, s43
    s_lshr_b32 s56, s52, 2
    s_add_u32 s52, s52, {ZM}
    s_add_u32 s53, s52, 65536
    s_add_u32 s56, s56, {ZT}
    s_add_u32 s57, s56, 16384
    """)
    AB_ = list(P.lines)
    P = P_
    P(f"""
    v_mov_b32 v{S}, 0
    v_mov_b32 v{S+1}, 0
    v_mov_b32 v{S+2}, 0
    v_mov_b32 v{S+3}, 0
    """)
    stamp(P, 13)
    P("s_waitcnt vmcnt(0)")
    stamp(P, 3)
    def half(hi, fills, extra):
        for c in range(10): P(f"ds_read_b128 {v(XL+4*c,4)}, v{AD+c}" + (" offset:10240" if hi else ""))
        if not hi: P("s_barrier")
        for k in range(5):
            x = XL + 8*k
            fl = fills(k)
            mm = [f"v_mfma_f32_16x16x32_bf16 {v(U+8*k,4)}, {v(C1+4*hi,4)}, {v(x,4)}, {v(U+8*k,4) if hi else '0'}",
                  f"v_mfma_f32_16x16x32_bf16 {v(G,4)}, {v(x,4)}, {v(x,4)}, {'0' if (k==0 and not hi) else v(G,4)}",
                  f"v_mfma_f32_16x16x32_bf16 {v(U+8*k+4,4)}, {v(C1+4*hi,4)}, {v(x+4,4)}, {v(U+8*k+4,4) if hi else '0'}",
                  f"v_mfma_f32_16x16x32_bf16 {v(G,4)}, {v(x+4,4)}, {v(x+4,4)}, {v(G,4)}",
                  f"v_smfmac_f32_16x16x64_bf16 {v(S,4)}, {v(ON,4)}, {v(x,8)}, v{IX}"]
            for i, m in enumerate(mm):
                if i in (0, 2): P(f"s_waitcnt lgkmcnt({9 - 2*k - i//2})")
                P(m)
                for _ in range(2):
                    if i >= 2 and fl: P(fl.pop(0))
                    elif extra: P(extra.pop(0))
        for o in extra: P(o)
    half(0, lambda k: [], FG)
    P(f"""
    s_cmp_lg_u32 s{sJ}, 0
    s_cbranch_scc1 L_nooff
    v_add_f32 v9, v{S}, v{S+1}
    v_mul_f32 v9, {f2u(-8.0/320)}, v9
    """)
    for i in range(20): P(f"v_add_f32 v{U+2*i}, v{U+2*i}, v9")
    P(f"""
    L_nooff:
    s_setprio 2
    s_barrier
    """)
    stamp(P, 12)
    def cvt(k): return [f"v_cvt_pk_bf16_f32 v{U+8*k+i}, v{U+8*k+2*i}, v{U+8*k+2*i+1}" for i in range(4)]
    half(1, lambda k: cvt(k-1) if k else [], AB_)
    chain = cvt(4) + [f"v_add_f32 v{S}, v{S}, v{S+1}",
             f"v_cndmask_b32 v{G}, v{G}, v{G+1}, s[60:61]",
             f"v_mul_f32 v{S}, s{sC640}, v{S}",
             f"v_cndmask_b32 v{G}, v{G}, v{G+2}, s[62:63]",
             f"v_mul_f32 v{S}, v{S}, v{S}",
             f"v_cndmask_b32 v{G}, v{G}, v{G+3}, s[64:65]",
             f"v_fma_f32 v{G}, v{G}, s{sC640}, -v{S}",
             f"v_max_f32 v{G}, 0, v{G}"] + bf16_round(G) + [f"v_add_f32 v{G}, {f2u(1e-5)}, v{G}"] + bf16_round(G) + \
            [f"v_sqrt_f32 v{G}, v{G}", None] + bf16_round(G) + [f"v_rcp_f32 v{G}, v{G}", None, None] + \
            [f"v_mov_b32_dpp v{RHO+r}, v{G} row_newbcast:{4*q+r} row_mask:{hex(1<<q)} bank_mask:0xf" for q in range(4) for r in range(4)]
    n = 0
    for kp in range(5):
        for t in range(5):
            P(f"v_mfma_f32_16x16x32_bf16 {v(ACC+4*t,4)}, {v(U+8*kp,4)}, {v(WR_+4*(5*t+kp),4)}, {'0' if kp==0 else v(ACC+4*t,4)}")
            n += 1
            if n >= 3:
                for _ in range(2):
                    if chain:
                        o = chain.pop(0)
                        if o: P(o)
    assert not chain
    stamp(P, 4)
    for t in range(5):
        P(f"v_pk_mul_f32 {v(ACC+4*t,2)}, {v(ACC+4*t,2)}, {v(RHO,2)}")
        P(f"v_pk_mul_f32 {v(ACC+4*t+2,2)}, {v(ACC+4*t+2,2)}, {v(RHO+2,2)}")
        P(f"v_cvt_pk_f16_f32 v{PK+2*t}, v{ACC+4*t}, v{ACC+4*t+1}")
        P(f"v_cvt_pk_f16_f32 v{PK+2*t+1}, v{ACC+4*t+2}, v{ACC+4*t+3}")
        P(f"ds_write_b64 v142, {v(PK+2*t,2)} offset:{L_HT + 16*t*HS}")
    P(f"""
    s_waitcnt lgkmcnt(0)
    s_barrier
    """)
    BF = 16; DC = 70; ZO = 92
    for t in range(5):
        for kk in range(2):
            P(f"ds_read_b128 {v(BF+8*t+4*kk,4)}, v{148 if kk else 143} offset:{L_HT + 16*t*HS}")
        if t == 2: P(f"ds_read_b128 {v(ZV,4)}, v13 offset:{L_ZP}")
    P(f"ds_read_b32 v147, v146 offset:{L_ZP}")
    P(f"ds_read_b32 v14, v13 offset:{L_TAG}")
    for t in range(5):
        c = DC + 4*t
        P(f"s_waitcnt lgkmcnt({[11, 9, 6, 4, 0][t]})")
        P(f"v_mfma_f32_16x16x32_f16 {v(c,4)}, {v(F,4)}, {v(BF+8*t,4)}, 0")
        P(f"v_mfma_f32_16x16x32_f16 {v(c,4)}, {v(F+4,4)}, {v(BF+8*t+4,4)}, {v(c,4)}")
        if t >= 2:
            for u in range(2):
                P(f"v_cvt_pk_f16_f32 v{ZO+4*u+t-2}, v{DC+4*(t-2)+2*u}, v{DC+4*(t-2)+2*u+1}")
                P(f"v_and_or_b32 v{ZO+4*u+t-2}, v{ZO+4*u+t-2}, s55, v{ZV+t-2}")
    for u in range(2):
        P(f"v_cvt_pk_f16_f32 v{ZO+4*u+3}, v{DC+12+2*u}, v{DC+12+2*u+1}")
        P(f"v_and_or_b32 v{ZO+4*u+3}, v{ZO+4*u+3}, s55, v{ZV+3}")
        P(f"buffer_store_dwordx4 {v(ZO+4*u,4)}, v144, s[8:11], s{52+u} offen sc1")
    for u in range(2):
        P(f"v_cvt_pk_f16_f32 v{ZO+8+u}, v{DC+16+2*u}, v{DC+16+2*u+1}")
        P(f"v_and_or_b32 v{ZO+8+u}, v{ZO+8+u}, s55, v147")
        P(f"buffer_store_dword v{ZO+8+u}, v145, s[8:11], s{56+u} offen sc1")
    P("s_setprio 0")
    stamp(P, 5)
    consts()
    P(f"""
    s_cmp_ge_u32 s{sJ}, 4
    s_cbranch_scc1 L_ffn
    """)
    for i in range(4): P(f"v_readfirstlane_b32 s{ZP[i]}, v{ZV+i}")
    P(f"""
    s_branch L_prep
    L_rare:
    """)
    P.raw(".p2align 12")

    SEC[0] = "p2"
    ZR = 16; CF = 80; AC = 96; X1 = 112; DL = 128; W1 = 144; W2 = 152; PH = 160; YT = 176; GS = 208; AB = 48
    aX1, aX2, aW1, aW2, aSP, aG, aS = 224, 225, 226, 227, 228, 230, 231
    P(f"""
    L_prep:
    v_mov_b32 v5, 0
    v_mov_b32 v7, 0
    s_add_u32 s69, s{sWV}, -2
    s_cmp_lt_u32 s69, 2
    s_cbranch_scc1 L_pub0
    s_cmp_lt_u32 s{sWV}, 2
    s_cbranch_scc1 L_ztail
    v_lshlrev_b32 v5, 11, v{vQ}
    v_lshrrev_b32 v10, 3, v{vN}
    s_add_u32 s49, s{sHW}, s{sJ}
    s_and_b32 s49, s49, 3
    v_lshl_add_u32 v10, s49, 1, v10
    v_lshl_add_u32 v5, v10, 8, v5
    v_and_b32 v9, 7, v{vN}
    v_lshl_add_u32 v5, v9, 4, v5
    v_add_u32 v7, 128, v5
    v_lshrrev_b32 v10, 1, v{vQ}
    v_lshl_add_u32 v10, s49, 1, v10
    v_and_b32 v9, 1, v{vQ}
    v_lshlrev_b32 v9, 5, v9
    s_lshl_b32 s58, s{sGRP}, 16
    s_add_u32 s58, s58, {ZM}
    s_movk_i32 s48, 8192
    s_add_u32 s51, s{sHW}, 2
    s_branch L_zcom
    L_ztail:
    v_lshl_add_u32 v10, s{sWV}, 2, v{vQ}
    v_lshlrev_b32 v5, 9, v{vQ}
    v_lshl_add_u32 v5, v{vN}, 4, v5
    v_lshl_add_u32 v5, s{sWV}, 8, v5
    s_lshl_b32 s58, s{sGRP}, 14
    s_add_u32 s58, s58, {ZT}
    s_movk_i32 s48, 2048
    v_mov_b32 v9, 256
    s_mov_b32 s51, s{sWV}
    L_zcom:
    """)
    for i in range(1, 8): P(f"s_add_u32 s{58+i}, s{57+i}, s48")
    P(f"""
    s_mul_i32 s{sROW}, s{sWV}, s{sSTR}
    s_add_u32 s{sROW}, s{sROW}, s{sTB}
    s_sub_u32 s{sROWB}, 2048, s{sROW}
    s_cmp_eq_u32 s{sROW}, 0
    s_cselect_b32 s{sROWB}, 1024, s{sROWB}
    s_mul_i32 s56, s{sROW}, 1280
    s_mul_i32 s57, s{sROWB}, 1280
    s_mul_i32 s49, s{sWV}, {XP}
    s_add_u32 s49, s49, {L_XR}
    v_add_u32 v233, s49, v{vL4}
    v_lshlrev_b32 v234, 3, v{vW}
    s_cmp_eq_u32 s{sTB}, 0
    s_cselect_b32 s47, 0, 8
    v_add_u32 v10, -1, v10
    v_and_b32 v10, 7, v10
    v_add3_u32 v9, v9, v10, 1
    v_lshlrev_b32 v9, 1, v9
    v_and_b32 v10, 7, v{vN}
    v_mov_b32 v11, s47
    v_cmp_ne_u32 vcc, 0, v10
    v_cndmask_b32 v11, v11, 8, vcc
    v_xor_b32 v11, v11, v{vN}
    s_movk_i32 s49, {XP}
    v_mad_u32_u24 v{aX1}, v{vN}, s49, v9
    v_add_u32 v{aX1}, {L_XR}, v{aX1}
    v_mul_u32_u24 v11, s49, v11
    v_add_u32 v11, {L_XR}, v11
    v_sub_u32 v10, {1280-432}, v9
    v_add_u32 v{aX2}, v11, v10
    s_lshl_b32 s49, s51, 8
    v_lshl_add_u32 v{aW1}, v{vQ}, 4, s49
    s_mul_i32 s51, s51, 768
    s_add_u32 s51, s51, {L_PART}
    v_lshl_add_u32 v{aG}, v{vN}, 4, s51
    v_lshl_add_u32 v{aS}, v{vN}, 3, s51
    v_mov_b32 v12, 0x3f803f80
    v_cmp_eq_u32 vcc, 1, v{vN}
    v_cndmask_b32 v12, 0, v12, vcc
    """)
    P(f"""
    s_cmp_lt_u32 s{sWV}, 2
    s_cbranch_scc1 L_tprep
    """)
    def wmask(on):
        if on: P("s_mov_b32 exec_lo, 0x10001"); P("s_mov_b32 exec_hi, 0x10001")
        else: P("s_mov_b64 exec, -1")
    off = [128*u + 16*r for u in range(4) for r in range(4)]
    for i in range(16):
        P(f"ds_read_u16_d16_hi v{X1+i}, v{aX1} offset:{off[i]}")
        P(f"ds_read_u16_d16_hi v{DL+i}, v{aX2} offset:{432-off[i]}")
        P(f"v_mov_b32 v{W1+i}, v12")
    P("s_waitcnt lgkmcnt(0)")
    for i_ in range(8): P(f"v_pk_add_f32 {v(DL+2*i_,2)}, {v(DL+2*i_,2)}, {v(X1+2*i_,2)} neg_lo:[0,1] neg_hi:[0,1]")
    stamp(P, 6)
    if OPT.get("zdelay"): P(f"s_sleep {OPT['zdelay']}")
    P("s_barrier")
    stamp(P, 7)
    P("s_mov_b32 s50, 0")
    for i in range(8):
        P(f"buffer_load_dwordx4 {v(ZR+8*i,4)}, v5, s[8:11], s{58+i} offen sc1")
        P(f"buffer_load_dwordx4 {v(ZR+8*i+4,4)}, v7, s[8:11], s{58+i} offen sc1")
        if i == 1:
            for k in range(4): P(f"ds_read_b128 {v(CF+4*k,4)}, v{vL16} offset:{L_CF + 1024*k}")
            wmask(1)
            for k in range(4): P(f"ds_read_b128 {v(W1+4*k,4)}, v{aW1} offset:{L_WF + 64*k}")
            wmask(0)
    P(f"""
    s_waitcnt lgkmcnt(0)
    L_zgo:
    v_mov_b32 v10, 0
    """)
    for k in range(4):
        z = ZR + 16*k
        y = YT + 16*(k & 1)
        chk = []
        def mm(u):
            P(f"v_mfma_f32_16x16x32_f16 {v(AC+4*u,4)}, {v(y+4*u,4)}, {v(CF+4*k,4)}, {v(X1+4*u,4) if k==0 else v(AC+4*u,4)}")
            o = [f"v_or3_b32 v10, v10, v{y+4*u}, v{y+4*u+1}", f"v_or3_b32 v10, v10, v{y+4*u+2}, v{y+4*u+3}"]
            if k == 3: chk.extend(o)
            else:
                for x_ in o: P(x_)
        P(f"s_waitcnt vmcnt({12 - 4*k})")
        for u in range(4):
            for l in range(4): P(f"v_xor_b32 v{y+4*u+l}, s{ZP[u]}, v{z+4*l+u}")
            if u: mm(u-1)
        mm(3)
        for x_ in chk: P(x_)
    P(f"v_and_b32 v10, 0x10001, v10")
    P(f"v_cmp_ne_u32 vcc, 0, v10")
    spin_tail(P, 50, "L_zretry", "L_zok")
    stamp(P, 8)
    if OPT["stamps"]: P("s_add_u32 s96, s50, 1")
    def stat_mm(side, f, first):
        p = PH + 8*side + 4*f; w = (W2 if side else W1) + 4*f
        g = GS + 8*side
        P(f"v_mfma_f32_16x16x32_bf16 {v(g,4)}, {v(p,4)}, {v(p,4)}, {'0' if first else v(g,4)}")
        P(f"v_mfma_f32_16x16x32_bf16 {v(g+4,4)}, {v(w,4)}, {v(p,4)}, {'0' if first else v(g+4,4)}")
    for f in range(2):
        for i in range(4): P(f"v_cvt_pk_bf16_f32 v{PH+4*f+i}, v{AC+8*f+2*i}, v{AC+8*f+2*i+1}")
        for i in range(4): P(f"v_pk_add_f32 {v(AC+8*f+2*i,2)}, {v(AC+8*f+2*i,2)}, {v(DL+8*f+2*i,2)}")
        stat_mm(0, f, f == 0)
        for i in range(4): P(f"v_cvt_pk_bf16_f32 v{PH+8+4*f+i}, v{AC+8*f+2*i}, v{AC+8*f+2*i+1}")
        if f == 1: stat_mm(1, 0, True)
    stat_mm(1, 1, False)
    def partw():
        P(f"""
        s_mov_b32 exec_lo, 0x00f0000f
        s_mov_b32 exec_hi, 0xf0000f00
        ds_write_b128 v{aG}, {v(GS,4)}
        ds_write_b128 v{aG}, {v(GS+8,4)} offset:384
        s_mov_b64 exec, 0xffff
        ds_write_b64 v{aS}, {v(GS+4,2)} offset:256
        ds_write_b64 v{aS}, {v(GS+12,2)} offset:640
        s_mov_b64 exec, -1
        s_waitcnt lgkmcnt(0)
        s_barrier
        """)
    partw()
    stamp(P, 9)
    for i in range(16):
        P(f"ds_write_b16{'_d16_hi' if i & 1 else ''} v{aX1}, v{PH+i//2} offset:{off[i]}")
        P(f"ds_write_b16{'_d16_hi' if i & 1 else ''} v{aX2}, v{PH+8+i//2} offset:{432-off[i]}")
    HA = 16; HB = 26; XT = 40; RM = 52
    P(f"""
    L_out:
    s_waitcnt lgkmcnt(0)
    s_barrier
    ds_read2st64_b32 {v(XT,2)}, v233 offset0:0 offset1:1
    ds_read2st64_b32 {v(XT+2,2)}, v233 offset0:2 offset1:3
    ds_read_b32 v{XT+4}, v233 offset:1024
    ds_read_b64 {v(RM,2)}, v234 offset:{L_RM}
    v_add_u32 v232, {8*XP}, v233
    ds_read2st64_b32 {v(XT+6,2)}, v232 offset0:0 offset1:1
    ds_read2st64_b32 {v(XT+8,2)}, v232 offset0:2 offset1:3
    ds_read_b32 v{XT+10}, v232 offset:1024
    ds_read_b64 {v(RM+2,2)}, v234 offset:{L_RM+64}
    """)
    for (Hr, src, rm, so, o, w_) in ((HA, XT, RM, 56, 56, 4), (HB, XT+6, RM+2, 57, 64, 0)):
        P(f"s_waitcnt lgkmcnt({w_})")
        for i in range(5):
            P(f"v_lshlrev_b32 v{Hr+2*i}, 16, v{src+i}")
            P(f"v_and_b32 v{Hr+2*i+1}, 0xffff0000, v{src+i}")
        for i in range(10): P(f"v_fma_f32 v{Hr+i}, v{Hr+i}, v{rm}, -v{rm+1}")
        for i in range(5):
            P(f"v_cvt_pk_bf16_f32 v{o+i}, v{Hr+2*i}, v{Hr+2*i+1}")
            P(f"v_min_u32 v{o+i}, -2, v{o+i}")
            P(f"buffer_store_dword v{o+i}, v{vL4}, s[12:15], s{so} offen offset:{256*i} sc1")
    stamp(P, 11)
    P(f"""
    s_cmp_lg_u32 s{sWV}, 3
    s_cbranch_scc1 L_finp
    s_cmp_lg_u32 s2, 0
    s_cbranch_scc1 L_finp
    s_mov_b64 exec, 1
    buffer_store_dword v14, v5, s[8:11], 0 offen sc1
    L_finp:
    {FIN}
    """)
    LATE_Z = list(LATE); del LATE[:]
    S1, S2, S3, MC, TM = 40, 36, 41, 44, 48
    P(f"""
    L_pub0:
    s_cmp_eq_u32 s{sWV}, 2
    s_cbranch_scc1 L_idle
    s_barrier
    s_mul_i32 s{sROW}, s{sWV}, s{sSTR}
    s_add_u32 s{sROW}, s{sROW}, s{sTB}
    s_sub_u32 s{sROWB}, 2048, s{sROW}
    s_cmp_eq_u32 s{sROW}, 0
    s_cselect_b32 s{sROWB}, 1024, s{sROWB}
    s_mul_i32 s56, s{sROW}, 1280
    s_mul_i32 s57, s{sROWB}, 1280
    s_mul_i32 s49, s{sWV}, {XP}
    s_add_u32 s49, s49, {L_XR}
    v_add_u32 v233, s49, v{vL4}
    v_lshlrev_b32 v234, 3, v{vW}
    s_cmp_eq_u32 s{sTB}, 0
    s_cselect_b32 s47, 0, 8
    v_add_u32 v9, {L_WR}, v{vL16}
    v_add_u32 v10, {L_WR+1024}, v{vL4}
    ds_read_b128 {v(16,4)}, v9
    ds_read_b32 v20, v10
    v_lshrrev_b32 v22, 2, v{vL}
    v_and_b32 v23, 7, v22
    v_mov_b32 v11, s47
    v_cmp_ne_u32 vcc, 0, v23
    v_cndmask_b32 v11, v11, 8, vcc
    v_and_b32 v24, 1, v{vL}
    v_mul_u32_u24 v11, v11, v24
    v_xor_b32 v11, v11, v22
    v_and_b32 v24, 3, v{vL}
    v_mul_u32_u24 v24, 384, v24
    v_lshl_add_u32 v26, v11, 3, v24
    v_lshl_add_u32 v25, v11, 4, v24
    v_and_b32 v11, 3, v11
    v_lshl_add_u32 v25, v11, 2, v25
    v_mul_u32_u24 v23, s{sSTR}, v23
    v_add_u32 v23, s{sTB}, v23
    v_sub_u32 v9, 2048, v23
    v_mov_b32 v10, 1024
    v_cmp_eq_u32 vcc, 0, v23
    v_cndmask_b32 v9, v9, v10, vcc
    v_cmp_lt_u32 vcc, 31, v{vL}
    v_cndmask_b32 v23, v23, v9, vcc
    v_lshlrev_b32 v23, 6, v23
    v_lshlrev_b32 v27, 3, v22
    v_mov_b32 v{MC+2}, v14
    v_mov_b32 v{MC+3}, v14
    s_mul_i32 s54, s{sIDX}, {KST}
    s_add_u32 s54, s54, {KEYS}
    s_lshr_b32 s36, s2, 6
    s_lshl2_add_u32 s36, s36, s{sJ}
    s_lshl_b32 s43, s{sXCD}, 8
    s_lshl2_add_u32 s36, s36, s43
    s_add_u32 s36, s36, {SEN1}
    s_mov_b32 s47, 0xffff8000
    s_mov_b32 s48, {STATS}
    s_mov_b32 s49, 0x3f803f80
    v_mov_b32 v21, 0
    s_waitcnt lgkmcnt(0)
    """)
    for i in range(5): P(f"v_dot2c_f32_bf16 v21, s49, v{16+i}")
    for sh in (1, 2, 4, 8): P(f"v_add_f32_dpp v21, v21, v21 row_shr:{sh} row_mask:0xf bank_mask:0xf bound_ctrl:0")
    P(f"""
    v_add_f32_dpp v21, v21, v21 row_bcast:15 row_mask:0xa bank_mask:0xf
    v_add_f32_dpp v21, v21, v21 row_bcast:31 row_mask:0xc bank_mask:0xf
    v_readlane_b32 s55, v21, 63
    s_setprio 3
    s_barrier
    """)
    stamp(P, 9)
    for i in range(3):
        P(f"ds_read_b32 v{36+i}, v25 offset:{L_PART + 1536*i}")
        P(f"ds_read_b64 {v(30+2*i,2)}, v26 offset:{L_PART + 1536*i + 256}")
    P(f"""
    s_waitcnt lgkmcnt(2)
    v_add_f32 v36, v36, v37
    v_pk_add_f32 {v(30,2)}, {v(30,2)}, {v(32,2)}
    s_waitcnt lgkmcnt(0)
    v_add_f32 v{S2}, v36, v38
    v_add_f32 v{S1}, v31, v35
    v_add_f32 v{S3}, v30, v34
    """)
    for qp in ("[1,0,3,2]", "[2,3,0,1]"):
        for r in (S2, S1, S3): P(f"v_add_f32_dpp v{r}, v{r}, v{r} quad_perm:{qp} row_mask:0xf bank_mask:0xf")
    P(f"""
    v_mul_f32 v{MC}, s{sC640}, v{S1}
    v_mul_f32 v{TM}, v{MC}, v{MC}
    v_fma_f32 v{S2}, v{S2}, s{sC640}, -v{TM}
    v_max_f32 v{S2}, 0, v{S2}
    """)
    for o in bf16_round(S2): P(o)
    P(f"v_add_f32 v{S2}, {f2u(1e-5)}, v{S2}")
    for o in bf16_round(S2): P(o)
    P(f"v_sqrt_f32 v{S2}, v{S2}")
    for o in bf16_round(MC): P(o)
    for o in bf16_round(S2): P(o)
    P(f"""
    v_rcp_f32 v{TM+2}, v{S2}
    v_fma_f32 v{S3}, -v{MC}, s55, v{S3}
    v_mul_f32 v{S3}, v{S3}, v{TM+2}
    v_cvt_pk_bf16_f32 v{S3}, v{S3}, v{S3}
    v_ashrrev_i32 v{TM}, 31, v{S3}
    v_or_b32 v{TM}, 0x80000000, v{TM}
    v_xor_b32 v{S3}, v{S3}, v{TM}
    v_lshrrev_b32 v{S3}, 1, v{S3}
    v_bfi_b32 v{S3}, s47, v{S3}, v14
    s_mov_b32 exec_lo, 0x11111111
    s_mov_b32 exec_hi, 0x11111111
    {"buffer_store_dword v14, v5, s[8:11], s36 offen" if OPT.get("h1pos", 1) == 2 else ""}
    buffer_store_dword v{S3}, v{vL}, s[8:11], s54 offen sc1
    {"buffer_store_dword v14, v5, s[8:11], s36 offen" if OPT.get("h1pos", 1) == 3 else ""}
    """)
    stamp(P, 10)
    P(f"""
    v_add_f32 v{MC+1}, 1.0, v{S2}
    v_mul_f32 v{TM+3}, v{MC}, v{TM+2}
    v_add_f32 v{TM+2}, 1.0, v{TM+2}
    v_rcp_f32 v{MC+1}, v{MC+1}
    ds_write_b64 v27, {v(TM+2,2)} offset:{L_RM}
    buffer_store_dwordx4 {v(MC,4)}, v23, s[8:11], s48 offen sc1
    s_mov_b64 exec, 1
    {"buffer_store_dword v14, v5, s[8:11], s36 offen" if OPT.get("h1pos", 1) == 1 else ""}
    s_mov_b64 exec, -1
    s_setprio 0
    s_branch L_out
    """)
    P_keep = P; P = Prog()
    P(f"""
    L_idle:
    s_mov_b32 s49, {L_WR}
    v_add_u32 v9, s{sJ}, v{vQ}
    v_and_b32 v9, 3, v9
    v_bfe_u32 v10, v{vL}, 1, 1
    v_lshl_add_u32 v9, v9, 1, v10
    v_add_u32 v9, -1, v9
    v_and_b32 v9, 7, v9
    v_and_b32 v10, 1, v{vL}
    v_lshl_add_u32 v9, v10, 5, v9
    v_and_b32 v10, 4, v{vL}
    v_lshl_add_u32 v9, v10, 5, v9
    v_lshlrev_b32 v9, 1, v9
    v_add_u32 v16, {L_WR+2}, v9
    v_sub_u32 v17, {L_WR+1278}, v9
    v_mov_b32 v18, 16
    v_and_b32 v10, 8, v{vL}
    v_cmp_ne_u32 vcc, 0, v10
    v_cndmask_b32 v16, v16, v17, vcc
    v_cndmask_b32 v18, v18, -16, vcc
    v_lshrrev_b32 v9, 4, v{vL}
    v_and_b32 v10, 3, v{vL}
    v_lshl_add_u32 v9, v9, 2, v10
    v_add_u32 v9, -1, v9
    v_and_b32 v9, 7, v9
    v_lshlrev_b32 v9, 1, v9
    v_add_u32 v19, {L_WR+514}, v9
    v_sub_u32 v17, {L_WR+766}, v9
    v_cndmask_b32 v19, v19, v17, vcc
    """)
    for i in range(8):
        m = 8*(i >> 2) + (i & 3)
        P(f"v_mad_i32_i24 v20, v18, {m}, v16")
        P(f"ds_read_u16 v{24+i}, v20")
    for i in range(8):
        m = (i >> 1) + 4*(i & 1)
        P(f"v_mad_i32_i24 v20, v18, {m}, v19")
        if i == 7: P(f"v_writelane_b32 v20, s49, 8")
        P(f"ds_read_u16 v{32+i}, v20")
    P("s_waitcnt lgkmcnt(0)")
    for i in range(8): P(f"v_lshl_or_b32 v{40+i}, v{25+2*i}, 16, v{24+2*i}")
    P(f"""
    ds_write_b128 v{vL16}, {v(40,4)} offset:{L_WF+512}
    s_mov_b32 exec_hi, 0
    ds_write_b128 v{vL16}, {v(44,4)} offset:{L_WF}
    s_mov_b64 exec, -1
    s_waitcnt lgkmcnt(0)
    s_barrier
    s_mul_i32 s{sROW}, s{sWV}, s{sSTR}
    s_add_u32 s{sROW}, s{sROW}, s{sTB}
    s_sub_u32 s{sROWB}, 2048, s{sROW}
    s_cmp_eq_u32 s{sROW}, 0
    s_cselect_b32 s{sROWB}, 1024, s{sROWB}
    s_mul_i32 s56, s{sROW}, 1280
    s_mul_i32 s57, s{sROWB}, 1280
    s_mul_i32 s49, s{sWV}, {XP}
    s_add_u32 s49, s49, {L_XR}
    v_add_u32 v233, s49, v{vL4}
    v_lshlrev_b32 v234, 3, v{vW}
    s_cmp_eq_u32 s{sTB}, 0
    s_cselect_b32 s47, 0, 8
    s_barrier
    s_branch L_out
    """)
    IDLE = list(P.lines); P = P_keep
    RARE = Prog()
    P_main = P
    P = RARE
    toff = [16*u + 64*ih for u in range(4) for ih in range(2)]
    P(f"""
    L_tprep:
    s_movk_i32 s49, 528
    v_cmp_eq_u32 s[52:53], s49, v9
    v_add_u32 v{aSP}, {432-toff[7]}, v{aX2}
    v_cndmask_b32 v{aSP}, v{aSP}, v11, s[52:53]
    """)
    for i in range(8):
        P(f"ds_read_u16_d16_hi v{X1+4*(i>>1)+(i&1)}, v{aX1} offset:{toff[i]}")
    for i in range(8):
        if i < 7: P(f"ds_read_u16_d16_hi v{DL+i}, v{aX2} offset:{432-toff[i]}")
        else: P(f"ds_read_u16_d16_hi v{DL+i}, v{aSP}")
    for i in range(4):
        P(f"v_mov_b32 v{W1+i}, v12"); P(f"v_mov_b32 v{W2+i}, v12")
        P(f"v_mov_b32 v{X1+4*i+2}, 0"); P(f"v_mov_b32 v{X1+4*i+3}, 0")
    P("s_waitcnt lgkmcnt(0)")
    P(f"v_mov_b32 v{DL+8}, v{DL+7}")
    for u in range(4): P(f"v_pk_add_f32 {v(DL+2*u,2)}, {v(DL+2*u,2)}, {v(X1+4*u,2)} neg_lo:[0,1] neg_hi:[0,1]")
    stamp(P, 6)
    P("s_barrier")
    stamp(P, 7)
    for i in range(8): P(f"buffer_load_dwordx4 {v(ZR+4*i,4)}, v5, s[8:11], s{58+i} offen sc1")
    P("s_mov_b32 s50, 0")
    P(f"v_add_u32 v9, {L_CF}, v{vL16}")
    for k in range(4):
        P(f"ds_read2_b32 {v(CF+4*(k>>1)+2*(k&1),2)}, v9 offset0:0 offset1:2")
        P(f"ds_read2_b32 {v(CF+8+4*(k>>1)+2*(k&1),2)}, v9 offset0:1 offset1:3")
        if k < 3: P(f"v_add_u32 v9, 1024, v9")
    wmask(1)
    P(f"ds_read_b128 {v(W1,4)}, v{aW1} offset:{L_WF}")
    P(f"ds_read_b128 {v(W2,4)}, v{aW1} offset:{L_WF+128}")
    wmask(0)
    P("s_branch L_tgo")
    P("L_tretry:")
    for i in range(8): P(f"buffer_load_dwordx4 {v(ZR+4*i,4)}, v5, s[8:11], s{58+i} offen sc1")
    P(f"""
    L_tgo:
    v_mov_b32 v10, 0
    s_waitcnt lgkmcnt(0)
    """)
    for k in range(2):
        z = ZR + 16*k; y = YT + 16*k
        P(f"s_waitcnt vmcnt({4 - 4*k})")
        def mt(u):
            P(f"v_mfma_f32_16x16x32_f16 {v(AC+4*u,4)}, {v(y+4*u,4)}, {v(CF+4*k,4)}, {v(X1+4*u,4) if k==0 else v(AC+4*u,4)}")
            P(f"v_or3_b32 v10, v10, v{y+4*u}, v{y+4*u+1}")
            P(f"v_mfma_f32_16x16x32_f16 {v(AB+4*u,4)}, {v(y+4*u,4)}, {v(CF+8+4*k,4)}, {'0' if k==0 else v(AB+4*u,4)}")
            P(f"v_or3_b32 v10, v10, v{y+4*u+2}, v{y+4*u+3}")
        for u in range(4):
            for l in range(4): P(f"v_xor_b32 v{y+4*u+l}, s{ZP[u]}, v{z+4*l+u}")
            if u: mt(u-1)
        mt(3)
    P(f"v_and_b32 v10, 0x10001, v10")
    P(f"v_cmp_ne_u32 vcc, 0, v10")
    spin_tail(P, 50, "L_tretry", "L_tok")
    stamp(P, 8)
    for u in range(4): P(f"v_pk_add_f32 {v(AC+4*u,2)}, {v(AC+4*u,2)}, {v(AB+4*u+2,2)}")
    for u in range(4): P(f"v_cvt_pk_bf16_f32 v{PH+u}, v{AC+4*u}, v{AC+4*u+1}")
    for u in range(4): P(f"v_pk_add_f32 {v(AC+4*u,2)}, {v(AC+4*u,2)}, {v(DL+2*u,2)}")
    P(f"v_cndmask_b32 v{AC+13}, v{AC+13}, v{DL+8}, s[52:53]")
    stat_mm(0, 0, True)
    for u in range(4): P(f"v_cvt_pk_bf16_f32 v{PH+8+u}, v{AC+4*u}, v{AC+4*u+1}")
    stat_mm(1, 0, True)
    partw()
    stamp(P, 9)
    for i in range(8):
        P(f"ds_write_b16{'_d16_hi' if i & 1 else ''} v{aX1}, v{PH+i//2} offset:{toff[i]}")
        if i < 7: P(f"ds_write_b16{'_d16_hi' if i & 1 else ''} v{aX2}, v{PH+8+i//2} offset:{432-toff[i]}")
        else: P(f"ds_write_b16_d16_hi v{aSP}, v{PH+11}")
    P("s_branch L_out")
    flush_late(P)
    TAILC = list(RARE.lines)
    RARE = Prog(); P = RARE
    P("L_zretry:")
    for i in range(8):
        P(f"buffer_load_dwordx4 {v(ZR+8*i,4)}, v5, s[8:11], s{58+i} offen sc1")
        P(f"buffer_load_dwordx4 {v(ZR+8*i+4,4)}, v7, s[8:11], s{58+i} offen sc1")
    P("s_branch L_zgo")
    for t_ in LATE_Z: P(t_)
    P = P_main
    k_ = P.lines.index("L_rare:") + 1
    P.lines[k_:k_] = RARE.lines
    k_ = P.lines.index("L_M:") - 1
    P.lines[k_:k_] = TAILC
    SEC[0] = "ffn"
    BW = 48; AR = 112; A0 = 128
    KK = 16; ID = 24; K4 = 32; CB = 112
    P.raw(".p2align 12")
    P(f"""
    L_ffn:
    s_barrier
    s_cmp_lg_u32 s{sWV}, 0
    s_cbranch_scc1 L_noflag
    s_mul_i32 s49, s{sIDX}, {KST}
    s_add_u32 s49, s49, {FLAGS}
    s_mov_b64 exec, 1
    buffer_store_dword v14, v13, s[8:11], s49 offen sc1
    s_mov_b64 exec, -1
    L_noflag:
    v_lshrrev_b32 v7, 2, v0
    v_mul_u32_u24 v7, {KST}, v7
    v_and_b32 v12, 3, v0
    v_lshl_add_u32 v7, v12, 4, v7
    s_mov_b32 s52, {KEYS}
    {"buffer_load_dword v253, v7, s[8:11], s52 offen sc1" if OPT.get("kwarm", 0) else ""}
    v_and_b32 v9, 1, v{vN}
    v_mul_u32_u24 v144, 0xaaaa, v9
    v_or_b32 v144, 0x4444, v144
    v_lshrrev_b32 v9, 1, v{vQ}
    v_and_b32 v10, 1, v{vQ}
    v_lshlrev_b32 v10, 2, v10
    v_lshl_add_u32 v145, v9, 4, v10
    v_and_b32 v9, 8, v{vN}
    v_bfe_u32 v10, v{vN}, 2, 1
    v_add3_u32 v145, v145, v9, v10
    v_and_b32 v146, 3, v{vN}
    """)
    P(f"""
    v_bfe_u32 v9, v0, 4, 3
    v_lshlrev_b32 v9, 1, v9
    v_add_u32 v40, 1, v9
    v_sub_u32 v41, 32, v9
    v_sub_u32 v42, 32, v40
    v_cmp_eq_u32 vcc, 0, v9
    v_cndmask_b32 v41, v41, 16, vcc
    v_and_b32 v12, 128, v0
    v_cmp_ne_u32 vcc, 0, v12
    v_cndmask_b32 v9, v9, v41, vcc
    v_cndmask_b32 v40, v40, v42, vcc
    v_bfe_u32 v10, v0, 2, 2
    v_and_b32 v12, 1, v0
    v_lshl_add_u32 v10, v10, 1, v12
    v_lshlrev_b32 v10, 2, v10
    v_mov_b32 v11, 64
    v_cmp_eq_u32 vcc, 0, v9
    v_cndmask_b32 v11, v11, 32, vcc
    v_mad_u32_u24 v{ID}, v10, v11, v9
    v_lshl_add_u32 v{ID+4}, v10, 6, v40
    """)
    for i in range(1, 4):
        P(f"v_add_u32 v{ID+i}, v{ID+i-1}, v11")
        P(f"v_add_u32 v{ID+4+i}, 64, v{ID+3+i}")
    P(f"""
    v_and_b32 v12, 2, v0
    v_cmp_ne_u32 vcc, 0, v12
    """)
    for i in range(8):
        P(f"v_sub_u32 v9, 2048, v{ID+i}")
        P(f"v_cndmask_b32 v{ID+i}, v{ID+i}, v9, vcc")
    P(f"""
    v_mov_b32 v11, 1024
    v_cmp_eq_u32 vcc, 2, v0
    v_cndmask_b32 v{ID}, v{ID}, v11, vcc
    s_mov_b32 s53, {KEYS + 64*KST}
    s_lshr_b32 s54, s2, 6
    s_and_b32 s43, s{sJ}, 3
    s_lshl2_add_u32 s54, s54, s43
    s_mov_b32 s55, {OOB}
    s_cmp_eq_u32 s54, 10
    s_cmov_b32 s55, {STATS}
    s_cmp_lt_u32 s54, 10
    s_cselect_b32 s54, s54, {OOB>>7}
    s_lshl_b32 s54, s54, 7
    v_mov_b32 v12, 0
    v_lshrrev_b32 v5, 4, v0
    v_lshlrev_b32 v5, 2, v5
    v_lshlrev_b32 v151, 2, v{vN}
    v_lshlrev_b32 v43, 4, v{vQ}
    v_lshrrev_b32 v147, 1, v{vN}
    v_lshrrev_b32 v9, 3, v{vL}
    s_cmp_ge_u32 s{sWV}, 5
    s_cselect_b64 vcc, -1, 0
    v_cndmask_b32 v147, v147, v9, vcc
    v_lshlrev_b32 v147, 2, v147
    v_and_b32 v148, 1, v{vN}
    v_lshl_add_u32 v148, v{vQ}, 1, v148
    v_lshlrev_b32 v148, 4, v148
    s_cmp_lt_u32 s{sIDX}, 108
    s_cselect_b32 s43, 7, 8
    v_lshlrev_b32 v149, s43, v{vQ}
    v_lshl_add_u32 v149, v{vN}, 2, v149
    v_lshl_add_u32 v149, v{vW}, 10, v149
    v_add_u32 v149, {L_RED}, v149
    s_lshl_b32 s56, s{sWV}, 8
    s_movk_i32 s57, 1280
    v_mov_b32 v152, 1
    v_mov_b32 v153, 0x7fff
    s_mov_b32 s52, {KEYS}
    s_mov_b32 s59, 0x7fff8000
    """)
    P(f"""
    s_cmp_ge_u32 s{sIDX}, 108
    s_cbranch_scc1 L_f2load
    """)
    P(f"""
    v_lshrrev_b32 v13, 1, v{vL}
    v_mul_u32_u24 v13, 3456, v13
    v_and_b32 v9, 1, v{vL}
    v_lshl_add_u32 v13, v9, 4, v13
    s_lshl_b32 s58, s{sIDX}, 5
    s_and_b32 s47, s{sJ}, 3
    s_mul_i32 s47, s47, 5
    s_mov_b32 s48, s{sWV}
    L_dma1:
    s_add_u32 s49, s48, s47
    s_cmp_ge_u32 s49, 20
    s_cselect_b32 s50, 20, 0
    s_sub_u32 s49, s49, s50
    s_lshr_b32 s50, s49, 2
    s_lshl_b32 s50, s50, 13
    s_and_b32 s51, s49, 3
    s_lshl_b32 s51, s51, 10
    s_add_u32 s50, s50, s51
    s_add_u32 m0, s50, {L_WT}
    s_mul_i32 s51, s49, {32*3456}
    s_add_u32 s51, s51, s58
    {"s_nop 0" if OPT.get("now") else f"buffer_load_dwordx4 v13, s[20:23], s51 offen lds"}
    s_add_u32 m0, m0, 4096
    s_add_u32 s48, s48, 8
    {"s_nop 0" if OPT.get("now") else f"buffer_load_dwordx4 v13, s[24:27], s51 offen lds"}
    s_cmp_lt_u32 s48, 20
    s_cbranch_scc1 L_dma1
    v_lshlrev_b32 v15, 5, v145
    v_lshl_add_u32 v15, v146, 3, v15
    v_lshl_add_u32 v15, v{vW}, 13, v15
    s_waitcnt vmcnt(0)
    s_barrier
    """)
    P("s_branch L_tk")
    P(f"""
    L_f2load:
    s_waitcnt vmcnt(0)
    s_barrier
    """)
    stamp(P, 9)
    P(f"""
    v_lshrrev_b32 v13, 2, v{vL}
    v_mul_u32_u24 v13, 1280, v13
    v_and_b32 v9, 3, v{vL}
    v_lshl_add_u32 v13, v9, 4, v13
    s_sub_u32 s58, s{sIDX}, 108
    s_lshl_b32 s58, s58, 6
    s_and_b32 s47, s{sJ}, 1
    s_mov_b32 s47, 0
    s_mov_b32 s48, s{sWV}
    L_dma2:
    s_add_u32 s49, s48, s47
    s_cmp_ge_u32 s49, 112
    s_cselect_b32 s50, 112, 0
    s_sub_u32 s49, s49, s50
    s_lshl_b32 s50, s49, 10
    s_add_u32 m0, s50, {L_WT}
    s_mul_i32 s51, s49, {16*1280}
    s_add_u32 s51, s51, s58
    s_add_u32 s48, s48, 8
    {"s_nop 0" if OPT.get("now") else f"buffer_load_dwordx4 v13, s[28:31], s51 offen lds"}
    s_cmp_lt_u32 s48, 112
    s_cbranch_scc1 L_dma2
    v_lshlrev_b32 v15, 6, v145
    v_lshl_add_u32 v15, v146, 3, v15
    v_lshl_add_u32 v15, v{vW}, 14, v15
    s_cmp_lg_u32 s{sWV}, 0
    s_cbranch_scc1 L_dok
    v_mul_u32_u24 v11, {KST}, v{vL}
    s_mov_b32 s49, {FLAGS}
    s_mov_b32 s47, {FLAGS+64*KST}
    s_mov_b32 s50, 0
    L_dpoll:
    buffer_load_dword v9, v11, s[8:11], s49 offen sc1
    buffer_load_dword v10, v11, s[8:11], s47 offen sc1
    s_waitcnt vmcnt(0)
    v_bitop3_b32 v9, v9, v10, v14 bitop3:0x7e
    v_cmp_ne_u32 vcc, 0, v9
    """)
    spin_tail(P, 50, "L_dpoll", "L_dok")
    P(f"""
    s_waitcnt vmcnt(0)
    s_barrier
    """)
    P("L_tk:")
    stamp(P, 6)
    P(f"""
    s_cmp_eq_u32 s{sWV}, 6
    s_cbranch_scc1 L_pad0
    s_cmp_eq_u32 s{sWV}, 7
    s_cbranch_scc1 L_fchk
    s_cmp_ge_u32 s{sIDX}, 108
    s_cbranch_scc1 L_tk1
    s_cmp_eq_u32 s{sWV}, 5
    s_cbranch_scc1 L_tk1
    """)
    for blk in range(4):
        for j in range(4):
            P(f"ds_read_b64_tr_b16 {v(BW+8*blk+2*j,2)}, v15 offset:{L_WT + 2048*blk + 32*(32*(j>>1) + 2*(j&1))}")
    for i in range(4): P(f"v_mov_b32 v{AR+i}, 0x3f803f80")
    P(f"""
    s_lshl_b32 s49, s{sWV}, 7
    v_lshl_add_u32 v13, v{vN}, 2, s49
    s_waitcnt lgkmcnt(0)
    """)
    for i in range(4):
        P(f"v_mfma_f32_16x16x32_bf16 {v(A0,4)}, {v(AR,4)}, {v(BW+4*i,4)}, {'0' if i==0 else v(A0,4)}")
        P(f"v_mfma_f32_16x16x32_bf16 {v(A0+4,4)}, {v(AR,4)}, {v(BW+16+4*i,4)}, {'0' if i==0 else v(A0+4,4)}")
    P(f"ds_write_b32 v13, v{A0} offset:{L_CS}")
    P(f"ds_write_b32 v13, v{A0+4} offset:{L_CS+64}")
    P(f"""
    L_tk1:
    s_barrier
    s_cmp_ge_u32 s{sWV}, 4
    s_cbranch_scc1 L_tk2
    s_mov_b32 s50, 0
    """)
    stamp(P, 7)
    P(f"""
    L_kpoll:
    buffer_load_dwordx4 {v(KK,4)}, v7, s[8:11], s52 offen sc1
    buffer_load_dwordx4 {v(KK+4,4)}, v7, s[8:11], s53 offen sc1
    s_waitcnt vmcnt(1)
    v_max3_u32 v10, v{KK}, v{KK+1}, v{KK+2}
    v_bitop3_b32 v40, v{KK}, v{KK+1}, v14 bitop3:0x7e
    v_bitop3_b32 v41, v{KK+2}, v{KK+3}, v14 bitop3:0x7e
    s_waitcnt vmcnt(0)
    v_max3_u32 v11, v{KK+3}, v{KK+4}, v{KK+5}
    v_max3_u32 v10, v10, v{KK+6}, v{KK+7}
    v_max_u32 v10, v10, v11
    v_bitop3_b32 v42, v{KK+4}, v{KK+5}, v14 bitop3:0x7e
    v_bitop3_b32 v11, v{KK+6}, v{KK+7}, v14 bitop3:0x7e
    v_max_u32_dpp v10, v10, v10 row_ror:1 row_mask:0xf bank_mask:0xf
    v_or3_b32 v40, v40, v41, v42
    v_bitop3_b32 v40, v40, v11, v153 bitop3:0xa8
    v_max_u32_dpp v10, v10, v10 row_ror:2 row_mask:0xf bank_mask:0xf
    v_cmp_ne_u32 vcc, 0, v40
    v_and_or_b32 v{KK}, v{KK}, s59, v{ID}
    v_max_u32_dpp v10, v10, v10 row_ror:4 row_mask:0xf bank_mask:0xf
    """)
    spin_tail(P, 50, "L_kpoll", "L_kok")
    stamp(P, 8)
    if OPT["stamps"]: P("s_add_u32 s96, s50, 1")
    P(f"""
    v_and_or_b32 v{KK+1}, v{KK+1}, s59, v{ID+1}
    v_max_u32_dpp v10, v10, v10 row_ror:8 row_mask:0xf bank_mask:0xf
    v_and_or_b32 v10, v10, s59, v5
    ds_write_b32 v5, v10 offset:{L_GM}
    """)
    for i in range(2, 8): P(f"v_and_or_b32 v{KK+i}, v{KK+i}, s59, v{ID+i}")
    P(f"""
    L_tk2:
    s_waitcnt lgkmcnt(0)
    s_barrier
    s_cmp_ge_u32 s{sWV}, 4
    s_cbranch_scc1 L_tk3
    """)
    def rank16(off, own):
        P(f"ds_read_b32 v{own}, v151 offset:{off}")
        P(f"ds_read_b128 {v(CB,4)}, v43 offset:{off}")
    def rank16b(own, acc):
        P("s_waitcnt lgkmcnt(0)")
        for i in range(4): P(f"v_sub_u32 v{CB+i}, v{own}, v{CB+i}")
        P(f"v_lshrrev_b32 v{acc}, 31, v{CB}")
        for i in range(1, 4): P(f"v_alignbit_b32 v{acc}, v{acc}, v{CB+i}, 31")
        P(f"""
        v_bcnt_u32_b32 v{acc}, v{acc}, 0
        v_mov_b32 v{CB}, v{acc}
        v_permlane16_swap_b32 v{acc}, v{CB}
        v_add_u32 v{acc}, v{acc}, v{CB}
        v_mov_b32 v{CB}, v{acc}
        v_permlane32_swap_b32 v{acc}, v{CB}
        v_add_u32 v{acc}, v{acc}, v{CB}
        """)
    rank16(L_GM, 10)
    P(f"""
    v_max3_u32 v9, v{KK}, v{KK+1}, v{KK+2}
    v_max3_u32 v11, v{KK+3}, v{KK+4}, v{KK+5}
    v_max3_u32 v9, v9, v{KK+6}, v{KK+7}
    v_max_u32 v9, v9, v11
    """)
    rank16b(10, 11)
    P(f"""
    v_cmp_eq_u32 vcc, 7, v11
    s_ff1_i32_b64 s47, vcc
    v_readlane_b32 s48, v10, s47
    s_and_b32 s48, s48, s59
    L_tkagain:
    v_mov_b32 v10, v9
    L_app:
    v_cmp_le_i32 vcc, s48, v10
    s_cbranch_vccz L_tk3
    s_mov_b64 exec, vcc
    ds_add_rtn_u32 v11, v12, v152
    {"" if not OPT.get("touch", 1) else f"v_and_b32 v{K4}, 2047, v10"}
    {"" if not OPT.get("touch", 1) else f"v_lshlrev_b32 v{K4+1}, 6, v{K4}"}
    {"" if not OPT.get("touch", 1) else f"v_mul_u32_u24 v{K4}, 1280, v{K4}"}
    {"" if not OPT.get("touch", 1) else f"buffer_load_dword v253, v{K4+1}, s[8:11], s55 offen sc1"}
    {"" if not OPT.get("touch", 1) else f"buffer_load_dword v253, v{K4}, s[12:15], s54 offen sc1"}
    s_mov_b64 exec, -1
    v_add_u32 v{K4+8}, -1, v10
    """)
    for i in range(8): P(f"v_sub_u32 v{K4+i}, v{K4+8}, v{KK+i}")
    P(f"""
    v_min3_u32 v{K4}, v{K4}, v{K4+1}, v{K4+2}
    v_min3_u32 v{K4+3}, v{K4+3}, v{K4+4}, v{K4+5}
    v_min3_u32 v{K4}, v{K4}, v{K4+6}, v{K4+7}
    v_min3_u32 v{K4}, v{K4}, v{K4+3}, v10
    s_waitcnt lgkmcnt(0)
    v_min_u32 v11, 16, v11
    v_lshlrev_b32 v11, 2, v11
    s_mov_b64 exec, vcc
    ds_write_b32 v11, v10 offset:{L_LIST}
    v_sub_u32 v10, v{K4+8}, v{K4}
    s_mov_b64 exec, -1
    s_branch L_app
    """)
    flush_late(P)
    P(f"""
    L_pad0:
    s_branch L_pad1
    L_fchk:
    """)
    P(f"""
    s_lshl_b32 s49, s{sXCD}, 8
    s_add_u32 s49, s49, {SEN1}
    s_mov_b32 s50, 0
    s_mov_b64 exec, 0xffff
    L_h1:
    buffer_load_dword v10, v{vL4}, s[8:11], s49 offen sc1
    s_add_u32 s50, s50, 1
    s_cmp_gt_u32 s50, {HINTMAX}
    s_waitcnt vmcnt(0)
    v_cmp_ne_u32 vcc, v14, v10
    s_cbranch_scc1 L_h1_d
    s_cbranch_vccnz L_h1
    L_h1_d:
    s_mov_b64 exec, -1
    {"s_sleep %d" % OPT["kdelay"] if OPT.get("kdelay") else ""}
    s_branch L_tk1
    """)
    P(f"""
    L_tk3:
    s_waitcnt lgkmcnt(0)
    s_barrier
    ds_read_b32 v{K4+9}, v12
    """)
    rank16(L_LIST, 10)
    rank16b(10, 11)
    P(f"""
    v_cmp_gt_u32 vcc, 8, v11
    v_readfirstlane_b32 s47, v{K4+9}
    v_lshlrev_b32 v11, 2, v11
    s_mov_b64 exec, vcc
    ds_write_b32 v11, v10 offset:{L_SEL}
    s_mov_b64 exec, -1
    ds_read_b32 v150, v147 offset:{L_SEL}
    s_mov_b32 s50, 0
    s_cmp_le_u32 s47, 16
    s_cbranch_scc1 L_tkdone
    ds_read_b32 v10, v12 offset:{L_SEL+28}
    s_waitcnt lgkmcnt(0)
    s_barrier
    v_readfirstlane_b32 s48, v10
    v_mov_b32 v11, -1
    ds_write_b32 v12, v12
    ds_write_b32 v151, v11 offset:{L_LIST}
    s_waitcnt lgkmcnt(0)
    s_barrier
    s_cmp_ge_u32 s{sWV}, 4
    s_cbranch_scc1 L_tk3
    s_branch L_tkagain
    """)
    flush_late(P)
    P(f"""
    L_pad1:
    s_branch L_pad2
    L_tkdone:
    s_cmp_ge_u32 s{sIDX}, 108
    s_cbranch_scc1 L_f2
    """)
    P(f"""
    s_cmp_eq_u32 s{sWV}, 5
    s_cbranch_scc1 L_f1fin
    s_cmp_gt_u32 s{sWV}, 5
    s_cbranch_scc1 L_fin2
    s_waitcnt lgkmcnt(0)
    """)
    stamp(P, 10)
    P(f"""
    v_and_b32 v9, 2047, v150
    v_mad_u32_u24 v9, v9, s57, v148
    L_gretry:
    buffer_load_dwordx4 {v(AR,4)}, v9, s[12:15], s56 offen sc1
    buffer_load_dwordx4 {v(AR+4,4)}, v9, s[12:15], s56 offen offset:128 sc1
    """)
    for i in range(8): P(f"v_mov_b32 v{A0+i}, 0")
    for b in range(2):
        P(f"s_waitcnt vmcnt({1-b})")
        for gu in range(2):
            P(f"v_smfmac_f32_16x16x64_bf16 {v(A0+4*gu,4)}, {v(AR+4*b,4)}, {v(BW+16*gu+8*b,8)}, v144")
        if b == 0: P(f"v_max3_u32 v10, v{AR}, v{AR+1}, v{AR+2}")
    P(f"""
    v_max3_u32 v10, v10, v{AR+3}, v{AR+4}
    v_max3_u32 v10, v10, v{AR+5}, v{AR+6}
    v_max_u32 v10, v10, v{AR+7}
    v_cmp_eq_u32 vcc, -1, v10
    """)
    spin_tail(P, 50, "L_gretry", "L_gok")
    stamp(P, 11)
    P(f"""
    v_add_f32 v{A0}, v{A0}, v{A0+1}
    v_add_f32 v{A0+2}, v{A0+2}, v{A0+3}
    ds_write2_b32 v149, v{A0}, v{A0+2} offset0:0 offset1:16
    v_add_f32 v{A0+4}, v{A0+4}, v{A0+5}
    v_add_f32 v{A0+6}, v{A0+6}, v{A0+7}
    ds_write2_b32 v149, v{A0+4}, v{A0+6} offset0:128 offset1:144
    s_waitcnt lgkmcnt(0)
    s_barrier
    {FIN}
    """)
    flush_late(P)
    P(f"""
    L_pad2:
    s_branch L_pad3
    """)
    D = 16
    P(f"""
    L_f1fin:
    s_mov_b32 s49, {STATS}
    s_waitcnt lgkmcnt(0)
    v_and_b32 v9, 2047, v150
    v_lshlrev_b32 v9, 6, v9
    buffer_load_dwordx4 {v(40,4)}, v9, s[8:11], s49 offen sc1
    v_and_b32 v13, 7, v{vL}
    v_lshlrev_b32 v13, 3, v13
    """)
    for w in range(5):
        P(f"ds_read_b64 {v(D+4*w,2)}, v13 offset:{L_CS+128*w}")
        P(f"ds_read_b64 {v(D+4*w+2,2)}, v13 offset:{L_CS+128*w+64}")
    P(f"""
    v_lshlrev_b32 v13, 3, v{vL}
    s_waitcnt lgkmcnt(0)
    """)
    for w in range(1, 5):
        P(f"v_pk_add_f32 {v(D,2)}, {v(D,2)}, {v(D+4*w,2)}")
        P(f"v_pk_add_f32 {v(D+2,2)}, {v(D+2,2)}, {v(D+4*w+2,2)}")
    P(f"""
    s_branch L_swait
    L_sretry:
    buffer_load_dwordx4 {v(40,4)}, v9, s[8:11], s49 offen sc1
    L_swait:
    s_waitcnt vmcnt(0)
    v_cmp_ne_u32 vcc, v14, v42
    """)
    spin_tail(P, 50, "L_sretry", "L_sok")
    P(f"""
    s_lshl_b32 s49, s{sIDX}, 8
    s_add_u32 s49, s49, {ACT}
    s_lshr_b32 s47, s2, 6
    s_and_b32 s43, s{sJ}, 3
    s_lshl2_add_u32 s47, s47, s43
    s_lshl_b32 s43, s{sXCD}, 8
    s_lshl2_add_u32 s47, s47, s43
    s_add_u32 s47, s47, {SEN2}
    v_mul_f32 v44, -v40, v{D}
    v_mul_f32 v45, -v40, v{D+1}
    v_mul_f32 v46, -v40, v{D+2}
    v_mul_f32 v47, -v40, v{D+3}
    v_mul_f32 v42, {f2u(-1.4426950408889634)}, v41
    v_mul_f32 v43, v41, v41
    s_barrier
    """)
    for w in range(5): P(f"ds_read_b64 {v(D+4*w,2)}, v13 offset:{L_RED+1024*w}")
    for w in range(5): P(f"ds_read_b64 {v(D+4*w+2,2)}, v13 offset:{L_RED+1024*w+512}")
    P(f"""
    s_waitcnt lgkmcnt(7)
    v_pk_add_f32 {v(44,2)}, {v(44,2)}, {v(D,2)}
    v_pk_add_f32 {v(D+4,2)}, {v(D+4,2)}, {v(D+8,2)}
    s_waitcnt lgkmcnt(5)
    v_pk_add_f32 {v(D+12,2)}, {v(D+12,2)}, {v(D+16,2)}
    v_pk_add_f32 {v(44,2)}, {v(44,2)}, {v(D+4,2)}
    v_pk_add_f32 {v(44,2)}, {v(44,2)}, {v(D+12,2)}
    v_mul_f32 v{D}, v42, v44
    v_mul_f32 v{D+1}, v42, v45
    v_exp_f32 v{D}, v{D}
    v_exp_f32 v{D+1}, v{D+1}
    s_waitcnt lgkmcnt(0)
    v_pk_add_f32 {v(46,2)}, {v(46,2)}, {v(D+2,2)}
    v_pk_add_f32 {v(D+6,2)}, {v(D+6,2)}, {v(D+10,2)}
    v_add_f32 v{D}, 1.0, v{D}
    v_add_f32 v{D+1}, 1.0, v{D+1}
    v_pk_add_f32 {v(D+14,2)}, {v(D+14,2)}, {v(D+18,2)}
    v_rcp_f32 v{D}, v{D}
    v_rcp_f32 v{D+1}, v{D+1}
    v_pk_add_f32 {v(46,2)}, {v(46,2)}, {v(D+6,2)}
    v_mul_f32 v44, v44, v43
    v_mul_f32 v45, v45, v43
    v_pk_add_f32 {v(46,2)}, {v(46,2)}, {v(D+14,2)}
    v_pk_mul_f32 {v(44,2)}, {v(44,2)}, {v(D,2)}
    v_pk_mul_f32 {v(44,2)}, {v(44,2)}, {v(46,2)}
    v_cvt_pk_bf16_f32 v44, v44, v45
    v_min_u32 v44, -2, v44
    {"buffer_store_dword v14, v12, s[8:11], s47 offen" if OPT.get("h2pos", 1) == 2 else ""}
    buffer_store_dword v44, v{vL4}, s[8:11], s49 offen sc1
    s_mov_b64 exec, 1
    {"buffer_store_dword v14, v12, s[8:11], s47 offen" if OPT.get("h2pos", 1) == 1 else ""}
    {FIN}
    """)
    flush_late(P)
    P(f"""
    L_pad3:
    s_branch L_pad4
    """)
    P(f"""
    L_f2:
    s_cmp_eq_u32 s{sWV}, 7
    s_cbranch_scc1 L_f2fin
    s_lshl_b32 s49, s{sWV}, 12
    s_add_u32 s49, s49, {ACT}
    """)
    for blk in range(4):
        for ct in range(2):
            for j in range(4):
                P(f"ds_read_b64_tr_b16 {v(BW+16*blk+8*ct+2*j,2)}, v15 offset:{L_WT + 4096*blk + 32*ct + 64*(32*(j>>1) + 2*(j&1))}")
    for i in range(4): P(f"v_mov_b32 v{AR+12+i}, 0")
    P("s_waitcnt lgkmcnt(0)")
    P("s_barrier")
    stamp(P, 10)
    P("L_a2:")
    for i in range(3):
        P(f"buffer_load_dwordx4 {v(AR+4*i,4)}, v{vL16}, s[8:11], s49 offen offset:{1024*i} sc1")
    P(f"""
    s_cmp_eq_u32 s{sWV}, 6
    s_cbranch_scc1 L_a3
    buffer_load_dwordx4 {v(AR+12,4)}, v{vL16}, s[8:11], s49 offen offset:3072 sc1
    L_a3:
    v_mov_b32 v10, 0
    """)
    for i in range(8): P(f"v_mov_b32 v{A0+i}, 0")
    for b in range(4):
        if b < 3: P(f"s_waitcnt vmcnt({2-b})")
        for ct in range(2):
            P(f"v_smfmac_f32_16x16x64_bf16 {v(A0+4*ct,4)}, {v(AR+4*b,4)}, {v(BW+16*b+8*ct,8)}, v144")
            P(f"v_max3_u32 v10, v10, v{AR+4*b+2*ct}, v{AR+4*b+2*ct+1}")
    P(f"v_cmp_eq_u32 vcc, -1, v10")
    spin_tail(P, 50, "L_a2", "L_a4")
    stamp(P, 11)
    if OPT["stamps"]: P("s_add_u32 s94, s50, 1")
    P(f"""
    v_add_f32 v{A0}, v{A0}, v{A0+1}
    v_add_f32 v{A0+2}, v{A0+2}, v{A0+3}
    ds_write2_b32 v149, v{A0}, v{A0+2} offset0:0 offset1:32
    v_add_f32 v{A0+4}, v{A0+4}, v{A0+5}
    v_add_f32 v{A0+6}, v{A0+6}, v{A0+7}
    ds_write2_b32 v149, v{A0+4}, v{A0+6} offset0:16 offset1:48
    s_waitcnt lgkmcnt(0)
    s_barrier
    {FIN}
    """)
    flush_late(P)
    P(f"""
    L_pad4:
    s_branch L_tk1
    L_f2fin:
    v_and_b32 v13, 7, v{vL}
    s_waitcnt lgkmcnt(0)
    v_and_b32 v46, 2047, v150
    v_mul_u32_u24 v46, 1280, v46
    v_lshl_add_u32 v46, v13, 3, v46
    L_oretry:
    buffer_load_dwordx2 {v(44,2)}, v46, s[12:15], s58 offen sc1
    s_waitcnt vmcnt(0)
    v_max_u32 v10, v44, v45
    v_cmp_eq_u32 vcc, -1, v10
    """)
    spin_tail(P, 50, "L_oretry", "L_ook")
    P(f"""
    s_lshl_b32 s49, s{sXCD}, 8
    s_add_u32 s49, s49, {SEN2}
    s_mov_b32 s50, 0
    s_mov_b64 exec, 0xfff
    L_h2:
    buffer_load_dword v10, v{vL4}, s[8:11], s49 offen sc1
    s_add_u32 s50, s50, 1
    s_cmp_gt_u32 s50, {HINTMAX}
    s_waitcnt vmcnt(0)
    v_cmp_ne_u32 vcc, v14, v10
    s_cbranch_scc1 L_h2_d
    s_cbranch_vccnz L_h2
    L_h2_d:
    s_mov_b64 exec, -1
    s_barrier
    """)
    O = 48
    P(f"""
    v_lshlrev_b32 v9, 1, v150
    v_ashrrev_i32 v10, 31, v9
    v_not_b32 v10, v10
    v_or_b32 v10, 0x80000000, v10
    v_xor_b32 v9, v9, v10
    v_and_b32 v9, 0xffff0000, v9
    v_mul_f32 v9, {f2u(-1.4426950408889634)}, v9
    v_exp_f32 v9, v9
    v_add_f32 v9, 1.0, v9
    v_rcp_f32 v47, v9
    v_lshlrev_b32 v{O}, 16, v44
    v_and_b32 v{O+1}, 0xffff0000, v44
    v_lshlrev_b32 v{O+2}, 16, v45
    v_and_b32 v{O+3}, 0xffff0000, v45
    s_barrier
    """)
    for w in range(7): P(f"ds_read_b128 {v(D+4*w,4)}, v{vL16} offset:{L_RED+1024*w}")
    def pk2(d, x):
        P(f"v_pk_add_f32 {v(d,2)}, {v(d,2)}, {v(x,2)}"); P(f"v_pk_add_f32 {v(d+2,2)}, {v(d+2,2)}, {v(x+2,2)}")
    P("s_waitcnt lgkmcnt(5)"); pk2(D, D+4)
    P("s_waitcnt lgkmcnt(3)"); pk2(D+8, D+12)
    P("s_waitcnt lgkmcnt(1)"); pk2(D+16, D+20); pk2(D, D+8)
    P("s_waitcnt lgkmcnt(0)"); pk2(D+16, D+24); pk2(D, D+16)
    for i in range(4): P(f"v_fma_f32 v{O+i}, v{D+i}, v47, v{O+i}")
    P(f"""
    v_cvt_pk_bf16_f32 v44, v{O}, v{O+1}
    v_cvt_pk_bf16_f32 v45, v{O+2}, v{O+3}
    buffer_store_dwordx2 {v(44,2)}, v46, s[12:15], s58 offen{" sc1" if OPT.get("fsc1", 0) else ""}
    L_fin:
    """)
    if OPT.get("padto"):
        if OPT.get("padwg") is not None:
            P(f"s_cmp_lg_u32 s2, {OPT['padwg']}")
            P("s_cbranch_scc1 L_fin2")
        if OPT.get("padfrom") == 999: P("s_memrealtime s[70:71]")
        P(f"""
        L_padt:
        s_memrealtime s[72:73]
        s_waitcnt lgkmcnt(0)
        s_sub_u32 s72, s72, s70
        s_cmp_lt_u32 s72, {OPT["padto"]}
        s_cbranch_scc1 L_padt
        """)
    P("L_fin2:")
    if OPT["stamps"]:
        P(f"""
        s_memrealtime s[{70+2*NST}:{71+2*NST}]
        s_waitcnt vmcnt(0)
        s_memrealtime s[{72+2*NST}:{73+2*NST}]
        s_waitcnt lgkmcnt(0)
        s_lshl_b32 s49, s2, 6
        s_lshl_b32 s50, s{sWV}, 14
        s_add_u32 s49, s49, s50
        s_add_u32 s49, s49, {ST_OFF}
        s_mov_b64 exec, 1
        v_mov_b32 v1, 0
        """)
        for i in range(NST+2):
            P(f"v_mov_b32 v2, s{70+2*i}")
            P(f"buffer_store_dword v2, v1, s[8:11], s49 offen offset:{4*i}")
    P("L_end:")
    P("s_endpgm")
    flush_late(P)
    for l_ in IDLE: P.raw(l_)
    P("L_last:")
    P("s_endpgm")
    return name

def main(out):
    P = Prog()
    name = gen(P)
    body = P.finalize()
    hdr = f"""; fused 2D-DFT (two-stage MFMA) + LayerNorms + top-8 routed SwiGLU; written by a generator script of mine
; @launch grid=(256,1,1) block=(512,1,1) lds={L_END}
.amdgcn_target "amdgcn-amd-amdhsa--gfx950"
.text
"""
    d = f""".section .rodata,"a"
.p2align 6
.amdhsa_kernel {name}
  .amdhsa_next_free_vgpr 256
  .amdhsa_next_free_sgpr 102
  .amdhsa_accum_offset 256
  .amdhsa_group_segment_fixed_size 0
  .amdhsa_kernarg_size 104
  .amdhsa_user_sgpr_count 2
  .amdhsa_user_sgpr_kernarg_segment_ptr 1
  .amdhsa_system_sgpr_workgroup_id_x 1
.end_amdhsa_kernel
"""
    open(out, "w").write(hdr + body + d)

if __name__ == "__main__":
    for a_ in sys.argv[2:]:
        k, _, val = a_.partition("=")
        OPT[k] = int(val) if val else True
    main(sys.argv[1])
```

```python
import sys, struct
sys.path.insert(0, "work")
from asmlib import *

NAME = "sequential_preLN__spectral_fnet__moe_arch_mod__prompt"
XB = 2621440
FLAGS = 0x2c0000
KEYS = 0x8000
KST = 384
ACT = 0x18000
ZM = 0x20000
ZT = ZM + 0x200000
STATS = 0x2a0000
SEN1 = 0x1000
SEN2 = 0x2000
SELR = 0x3000
HINTMAX = 64
ST_OFF = 0x300000
WS_SZ = 0x400000
OOB = 0x1000000
SPIN = 1 << 16

L_MISC = 0
L_CNT = 0; L_TAG = 4; L_ZP = 16; L_SEL = 32; L_KREC = 64; L_GM = 128; L_LIST = 192
L_PS = 512
L_CS = 1024
L_RED = 2048
L_HT = 2048; HS = 128
L_W = 12288
L_X = 32768
L_CF = 114688
L_XR = 118784
XP = 1284
L_WR = 139520
L_PART = 12288
L_WF = 20480
L_RM = 512
L_WT1 = 114688
L_WT = 12288
L_END = 114688 + 40960
RSB = 2576

sGRP, sJ, sWV, sSL, sXCD, sTB, sSTR, sROW, sROWB, sIDX, sRHO, sC640, sHW = 32, 33, 34, 36, 37, 38, 39, 40, 41, 35, 44, 45, 46
vN, vQ, vW, vL, vL4, vL16 = 1, 2, 3, 4, 6, 8
sTAG = 3; sZP = 100

OPT = dict(stamps=False, xnt=0, wnt=0, cpre=1, npre=5, tail=0, pf1=1)

def f2u(x): return "0x%08x" % struct.unpack("<I", struct.pack("<f", x))[0]
NST = 14
SEC = ["p1"]
def stamp(P, i):
    if OPT["stamps"]: P(f"s_memrealtime s[{70+2*i}:{71+2*i}]")
    if OPT.get("padfrom") == {"p1": 0, "m": 100, "p2": 200, "ffn": 300}[SEC[0]] + i and i: P("s_memrealtime s[70:71]")

def bf16_round(r):
    return [f"v_cvt_pk_bf16_f32 {v(r)}, {v(r)}, {v(r)}", f"v_lshlrev_b32 {v(r)}, 16, {v(r)}"]

def spin_tail(P, cnt, again, ok):
    P(f"""
    s_cbranch_vccnz {ok}_r
    {ok}:
    """)
    LATE.append(f"""
    {ok}_r:
    s_add_u32 s{cnt}, s{cnt}, 1
    s_cmp_gt_u32 s{cnt}, {SPIN}
    s_cbranch_scc1 {ok}
    s_branch {again}
    """)
LATE = []
def flush_late(P):
    for t in LATE: P(t)
    del LATE[:]

def cheb2(P, T, k):
    for i in range(2, 8):
        P(f"v_fma_f32 v{T+i}, v{k}, v{T+i-1}, -v{T+i-2}")
        P(f"v_fma_f32 v{T+8+i}, v{k}, v{T+8+i-1}, -v{T+8+i-2}")

def gen(P):
    global KST
    KST = OPT.get("kst", 64)
    name = NAME + "_kernel"
    xnt = " nt" if OPT["xnt"] else ""
    wnt = " nt" if OPT["wnt"] else ""
    P.raw(".p2align 12"); P.raw(".fill 0x340, 4, 0xbf810000")
    P.raw(f".globl {name}"); P.raw(".p2align 8"); P.raw(f".type {name},@function"); P.raw(f"{name}:")
    P("L_start:")
    stamp(P, 0)
    if OPT.get("padto"): P("s_memrealtime s[70:71]")
    def ptrs():
        P(f"""
        s_load_dwordx2 s[12:13], s[0:1], 80
        s_load_dwordx2 s[16:17], s[0:1], 48
        s_load_dwordx2 s[20:21], s[0:1], 56
        s_load_dwordx2 s[24:25], s[0:1], 64
        s_load_dwordx2 s[28:29], s[0:1], 72
        """)
    ZP = [66, 67, 42, 68]
    FIN = "s_branch L_fin" if (OPT["stamps"] or OPT.get("padto")) else "s_endpgm"
    MK = 24
    def tagcalc():
        P(f"""
        s_mul_i32 s{sTAG}, s{sTAG}, 0x9e3779b1
        s_add_u32 s{sTAG}, s{sTAG}, 0x7f4a7c15
        v_mov_b32 v14, s{sTAG}
        """)
        for i in range(3):
            P(f"s_bfe_u32 s43, s{sTAG}, {hex((2<<16) | (2*i))}")
            P(f"s_mul_i32 s43, s43, 0x8001")
            P(f"s_and_b32 s{ZP[i]}, s43, 0x10001")
        P(f"s_xor_b32 s68, s66, 0x10001")
    def consts():
        P(f"""
        s_mov_b64 s[12:13], s[26:27]
        s_mov_b64 s[16:17], s[18:19]
        s_mov_b64 s[28:29], s[24:25]
        s_mov_b64 s[24:25], s[22:23]
        s_mov_b32 s14, {XB}
        s_mov_b32 s15, 0x20000
        s_mov_b32 s18, 1280
        s_mov_b32 s19, 0x20000
        s_mov_b32 s22, {640*3456}
        s_mov_b32 s23, 0x20000
        s_mov_b32 s26, {640*3456}
        s_mov_b32 s27, 0x20000
        s_mov_b32 s30, {1728*1280}
        s_mov_b32 s31, 0x20000
        v_lshlrev_b32 v{vL4}, 2, v{vL}
        v_mov_b32 v13, 0
        s_and_b32 s43, s{sJ}, 3
        s_lshr_b32 s{sIDX}, s2, 6
        s_lshl3_add_u32 s{sIDX}, s{sIDX}, s{sXCD}
        s_lshl2_add_u32 s{sIDX}, s{sIDX}, s43
        s_cmp_eq_u32 s{sGRP}, 0
        s_cselect_b32 s{sSTR}, 32, 64
        s_lshl_b32 s{sTB}, s{sSTR}, 3
        s_mul_i32 s{sTB}, s{sTB}, s43
        s_add_u32 s{sTB}, s{sTB}, s{sGRP}
        """)
    def rows4(dst=92):
        for pr in range(2):
            sa, sb = 56 + 2*pr, 57 + 2*pr
            P(f"""
            s_add_u32 s{sa}, s{sHW}, {4*pr}
            s_mul_i32 s{sa}, s{sa}, s{sSTR}
            s_add_u32 s{sa}, s{sa}, s{sTB}
            s_sub_u32 s{sb}, 2048, s{sa}
            s_cmp_eq_u32 s{sa}, 0
            s_cselect_b32 s{sb}, 1024, s{sb}
            s_mul_i32 s{sa}, s{sa}, 1280
            s_mul_i32 s{sb}, s{sb}, 1280
            """)
        P(f"""
        v_mov_b32 v10, s56
        v_mov_b32 v9, s57
        v_mov_b32 v11, s58
        v_mov_b32 v12, s59
        v_mov_b32_dpp v10, v9 quad_perm:[0,1,2,3] row_mask:0x2 bank_mask:0xf
        s_movk_i32 s62, 1024
        v_mov_b32_dpp v10, v11 quad_perm:[0,1,2,3] row_mask:0x4 bank_mask:0xf
        v_mov_b32_dpp v10, v12 quad_perm:[0,1,2,3] row_mask:0x8 bank_mask:0xf
        v_lshl_add_u32 v{dst}, v{vN}, 4, v10
        """)
    P(f"""
    s_load_dwordx2 s[4:5], s[0:1], 0
    s_load_dwordx2 s[8:9], s[0:1], 96
    s_load_dwordx16 s[16:31], s[0:1], 40
    s_mov_b32 s10, {WS_SZ}
    s_mov_b32 s11, 0x20000
    v_lshrrev_b32 v{vW}, 6, v0
    s_cmp_ge_u32 s2, 256
    s_cbranch_scc1 L_end
    v_readfirstlane_b32 s{sWV}, v{vW}
    s_bfe_u32 s{sJ}, s2, 0x30003
    v_and_b32 v{vL}, 63, v0
    v_and_b32 v{vN}, 15, v0
    v_bfe_u32 v{vQ}, v0, 4, 2
    s_and_b32 s{sXCD}, s2, 7
    s_lshr_b32 s43, s2, 7
    s_lshl1_add_u32 s{sGRP}, s{sXCD}, s43
    s_sub_u32 s43, 32, s{sGRP}
    s_cmp_eq_u32 s{sGRP}, 0
    s_cselect_b32 s43, 16, s43
    s_bitcmp1_b32 s2, 6
    s_cselect_b32 s{sGRP}, s43, s{sGRP}
    s_mul_i32 s{sRHO}, s{sJ}, 5
    s_lshr_b32 s{sRHO}, s{sRHO}, 2
    s_and_b32 s{sHW}, s{sWV}, 3
    s_mov_b32 s{sC640}, {f2u(1.0/640)}
    v_lshlrev_b32 v{vL16}, 4, v{vL}
    s_cmp_ge_u32 s{sWV}, 4
    s_cbranch_scc1 L_W
    """)
    if OPT["cpre"]:
        P(f"""
        s_cmp_ge_u32 s{sWV}, 3
        s_cbranch_scc1 L_Mx
        s_cmp_ge_u32 s2, {OPT.get("cprewg", 32)}
        s_cbranch_scc1 L_Mx
        s_getpc_b64 s[42:43]
        L_pc:
        v_lshlrev_b32 v10, 7, v0
        v_add_u32 v10, 896, v10
        v_min_u32 v10, L_last-L_pc, v10
        v_mov_b32 v11, s43
        v_add_co_u32 v10, vcc, s42, v10
        v_addc_co_u32 v11, vcc, 0, v11, vcc
        global_load_dword v15, v[10:11], off
        """)
    P(f"""
    L_Mx:
    v_lshrrev_b32 v9, 3, v{vL}
    s_lshl_b32 s47, s{sHW}, 4
    v_add_u32 v5, s47, v9
    v_mul_u32_u24 v5, 40960, v5
    v_lshrrev_b32 v7, 2, v9
    v_and_or_b32 v9, v9, 6, v7
    v_xor_b32 v9, v9, v{vL}
    v_and_b32 v9, 7, v9
    v_lshl_add_u32 v5, v9, 4, v5
    v_xor_b32 v7, 16, v5
    v_add_u32 v7, {8*40960}, v7
    s_mul_i32 s50, s{sGRP}, 1280
    s_add_u32 s47, s50, 1280
    s_lshr_b32 s52, s{sWV}, 2
    s_mul_i32 s52, s52, 5
    s_add_u32 s48, s{sRHO}, s52
    s_cmp_ge_u32 s48, 10
    s_cselect_b32 s49, 10, 0
    s_sub_u32 s48, s48, s49
    s_lshl_b32 s48, s48, 7
    s_add_u32 s48, s48, s50
    s_mul_i32 s49, s{sHW}, 20480
    s_add_u32 s49, s49, {L_X}
    s_lshl_b32 s52, s52, 11
    s_add_u32 m0, s49, s52
    s_mov_b32 s6, {XB}
    s_mov_b32 s7, 0x20000
    s_mov_b32 s52, 5
    s_waitcnt lgkmcnt(0)
    """)
    stamp(P, 1)
    P(f"""
    s_cmp_lt_u32 s{sWV}, 4
    s_cbranch_scc1 L_xl
    s_load_dword s{sTAG}, s[8:9], 0
    s_barrier
    s_branch L_H1
    L_xl:
    buffer_load_dwordx4 v5, s[4:7], s48 offen{xnt} lds
    s_add_u32 m0, m0, 1024
    s_add_u32 s51, s48, 128
    buffer_load_dwordx4 v7, s[4:7], s48 offen{xnt} lds
    s_add_u32 m0, m0, 1024
    s_cmp_eq_u32 s51, s47
    s_cselect_b32 s48, s50, s51
    s_sub_u32 s52, s52, 1
    s_cmp_lg_u32 s52, 0
    s_cbranch_scc1 L_xl
    s_cmp_ge_u32 s{sWV}, 4
    s_cbranch_scc1 L_H2
    s_barrier
    s_branch L_M
    """)
    def wrow(dst, fill=None):
        T = 32; K8 = 76; a_, b_, c_, d_ = 78, 79, 80, 81
        P(f"""
        s_cmp_eq_u32 s{sJ}, 0
        s_cselect_b32 s53, 8, s{sJ}
        s_lshl_b32 s54, s{sRHO}, 6
        """)
        if dst is None: P(f"s_lshl_b32 s55, s{sHW}, 6"); P("s_add_u32 s53, s53, s55")
        else: P("s_add_u32 s53, s53, 256")
        P(f"""
        v_and_b32 v{a_}, 7, v{vN}
        v_lshl_add_u32 v{a_}, v{a_}, 3, s53
        v_lshrrev_b32 v{c_}, 3, v{vN}
        v_lshl_add_u32 v{b_}, v{vQ}, 1, s54
        v_cvt_f32_u32 v{c_}, v{c_}
        v_mul_u32_u24 v{b_}, v{a_}, v{b_}
        v_mul_f32 v{c_}, {f2u(-0.25)}, v{c_}
        v_cvt_f32_u32 v{a_}, v{a_}
        v_cvt_f32_u32 v{b_}, v{b_}
        v_mul_f32 v{a_}, s{sC640}, v{a_}
        v_fma_f32 v{b_}, v{b_}, s{sC640}, v{c_}
        v_mul_f32 v{K8}, {f2u(8.0)}, v{a_}
        v_fract_f32 v{T}, v{b_}
        v_add_f32 v{T+2}, v{T}, v{a_}
        v_add_f32 v{T+4}, v{T}, v{K8}
        v_add_f32 v{T+6}, v{T+2}, v{K8}
        v_cos_f32 v{K8}, v{K8}
        """)
        for i in range(4):
            P(f"v_sin_f32 v{T+2*i+1}, -v{T+2*i}")
            P(f"v_cos_f32 v{T+2*i}, v{T+2*i}")
        P(f"v_add_f32 v{K8}, v{K8}, v{K8}")
        if dst is None: P(f"s_mul_i32 s55, s{sHW}, 5120"); P(f"v_add_u32 v{d_}, s55, v{vL16}")
        P(f"v_mov_b32 v{K8+1}, v{K8}")
        for kp in range(5):
            if kp:
                for c in (2*kp, 2*kp+1):
                    for i in range(2):
                        P(f"v_pk_fma_f32 {v(T+4*c+2*i,2)}, {v(K8,2)}, {v(T+4*c-4+2*i,2)}, {v(T+4*c-8+2*i,2)} neg_lo:[0,0,1] neg_hi:[0,0,1]")
            pk = 84 + 4*(kp & 1) if dst is None else dst + 4*kp
            for i in range(4): P(f"v_cvt_pk_bf16_f32 v{pk+i}, v{T+8*kp+2*i}, v{T+8*kp+2*i+1}")
            if fill:
                for _ in range(2): P(fill.pop(0))
            if dst is None: P(f"ds_write_b128 v{d_}, {v(pk,4)} offset:{L_W + 1024*kp}")
    P("L_W:")
    wrow(None)
    PZ = 152; T = 64; F = 80
    P(f"""
    s_branch L_Mx
    L_H1:
    """)
    consts()
    P(f"""
    v_mov_b32 v{PZ}, -1
    v_mov_b32 v{PZ+1}, -1
    v_mov_b32 v{PZ+2}, -1
    v_mov_b32 v{PZ+3}, -1
    v_lshrrev_b32 v150, 1, v{vL}
    v_and_b32 v9, 2, v150
    v_bfe_u32 v10, v150, 3, 1
    v_and_b32 v150, 21, v150
    v_lshl_or_b32 v150, v9, 2, v150
    v_lshl_or_b32 v150, v10, 1, v150
    v_mul_u32_u24 v150, 3456, v150
    v_and_b32 v9, 1, v{vL}
    v_lshl_add_u32 v150, v9, 4, v150
    v_mul_u32_u24 v151, 1280, v{vL}
    s_cmp_ge_u32 s{sJ}, 4
    s_cbranch_scc1 L_hs1
    """)
    rows4(107)
    P(f"""
    s_mul_i32 s53, s{sHW}, {XP}
    s_mul_i32 s54, s{sHW}, 320
    s_mov_b32 s55, m0
    s_add_u32 m0, s54, {L_WR}
    s_mov_b64 exec, 0xfffff
    buffer_load_dwordx4 v{vL16}, s[16:19], s54 offen lds
    s_mov_b64 exec, -1
    s_mov_b32 m0, s55
    s_branch L_xl
    """)
    P(f"""
    L_hs1:
    v_mov_b32 v107, 0
    s_and_b32 s63, s{sJ}, 3
    s_lshl2_add_u32 s63, s63, s{sHW}
    s_and_b32 s56, s{sJ}, 3
    s_mul_i32 s56, s56, 5
    s_add_u32 s57, s56, 4
    s_add_u32 s56, s56, s{sHW}
    s_lshl_b32 s43, s{sIDX}, 5
    s_mul_i32 s58, s56, {32*3456}
    s_add_u32 s58, s58, s43
    s_mul_i32 s59, s57, {32*3456}
    s_add_u32 s59, s59, s43
    s_and_b32 s43, s56, 28
    s_add_u32 s56, s56, s43
    s_lshl_b32 s56, s56, 10
    s_and_b32 s43, s57, 28
    s_add_u32 s57, s57, s43
    s_lshl_b32 s57, s57, 10
    s_lshl_b32 s43, s{sHW}, 4
    s_bfm_b64 s[60:61], 16, s43
    s_and_b32 s63, s63, 7
    s_mul_i32 s65, s63, {54*1280}
    s_sub_u32 s43, s{sIDX}, 108
    s_lshr_b32 s43, s43, 1
    s_lshl_b32 s43, s43, 7
    s_add_u32 s65, s65, s43
    s_lshl2_add_u32 s63, s{sIDX}, s{sHW}
    s_lshl_b32 s63, s63, 6
    s_add_u32 s63, s63, {ACT}
    s_branch L_xl
    L_H2:
    """)
    stamp(P, 2)
    P(f"""
    s_barrier
    s_cmp_ge_u32 s{sJ}, 4
    s_cbranch_scc1 L_hc1
    """)
    for i in range(4):
        P(f"s_add_u32 m0, s53, {L_XR + XP*[0, 8, 4, 12][i]}")
        P(f"buffer_load_dwordx4 v{vL16}, s[4:7], s{56+i} offen lds")
    P("s_mov_b64 exec, 0xffff")
    for i in range(4):
        P(f"s_add_u32 m0, s53, {L_XR + XP*[0, 8, 4, 12][i]}")
        P(f"buffer_load_dwordx4 v{vL16}, s[4:7], s{56+i} offen offset:1024 lds")
    P(f"""
    s_mov_b64 exec, -1
    """)
    NPB = OPT.get("npb", 0)
    pzs = [f"buffer_store_dwordx4 {v(PZ,4)}, v{vL16}, s[12:15], s{56+i} offen sc1" for i in range(4)] + [f"buffer_store_dwordx4 {v(PZ,4)}, v107, s[12:15], s62 offen sc1"]
    for o in pzs[:NPB]: P(o)
    P(f"""
    s_waitcnt vmcnt({8+NPB})
    s_barrier
    """)
    for o in pzs[NPB:]: P(o)
    P(f"""
    s_branch L_hs4
    L_hc1:
    s_cmp_ge_u32 s{sIDX}, 108
    s_cbranch_scc1 L_hs2
    s_mov_b64 exec, 15
    buffer_store_dwordx4 {v(PZ,4)}, v{vL16}, s[8:11], s63 offen sc1
    s_mov_b64 exec, -1
    s_add_u32 m0, s56, {L_WT1}
    s_nop 0
    buffer_load_dwordx4 v150, s[20:23], s58 offen lds
    s_add_u32 m0, s56, {L_WT1+4096}
    s_nop 0
    buffer_load_dwordx4 v150, s[24:27], s58 offen lds
    s_add_u32 m0, s57, {L_WT1}
    s_mov_b64 exec, s[60:61]
    buffer_load_dwordx4 v150, s[20:23], s59 offen lds
    s_add_u32 m0, s57, {L_WT1+4096}
    s_nop 0
    buffer_load_dwordx4 v150, s[24:27], s59 offen lds
    s_lshr_b32 s65, s2, 6
    s_and_b32 s43, s{sJ}, 3
    s_lshl2_add_u32 s65, s65, s43
    s_lshr_b32 s43, s{sHW}, 1
    s_lshl1_add_u32 s65, s65, s43
    s_mul_i32 s65, s65, {36*1280}
    s_and_b32 s43, s{sHW}, 1
    s_lshl1_add_u32 s43, s{sXCD}, s43
    s_lshl_b32 s43, s43, 7
    s_add_u32 s65, s65, s43
    s_add_u32 s65, s65, {864*1280 - 768}
    s_cmp_lt_u32 s{sXCD}, 3
    s_cselect_b32 s65, {OOB}, s65
    s_mov_b32 s64, 0xf
    s_waitcnt vmcnt(5)
    s_branch L_hs3
    L_hs2:
    s_mov_b32 exec_hi, 0x3fffff
    buffer_load_dword v253, v151, s[28:31], s65 offen{wnt}
    s_add_u32 s65, s65, {432*1280}
    s_mov_b32 s64, 0x3fffff
    s_waitcnt vmcnt(1)
    L_hs3:
    s_barrier
    L_hs4:
    s_mov_b64 exec, -1
    s_waitcnt lgkmcnt(0)
    """)
    stamp(P, 3)
    tagcalc()
    P(f"""
    v_mov_b32 v48, s{ZP[0]}
    v_mov_b32 v49, s{ZP[1]}
    v_mov_b32 v50, s{ZP[2]}
    v_mov_b32 v51, s{ZP[3]}
    ds_write_b128 v13, v[48:51] offset:{L_ZP}
    ds_write2_b32 v13, v13, v14 offset0:0 offset1:1
    ds_write_b32 v{vL4}, v{PZ} offset:{L_LIST}
    """)
    P(f"""
    s_cmp_ge_u32 s{sJ}, 4
    s_cbranch_scc1 L_hf
    s_waitcnt vmcnt(5) lgkmcnt(0)
    """)
    stamp(P, 4)
    P("s_barrier")
    T = 32
    P(f"""
    v_and_b32 v10, 7, v{vN}
    v_mul_u32_u24 v10, s{sSTR}, v10
    v_add_u32 v10, s{sTB}, v10
    v_sub_u32 v11, 2048, v10
    v_mov_b32 v12, 1024
    v_cmp_eq_u32 vcc, 0, v10
    v_cndmask_b32 v11, v11, v12, vcc
    v_cmp_lt_u32 vcc, 7, v{vN}
    v_cndmask_b32 v10, v10, v11, vcc
    v_and_b32 v11, 63, v10
    v_bfrev_b32 v12, 1
    v_cmp_gt_u32 vcc, 32, v11
    v_cndmask_b32 v12, 0, v12, vcc
    v_lshrrev_b32 v9, 1, v11
    s_lshl_b32 s49, s{sHW}, 3
    """)
    for h in range(2):
        P(f"""
        v_add_u32 v11, s49, v{vQ}
        v_mul_u32_u24 v11, v11, v10
        v_cvt_f32_u32 v11, v11
        v_mul_f32 v11, {f2u(1.0/2048)}, v11
        v_cos_f32 v{T+4}, v11
        v_sin_f32 v{T+5}, v11
        s_add_u32 s49, s49, 4
        v_cvt_pk_f16_f32 v{T+2*h}, v{T+4}, v{T+5}
        v_cvt_pk_f16_f32 v{T+2*h+1}, -v{T+5}, v{T+4}
        v_xor_b32 v{T+2*h}, v12, v{T+2*h}
        v_xor_b32 v{T+2*h+1}, v12, v{T+2*h+1}
        """)
    P(f"""
    s_cmp_lg_u32 s{sGRP}, 0
    s_cbranch_scc1 L_nofix
    """)
    for i in range(4):
        P(f"v_and_b32 v{T+i}, 0xffff, v{T+i}")
        P(f"v_lshlrev_b32 v{T+i}, v9, v{T+i}")
    P(f"""
    L_nofix:
    s_lshl_b32 s49, s{sHW}, 10
    s_add_u32 s49, s49, {L_CF}
    v_add_u32 v11, s49, v{vL16}
    ds_write_b128 v11, {v(T,4)}
    """)

    P(f"""
    s_branch L_prep
    L_hf:
    s_waitcnt lgkmcnt(0)
    """)
    stamp(P, 4)
    P(f"""
    s_barrier
    s_waitcnt vmcnt(4)
    s_barrier
    s_mov_b32 exec_hi, s64
    buffer_load_dword v253, v151, s[28:31], s65 offen{wnt}
    s_mov_b64 exec, -1
    s_branch L_noflag
    """)

    P.raw(".p2align 12")
    WR_ = 156; XL = 16; U = 56; AD = 96; C1 = 108; F = 116; G = 124; S = 128; ON = 132; IX = 136
    ACC = 16; RHO = 138; ZV = 150; PK = 36
    SEC[0] = "m"
    P("L_M:")
    stamp(P, 2)
    wq = [f"ds_read_b128 {v(WR_+4*f,4)}, v{vL16} offset:{L_W + 1024*f}" for f in range(20)]
    for o in wq: P(o)
    wrow(WR_ + 80)
    P(f"""
    v_mul_u32_u24 v9, 10, v{vQ}
    v_lshrrev_b32 v10, 1, v{vN}
    v_xor_b32 v10, v10, v{vN}
    v_bfe_u32 v10, v10, 2, 1
    v_and_or_b32 v10, v{vN}, 6, v10
    v_lshl_add_u32 v11, v{vN}, 7, s49
    """)
    for c in range(0, 10, 2):
        P(f"""
        v_xor_b32 v12, v9, v10
        v_and_b32 v{AD+c}, 7, v12
        v_lshrrev_b32 v12, 3, v12
        v_lshl_add_u32 v{AD+c}, v{AD+c}, 4, v11
        v_lshl_add_u32 v{AD+c}, v12, 11, v{AD+c}
        v_xor_b32 v{AD+c+1}, 16, v{AD+c}
        """)
        if c < 8: P("v_add_u32 v9, 2, v9")
    P(f"""
    v_mov_b32 v{ON}, 0x3f803f80
    v_mov_b32 v{ON+1}, 0x3f803f80
    v_mov_b32 v{ON+2}, 0x3f803f80
    v_mov_b32 v{ON+3}, 0x3f803f80
    v_and_b32 v9, 1, v{vN}
    v_mul_u32_u24 v{IX}, 0xaaaa, v9
    v_or_b32 v{IX}, 0x4444, v{IX}
    s_mov_b32 s60, 0x22222222
    s_mov_b32 s61, s60
    s_lshl_b64 s[62:63], s[60:61], 1
    s_lshl_b64 s[64:65], s[60:61], 2
    """)
    P(f"""
    v_mul_u32_u24 v9, s{sJ}, v{vQ}
    v_and_b32 v10, 1, v{vN}
    v_lshlrev_b32 v10, 1, v10
    v_sub_u32 v9, v9, v10
    v_cvt_f32_i32 v9, v9
    v_mul_f32 v9, {f2u(0.125)}, v9
    v_cos_f32 v9, v9
    v_and_b32 v10, 2, v{vN}
    v_lshlrev_b32 v10, 3, v10
    v_cvt_pk_bf16_f32 v9, v9, 0
    v_lshlrev_b32 v9, v10, v9
    v_lshrrev_b32 v10, 2, v{vN}
    s_and_b32 s43, s{sJ}, 1
    s_mul_i32 s43, s43, 0x80008000
    """)
    for i in range(4):
        P(f"v_cmp_eq_u32 vcc, {i}, v10")
        P(f"v_cndmask_b32 v{C1+i}, 0, v9, vcc")
        P(f"v_xor_b32 v{C1+4+i}, s43, v{C1+i}")
    P_ = P
    P = Prog(); T = 138
    P(f"""
    v_lshrrev_b32 v9, 1, v{vN}
    v_lshl_add_u32 v9, s{sHW}, 3, v9
    v_and_b32 v11, 1, v{vN}
    v_lshl_add_u32 v10, v9, 1, v11
    v_cmp_eq_u32 vcc, 1, v10
    v_cndmask_b32 v9, v9, 32, vcc
    v_cndmask_b32 v11, v11, 0, vcc
    v_cvt_f32_u32 v9, v9
    v_cvt_f32_u32 v11, v11
    v_mul_f32 v9, {f2u(1.0/64)}, v9
    v_mul_f32 v11, {f2u(-0.25)}, v11
    v_lshlrev_b32 v10, 3, v{vQ}
    v_cvt_f32_u32 v10, v10
    v_cos_f32 v12, v9
    v_fma_f32 v{T}, v9, v10, v11
    v_add_f32 v10, {f2u(32.0)}, v10
    v_fma_f32 v{T+8}, v9, v10, v11
    v_add_f32 v{T+1}, v{T}, v9
    v_add_f32 v{T+9}, v{T+8}, v9
    v_cos_f32 v{T}, v{T}
    v_cos_f32 v{T+1}, v{T+1}
    v_cos_f32 v{T+8}, v{T+8}
    v_cos_f32 v{T+9}, v{T+9}
    v_add_f32 v12, v12, v12
    """)
    cheb2(P, T, 12)
    for i in range(8): P(f"v_cvt_pk_f16_f32 v{F+i}, v{T+2*i}, v{T+2*i+1}")
    FG = list(P.lines)
    P = Prog()
    P(f"""
    v_and_b32 v148, 7, v{vN}
    v_lshlrev_b32 v148, 4, v148
    v_lshl_add_u32 v148, v{vN}, 7, v148
    v_lshlrev_b32 v142, 5, v{vW}
    v_lshl_add_u32 v142, v{vQ}, 3, v142
    v_xor_b32 v142, v142, v148
    v_lshlrev_b32 v143, 4, v{vQ}
    v_xor_b32 v143, v143, v148
    v_xor_b32 v148, 64, v143
    v_lshlrev_b32 v144, 17, v{vQ}
    v_lshl_add_u32 v144, v{vN}, 4, v144
    v_lshlrev_b32 v145, 15, v{vQ}
    v_lshl_add_u32 v145, v{vN}, 2, v145
    s_mov_b32 s55, 0xfffefffe
    v_and_b32 v146, 3, v{vN}
    v_lshlrev_b32 v146, 2, v146
    v_mov_b32 v13, 0
    s_lshl_b32 s52, s{sHW}, 19
    s_lshl_b32 s43, s{sGRP}, 11
    s_add_u32 s52, s52, s43
    s_lshl_b32 s43, s{sJ}, 8
    s_add_u32 s52, s52, s43
    s_lshr_b32 s56, s52, 2
    s_add_u32 s52, s52, {ZM}
    s_add_u32 s53, s52, 65536
    s_add_u32 s56, s56, {ZT}
    s_add_u32 s57, s56, 16384
    """)
    AB_ = list(P.lines)
    P = P_
    P(f"""
    v_mov_b32 v{S}, 0
    v_mov_b32 v{S+1}, 0
    v_mov_b32 v{S+2}, 0
    v_mov_b32 v{S+3}, 0
    """)
    stamp(P, 13)
    P("s_waitcnt vmcnt(0)")
    stamp(P, 3)
    def half(hi, fills, extra):
        for c in range(10): P(f"ds_read_b128 {v(XL+4*c,4)}, v{AD+c}" + (" offset:10240" if hi else ""))
        if not hi: P("s_barrier")
        for k in range(5):
            x = XL + 8*k
            fl = fills(k)
            mm = [f"v_mfma_f32_16x16x32_bf16 {v(U+8*k,4)}, {v(C1+4*hi,4)}, {v(x,4)}, {v(U+8*k,4) if hi else '0'}",
                  f"v_mfma_f32_16x16x32_bf16 {v(G,4)}, {v(x,4)}, {v(x,4)}, {'0' if (k==0 and not hi) else v(G,4)}",
                  f"v_mfma_f32_16x16x32_bf16 {v(U+8*k+4,4)}, {v(C1+4*hi,4)}, {v(x+4,4)}, {v(U+8*k+4,4) if hi else '0'}",
                  f"v_mfma_f32_16x16x32_bf16 {v(G,4)}, {v(x+4,4)}, {v(x+4,4)}, {v(G,4)}",
                  f"v_smfmac_f32_16x16x64_bf16 {v(S,4)}, {v(ON,4)}, {v(x,8)}, v{IX}"]
            for i, m in enumerate(mm):
                if i in (0, 2): P(f"s_waitcnt lgkmcnt({9 - 2*k - i//2})")
                P(m)
                for _ in range(2):
                    if i >= 2 and fl: P(fl.pop(0))
                    elif extra: P(extra.pop(0))
        for o in extra: P(o)
    half(0, lambda k: [], FG)
    P(f"""
    s_cmp_lg_u32 s{sJ}, 0
    s_cbranch_scc1 L_nooff
    v_add_f32 v9, v{S}, v{S+1}
    v_mul_f32 v9, {f2u(-8.0/320)}, v9
    """)
    for i in range(20): P(f"v_add_f32 v{U+2*i}, v{U+2*i}, v9")
    P(f"""
    L_nooff:
    s_setprio 2
    s_barrier
    """)
    stamp(P, 12)
    def cvt(k): return [f"v_cvt_pk_bf16_f32 v{U+8*k+i}, v{U+8*k+2*i}, v{U+8*k+2*i+1}" for i in range(4)]
    half(1, lambda k: cvt(k-1) if k else [], AB_)
    chain = cvt(4) + [f"v_add_f32 v{S}, v{S}, v{S+1}",
             f"v_cndmask_b32 v{G}, v{G}, v{G+1}, s[60:61]",
             f"v_mul_f32 v{S}, s{sC640}, v{S}",
             f"v_cndmask_b32 v{G}, v{G}, v{G+2}, s[62:63]",
             f"v_mul_f32 v{S}, v{S}, v{S}",
             f"v_cndmask_b32 v{G}, v{G}, v{G+3}, s[64:65]",
             f"v_fma_f32 v{G}, v{G}, s{sC640}, -v{S}",
             f"v_max_f32 v{G}, 0, v{G}"] + bf16_round(G) + [f"v_add_f32 v{G}, {f2u(1e-5)}, v{G}"] + bf16_round(G) + \
            [f"v_sqrt_f32 v{G}, v{G}", None] + bf16_round(G) + [f"v_rcp_f32 v{G}, v{G}", None, None] + \
            [f"v_mov_b32_dpp v{RHO+r}, v{G} row_newbcast:{4*q+r} row_mask:{hex(1<<q)} bank_mask:0xf" for q in range(4) for r in range(4)]
    n = 0
    for kp in range(5):
        for t in range(5):
            P(f"v_mfma_f32_16x16x32_bf16 {v(ACC+4*t,4)}, {v(U+8*kp,4)}, {v(WR_+4*(5*t+kp),4)}, {'0' if kp==0 else v(ACC+4*t,4)}")
            n += 1
            if n >= 3:
                for _ in range(2):
                    if chain:
                        o = chain.pop(0)
                        if o: P(o)
    assert not chain
    stamp(P, 4)
    for t in range(5):
        P(f"v_pk_mul_f32 {v(ACC+4*t,2)}, {v(ACC+4*t,2)}, {v(RHO,2)}")
        P(f"v_pk_mul_f32 {v(ACC+4*t+2,2)}, {v(ACC+4*t+2,2)}, {v(RHO+2,2)}")
        P(f"v_cvt_pk_f16_f32 v{PK+2*t}, v{ACC+4*t}, v{ACC+4*t+1}")
        P(f"v_cvt_pk_f16_f32 v{PK+2*t+1}, v{ACC+4*t+2}, v{ACC+4*t+3}")
        P(f"ds_write_b64 v142, {v(PK+2*t,2)} offset:{L_HT + 16*t*HS}")
    P(f"""
    s_waitcnt lgkmcnt(0)
    s_barrier
    """)
    BF = 16; DC = 70; ZO = 92
    for t in range(5):
        for kk in range(2):
            P(f"ds_read_b128 {v(BF+8*t+4*kk,4)}, v{148 if kk else 143} offset:{L_HT + 16*t*HS}")
        if t == 2: P(f"ds_read_b128 {v(ZV,4)}, v13 offset:{L_ZP}")
    P(f"ds_read_b32 v147, v146 offset:{L_ZP}")
    P(f"ds_read_b32 v14, v13 offset:{L_TAG}")
    for t in range(5):
        c = DC + 4*t
        P(f"s_waitcnt lgkmcnt({[11, 9, 6, 4, 0][t]})")
        P(f"v_mfma_f32_16x16x32_f16 {v(c,4)}, {v(F,4)}, {v(BF+8*t,4)}, 0")
        P(f"v_mfma_f32_16x16x32_f16 {v(c,4)}, {v(F+4,4)}, {v(BF+8*t+4,4)}, {v(c,4)}")
        if t >= 2:
            for u in range(2):
                P(f"v_cvt_pk_f16_f32 v{ZO+4*u+t-2}, v{DC+4*(t-2)+2*u}, v{DC+4*(t-2)+2*u+1}")
                P(f"v_and_or_b32 v{ZO+4*u+t-2}, v{ZO+4*u+t-2}, s55, v{ZV+t-2}")
    for u in range(2):
        P(f"v_cvt_pk_f16_f32 v{ZO+4*u+3}, v{DC+12+2*u}, v{DC+12+2*u+1}")
        P(f"v_and_or_b32 v{ZO+4*u+3}, v{ZO+4*u+3}, s55, v{ZV+3}")
        P(f"buffer_store_dwordx4 {v(ZO+4*u,4)}, v144, s[8:11], s{52+u} offen sc1")
    for u in range(2):
        P(f"v_cvt_pk_f16_f32 v{ZO+8+u}, v{DC+16+2*u}, v{DC+16+2*u+1}")
        P(f"v_and_or_b32 v{ZO+8+u}, v{ZO+8+u}, s55, v147")
        P(f"buffer_store_dword v{ZO+8+u}, v145, s[8:11], s{56+u} offen sc1")
    P("s_setprio 0")
    stamp(P, 5)
    consts()
    P(f"""
    s_cmp_ge_u32 s{sJ}, 4
    s_cbranch_scc1 L_ffn
    """)
    for i in range(4): P(f"v_readfirstlane_b32 s{ZP[i]}, v{ZV+i}")
    P(f"""
    s_branch L_prep
    L_rare:
    """)
    P.raw(".p2align 12")

    SEC[0] = "p2"
    ZR = 16; CF = 80; AC = 96; X1 = 112; DL = 128; W1 = 144; W2 = 152; PH = 160; YT = 176; GS = 208; AB = 48
    aX1, aX2, aW1, aW2, aSP, aG, aS = 224, 225, 226, 227, 228, 230, 231
    P(f"""
    L_prep:
    v_mov_b32 v5, 0
    v_mov_b32 v7, 0
    s_add_u32 s69, s{sWV}, -2
    s_cmp_lt_u32 s69, 2
    s_cbranch_scc1 L_pub0
    s_cmp_lt_u32 s{sWV}, 2
    s_cbranch_scc1 L_ztail
    v_lshlrev_b32 v5, 11, v{vQ}
    v_lshrrev_b32 v10, 3, v{vN}
    s_add_u32 s49, s{sHW}, s{sJ}
    s_and_b32 s49, s49, 3
    v_lshl_add_u32 v10, s49, 1, v10
    v_lshl_add_u32 v5, v10, 8, v5
    v_and_b32 v9, 7, v{vN}
    v_lshl_add_u32 v5, v9, 4, v5
    v_add_u32 v7, 128, v5
    v_lshrrev_b32 v10, 1, v{vQ}
    v_lshl_add_u32 v10, s49, 1, v10
    v_and_b32 v9, 1, v{vQ}
    v_lshlrev_b32 v9, 5, v9
    s_lshl_b32 s58, s{sGRP}, 16
    s_add_u32 s58, s58, {ZM}
    s_movk_i32 s48, 8192
    s_add_u32 s51, s{sHW}, 2
    s_branch L_zcom
    L_ztail:
    v_lshl_add_u32 v10, s{sWV}, 2, v{vQ}
    v_lshlrev_b32 v5, 9, v{vQ}
    v_lshl_add_u32 v5, v{vN}, 4, v5
    v_lshl_add_u32 v5, s{sWV}, 8, v5
    s_lshl_b32 s58, s{sGRP}, 14
    s_add_u32 s58, s58, {ZT}
    s_movk_i32 s48, 2048
    v_mov_b32 v9, 256
    s_mov_b32 s51, s{sWV}
    L_zcom:
    """)
    for i in range(1, 8): P(f"s_add_u32 s{58+i}, s{57+i}, s48")
    P(f"""
    s_mul_i32 s{sROW}, s{sWV}, s{sSTR}
    s_add_u32 s{sROW}, s{sROW}, s{sTB}
    s_sub_u32 s{sROWB}, 2048, s{sROW}
    s_cmp_eq_u32 s{sROW}, 0
    s_cselect_b32 s{sROWB}, 1024, s{sROWB}
    s_mul_i32 s56, s{sROW}, 1280
    s_mul_i32 s57, s{sROWB}, 1280
    s_mul_i32 s49, s{sWV}, {XP}
    s_add_u32 s49, s49, {L_XR}
    v_add_u32 v233, s49, v{vL4}
    v_lshlrev_b32 v234, 3, v{vW}
    s_cmp_eq_u32 s{sTB}, 0
    s_cselect_b32 s47, 0, 8
    v_add_u32 v10, -1, v10
    v_and_b32 v10, 7, v10
    v_add3_u32 v9, v9, v10, 1
    v_lshlrev_b32 v9, 1, v9
    v_and_b32 v10, 7, v{vN}
    v_mov_b32 v11, s47
    v_cmp_ne_u32 vcc, 0, v10
    v_cndmask_b32 v11, v11, 8, vcc
    v_xor_b32 v11, v11, v{vN}
    s_movk_i32 s49, {XP}
    v_mad_u32_u24 v{aX1}, v{vN}, s49, v9
    v_add_u32 v{aX1}, {L_XR}, v{aX1}
    v_mul_u32_u24 v11, s49, v11
    v_add_u32 v11, {L_XR}, v11
    v_sub_u32 v10, {1280-432}, v9
    v_add_u32 v{aX2}, v11, v10
    s_lshl_b32 s49, s51, 8
    v_lshl_add_u32 v{aW1}, v{vQ}, 4, s49
    s_mul_i32 s51, s51, 768
    s_add_u32 s51, s51, {L_PART}
    v_lshl_add_u32 v{aG}, v{vN}, 4, s51
    v_lshl_add_u32 v{aS}, v{vN}, 3, s51
    v_mov_b32 v12, 0x3f803f80
    v_cmp_eq_u32 vcc, 1, v{vN}
    v_cndmask_b32 v12, 0, v12, vcc
    """)
    P(f"""
    s_cmp_lt_u32 s{sWV}, 2
    s_cbranch_scc1 L_tprep
    """)
    def wmask(on):
        if on: P("s_mov_b32 exec_lo, 0x10001"); P("s_mov_b32 exec_hi, 0x10001")
        else: P("s_mov_b64 exec, -1")
    off = [128*u + 16*r for u in range(4) for r in range(4)]
    for i in range(16):
        P(f"ds_read_u16_d16_hi v{X1+i}, v{aX1} offset:{off[i]}")
        P(f"ds_read_u16_d16_hi v{DL+i}, v{aX2} offset:{432-off[i]}")
        P(f"v_mov_b32 v{W1+i}, v12")
    P("s_waitcnt lgkmcnt(0)")
    for i_ in range(8): P(f"v_pk_add_f32 {v(DL+2*i_,2)}, {v(DL+2*i_,2)}, {v(X1+2*i_,2)} neg_lo:[0,1] neg_hi:[0,1]")
    P("s_setprio 1")
    stamp(P, 6)
    if OPT.get("zdelay"): P(f"s_sleep {OPT['zdelay']}")
    P("s_barrier")
    stamp(P, 7)
    P("s_mov_b32 s50, 0")
    for i in range(8):
        P(f"buffer_load_dwordx4 {v(ZR+8*i,4)}, v5, s[8:11], s{58+i} offen sc1")
        P(f"buffer_load_dwordx4 {v(ZR+8*i+4,4)}, v7, s[8:11], s{58+i} offen sc1")
        if i == 1:
            P(f"v_add_u32 v9, {L_CF}, v{vL16}")
            for k in range(4): P(f"ds_read_b128 {v(CF+4*k,4)}, v9 offset:{1024*k}")
            wmask(1)
            for k in range(4): P(f"ds_read_b128 {v(W1+4*k,4)}, v{aW1} offset:{L_WF + 64*k}")
            wmask(0)
    P(f"""
    s_waitcnt lgkmcnt(0)
    L_zgo:
    v_mov_b32 v10, 0
    """)
    for k in range(4):
        z = ZR + 16*k
        y = YT + 16*(k & 1)
        chk = []
        def mm(u):
            P(f"v_mfma_f32_16x16x32_f16 {v(AC+4*u,4)}, {v(y+4*u,4)}, {v(CF+4*k,4)}, {v(X1+4*u,4) if k==0 else v(AC+4*u,4)}")
            o = [f"v_or3_b32 v10, v10, v{y+4*u}, v{y+4*u+1}", f"v_or3_b32 v10, v10, v{y+4*u+2}, v{y+4*u+3}"]
            if k == 3: chk.extend(o)
            else:
                for x_ in o: P(x_)
        P(f"s_waitcnt vmcnt({12 - 4*k})")
        for u in range(4):
            for l in range(4): P(f"v_xor_b32 v{y+4*u+l}, s{ZP[u]}, v{z+4*l+u}")
            if u: mm(u-1)
        mm(3)
        for x_ in chk: P(x_)
    P(f"v_and_b32 v10, 0x10001, v10")
    P(f"v_cmp_ne_u32 vcc, 0, v10")
    spin_tail(P, 50, "L_zretry", "L_zok")
    stamp(P, 8)
    if OPT["stamps"]: P("s_add_u32 s96, s50, 1")
    def stat_mm(side, f, first):
        p = PH + 8*side + 4*f; w = (W2 if side else W1) + 4*f
        g = GS + 8*side
        P(f"v_mfma_f32_16x16x32_bf16 {v(g,4)}, {v(p,4)}, {v(p,4)}, {'0' if first else v(g,4)}")
        P(f"v_mfma_f32_16x16x32_bf16 {v(g+4,4)}, {v(w,4)}, {v(p,4)}, {'0' if first else v(g+4,4)}")
    for f in range(2):
        for i in range(4): P(f"v_cvt_pk_bf16_f32 v{PH+4*f+i}, v{AC+8*f+2*i}, v{AC+8*f+2*i+1}")
        for i in range(4): P(f"v_pk_add_f32 {v(AC+8*f+2*i,2)}, {v(AC+8*f+2*i,2)}, {v(DL+8*f+2*i,2)}")
        stat_mm(0, f, f == 0)
        for i in range(4): P(f"v_cvt_pk_bf16_f32 v{PH+8+4*f+i}, v{AC+8*f+2*i}, v{AC+8*f+2*i+1}")
        if f == 1: stat_mm(1, 0, True)
    stat_mm(1, 1, False)
    def partw():
        P(f"""
        s_mov_b32 exec_lo, 0x00f0000f
        s_mov_b32 exec_hi, 0xf0000f00
        ds_write_b128 v{aG}, {v(GS,4)}
        ds_write_b128 v{aG}, {v(GS+8,4)} offset:384
        s_mov_b64 exec, 0xffff
        ds_write_b64 v{aS}, {v(GS+4,2)} offset:256
        ds_write_b64 v{aS}, {v(GS+12,2)} offset:640
        s_mov_b64 exec, -1
        s_waitcnt lgkmcnt(0)
        s_barrier
        """)
    partw()
    stamp(P, 9)
    for i in range(16):
        P(f"ds_write_b16{'_d16_hi' if i & 1 else ''} v{aX1}, v{PH+i//2} offset:{off[i]}")
        P(f"ds_write_b16{'_d16_hi' if i & 1 else ''} v{aX2}, v{PH+8+i//2} offset:{432-off[i]}")
    HA = 16; HB = 26; XT = 40; RM = 52
    P(f"""
    L_out:
    s_waitcnt lgkmcnt(0)
    s_barrier
    ds_read2st64_b32 {v(XT,2)}, v233 offset0:0 offset1:1
    ds_read2st64_b32 {v(XT+2,2)}, v233 offset0:2 offset1:3
    ds_read_b32 v{XT+4}, v233 offset:1024
    ds_read_b64 {v(RM,2)}, v234 offset:{L_RM}
    v_add_u32 v232, {8*XP}, v233
    ds_read2st64_b32 {v(XT+6,2)}, v232 offset0:0 offset1:1
    ds_read2st64_b32 {v(XT+8,2)}, v232 offset0:2 offset1:3
    ds_read_b32 v{XT+10}, v232 offset:1024
    ds_read_b64 {v(RM+2,2)}, v234 offset:{L_RM+64}
    """)
    for (Hr, src, rm, so, o, w_) in ((HA, XT, RM, 56, 56, 4), (HB, XT+6, RM+2, 57, 64, 0)):
        P(f"s_waitcnt lgkmcnt({w_})")
        for i in range(5):
            P(f"v_lshlrev_b32 v{Hr+2*i}, 16, v{src+i}")
            P(f"v_and_b32 v{Hr+2*i+1}, 0xffff0000, v{src+i}")
        for i in range(10): P(f"v_fma_f32 v{Hr+i}, v{Hr+i}, v{rm}, -v{rm+1}")
        for i in range(5):
            P(f"v_cvt_pk_bf16_f32 v{o+i}, v{Hr+2*i}, v{Hr+2*i+1}")
            P(f"v_min_u32 v{o+i}, -2, v{o+i}")
            P(f"buffer_store_dword v{o+i}, v{vL4}, s[12:15], s{so} offen offset:{256*i} sc1")
    stamp(P, 11)
    P(f"""
    s_cmp_lg_u32 s{sWV}, 3
    s_cbranch_scc1 L_finp
    s_cmp_lg_u32 s2, 0
    s_cbranch_scc1 L_finp
    s_mov_b64 exec, 1
    buffer_store_dword v14, v5, s[8:11], 0 offen sc1
    L_finp:
    {FIN}
    """)
    LATE_Z = list(LATE); del LATE[:]
    S1, S2, S3, MC, TM = 40, 36, 41, 44, 48
    P(f"""
    L_pub0:
    s_cmp_eq_u32 s{sWV}, 2
    s_cbranch_scc1 L_idle
    s_barrier
    s_mul_i32 s{sROW}, s{sWV}, s{sSTR}
    s_add_u32 s{sROW}, s{sROW}, s{sTB}
    s_sub_u32 s{sROWB}, 2048, s{sROW}
    s_cmp_eq_u32 s{sROW}, 0
    s_cselect_b32 s{sROWB}, 1024, s{sROWB}
    s_mul_i32 s56, s{sROW}, 1280
    s_mul_i32 s57, s{sROWB}, 1280
    s_mul_i32 s49, s{sWV}, {XP}
    s_add_u32 s49, s49, {L_XR}
    v_add_u32 v233, s49, v{vL4}
    v_lshlrev_b32 v234, 3, v{vW}
    s_cmp_eq_u32 s{sTB}, 0
    s_cselect_b32 s47, 0, 8
    v_add_u32 v9, {L_WR}, v{vL16}
    v_add_u32 v10, {L_WR+1024}, v{vL4}
    ds_read_b128 {v(16,4)}, v9
    ds_read_b32 v20, v10
    v_lshrrev_b32 v22, 2, v{vL}
    v_and_b32 v23, 7, v22
    v_mov_b32 v11, s47
    v_cmp_ne_u32 vcc, 0, v23
    v_cndmask_b32 v11, v11, 8, vcc
    v_and_b32 v24, 1, v{vL}
    v_mul_u32_u24 v11, v11, v24
    v_xor_b32 v11, v11, v22
    v_and_b32 v24, 3, v{vL}
    v_mul_u32_u24 v24, 384, v24
    v_lshl_add_u32 v26, v11, 3, v24
    v_lshl_add_u32 v25, v11, 4, v24
    v_and_b32 v11, 3, v11
    v_lshl_add_u32 v25, v11, 2, v25
    v_mul_u32_u24 v23, s{sSTR}, v23
    v_add_u32 v23, s{sTB}, v23
    v_sub_u32 v9, 2048, v23
    v_mov_b32 v10, 1024
    v_cmp_eq_u32 vcc, 0, v23
    v_cndmask_b32 v9, v9, v10, vcc
    v_cmp_lt_u32 vcc, 31, v{vL}
    v_cndmask_b32 v23, v23, v9, vcc
    v_lshlrev_b32 v23, 6, v23
    v_lshlrev_b32 v27, 3, v22
    v_mov_b32 v{MC+2}, v14
    v_mov_b32 v{MC+3}, v14
    s_mul_i32 s54, s{sIDX}, {KST}
    s_add_u32 s54, s54, {KEYS}
    s_lshr_b32 s36, s2, 6
    s_lshl2_add_u32 s36, s36, s{sJ}
    s_lshl_b32 s43, s{sXCD}, 8
    s_lshl2_add_u32 s36, s36, s43
    s_add_u32 s36, s36, {SEN1}
    s_mov_b32 s47, 0xffff8000
    s_mov_b32 s48, {STATS}
    s_mov_b32 s49, 0x3f803f80
    v_mov_b32 v21, 0
    s_waitcnt lgkmcnt(0)
    """)
    for i in range(5): P(f"v_dot2c_f32_bf16 v21, s49, v{16+i}")
    for sh in (1, 2, 4, 8): P(f"v_add_f32_dpp v21, v21, v21 row_shr:{sh} row_mask:0xf bank_mask:0xf bound_ctrl:0")
    P(f"""
    v_add_f32_dpp v21, v21, v21 row_bcast:15 row_mask:0xa bank_mask:0xf
    v_add_f32_dpp v21, v21, v21 row_bcast:31 row_mask:0xc bank_mask:0xf
    v_readlane_b32 s55, v21, 63
    s_setprio 3
    s_barrier
    """)
    stamp(P, 9)
    for i in range(3):
        P(f"ds_read_b32 v{36+i}, v25 offset:{L_PART + 1536*i}")
        P(f"ds_read_b64 {v(30+2*i,2)}, v26 offset:{L_PART + 1536*i + 256}")
    P(f"""
    s_waitcnt lgkmcnt(2)
    v_add_f32 v36, v36, v37
    v_pk_add_f32 {v(30,2)}, {v(30,2)}, {v(32,2)}
    s_waitcnt lgkmcnt(0)
    v_add_f32 v{S2}, v36, v38
    v_add_f32 v{S1}, v31, v35
    v_add_f32 v{S3}, v30, v34
    """)
    for qp in ("[1,0,3,2]", "[2,3,0,1]"):
        for r in (S2, S1, S3): P(f"v_add_f32_dpp v{r}, v{r}, v{r} quad_perm:{qp} row_mask:0xf bank_mask:0xf")
    P(f"""
    v_mul_f32 v{MC}, s{sC640}, v{S1}
    v_mul_f32 v{TM}, v{MC}, v{MC}
    v_fma_f32 v{S2}, v{S2}, s{sC640}, -v{TM}
    v_max_f32 v{S2}, 0, v{S2}
    """)
    for o in bf16_round(S2): P(o)
    P(f"v_add_f32 v{S2}, {f2u(1e-5)}, v{S2}")
    for o in bf16_round(S2): P(o)
    P(f"v_sqrt_f32 v{S2}, v{S2}")
    for o in bf16_round(MC): P(o)
    for o in bf16_round(S2): P(o)
    P(f"""
    v_rcp_f32 v{TM+2}, v{S2}
    v_fma_f32 v{S3}, -v{MC}, s55, v{S3}
    v_mul_f32 v{S3}, v{S3}, v{TM+2}
    v_cvt_pk_bf16_f32 v{S3}, v{S3}, v{S3}
    v_ashrrev_i32 v{TM}, 31, v{S3}
    v_or_b32 v{TM}, 0x80000000, v{TM}
    v_xor_b32 v{S3}, v{S3}, v{TM}
    v_lshrrev_b32 v{S3}, 1, v{S3}
    v_bfi_b32 v{S3}, s47, v{S3}, v14
    s_mov_b32 exec_lo, 0x11111111
    s_mov_b32 exec_hi, 0x11111111
    {"buffer_store_dword v14, v5, s[8:11], s36 offen" if OPT.get("h1pos", 3) == 2 else ""}
    buffer_store_dword v{S3}, v{vL}, s[8:11], s54 offen sc1
    {"buffer_store_dword v14, v5, s[8:11], s36 offen" if OPT.get("h1pos", 3) == 3 else ""}
    """)
    stamp(P, 10)
    P(f"""
    v_add_f32 v{MC+1}, 1.0, v{S2}
    v_mul_f32 v{TM+3}, v{MC}, v{TM+2}
    v_add_f32 v{TM+2}, 1.0, v{TM+2}
    v_rcp_f32 v{MC+1}, v{MC+1}
    ds_write_b64 v27, {v(TM+2,2)} offset:{L_RM}
    buffer_store_dwordx4 {v(MC,4)}, v23, s[8:11], s48 offen sc1
    s_mov_b64 exec, 1
    {"buffer_store_dword v14, v5, s[8:11], s36 offen" if OPT.get("h1pos", 3) == 1 else ""}
    s_mov_b64 exec, -1
    s_setprio 0
    s_branch L_out
    """)
    P_keep = P; P = Prog()
    P(f"""
    L_idle:
    s_mov_b32 s49, {L_WR}
    v_add_u32 v9, s{sJ}, v{vQ}
    v_and_b32 v9, 3, v9
    v_bfe_u32 v10, v{vL}, 1, 1
    v_lshl_add_u32 v9, v9, 1, v10
    v_add_u32 v9, -1, v9
    v_and_b32 v9, 7, v9
    v_and_b32 v10, 1, v{vL}
    v_lshl_add_u32 v9, v10, 5, v9
    v_and_b32 v10, 4, v{vL}
    v_lshl_add_u32 v9, v10, 5, v9
    v_lshlrev_b32 v9, 1, v9
    v_add_u32 v16, {L_WR+2}, v9
    v_sub_u32 v17, {L_WR+1278}, v9
    v_mov_b32 v18, 16
    v_and_b32 v10, 8, v{vL}
    v_cmp_ne_u32 vcc, 0, v10
    v_cndmask_b32 v16, v16, v17, vcc
    v_cndmask_b32 v18, v18, -16, vcc
    v_lshrrev_b32 v9, 4, v{vL}
    v_and_b32 v10, 3, v{vL}
    v_lshl_add_u32 v9, v9, 2, v10
    v_add_u32 v9, -1, v9
    v_and_b32 v9, 7, v9
    v_lshlrev_b32 v9, 1, v9
    v_add_u32 v19, {L_WR+514}, v9
    v_sub_u32 v17, {L_WR+766}, v9
    v_cndmask_b32 v19, v19, v17, vcc
    """)
    for i in range(8):
        m = 8*(i >> 2) + (i & 3)
        P(f"v_mad_i32_i24 v20, v18, {m}, v16")
        P(f"ds_read_u16 v{24+i}, v20")
    for i in range(8):
        m = (i >> 1) + 4*(i & 1)
        P(f"v_mad_i32_i24 v20, v18, {m}, v19")
        if i == 7: P(f"v_writelane_b32 v20, s49, 8")
        P(f"ds_read_u16 v{32+i}, v20")
    P("s_waitcnt lgkmcnt(0)")
    for i in range(8): P(f"v_lshl_or_b32 v{40+i}, v{25+2*i}, 16, v{24+2*i}")
    P(f"""
    ds_write_b128 v{vL16}, {v(40,4)} offset:{L_WF+512}
    s_mov_b32 exec_hi, 0
    ds_write_b128 v{vL16}, {v(44,4)} offset:{L_WF}
    s_mov_b64 exec, -1
    s_waitcnt lgkmcnt(0)
    s_barrier
    s_mul_i32 s{sROW}, s{sWV}, s{sSTR}
    s_add_u32 s{sROW}, s{sROW}, s{sTB}
    s_sub_u32 s{sROWB}, 2048, s{sROW}
    s_cmp_eq_u32 s{sROW}, 0
    s_cselect_b32 s{sROWB}, 1024, s{sROWB}
    s_mul_i32 s56, s{sROW}, 1280
    s_mul_i32 s57, s{sROWB}, 1280
    s_mul_i32 s49, s{sWV}, {XP}
    s_add_u32 s49, s49, {L_XR}
    v_add_u32 v233, s49, v{vL4}
    v_lshlrev_b32 v234, 3, v{vW}
    s_cmp_eq_u32 s{sTB}, 0
    s_cselect_b32 s47, 0, 8
    s_barrier
    s_branch L_out
    """)
    IDLE = list(P.lines); P = P_keep
    RARE = Prog()
    P_main = P
    P = RARE
    toff = [16*u + 64*ih for u in range(4) for ih in range(2)]
    P(f"""
    L_tprep:
    s_movk_i32 s49, 528
    v_cmp_eq_u32 s[52:53], s49, v9
    v_add_u32 v{aSP}, {432-toff[7]}, v{aX2}
    v_cndmask_b32 v{aSP}, v{aSP}, v11, s[52:53]
    """)
    for i in range(8):
        P(f"ds_read_u16_d16_hi v{X1+4*(i>>1)+(i&1)}, v{aX1} offset:{toff[i]}")
    for i in range(8):
        if i < 7: P(f"ds_read_u16_d16_hi v{DL+i}, v{aX2} offset:{432-toff[i]}")
        else: P(f"ds_read_u16_d16_hi v{DL+i}, v{aSP}")
    for i in range(4):
        P(f"v_mov_b32 v{W1+i}, v12"); P(f"v_mov_b32 v{W2+i}, v12")
        P(f"v_mov_b32 v{X1+4*i+2}, 0"); P(f"v_mov_b32 v{X1+4*i+3}, 0")
    P("s_waitcnt lgkmcnt(0)")
    P(f"v_mov_b32 v{DL+8}, v{DL+7}")
    for u in range(4): P(f"v_pk_add_f32 {v(DL+2*u,2)}, {v(DL+2*u,2)}, {v(X1+4*u,2)} neg_lo:[0,1] neg_hi:[0,1]")
    stamp(P, 6)
    P("s_barrier")
    stamp(P, 7)
    if not OPT.get("tlate"):
        for i in range(8): P(f"buffer_load_dwordx4 {v(ZR+4*i,4)}, v5, s[8:11], s{58+i} offen sc1")
    P("s_mov_b32 s50, 0")
    P(f"v_add_u32 v9, {L_CF}, v{vL16}")
    for k in range(4):
        P(f"ds_read2_b32 {v(CF+4*(k>>1)+2*(k&1),2)}, v9 offset0:0 offset1:2")
        P(f"ds_read2_b32 {v(CF+8+4*(k>>1)+2*(k&1),2)}, v9 offset0:1 offset1:3")
        if k < 3: P(f"v_add_u32 v9, 1024, v9")
    wmask(1)
    P(f"ds_read_b128 {v(W1,4)}, v{aW1} offset:{L_WF}")
    P(f"ds_read_b128 {v(W2,4)}, v{aW1} offset:{L_WF+128}")
    wmask(0)
    if OPT.get("tlate", 0) > 1: P(f"s_sleep {OPT['tlate']}")
    if not OPT.get("tlate"): P("s_branch L_tgo")
    P("L_tretry:")
    for i in range(8): P(f"buffer_load_dwordx4 {v(ZR+4*i,4)}, v5, s[8:11], s{58+i} offen sc1")
    P(f"""
    L_tgo:
    v_mov_b32 v10, 0
    s_waitcnt lgkmcnt(0)
    """)
    for k in range(2):
        z = ZR + 16*k; y = YT + 16*k
        P(f"s_waitcnt vmcnt({4 - 4*k})")
        def mt(u):
            P(f"v_mfma_f32_16x16x32_f16 {v(AC+4*u,4)}, {v(y+4*u,4)}, {v(CF+4*k,4)}, {v(X1+4*u,4) if k==0 else v(AC+4*u,4)}")
            P(f"v_or3_b32 v10, v10, v{y+4*u}, v{y+4*u+1}")
            P(f"v_mfma_f32_16x16x32_f16 {v(AB+4*u,4)}, {v(y+4*u,4)}, {v(CF+8+4*k,4)}, {'0' if k==0 else v(AB+4*u,4)}")
            P(f"v_or3_b32 v10, v10, v{y+4*u+2}, v{y+4*u+3}")
        for u in range(4):
            for l in range(4): P(f"v_xor_b32 v{y+4*u+l}, s{ZP[u]}, v{z+4*l+u}")
            if u: mt(u-1)
        mt(3)
    P(f"v_and_b32 v10, 0x10001, v10")
    P(f"v_cmp_ne_u32 vcc, 0, v10")
    spin_tail(P, 50, "L_tretry", "L_tok")
    stamp(P, 8)
    for u in range(4): P(f"v_pk_add_f32 {v(AC+4*u,2)}, {v(AC+4*u,2)}, {v(AB+4*u+2,2)}")
    for u in range(4): P(f"v_cvt_pk_bf16_f32 v{PH+u}, v{AC+4*u}, v{AC+4*u+1}")
    for u in range(4): P(f"v_pk_add_f32 {v(AC+4*u,2)}, {v(AC+4*u,2)}, {v(DL+2*u,2)}")
    P(f"v_cndmask_b32 v{AC+13}, v{AC+13}, v{DL+8}, s[52:53]")
    stat_mm(0, 0, True)
    for u in range(4): P(f"v_cvt_pk_bf16_f32 v{PH+8+u}, v{AC+4*u}, v{AC+4*u+1}")
    stat_mm(1, 0, True)
    partw()
    stamp(P, 9)
    for i in range(8):
        P(f"ds_write_b16{'_d16_hi' if i & 1 else ''} v{aX1}, v{PH+i//2} offset:{toff[i]}")
        if i < 7: P(f"ds_write_b16{'_d16_hi' if i & 1 else ''} v{aX2}, v{PH+8+i//2} offset:{432-toff[i]}")
        else: P(f"ds_write_b16_d16_hi v{aSP}, v{PH+11}")
    P("s_branch L_out")
    flush_late(P)
    TAILC = list(RARE.lines)
    RARE = Prog(); P = RARE
    P("L_zretry:")
    for i in range(8):
        P(f"buffer_load_dwordx4 {v(ZR+8*i,4)}, v5, s[8:11], s{58+i} offen sc1")
        P(f"buffer_load_dwordx4 {v(ZR+8*i+4,4)}, v7, s[8:11], s{58+i} offen sc1")
    P("s_branch L_zgo")
    for t_ in LATE_Z: P(t_)
    P = P_main
    k_ = P.lines.index("L_rare:") + 1
    P.lines[k_:k_] = RARE.lines
    k_ = P.lines.index("L_M:") - 1
    P.lines[k_:k_] = TAILC
    SEC[0] = "ffn"
    BW = 48; AR = 112; A0 = 128
    KK = 16; ID = 24; K4 = 32; CB = 112
    P.raw(".p2align 12")
    P(f"""
    L_ffn:
    s_barrier
    s_cmp_lg_u32 s{sWV}, 0
    s_cbranch_scc1 L_noflag
    s_mul_i32 s49, s{sIDX}, {KST}
    s_add_u32 s49, s49, {FLAGS}
    s_mov_b64 exec, 1
    buffer_store_dword v14, v13, s[8:11], s49 offen sc1
    s_mov_b64 exec, -1
    L_noflag:
    s_cmp_ge_u32 s{sIDX}, 108
    s_cbranch_scc1 L_setup
    v_lshrrev_b32 v13, 1, v{vL}
    v_and_b32 v9, 2, v13
    v_bfe_u32 v10, v13, 3, 1
    v_and_b32 v13, 21, v13
    v_lshl_or_b32 v13, v9, 2, v13
    v_lshl_or_b32 v13, v10, 1, v13
    v_mul_u32_u24 v13, 3456, v13
    v_and_b32 v9, 1, v{vL}
    v_lshl_add_u32 v13, v9, 4, v13
    s_lshl_b32 s58, s{sIDX}, 5
    s_and_b32 s47, s{sJ}, 3
    s_mul_i32 s47, s47, 5
    s_add_u32 s48, s{sWV}, 5
    L_dma1:
    s_add_u32 s49, s48, s47
    s_cmp_ge_u32 s49, 20
    s_cselect_b32 s50, 20, 0
    s_sub_u32 s49, s49, s50
    s_lshr_b32 s50, s49, 2
    s_lshl_b32 s50, s50, 13
    s_and_b32 s51, s49, 3
    s_lshl_b32 s51, s51, 10
    s_add_u32 s50, s50, s51
    s_add_u32 m0, s50, {L_WT1}
    s_mul_i32 s51, s49, {32*3456}
    s_add_u32 s51, s51, s58
    {"s_nop 0" if OPT.get("now") else f"buffer_load_dwordx4 v13, s[20:23], s51 offen lds"}
    s_add_u32 m0, m0, 4096
    s_add_u32 s48, s48, 8
    {"s_nop 0" if OPT.get("now") else f"buffer_load_dwordx4 v13, s[24:27], s51 offen lds"}
    s_cmp_lt_u32 s48, 20
    s_cbranch_scc1 L_dma1
    L_setup:
    v_lshrrev_b32 v7, 2, v0
    v_mul_u32_u24 v7, {KST}, v7
    v_and_b32 v12, 3, v0
    v_lshl_add_u32 v7, v12, 4, v7
    s_mov_b32 s52, {KEYS}
    {"buffer_load_dword v253, v7, s[8:11], s52 offen sc1" if OPT.get("kwarm", 0) else ""}
    v_and_b32 v9, 1, v{vN}
    v_mul_u32_u24 v144, 0xaaaa, v9
    v_or_b32 v144, 0x4444, v144
    """)
    P(f"""
    v_bfe_u32 v9, v0, 4, 3
    v_lshlrev_b32 v9, 1, v9
    v_add_u32 v40, 1, v9
    v_sub_u32 v41, 32, v9
    v_sub_u32 v42, 32, v40
    v_cmp_eq_u32 vcc, 0, v9
    v_cndmask_b32 v41, v41, 16, vcc
    v_and_b32 v12, 128, v0
    v_cmp_ne_u32 vcc, 0, v12
    v_cndmask_b32 v9, v9, v41, vcc
    v_cndmask_b32 v40, v40, v42, vcc
    v_bfe_u32 v10, v0, 2, 2
    v_and_b32 v12, 1, v0
    v_lshl_add_u32 v10, v10, 1, v12
    v_lshlrev_b32 v10, 2, v10
    v_mov_b32 v11, 64
    v_cmp_eq_u32 vcc, 0, v9
    v_cndmask_b32 v11, v11, 32, vcc
    v_mad_u32_u24 v{ID}, v10, v11, v9
    v_lshl_add_u32 v{ID+4}, v10, 6, v40
    """)
    for i in range(1, 4):
        P(f"v_add_u32 v{ID+i}, v{ID+i-1}, v11")
        P(f"v_add_u32 v{ID+4+i}, 64, v{ID+3+i}")
    P(f"""
    v_and_b32 v12, 2, v0
    v_cmp_ne_u32 vcc, 0, v12
    """)
    for i in range(8):
        P(f"v_sub_u32 v9, 2048, v{ID+i}")
        P(f"v_cndmask_b32 v{ID+i}, v{ID+i}, v9, vcc")
    P(f"""
    v_mov_b32 v11, 1024
    v_cmp_eq_u32 vcc, 2, v0
    v_cndmask_b32 v{ID}, v{ID}, v11, vcc
    s_mov_b32 s53, {KEYS + 64*KST}
    s_lshr_b32 s54, s2, 6
    s_and_b32 s43, s{sJ}, 3
    s_lshl2_add_u32 s54, s54, s43
    s_mov_b32 s55, {OOB}
    s_cmp_eq_u32 s54, 10
    s_cmov_b32 s55, {STATS}
    s_cmp_lt_u32 s54, 10
    s_cselect_b32 s54, s54, {OOB>>7}
    s_lshl_b32 s54, s54, 7
    v_mov_b32 v12, 0
    v_lshrrev_b32 v5, 4, v0
    v_lshlrev_b32 v5, 2, v5
    v_lshlrev_b32 v151, 2, v{vN}
    v_lshlrev_b32 v43, 4, v{vQ}
    v_lshrrev_b32 v147, 1, v{vN}
    v_lshrrev_b32 v9, 3, v{vL}
    s_cmp_ge_u32 s{sWV}, 5
    s_cselect_b64 vcc, -1, 0
    v_cndmask_b32 v147, v147, v9, vcc
    v_lshlrev_b32 v147, 2, v147
    v_and_b32 v148, 1, v{vN}
    v_lshl_add_u32 v148, v{vQ}, 1, v148
    v_lshlrev_b32 v148, 4, v148
    s_cmp_lt_u32 s{sIDX}, 108
    s_cselect_b32 s43, 7, 8
    v_lshlrev_b32 v149, s43, v{vQ}
    v_lshl_add_u32 v149, v{vN}, 2, v149
    v_lshl_add_u32 v149, v{vW}, 10, v149
    v_add_u32 v149, {L_RED}, v149
    s_lshl_b32 s56, s{sWV}, 8
    s_movk_i32 s57, 1280
    v_mov_b32 v152, 1
    v_mov_b32 v153, 0x7fff
    v_mov_b32 v158, 0
    v_mov_b32 v156, 0
    s_mov_b32 s52, {KEYS}
    s_mov_b32 s59, 0x7fff8000
    """)
    P(f"""
    s_cmp_ge_u32 s{sIDX}, 108
    s_cbranch_scc1 L_f2load
    """)
    P(f"""
    v_lshrrev_b32 v9, 1, v{vQ}
    v_and_b32 v10, 1, v{vQ}
    v_lshlrev_b32 v15, 3, v{vN}
    v_lshl_add_u32 v15, v10, 7, v15
    v_lshl_add_u32 v15, v9, 9, v15
    v_add_u32 v15, {L_WT1}, v15
    s_waitcnt vmcnt(0)
    s_barrier
    """)
    P("s_branch L_tk")
    P(f"""
    L_f2load:
    s_waitcnt vmcnt(0)
    s_barrier
    """)
    stamp(P, 9)
    P(f"""
    v_bfe_u32 v13, v{vL}, 2, 1
    v_and_b32 v9, 8, v{vL}
    v_or_b32 v13, v13, v9
    v_lshl_or_b32 v13, v{vQ}, 1, v13
    v_mul_u32_u24 v13, 1280, v13
    v_and_b32 v9, 2, v{vQ}
    v_xor_b32 v9, v9, v{vL}
    v_and_b32 v9, 3, v9
    v_lshl_add_u32 v13, v9, 4, v13
    s_sub_u32 s58, s{sIDX}, 108
    s_lshl_b32 s58, s58, 6
    s_and_b32 s47, s{sJ}, 1
    s_mov_b32 s47, 0
    s_mov_b32 s48, s{sWV}
    L_dma2:
    s_add_u32 s49, s48, s47
    s_cmp_ge_u32 s49, 112
    s_cselect_b32 s50, 112, 0
    s_sub_u32 s49, s49, s50
    s_lshl_b32 s50, s49, 10
    s_add_u32 m0, s50, {L_WT}
    s_mul_i32 s51, s49, {16*1280}
    s_add_u32 s51, s51, s58
    s_add_u32 s48, s48, 8
    {"s_nop 0" if OPT.get("now") else f"buffer_load_dwordx4 v13, s[28:31], s51 offen lds"}
    s_cmp_lt_u32 s48, 112
    s_cbranch_scc1 L_dma2
    v_lshrrev_b32 v9, 2, v{vN}
    v_and_b32 v10, 3, v{vN}
    v_lshlrev_b32 v15, 9, v{vQ}
    v_lshl_add_u32 v15, v9, 6, v15
    v_lshl_add_u32 v15, v10, 3, v15
    v_and_b32 v9, 1, v{vQ}
    v_lshl_add_u32 v15, v9, 5, v15
    v_lshl_add_u32 v15, v{vW}, 14, v15
    v_xor_b32 v145, 32, v15
    s_cmp_lg_u32 s{sWV}, 0
    s_cbranch_scc1 L_dok
    v_mul_u32_u24 v11, {KST}, v{vL}
    s_mov_b32 s49, {FLAGS}
    s_mov_b32 s47, {FLAGS+64*KST}
    s_mov_b32 s50, 0
    L_dpoll:
    buffer_load_dword v9, v11, s[8:11], s49 offen sc1
    buffer_load_dword v10, v11, s[8:11], s47 offen sc1
    s_waitcnt vmcnt(0)
    v_bitop3_b32 v9, v9, v10, v14 bitop3:0x7e
    v_cmp_ne_u32 vcc, 0, v9
    """)
    spin_tail(P, 50, "L_dpoll", "L_dok")
    P(f"""
    s_waitcnt vmcnt(0)
    s_barrier
    """)
    stamp(P, 6)
    P(f"s_cmp_eq_u32 s{sWV}, 7"); P("s_cbranch_scc1 L_f2fin")
    for blk in range(4):
        for ct in range(2):
            for j in range(4):
                P(f"ds_read_b64_tr_b16 {v(BW+16*blk+8*ct+2*j,2)}, v{145 if ct else 15} offset:{L_WT + 4096*blk + 2048*(j>>1) + 256*(j&1)}")
    P("s_branch L_f2")
    P("L_tk:")
    stamp(P, 6)
    P(f"""
    s_cmp_eq_u32 s{sWV}, 6
    s_cbranch_scc1 L_pad0
    s_cmp_eq_u32 s{sWV}, 7
    s_cbranch_scc1 L_fchk
    s_cmp_lg_u32 s{sWV}, 4
    s_cbranch_scc1 L_tk1
    s_branch L_w4prep
    L_tk1:
    s_barrier
    s_cmp_ge_u32 s{sWV}, 4
    s_cbranch_scc1 L_tk2
    s_mov_b32 s50, 0
    """)
    stamp(P, 7)
    P(f"""
    L_kpoll:
    buffer_load_dwordx4 {v(KK,4)}, v7, s[8:11], s52 offen sc1
    buffer_load_dwordx4 {v(KK+4,4)}, v7, s[8:11], s53 offen sc1
    s_waitcnt vmcnt(1)
    v_max3_u32 v10, v{KK}, v{KK+1}, v{KK+2}
    v_bitop3_b32 v40, v{KK}, v{KK+1}, v14 bitop3:0x7e
    v_bitop3_b32 v41, v{KK+2}, v{KK+3}, v14 bitop3:0x7e
    s_waitcnt vmcnt(0)
    v_max3_u32 v11, v{KK+3}, v{KK+4}, v{KK+5}
    v_max3_u32 v10, v10, v{KK+6}, v{KK+7}
    v_max_u32 v10, v10, v11
    v_bitop3_b32 v42, v{KK+4}, v{KK+5}, v14 bitop3:0x7e
    v_bitop3_b32 v11, v{KK+6}, v{KK+7}, v14 bitop3:0x7e
    v_max_u32_dpp v10, v10, v10 row_ror:1 row_mask:0xf bank_mask:0xf
    v_or3_b32 v40, v40, v41, v42
    v_bitop3_b32 v40, v40, v11, v153 bitop3:0xa8
    v_max_u32_dpp v10, v10, v10 row_ror:2 row_mask:0xf bank_mask:0xf
    v_cmp_ne_u32 vcc, 0, v40
    v_and_or_b32 v{KK}, v{KK}, s59, v{ID}
    v_max_u32_dpp v10, v10, v10 row_ror:4 row_mask:0xf bank_mask:0xf
    """)
    spin_tail(P, 50, "L_kpoll", "L_kok")
    stamp(P, 8)
    if OPT["stamps"]: P("s_add_u32 s96, s50, 1")
    P(f"""
    v_and_or_b32 v{KK+1}, v{KK+1}, s59, v{ID+1}
    v_max_u32_dpp v10, v10, v10 row_ror:8 row_mask:0xf bank_mask:0xf
    v_and_or_b32 v10, v10, s59, v5
    ds_write_b32 v5, v10 offset:{L_GM}
    """)
    for i in range(2, 8): P(f"v_and_or_b32 v{KK+i}, v{KK+i}, s59, v{ID+i}")
    P(f"""
    v_max3_u32 v9, v{KK}, v{KK+1}, v{KK+2}
    v_max3_u32 v11, v{KK+3}, v{KK+4}, v{KK+5}
    v_max3_u32 v9, v9, v{KK+6}, v{KK+7}
    v_max_u32 v9, v9, v11
    """)
    P(f"""
    L_tk2:
    s_waitcnt lgkmcnt(0)
    s_barrier
    s_cmp_ge_u32 s{sWV}, 4
    s_cbranch_scc1 L_tk3
    """)
    def rank16(off, own):
        P(f"ds_read_b32 v{own}, v151 offset:{off}")
        P(f"ds_read_b128 {v(CB,4)}, v43 offset:{off}")
    def rank16b(own, acc):
        P("s_waitcnt lgkmcnt(0)")
        for i in range(4): P(f"v_sub_u32 v{CB+i}, v{own}, v{CB+i}")
        P(f"v_lshrrev_b32 v{acc}, 31, v{CB}")
        for i in range(1, 4): P(f"v_alignbit_b32 v{acc}, v{acc}, v{CB+i}, 31")
        P(f"""
        v_bcnt_u32_b32 v{acc}, v{acc}, 0
        v_mov_b32 v{CB}, v{acc}
        v_permlane16_swap_b32 v{acc}, v{CB}
        v_add_u32 v{acc}, v{acc}, v{CB}
        v_mov_b32 v{CB}, v{acc}
        v_permlane32_swap_b32 v{acc}, v{CB}
        v_add_u32 v{acc}, v{acc}, v{CB}
        """)
    rank16(L_GM, 10)
    P(f"""
    v_and_b32 v159, 2047, v9
    v_lshlrev_b32 v160, 6, v159
    v_mul_u32_u24 v159, 1280, v159
    """)
    rank16b(10, 11)
    P(f"""
    v_cmp_eq_u32 vcc, 7, v11
    s_ff1_i32_b64 s47, vcc
    v_readlane_b32 s48, v10, s47
    s_and_b32 s48, s48, s59
    v_cmp_le_i32 vcc, s48, v9
    v_mov_b32 v10, v9
    s_cbranch_vccz L_tk3
    s_mov_b64 exec, vcc
    ds_add_rtn_u32 v11, v12, v152
    buffer_load_dword v253, v159, s[12:15], s54 offen sc1
    buffer_load_dword v253, v160, s[8:11], s55 offen sc1
    s_branch L_app2
    L_tkagain:
    v_mov_b32 v10, v9
    L_app:
    v_cmp_le_i32 vcc, s48, v10
    s_cbranch_vccz L_tk3
    s_mov_b64 exec, vcc
    ds_add_rtn_u32 v11, v12, v152
    {"" if not OPT.get("touch", 1) else f"v_and_b32 v{K4}, 2047, v10"}
    {"" if not OPT.get("touch", 1) else f"v_lshlrev_b32 v{K4+1}, 6, v{K4}"}
    {"" if not OPT.get("touch", 1) else f"v_mul_u32_u24 v{K4}, 1280, v{K4}"}
    {"" if not OPT.get("touch", 1) else f"buffer_load_dword v253, v{K4+1}, s[8:11], s55 offen sc1"}
    {"" if not OPT.get("touch", 1) else f"buffer_load_dword v253, v{K4}, s[12:15], s54 offen sc1"}
    L_app2:
    s_mov_b64 exec, -1
    v_add_u32 v{K4+8}, -1, v10
    """)
    for i in range(8): P(f"v_sub_u32 v{K4+i}, v{K4+8}, v{KK+i}")
    P(f"""
    v_min3_u32 v{K4}, v{K4}, v{K4+1}, v{K4+2}
    v_min3_u32 v{K4+3}, v{K4+3}, v{K4+4}, v{K4+5}
    v_min3_u32 v{K4}, v{K4}, v{K4+6}, v{K4+7}
    v_min3_u32 v{K4}, v{K4}, v{K4+3}, v10
    s_waitcnt lgkmcnt(0)
    v_min_u32 v11, 16, v11
    v_lshlrev_b32 v11, 2, v11
    s_mov_b64 exec, vcc
    ds_write_b32 v11, v10 offset:{L_LIST}
    v_sub_u32 v10, v{K4+8}, v{K4}
    s_mov_b64 exec, -1
    s_branch L_app
    """)
    flush_late(P)
    P(f"""
    L_pad0:
    s_branch L_pad1
    L_fchk:
    """)
    P(f"""
    s_lshl_b32 s49, s{sXCD}, 8
    s_add_u32 s49, s49, {SEN1}
    s_mov_b32 s50, 0
    s_mov_b64 exec, 0xffff
    L_h1:
    buffer_load_dword v10, v{vL4}, s[8:11], s49 offen sc1
    s_add_u32 s50, s50, 1
    s_cmp_gt_u32 s50, {HINTMAX}
    s_waitcnt vmcnt(0)
    v_cmp_ne_u32 vcc, v14, v10
    s_cbranch_scc1 L_h1_d
    s_cbranch_vccnz L_h1
    L_h1_d:
    s_mov_b64 exec, -1
    {"s_sleep %d" % OPT["kdelay"] if OPT.get("kdelay") else ""}
    s_branch L_tk1
    """)
    P(f"""
    L_tk3:
    s_waitcnt lgkmcnt(0)
    s_barrier
    ds_read_b32 v{K4+9}, v12
    """)
    rank16(L_LIST, 10)
    rank16b(10, 11)
    P(f"""
    v_cmp_gt_u32 vcc, 8, v11
    v_readfirstlane_b32 s47, v{K4+9}
    v_lshlrev_b32 v11, 2, v11
    s_mov_b64 exec, vcc
    ds_write_b32 v11, v10 offset:{L_SEL}
    s_mov_b64 exec, -1
    ds_read_b32 v150, v147 offset:{L_SEL}
    ds_read_b64 v[154:155], v158 offset:{L_SEL}
    s_mov_b32 s50, 0
    s_cmp_le_u32 s47, 16
    s_cbranch_scc1 L_tkdone
    ds_read_b32 v10, v12 offset:{L_SEL+28}
    s_waitcnt lgkmcnt(0)
    s_barrier
    v_readfirstlane_b32 s48, v10
    v_mov_b32 v11, -1
    ds_write_b32 v12, v12
    ds_write_b32 v151, v11 offset:{L_LIST}
    s_waitcnt lgkmcnt(0)
    s_barrier
    s_cmp_ge_u32 s{sWV}, 4
    s_cbranch_scc1 L_tk3
    s_branch L_tkagain
    """)
    flush_late(P)
    P(f"""
    L_pad1:
    s_branch L_pad2
    L_tkdone:
    """)
    GB = [48 + 8*b for b in range(8)] + [240, 248]
    UB = [160 + 8*b for b in range(10)]
    AG = [16, 20, 24, 28, 32, 36, 112, 116, 120, 124]
    P(f"""
    s_cmp_lg_u32 s{sWV}, 4
    s_cbranch_scc1 L_selpub
    s_waitcnt lgkmcnt(0)
    """)
    stamp(P, 10)
    P(f"""
    v_and_b32 v9, 2047, v150
    v_mad_u32_u24 v9, v9, s57, v148
    v_and_b32 v154, 2047, v154
    v_and_b32 v155, 2047, v155
    v_lshlrev_b32 v154, 6, v154
    v_lshlrev_b32 v155, 6, v155
    L_gretry:
    """)
    for b in range(10):
        P(f"buffer_load_dwordx4 {v(AG[b],4)}, v9, s[12:15], 0 offen offset:{128*b} sc1")
    P(f"""
    buffer_load_dwordx3 {v(136,3)}, v154, s[8:11], s60 offen sc1
    buffer_load_dwordx3 {v(140,3)}, v155, s[8:11], s60 offen sc1
    """)
    for i in range(8): P(f"v_mov_b32 v{A0+i}, 0")
    P("v_mov_b32 v10, 0")
    for b in range(10):
        P(f"s_waitcnt vmcnt({11-b})")
        P(f"v_smfmac_f32_16x16x64_bf16 {v(A0,4)}, {v(AG[b],4)}, {v(GB[b],8)}, v144")
        P(f"v_max3_u32 v10, v10, v{AG[b]}, v{AG[b]+1}")
        P(f"v_smfmac_f32_16x16x64_bf16 {v(A0+4,4)}, {v(AG[b],4)}, {v(UB[b],8)}, v144")
        P(f"v_max3_u32 v10, v10, v{AG[b]+2}, v{AG[b]+3}")
    P(f"""
    v_cmp_eq_u32 s[62:63], -1, v10
    s_waitcnt vmcnt(0)
    v_bitop3_b32 v10, v138, v142, v14 bitop3:0x7e
    v_mul_f32 v44, {f2u(-1.4426950408889634)}, v137
    v_cmp_ne_u32 vcc, 0, v10
    v_mul_f32 v45, {f2u(-1.4426950408889634)}, v141
    v_mul_f32 v137, v137, v137
    s_or_b64 vcc, vcc, s[62:63]
    v_mul_f32 v141, v141, v141
    """)
    spin_tail(P, 50, "L_gretry", "L_gok")
    stamp(P, 11)
    P(f"""
    v_fma_f32 v{A0}, -v136, v46, v{A0}
    v_fma_f32 v{A0+2}, -v140, v46, v{A0+2}
    v_add_f32 v{A0}, v{A0}, v{A0+1}
    v_add_f32 v{A0+2}, v{A0+2}, v{A0+3}
    v_mul_f32 v44, v44, v{A0}
    v_mul_f32 v45, v45, v{A0+2}
    v_exp_f32 v44, v44
    v_exp_f32 v45, v45
    v_fma_f32 v{A0+4}, -v136, v47, v{A0+4}
    v_fma_f32 v{A0+6}, -v140, v47, v{A0+6}
    v_add_f32 v44, 1.0, v44
    v_add_f32 v45, 1.0, v45
    v_rcp_f32 v44, v44
    v_rcp_f32 v45, v45
    v_add_f32 v{A0+4}, v{A0+4}, v{A0+5}
    v_add_f32 v{A0+6}, v{A0+6}, v{A0+7}
    v_mul_f32 v{A0}, v{A0}, v137
    v_mul_f32 v{A0+2}, v{A0+2}, v141
    v_mul_f32 v{A0}, v{A0}, v44
    v_mul_f32 v{A0+2}, v{A0+2}, v45
    v_mul_f32 v{A0}, v{A0}, v{A0+4}
    v_mul_f32 v{A0+2}, v{A0+2}, v{A0+6}
    v_cvt_pk_bf16_f32 v44, v{A0}, v{A0+2}
    v_mov_b32_dpp v45, v44 quad_perm:[1,0,3,2] row_mask:0xf bank_mask:0xf
    v_perm_b32 v44, v45, v44, v157
    v_min_u32 v44, -2, v44
    buffer_store_dword v44, v156, s[8:11], s61 offen sc1
    s_mov_b64 exec, 1
    buffer_store_dword v14, v12, s[8:11], s64 offen
    {FIN}
    """)
    flush_late(P)
    P_keep2 = P; P = Prog()
    P("L_w4prep:")
    for b in range(10):
        if b == OPT.get("w4split", 9): P("s_barrier")
        for gu in range(2):
            r = (UB if gu else GB)[b]
            for j in range(4):
                P(f"ds_read_b64_tr_b16 {v(r+2*j,2)}, v15 offset:{8192*(b>>1) + 4096*gu + 2048*(b&1) + 1024*(j>>1) + 256*(j&1)}")
    for i in range(4): P(f"v_mov_b32 v{16+i}, 0x3f803f80")
    for i in range(8): P(f"v_mov_b32 v{A0+i}, 0")
    P(f"""
    v_lshlrev_b32 v158, 3, v{vQ}
    v_and_b32 v9, 1, v{vN}
    v_lshl_add_u32 v156, v{vQ}, 1, v9
    v_lshlrev_b32 v156, 5, v156
    v_and_b32 v10, 14, v{vN}
    v_lshl_add_u32 v156, v10, 1, v156
    v_mov_b32 v157, 0x05040100
    v_mov_b32 v10, 0x03020706
    v_cmp_eq_u32 vcc, 1, v9
    v_cndmask_b32 v157, v157, v10, vcc
    s_mov_b32 s60, {STATS}
    s_lshl_b32 s61, s{sIDX}, 8
    s_add_u32 s61, s61, {ACT}
    s_lshr_b32 s64, s2, 6
    s_and_b32 s43, s{sJ}, 3
    s_lshl2_add_u32 s64, s64, s43
    s_lshl_b32 s43, s{sXCD}, 8
    s_lshl2_add_u32 s64, s64, s43
    s_add_u32 s64, s64, {SEN2}
    s_waitcnt lgkmcnt(0)
    {"s_barrier" if OPT.get("cspos", 0) else ""}
    """)
    for b in range(10):
        P(f"v_smfmac_f32_16x16x64_bf16 {v(A0,4)}, {v(16,4)}, {v(GB[b],8)}, v144")
        P(f"v_smfmac_f32_16x16x64_bf16 {v(A0+4,4)}, {v(16,4)}, {v(UB[b],8)}, v144")
    P(f"""
    v_add_f32 v46, v{A0}, v{A0+1}
    v_add_f32 v47, v{A0+4}, v{A0+5}
    s_setprio 2
    {"" if OPT.get("cspos", 0) else "s_barrier"}
    s_branch L_tk3
    """)
    IDLE += P.lines; P = P_keep2
    D = 16
    P(f"""
    L_selpub:
    s_cmp_lg_u32 s{sWV}, 5
    s_cbranch_scc1 L_fin2
    s_cmp_lg_u32 s54, 0
    s_cbranch_scc1 L_fin2
    ds_read_b32 v150, v{vL4} offset:{L_SEL}
    v_mov_b32 v151, v14
    v_lshlrev_b32 v9, 3, v{vL}
    s_lshl_b32 s49, s{sXCD}, 8
    s_add_u32 s49, s49, {SELR}
    s_mov_b64 exec, 0xffff
    s_waitcnt lgkmcnt(0)
    buffer_store_dwordx2 v[150:151], v9, s[8:11], s49 offen sc1
    s_branch L_fin2
    L_pad2:
    s_branch L_tk1
    """)
    P(f"""
    L_f2:
    s_lshl_b32 s51, s{sWV}, 12
    s_add_u32 s51, s51, {ACT}
    """)
    for i in range(4): P(f"v_mov_b32 v{AR+12+i}, 0")
    P(f"""
    s_lshl_b32 s49, s{sXCD}, 8
    s_add_u32 s49, s49, {SEN2}
    s_mov_b32 s50, 0
    s_mov_b64 exec, 0xfff
    L_h2:
    buffer_load_dword v10, v{vL4}, s[8:11], s49 offen sc1
    s_add_u32 s50, s50, 1
    s_cmp_gt_u32 s50, {HINTMAX}
    s_waitcnt vmcnt(0)
    v_cmp_ne_u32 vcc, v14, v10
    s_cbranch_scc1 L_h2_d
    s_cbranch_vccnz L_h2
    L_h2_d:
    s_mov_b64 exec, -1
    {"s_sleep %d" % OPT["adelay"] if OPT.get("adelay") else ""}
    s_mov_b32 s50, 0
    s_waitcnt lgkmcnt(0)
    """)
    stamp(P, 10)
    P("L_a2:")
    for i in range(3):
        P(f"buffer_load_dwordx4 {v(AR+4*i,4)}, v{vL16}, s[8:11], s51 offen offset:{1024*i} sc1")
    P(f"""
    s_cmp_eq_u32 s{sWV}, 6
    s_cbranch_scc1 L_a3
    buffer_load_dwordx4 {v(AR+12,4)}, v{vL16}, s[8:11], s51 offen offset:3072 sc1
    L_a3:
    v_mov_b32 v10, 0
    """)
    for i in range(8): P(f"v_mov_b32 v{A0+i}, 0")
    for b in range(4):
        if b < 3: P(f"s_waitcnt vmcnt({2-b})")
        for ct in range(2):
            P(f"v_smfmac_f32_16x16x64_bf16 {v(A0+4*ct,4)}, {v(AR+4*b,4)}, {v(BW+16*b+8*ct,8)}, v144")
            P(f"v_max3_u32 v10, v10, v{AR+4*b+2*ct}, v{AR+4*b+2*ct+1}")
    P(f"v_cmp_eq_u32 vcc, -1, v10")
    spin_tail(P, 50, "L_a2", "L_a4")
    stamp(P, 11)
    if OPT["stamps"]: P("s_add_u32 s94, s50, 1")
    P(f"""
    v_add_f32 v{A0}, v{A0}, v{A0+1}
    v_add_f32 v{A0+2}, v{A0+2}, v{A0+3}
    ds_write2_b32 v149, v{A0}, v{A0+2} offset0:0 offset1:32
    v_add_f32 v{A0+4}, v{A0+4}, v{A0+5}
    v_add_f32 v{A0+6}, v{A0+6}, v{A0+7}
    ds_write2_b32 v149, v{A0+4}, v{A0+6} offset0:16 offset1:48
    s_waitcnt lgkmcnt(0)
    s_barrier
    {FIN}
    """)
    flush_late(P)
    P(f"""
    L_f2fin:
    v_and_b32 v13, 7, v{vL}
    v_and_b32 v9, 56, v{vL}
    s_lshl_b32 s49, s{sXCD}, 8
    s_add_u32 s49, s49, {SELR}
    s_mov_b32 s50, 0
    L_spoll:
    buffer_load_dwordx2 v[150:151], v9, s[8:11], s49 offen sc1
    s_waitcnt vmcnt(0)
    v_cmp_ne_u32 vcc, v14, v151
    """)
    spin_tail(P, 50, "L_spoll", "L_spok")
    stamp(P, 8)
    P(f"""
    v_and_b32 v46, 2047, v150
    v_mul_u32_u24 v46, 1280, v46
    v_lshl_add_u32 v46, v13, 3, v46
    L_oretry:
    buffer_load_dwordx2 {v(44,2)}, v46, s[12:15], s58 offen sc1
    s_waitcnt vmcnt(0)
    v_max_u32 v10, v44, v45
    v_cmp_eq_u32 vcc, -1, v10
    """)
    spin_tail(P, 50, "L_oretry", "L_ook")
    P(f"""
    """)
    O = 48
    P(f"""
    v_lshlrev_b32 v9, 1, v150
    v_ashrrev_i32 v10, 31, v9
    v_not_b32 v10, v10
    v_or_b32 v10, 0x80000000, v10
    v_xor_b32 v9, v9, v10
    v_and_b32 v9, 0xffff0000, v9
    v_mul_f32 v9, {f2u(-1.4426950408889634)}, v9
    v_exp_f32 v9, v9
    v_add_f32 v9, 1.0, v9
    v_rcp_f32 v47, v9
    v_lshlrev_b32 v{O}, 16, v44
    v_and_b32 v{O+1}, 0xffff0000, v44
    v_lshlrev_b32 v{O+2}, 16, v45
    v_and_b32 v{O+3}, 0xffff0000, v45
    s_barrier
    """)
    for w in range(7): P(f"ds_read_b128 {v(D+4*w,4)}, v{vL16} offset:{L_RED+1024*w}")
    def pk2(d, x):
        P(f"v_pk_add_f32 {v(d,2)}, {v(d,2)}, {v(x,2)}"); P(f"v_pk_add_f32 {v(d+2,2)}, {v(d+2,2)}, {v(x+2,2)}")
    P("s_waitcnt lgkmcnt(5)"); pk2(D, D+4)
    P("s_waitcnt lgkmcnt(3)"); pk2(D+8, D+12)
    P("s_waitcnt lgkmcnt(1)"); pk2(D+16, D+20); pk2(D, D+8)
    P("s_waitcnt lgkmcnt(0)"); pk2(D+16, D+24); pk2(D, D+16)
    for i in range(4): P(f"v_fma_f32 v{O+i}, v{D+i}, v47, v{O+i}")
    P(f"""
    v_cvt_pk_bf16_f32 v44, v{O}, v{O+1}
    v_cvt_pk_bf16_f32 v45, v{O+2}, v{O+3}
    buffer_store_dwordx2 {v(44,2)}, v46, s[12:15], s58 offen{" sc1" if OPT.get("fsc1", 0) else ""}
    L_fin:
    """)
    if OPT.get("padto"):
        if OPT.get("padwg") is not None:
            P(f"s_cmp_lg_u32 s2, {OPT['padwg']}")
            P("s_cbranch_scc1 L_fin2")
        if OPT.get("padrole") == 1:
            P(f"s_cmp_ge_u32 s{sIDX}, 108"); P("s_cbranch_scc1 L_fin2")
        if OPT.get("padrole") == 2:
            P(f"s_cmp_lt_u32 s{sIDX}, 108"); P("s_cbranch_scc1 L_fin2")
        if OPT.get("padfrom") == 999: P("s_memrealtime s[70:71]")
        P(f"""
        L_padt:
        s_memrealtime s[72:73]
        s_waitcnt lgkmcnt(0)
        s_sub_u32 s72, s72, s70
        s_cmp_lt_u32 s72, {OPT["padto"]}
        s_cbranch_scc1 L_padt
        """)
    P("L_fin2:")
    if OPT["stamps"]:
        P(f"""
        s_memrealtime s[{70+2*NST}:{71+2*NST}]
        s_waitcnt vmcnt(0)
        s_memrealtime s[{72+2*NST}:{73+2*NST}]
        s_waitcnt lgkmcnt(0)
        s_lshl_b32 s49, s2, 6
        s_lshl_b32 s50, s{sWV}, 14
        s_add_u32 s49, s49, s50
        s_add_u32 s49, s49, {ST_OFF}
        s_mov_b64 exec, 1
        v_mov_b32 v1, 0
        """)
        for i in range(NST+2):
            P(f"v_mov_b32 v2, s{70+2*i}")
            P(f"buffer_store_dword v2, v1, s[8:11], s49 offen offset:{4*i}")
    P("L_end:")
    P("s_endpgm")
    flush_late(P)
    P.raw('.p2align 12')
    for l_ in IDLE: P.raw(l_)
    P("L_last:")
    P("s_endpgm")
    return name

def main(out):
    P = Prog()
    name = gen(P)
    body = P.finalize()
    hdr = f"""; fused 2D-DFT (two-stage MFMA) + LayerNorms + top-8 routed SwiGLU; written by a generator script of mine
; @launch grid=(256,1,1) block=(512,1,1) lds={L_END}
.amdgcn_target "amdgcn-amd-amdhsa--gfx950"
.text
"""
    d = f""".section .rodata,"a"
.p2align 6
.amdhsa_kernel {name}
  .amdhsa_next_free_vgpr 256
  .amdhsa_next_free_sgpr 102
  .amdhsa_accum_offset 256
  .amdhsa_group_segment_fixed_size 0
  .amdhsa_kernarg_size 104
  .amdhsa_user_sgpr_count 2
  .amdhsa_user_sgpr_kernarg_segment_ptr 1
  .amdhsa_system_sgpr_workgroup_id_x 1
.end_amdhsa_kernel
"""
    open(out, "w").write(hdr + body + d)

if __name__ == "__main__":
    for a_ in sys.argv[2:]:
        k, _, val = a_.partition("=")
        OPT[k] = int(val) if val else True
    main(sys.argv[1])
```

```python
import sys, struct
sys.path.insert(0, "work")
from asmlib import *

NAME = "sequential_preLN__spectral_fnet__moe_arch_mod__prompt"
XB = 2621440
FLAGS = 0x2c0000
KEYS = 0x8000
KST = 384
ACT = 0x18000
ZM = 0x20000
ZT = ZM + 0x200000
STATS = 0x2a0000
SEN1 = 0x1000
SEN2 = 0x2000
SELR = 0x3000
HINTMAX = 64
ST_OFF = 0x300000
WS_SZ = 0x400000
OOB = 0x1000000
SPIN = 1 << 16

L_MISC = 0
L_CNT = 0; L_TAG = 4; L_ZP = 16; L_SEL = 32; L_KREC = 64; L_GM = 128; L_LIST = 192
L_PS = 512
L_CS = 1024
L_RED = 2048
L_HT = 2048; HS = 128
L_W = 12288
L_X = 32768
L_CF = 114688
L_XR = 118784
XP = 1284
L_WR = 139520
L_PART = 12288
L_WF = 20480
L_RM = 512
L_WT1 = 114688
L_WT = 12288
L_END = 114688 + 40960
RSB = 2576

sGRP, sJ, sWV, sSL, sXCD, sTB, sSTR, sROW, sROWB, sIDX, sRHO, sC640, sHW = 32, 33, 34, 36, 37, 38, 39, 40, 41, 35, 44, 45, 46
vN, vQ, vW, vL, vL4, vL16 = 1, 2, 3, 4, 6, 8
sTAG = 3; sZP = 100

OPT = dict(stamps=False, xnt=0, wnt=0, cpre=1, npre=5, tail=0, pf1=1)

def f2u(x): return "0x%08x" % struct.unpack("<I", struct.pack("<f", x))[0]
NST = 14
SEC = ["p1"]
def stamp(P, i):
    if OPT["stamps"]: P(f"s_memrealtime s[{70+2*i}:{71+2*i}]")
    if OPT.get("padfrom") == {"p1": 0, "m": 100, "p2": 200, "ffn": 300}[SEC[0]] + i and i: P("s_memrealtime s[70:71]")

def bf16_round(r):
    return [f"v_cvt_pk_bf16_f32 {v(r)}, {v(r)}, {v(r)}", f"v_lshlrev_b32 {v(r)}, 16, {v(r)}"]

def spin_tail(P, cnt, again, ok):
    P(f"""
    s_cbranch_vccnz {ok}_r
    {ok}:
    """)
    LATE.append(f"""
    {ok}_r:
    s_add_u32 s{cnt}, s{cnt}, 1
    s_cmp_gt_u32 s{cnt}, {SPIN}
    s_cbranch_scc1 {ok}
    s_branch {again}
    """)
LATE = []
def flush_late(P):
    for t in LATE: P(t)
    del LATE[:]

def cheb2(P, T, k):
    for i in range(2, 8):
        P(f"v_fma_f32 v{T+i}, v{k}, v{T+i-1}, -v{T+i-2}")
        P(f"v_fma_f32 v{T+8+i}, v{k}, v{T+8+i-1}, -v{T+8+i-2}")

def gen(P):
    global KST
    KST = OPT.get("kst", 64)
    name = NAME + "_kernel"
    xnt = " nt" if OPT["xnt"] else ""
    wnt = " nt" if OPT["wnt"] else ""
    P.raw(".p2align 12"); P.raw(".fill 0x340, 4, 0xbf810000")
    P.raw(f".globl {name}"); P.raw(".p2align 8"); P.raw(f".type {name},@function"); P.raw(f"{name}:")
    P("L_start:")
    stamp(P, 0)
    if OPT.get("padto"): P("s_memrealtime s[70:71]")
    def ptrs():
        P(f"""
        s_load_dwordx2 s[12:13], s[0:1], 80
        s_load_dwordx2 s[16:17], s[0:1], 48
        s_load_dwordx2 s[20:21], s[0:1], 56
        s_load_dwordx2 s[24:25], s[0:1], 64
        s_load_dwordx2 s[28:29], s[0:1], 72
        """)
    ZP = [66, 67, 42, 68]
    FIN = "s_branch L_fin" if (OPT["stamps"] or OPT.get("padto")) else "s_endpgm"
    MK = 24
    def tagcalc():
        P(f"""
        s_mul_i32 s{sTAG}, s{sTAG}, 0x9e3779b1
        s_add_u32 s{sTAG}, s{sTAG}, 0x7f4a7c15
        v_mov_b32 v14, s{sTAG}
        """)
        for i in range(3):
            P(f"s_bfe_u32 s43, s{sTAG}, {hex((2<<16) | (2*i))}")
            P(f"s_mul_i32 s43, s43, 0x8001")
            P(f"s_and_b32 s{ZP[i]}, s43, 0x10001")
        P(f"s_xor_b32 s68, s66, 0x10001")
    def consts():
        P(f"""
        s_mov_b64 s[12:13], s[26:27]
        s_mov_b64 s[16:17], s[18:19]
        s_mov_b64 s[28:29], s[24:25]
        s_mov_b64 s[24:25], s[22:23]
        s_mov_b32 s14, {XB}
        s_mov_b32 s15, 0x20000
        s_mov_b32 s18, 1280
        s_mov_b32 s19, 0x20000
        s_mov_b32 s22, {640*3456}
        s_mov_b32 s23, 0x20000
        s_mov_b32 s26, {640*3456}
        s_mov_b32 s27, 0x20000
        s_mov_b32 s30, {1728*1280}
        s_mov_b32 s31, 0x20000
        v_lshlrev_b32 v{vL4}, 2, v{vL}
        v_mov_b32 v13, 0
        s_and_b32 s43, s{sJ}, 3
        s_lshr_b32 s{sIDX}, s2, 6
        s_lshl3_add_u32 s{sIDX}, s{sIDX}, s{sXCD}
        s_lshl2_add_u32 s{sIDX}, s{sIDX}, s43
        s_cmp_eq_u32 s{sGRP}, 0
        s_cselect_b32 s{sSTR}, 32, 64
        s_lshl_b32 s{sTB}, s{sSTR}, 3
        s_mul_i32 s{sTB}, s{sTB}, s43
        s_add_u32 s{sTB}, s{sTB}, s{sGRP}
        """)
    def rows4(dst=92):
        for pr in range(2):
            sa, sb = 56 + 2*pr, 57 + 2*pr
            P(f"""
            s_add_u32 s{sa}, s{sHW}, {4*pr}
            s_mul_i32 s{sa}, s{sa}, s{sSTR}
            s_add_u32 s{sa}, s{sa}, s{sTB}
            s_sub_u32 s{sb}, 2048, s{sa}
            s_cmp_eq_u32 s{sa}, 0
            s_cselect_b32 s{sb}, 1024, s{sb}
            s_mul_i32 s{sa}, s{sa}, 1280
            s_mul_i32 s{sb}, s{sb}, 1280
            """)
        P(f"""
        v_mov_b32 v10, s56
        v_mov_b32 v9, s57
        v_mov_b32 v11, s58
        v_mov_b32 v12, s59
        v_mov_b32_dpp v10, v9 quad_perm:[0,1,2,3] row_mask:0x2 bank_mask:0xf
        s_movk_i32 s62, 1024
        v_mov_b32_dpp v10, v11 quad_perm:[0,1,2,3] row_mask:0x4 bank_mask:0xf
        v_mov_b32_dpp v10, v12 quad_perm:[0,1,2,3] row_mask:0x8 bank_mask:0xf
        v_lshl_add_u32 v{dst}, v{vN}, 4, v10
        """)
    P(f"""
    s_load_dwordx2 s[4:5], s[0:1], 0
    s_load_dwordx2 s[8:9], s[0:1], 96
    s_load_dwordx16 s[16:31], s[0:1], 40
    s_mov_b32 s10, {WS_SZ}
    s_mov_b32 s11, 0x20000
    v_lshrrev_b32 v{vW}, 6, v0
    s_cmp_ge_u32 s2, 256
    s_cbranch_scc1 L_end
    v_readfirstlane_b32 s{sWV}, v{vW}
    s_bfe_u32 s{sJ}, s2, 0x30003
    v_and_b32 v{vL}, 63, v0
    v_and_b32 v{vN}, 15, v0
    v_bfe_u32 v{vQ}, v0, 4, 2
    s_and_b32 s{sXCD}, s2, 7
    s_lshr_b32 s43, s2, 7
    s_lshl1_add_u32 s{sGRP}, s{sXCD}, s43
    s_sub_u32 s43, 32, s{sGRP}
    s_cmp_eq_u32 s{sGRP}, 0
    s_cselect_b32 s43, 16, s43
    s_bitcmp1_b32 s2, 6
    s_cselect_b32 s{sGRP}, s43, s{sGRP}
    s_mul_i32 s{sRHO}, s{sJ}, 5
    s_lshr_b32 s{sRHO}, s{sRHO}, 2
    s_and_b32 s{sHW}, s{sWV}, 3
    s_mov_b32 s{sC640}, {f2u(1.0/640)}
    v_lshlrev_b32 v{vL16}, 4, v{vL}
    s_cmp_ge_u32 s{sWV}, 4
    s_cbranch_scc1 L_W
    """)
    if OPT["cpre"]:
        P(f"""
        s_cmp_ge_u32 s{sWV}, 3
        s_cbranch_scc1 L_Mx
        s_cmp_ge_u32 s2, {OPT.get("cprewg", 32)}
        s_cbranch_scc1 L_Mx
        s_getpc_b64 s[42:43]
        L_pc:
        v_lshlrev_b32 v10, 7, v0
        v_add_u32 v10, 896, v10
        v_min_u32 v10, L_last-L_pc, v10
        v_mov_b32 v11, s43
        v_add_co_u32 v10, vcc, s42, v10
        v_addc_co_u32 v11, vcc, 0, v11, vcc
        global_load_dword v15, v[10:11], off
        """)
    P(f"""
    L_Mx:
    v_lshrrev_b32 v9, 3, v{vL}
    s_lshl_b32 s47, s{sHW}, 4
    v_add_u32 v5, s47, v9
    v_mul_u32_u24 v5, 40960, v5
    v_lshrrev_b32 v7, 2, v9
    v_and_or_b32 v9, v9, 6, v7
    v_xor_b32 v9, v9, v{vL}
    v_and_b32 v9, 7, v9
    v_lshl_add_u32 v5, v9, 4, v5
    v_xor_b32 v7, 16, v5
    v_add_u32 v7, {8*40960}, v7
    s_mul_i32 s50, s{sGRP}, 1280
    s_add_u32 s47, s50, 1280
    s_lshr_b32 s52, s{sWV}, 2
    s_mul_i32 s52, s52, 5
    s_add_u32 s48, s{sRHO}, s52
    s_cmp_ge_u32 s48, 10
    s_cselect_b32 s49, 10, 0
    s_sub_u32 s48, s48, s49
    s_lshl_b32 s48, s48, 7
    s_add_u32 s48, s48, s50
    s_mul_i32 s49, s{sHW}, 20480
    s_add_u32 s49, s49, {L_X}
    s_lshl_b32 s52, s52, 11
    s_add_u32 m0, s49, s52
    s_mov_b32 s6, {XB}
    s_mov_b32 s7, 0x20000
    s_mov_b32 s52, 5
    s_waitcnt lgkmcnt(0)
    """)
    stamp(P, 1)
    P(f"""
    s_cmp_lt_u32 s{sWV}, 4
    s_cbranch_scc1 L_xl
    s_load_dword s{sTAG}, s[8:9], 0
    s_barrier
    s_branch L_H1
    L_xl:
    buffer_load_dwordx4 v5, s[4:7], s48 offen{xnt} lds
    s_add_u32 m0, m0, 1024
    s_add_u32 s51, s48, 128
    buffer_load_dwordx4 v7, s[4:7], s48 offen{xnt} lds
    s_add_u32 m0, m0, 1024
    s_cmp_eq_u32 s51, s47
    s_cselect_b32 s48, s50, s51
    s_sub_u32 s52, s52, 1
    s_cmp_lg_u32 s52, 0
    s_cbranch_scc1 L_xl
    s_cmp_ge_u32 s{sWV}, 4
    s_cbranch_scc1 L_H2
    s_barrier
    s_branch L_M
    """)
    def wrow(dst, fill=None):
        T = 32; K8 = 76; a_, b_, c_, d_ = 78, 79, 80, 81
        P(f"""
        s_cmp_eq_u32 s{sJ}, 0
        s_cselect_b32 s53, 8, s{sJ}
        s_lshl_b32 s54, s{sRHO}, 6
        """)
        if dst is None: P(f"s_lshl_b32 s55, s{sHW}, 6"); P("s_add_u32 s53, s53, s55")
        else: P("s_add_u32 s53, s53, 256")
        P(f"""
        v_and_b32 v{a_}, 7, v{vN}
        v_lshl_add_u32 v{a_}, v{a_}, 3, s53
        v_lshrrev_b32 v{c_}, 3, v{vN}
        v_lshl_add_u32 v{b_}, v{vQ}, 1, s54
        v_cvt_f32_u32 v{c_}, v{c_}
        v_mul_u32_u24 v{b_}, v{a_}, v{b_}
        v_mul_f32 v{c_}, {f2u(-0.25)}, v{c_}
        v_cvt_f32_u32 v{a_}, v{a_}
        v_cvt_f32_u32 v{b_}, v{b_}
        v_mul_f32 v{a_}, s{sC640}, v{a_}
        v_fma_f32 v{b_}, v{b_}, s{sC640}, v{c_}
        v_mul_f32 v{K8}, {f2u(8.0)}, v{a_}
        v_fract_f32 v{T}, v{b_}
        v_add_f32 v{T+2}, v{T}, v{a_}
        v_add_f32 v{T+4}, v{T}, v{K8}
        v_add_f32 v{T+6}, v{T+2}, v{K8}
        v_cos_f32 v{K8}, v{K8}
        """)
        for i in range(4):
            P(f"v_sin_f32 v{T+2*i+1}, -v{T+2*i}")
            P(f"v_cos_f32 v{T+2*i}, v{T+2*i}")
        P(f"v_add_f32 v{K8}, v{K8}, v{K8}")
        if dst is None: P(f"s_mul_i32 s55, s{sHW}, 5120"); P(f"v_add_u32 v{d_}, s55, v{vL16}")
        P(f"v_mov_b32 v{K8+1}, v{K8}")
        for kp in range(5):
            if kp:
                for c in (2*kp, 2*kp+1):
                    for i in range(2):
                        P(f"v_pk_fma_f32 {v(T+4*c+2*i,2)}, {v(K8,2)}, {v(T+4*c-4+2*i,2)}, {v(T+4*c-8+2*i,2)} neg_lo:[0,0,1] neg_hi:[0,0,1]")
            pk = 84 + 4*(kp & 1) if dst is None else dst + 4*kp
            for i in range(4): P(f"v_cvt_pk_bf16_f32 v{pk+i}, v{T+8*kp+2*i}, v{T+8*kp+2*i+1}")
            if fill:
                for _ in range(2): P(fill.pop(0))
            if dst is None: P(f"ds_write_b128 v{d_}, {v(pk,4)} offset:{L_W + 1024*kp}")
    P("L_W:")
    wrow(None)
    PZ = 152; T = 64; F = 80
    P(f"""
    s_branch L_Mx
    L_H1:
    """)
    consts()
    P(f"""
    v_mov_b32 v{PZ}, -1
    v_mov_b32 v{PZ+1}, -1
    v_mov_b32 v{PZ+2}, -1
    v_mov_b32 v{PZ+3}, -1
    v_lshrrev_b32 v150, 1, v{vL}
    v_and_b32 v9, 2, v150
    v_bfe_u32 v10, v150, 3, 1
    v_and_b32 v150, 21, v150
    v_lshl_or_b32 v150, v9, 2, v150
    v_lshl_or_b32 v150, v10, 1, v150
    v_mul_u32_u24 v150, 3456, v150
    v_and_b32 v9, 1, v{vL}
    v_lshl_add_u32 v150, v9, 4, v150
    v_mul_u32_u24 v151, 1280, v{vL}
    s_cmp_ge_u32 s{sJ}, 4
    s_cbranch_scc1 L_hs1
    """)
    rows4(107)
    P(f"""
    s_mul_i32 s53, s{sHW}, {XP}
    s_mul_i32 s54, s{sHW}, 320
    s_mov_b32 s55, m0
    s_add_u32 m0, s54, {L_WR}
    s_mov_b64 exec, 0xfffff
    buffer_load_dwordx4 v{vL16}, s[16:19], s54 offen lds
    s_mov_b64 exec, -1
    s_mov_b32 m0, s55
    s_branch L_xl
    """)
    P(f"""
    L_hs1:
    v_mov_b32 v107, 0
    s_and_b32 s63, s{sJ}, 3
    s_lshl2_add_u32 s63, s63, s{sHW}
    s_and_b32 s56, s{sJ}, 3
    s_mul_i32 s56, s56, 5
    s_add_u32 s57, s56, 4
    s_add_u32 s56, s56, s{sHW}
    s_lshl_b32 s43, s{sIDX}, 5
    s_mul_i32 s58, s56, {32*3456}
    s_add_u32 s58, s58, s43
    s_mul_i32 s59, s57, {32*3456}
    s_add_u32 s59, s59, s43
    s_and_b32 s43, s56, 28
    s_add_u32 s56, s56, s43
    s_lshl_b32 s56, s56, 10
    s_and_b32 s43, s57, 28
    s_add_u32 s57, s57, s43
    s_lshl_b32 s57, s57, 10
    s_lshl_b32 s43, s{sHW}, 4
    s_bfm_b64 s[60:61], 16, s43
    s_and_b32 s63, s63, 7
    s_mul_i32 s65, s63, {54*1280}
    s_sub_u32 s43, s{sIDX}, 108
    s_lshr_b32 s43, s43, 1
    s_lshl_b32 s43, s43, 7
    s_add_u32 s65, s65, s43
    s_lshl2_add_u32 s63, s{sIDX}, s{sHW}
    s_lshl_b32 s63, s63, 6
    s_add_u32 s63, s63, {ACT}
    s_branch L_xl
    L_H2:
    """)
    stamp(P, 2)
    P(f"""
    s_barrier
    s_cmp_ge_u32 s{sJ}, 4
    s_cbranch_scc1 L_hc1
    """)
    for i in range(4):
        P(f"s_add_u32 m0, s53, {L_XR + XP*[0, 8, 4, 12][i]}")
        P(f"buffer_load_dwordx4 v{vL16}, s[4:7], s{56+i} offen lds")
    P("s_mov_b64 exec, 0xffff")
    for i in range(4):
        P(f"s_add_u32 m0, s53, {L_XR + XP*[0, 8, 4, 12][i]}")
        P(f"buffer_load_dwordx4 v{vL16}, s[4:7], s{56+i} offen offset:1024 lds")
    P(f"""
    s_mov_b64 exec, -1
    """)
    NPB = OPT.get("npb", 0)
    pzs = [f"buffer_store_dwordx4 {v(PZ,4)}, v{vL16}, s[12:15], s{56+i} offen sc1" for i in range(4)] + [f"buffer_store_dwordx4 {v(PZ,4)}, v107, s[12:15], s62 offen sc1"]
    for o in pzs[:NPB]: P(o)
    P(f"""
    s_waitcnt vmcnt({8+NPB})
    s_barrier
    """)
    for o in pzs[NPB:]: P(o)
    P(f"""
    s_branch L_hs4
    L_hc1:
    s_cmp_ge_u32 s{sIDX}, 108
    s_cbranch_scc1 L_hs2
    s_mov_b64 exec, 15
    buffer_store_dwordx4 {v(PZ,4)}, v{vL16}, s[8:11], s63 offen sc1
    s_mov_b64 exec, -1
    s_add_u32 m0, s56, {L_WT1}
    s_nop 0
    buffer_load_dwordx4 v150, s[20:23], s58 offen lds
    s_add_u32 m0, s56, {L_WT1+4096}
    s_nop 0
    buffer_load_dwordx4 v150, s[24:27], s58 offen lds
    s_add_u32 m0, s57, {L_WT1}
    s_mov_b64 exec, s[60:61]
    buffer_load_dwordx4 v150, s[20:23], s59 offen lds
    s_add_u32 m0, s57, {L_WT1+4096}
    s_nop 0
    buffer_load_dwordx4 v150, s[24:27], s59 offen lds
    s_lshr_b32 s65, s2, 6
    s_and_b32 s43, s{sJ}, 3
    s_lshl2_add_u32 s65, s65, s43
    s_lshr_b32 s43, s{sHW}, 1
    s_lshl1_add_u32 s65, s65, s43
    s_mul_i32 s65, s65, {36*1280}
    s_and_b32 s43, s{sHW}, 1
    s_lshl1_add_u32 s43, s{sXCD}, s43
    s_lshl_b32 s43, s43, 7
    s_add_u32 s65, s65, s43
    s_add_u32 s65, s65, {864*1280 - 768}
    s_cmp_lt_u32 s{sXCD}, 3
    s_cselect_b32 s65, {OOB}, s65
    s_mov_b32 s64, 0xf
    s_waitcnt vmcnt(5)
    s_branch L_hs3
    L_hs2:
    s_mov_b32 exec_hi, 0x3fffff
    buffer_load_dword v253, v151, s[28:31], s65 offen{wnt}
    s_add_u32 s65, s65, {432*1280}
    s_mov_b32 s64, 0x3fffff
    s_waitcnt vmcnt(1)
    L_hs3:
    s_barrier
    L_hs4:
    s_mov_b64 exec, -1
    s_waitcnt lgkmcnt(0)
    """)
    stamp(P, 3)
    tagcalc()
    P(f"""
    v_mov_b32 v48, s{ZP[0]}
    v_mov_b32 v49, s{ZP[1]}
    v_mov_b32 v50, s{ZP[2]}
    v_mov_b32 v51, s{ZP[3]}
    ds_write_b128 v13, v[48:51] offset:{L_ZP}
    ds_write2_b32 v13, v13, v14 offset0:0 offset1:1
    ds_write_b32 v{vL4}, v{PZ} offset:{L_LIST}
    """)
    P(f"""
    s_cmp_ge_u32 s{sJ}, 4
    s_cbranch_scc1 L_hf
    s_waitcnt vmcnt(5) lgkmcnt(0)
    """)
    stamp(P, 4)
    P("s_barrier")
    T = 32
    P(f"""
    v_and_b32 v10, 7, v{vN}
    v_mul_u32_u24 v10, s{sSTR}, v10
    v_add_u32 v10, s{sTB}, v10
    v_sub_u32 v11, 2048, v10
    v_mov_b32 v12, 1024
    v_cmp_eq_u32 vcc, 0, v10
    v_cndmask_b32 v11, v11, v12, vcc
    v_cmp_lt_u32 vcc, 7, v{vN}
    v_cndmask_b32 v10, v10, v11, vcc
    v_and_b32 v11, 63, v10
    v_bfrev_b32 v12, 1
    v_cmp_gt_u32 vcc, 32, v11
    v_cndmask_b32 v12, 0, v12, vcc
    v_lshrrev_b32 v9, 1, v11
    s_lshl_b32 s49, s{sHW}, 3
    """)
    for h in range(2):
        P(f"""
        v_add_u32 v11, s49, v{vQ}
        v_mul_u32_u24 v11, v11, v10
        v_cvt_f32_u32 v11, v11
        v_mul_f32 v11, {f2u(1.0/2048)}, v11
        v_cos_f32 v{T+4}, v11
        v_sin_f32 v{T+5}, v11
        s_add_u32 s49, s49, 4
        v_cvt_pk_f16_f32 v{T+2*h}, v{T+4}, v{T+5}
        v_cvt_pk_f16_f32 v{T+2*h+1}, -v{T+5}, v{T+4}
        v_xor_b32 v{T+2*h}, v12, v{T+2*h}
        v_xor_b32 v{T+2*h+1}, v12, v{T+2*h+1}
        """)
    P(f"""
    s_cmp_lg_u32 s{sGRP}, 0
    s_cbranch_scc1 L_nofix
    """)
    for i in range(4):
        P(f"v_and_b32 v{T+i}, 0xffff, v{T+i}")
        P(f"v_lshlrev_b32 v{T+i}, v9, v{T+i}")
    P(f"""
    L_nofix:
    s_lshl_b32 s49, s{sHW}, 10
    s_add_u32 s49, s49, {L_CF}
    v_add_u32 v11, s49, v{vL16}
    ds_write_b128 v11, {v(T,4)}
    """)

    P(f"""
    s_branch L_prep
    L_hf:
    s_waitcnt lgkmcnt(0)
    """)
    stamp(P, 4)
    P(f"""
    s_barrier
    s_waitcnt vmcnt(4)
    s_barrier
    s_mov_b32 exec_hi, s64
    buffer_load_dword v253, v151, s[28:31], s65 offen{wnt}
    s_mov_b64 exec, -1
    s_branch L_noflag
    """)

    P.raw(".p2align 12")
    WR_ = 156; XL = 16; U = 56; AD = 96; C1 = 108; F = 116; G = 124; S = 128; ON = 132; IX = 136
    ACC = 16; RHO = 138; ZV = 150; PK = 36
    SEC[0] = "m"
    P("L_M:")
    stamp(P, 2)
    wq = [f"ds_read_b128 {v(WR_+4*f,4)}, v{vL16} offset:{L_W + 1024*f}" for f in range(20)]
    for o in wq: P(o)
    wrow(WR_ + 80)
    P(f"""
    v_mul_u32_u24 v9, 10, v{vQ}
    v_lshrrev_b32 v10, 1, v{vN}
    v_xor_b32 v10, v10, v{vN}
    v_bfe_u32 v10, v10, 2, 1
    v_and_or_b32 v10, v{vN}, 6, v10
    v_lshl_add_u32 v11, v{vN}, 7, s49
    """)
    for c in range(0, 10, 2):
        P(f"""
        v_xor_b32 v12, v9, v10
        v_and_b32 v{AD+c}, 7, v12
        v_lshrrev_b32 v12, 3, v12
        v_lshl_add_u32 v{AD+c}, v{AD+c}, 4, v11
        v_lshl_add_u32 v{AD+c}, v12, 11, v{AD+c}
        v_xor_b32 v{AD+c+1}, 16, v{AD+c}
        """)
        if c < 8: P("v_add_u32 v9, 2, v9")
    P(f"""
    v_mov_b32 v{ON}, 0x3f803f80
    v_mov_b32 v{ON+1}, 0x3f803f80
    v_mov_b32 v{ON+2}, 0x3f803f80
    v_mov_b32 v{ON+3}, 0x3f803f80
    v_and_b32 v9, 1, v{vN}
    v_mul_u32_u24 v{IX}, 0xaaaa, v9
    v_or_b32 v{IX}, 0x4444, v{IX}
    s_mov_b32 s60, 0x22222222
    s_mov_b32 s61, s60
    s_lshl_b64 s[62:63], s[60:61], 1
    s_lshl_b64 s[64:65], s[60:61], 2
    """)
    P(f"""
    v_mul_u32_u24 v9, s{sJ}, v{vQ}
    v_and_b32 v10, 1, v{vN}
    v_lshlrev_b32 v10, 1, v10
    v_sub_u32 v9, v9, v10
    v_cvt_f32_i32 v9, v9
    v_mul_f32 v9, {f2u(0.125)}, v9
    v_cos_f32 v9, v9
    v_and_b32 v10, 2, v{vN}
    v_lshlrev_b32 v10, 3, v10
    v_cvt_pk_bf16_f32 v9, v9, 0
    v_lshlrev_b32 v9, v10, v9
    v_lshrrev_b32 v10, 2, v{vN}
    s_and_b32 s43, s{sJ}, 1
    s_mul_i32 s43, s43, 0x80008000
    """)
    for i in range(4):
        P(f"v_cmp_eq_u32 vcc, {i}, v10")
        P(f"v_cndmask_b32 v{C1+i}, 0, v9, vcc")
        P(f"v_xor_b32 v{C1+4+i}, s43, v{C1+i}")
    P_ = P
    P = Prog(); T = 138
    P(f"""
    v_lshrrev_b32 v9, 1, v{vN}
    v_lshl_add_u32 v9, s{sHW}, 3, v9
    v_and_b32 v11, 1, v{vN}
    v_lshl_add_u32 v10, v9, 1, v11
    v_cmp_eq_u32 vcc, 1, v10
    v_cndmask_b32 v9, v9, 32, vcc
    v_cndmask_b32 v11, v11, 0, vcc
    v_cvt_f32_u32 v9, v9
    v_cvt_f32_u32 v11, v11
    v_mul_f32 v9, {f2u(1.0/64)}, v9
    v_mul_f32 v11, {f2u(-0.25)}, v11
    v_lshlrev_b32 v10, 3, v{vQ}
    v_cvt_f32_u32 v10, v10
    v_cos_f32 v12, v9
    v_fma_f32 v{T}, v9, v10, v11
    v_add_f32 v10, {f2u(32.0)}, v10
    v_fma_f32 v{T+8}, v9, v10, v11
    v_add_f32 v{T+1}, v{T}, v9
    v_add_f32 v{T+9}, v{T+8}, v9
    v_cos_f32 v{T}, v{T}
    v_cos_f32 v{T+1}, v{T+1}
    v_cos_f32 v{T+8}, v{T+8}
    v_cos_f32 v{T+9}, v{T+9}
    v_add_f32 v12, v12, v12
    """)
    cheb2(P, T, 12)
    for i in range(8): P(f"v_cvt_pk_f16_f32 v{F+i}, v{T+2*i}, v{T+2*i+1}")
    FG = list(P.lines)
    P = Prog()
    P(f"""
    v_and_b32 v148, 7, v{vN}
    v_lshlrev_b32 v148, 4, v148
    v_lshl_add_u32 v148, v{vN}, 7, v148
    v_lshlrev_b32 v142, 5, v{vW}
    v_lshl_add_u32 v142, v{vQ}, 3, v142
    v_xor_b32 v142, v142, v148
    v_lshlrev_b32 v143, 4, v{vQ}
    v_xor_b32 v143, v143, v148
    v_xor_b32 v148, 64, v143
    v_lshlrev_b32 v144, 17, v{vQ}
    v_lshl_add_u32 v144, v{vN}, 4, v144
    v_lshlrev_b32 v145, 15, v{vQ}
    v_lshl_add_u32 v145, v{vN}, 2, v145
    s_mov_b32 s55, 0xfffefffe
    v_and_b32 v146, 3, v{vN}
    v_lshlrev_b32 v146, 2, v146
    v_mov_b32 v13, 0
    s_lshl_b32 s52, s{sHW}, 19
    s_lshl_b32 s43, s{sGRP}, 11
    s_add_u32 s52, s52, s43
    s_lshl_b32 s43, s{sJ}, 8
    s_add_u32 s52, s52, s43
    s_lshr_b32 s56, s52, 2
    s_add_u32 s52, s52, {ZM}
    s_add_u32 s53, s52, 65536
    s_add_u32 s56, s56, {ZT}
    s_add_u32 s57, s56, 16384
    """)
    AB_ = list(P.lines)
    P = P_
    P(f"""
    v_mov_b32 v{S}, 0
    v_mov_b32 v{S+1}, 0
    v_mov_b32 v{S+2}, 0
    v_mov_b32 v{S+3}, 0
    """)
    stamp(P, 13)
    P("s_waitcnt vmcnt(0)")
    stamp(P, 3)
    def half(hi, fills, extra):
        for c in range(10): P(f"ds_read_b128 {v(XL+4*c,4)}, v{AD+c}" + (" offset:10240" if hi else ""))
        if not hi: P("s_barrier")
        for k in range(5):
            x = XL + 8*k
            fl = fills(k)
            mm = [f"v_mfma_f32_16x16x32_bf16 {v(U+8*k,4)}, {v(C1+4*hi,4)}, {v(x,4)}, {v(U+8*k,4) if hi else '0'}",
                  f"v_mfma_f32_16x16x32_bf16 {v(G,4)}, {v(x,4)}, {v(x,4)}, {'0' if (k==0 and not hi) else v(G,4)}",
                  f"v_mfma_f32_16x16x32_bf16 {v(U+8*k+4,4)}, {v(C1+4*hi,4)}, {v(x+4,4)}, {v(U+8*k+4,4) if hi else '0'}",
                  f"v_mfma_f32_16x16x32_bf16 {v(G,4)}, {v(x+4,4)}, {v(x+4,4)}, {v(G,4)}",
                  f"v_smfmac_f32_16x16x64_bf16 {v(S,4)}, {v(ON,4)}, {v(x,8)}, v{IX}"]
            for i, m in enumerate(mm):
                if i in (0, 2): P(f"s_waitcnt lgkmcnt({9 - 2*k - i//2})")
                P(m)
                for _ in range(2):
                    if i >= 2 and fl: P(fl.pop(0))
                    elif extra: P(extra.pop(0))
        for o in extra: P(o)
    half(0, lambda k: [], FG)
    P(f"""
    s_cmp_lg_u32 s{sJ}, 0
    s_cbranch_scc1 L_nooff
    v_add_f32 v9, v{S}, v{S+1}
    v_mul_f32 v9, {f2u(-8.0/320)}, v9
    """)
    for i in range(20): P(f"v_add_f32 v{U+2*i}, v{U+2*i}, v9")
    P(f"""
    L_nooff:
    s_setprio 2
    s_barrier
    """)
    stamp(P, 12)
    def cvt(k): return [f"v_cvt_pk_bf16_f32 v{U+8*k+i}, v{U+8*k+2*i}, v{U+8*k+2*i+1}" for i in range(4)]
    half(1, lambda k: cvt(k-1) if k else [], AB_)
    chain = cvt(4) + [f"v_add_f32 v{S}, v{S}, v{S+1}",
             f"v_cndmask_b32 v{G}, v{G}, v{G+1}, s[60:61]",
             f"v_mul_f32 v{S}, s{sC640}, v{S}",
             f"v_cndmask_b32 v{G}, v{G}, v{G+2}, s[62:63]",
             f"v_mul_f32 v{S}, v{S}, v{S}",
             f"v_cndmask_b32 v{G}, v{G}, v{G+3}, s[64:65]",
             f"v_fma_f32 v{G}, v{G}, s{sC640}, -v{S}",
             f"v_max_f32 v{G}, 0, v{G}"] + bf16_round(G) + [f"v_add_f32 v{G}, {f2u(1e-5)}, v{G}"] + bf16_round(G) + \
            [f"v_sqrt_f32 v{G}, v{G}", None] + bf16_round(G) + [f"v_rcp_f32 v{G}, v{G}", None, None] + \
            [f"v_mov_b32_dpp v{RHO+r}, v{G} row_newbcast:{4*q+r} row_mask:{hex(1<<q)} bank_mask:0xf" for q in range(4) for r in range(4)]
    n = 0
    for kp in range(5):
        for t in range(5):
            P(f"v_mfma_f32_16x16x32_bf16 {v(ACC+4*t,4)}, {v(U+8*kp,4)}, {v(WR_+4*(5*t+kp),4)}, {'0' if kp==0 else v(ACC+4*t,4)}")
            n += 1
            if n >= 3:
                for _ in range(2):
                    if chain:
                        o = chain.pop(0)
                        if o: P(o)
    assert not chain
    stamp(P, 4)
    for t in range(5):
        P(f"v_pk_mul_f32 {v(ACC+4*t,2)}, {v(ACC+4*t,2)}, {v(RHO,2)}")
        P(f"v_pk_mul_f32 {v(ACC+4*t+2,2)}, {v(ACC+4*t+2,2)}, {v(RHO+2,2)}")
        P(f"v_cvt_pk_f16_f32 v{PK+2*t}, v{ACC+4*t}, v{ACC+4*t+1}")
        P(f"v_cvt_pk_f16_f32 v{PK+2*t+1}, v{ACC+4*t+2}, v{ACC+4*t+3}")
        P(f"ds_write_b64 v142, {v(PK+2*t,2)} offset:{L_HT + 16*t*HS}")
    P(f"""
    s_waitcnt lgkmcnt(0)
    s_barrier
    """)
    BF = 16; DC = 70; ZO = 92
    for t in range(5):
        for kk in range(2):
            P(f"ds_read_b128 {v(BF+8*t+4*kk,4)}, v{148 if kk else 143} offset:{L_HT + 16*t*HS}")
        if t == 2: P(f"ds_read_b128 {v(ZV,4)}, v13 offset:{L_ZP}")
    P(f"ds_read_b32 v147, v146 offset:{L_ZP}")
    P(f"ds_read_b32 v14, v13 offset:{L_TAG}")
    for t in range(5):
        c = DC + 4*t
        P(f"s_waitcnt lgkmcnt({[11, 9, 6, 4, 0][t]})")
        P(f"v_mfma_f32_16x16x32_f16 {v(c,4)}, {v(F,4)}, {v(BF+8*t,4)}, 0")
        P(f"v_mfma_f32_16x16x32_f16 {v(c,4)}, {v(F+4,4)}, {v(BF+8*t+4,4)}, {v(c,4)}")
        if t >= 2:
            for u in range(2):
                P(f"v_cvt_pk_f16_f32 v{ZO+4*u+t-2}, v{DC+4*(t-2)+2*u}, v{DC+4*(t-2)+2*u+1}")
                P(f"v_and_or_b32 v{ZO+4*u+t-2}, v{ZO+4*u+t-2}, s55, v{ZV+t-2}")
    for u in range(2):
        P(f"v_cvt_pk_f16_f32 v{ZO+4*u+3}, v{DC+12+2*u}, v{DC+12+2*u+1}")
        P(f"v_and_or_b32 v{ZO+4*u+3}, v{ZO+4*u+3}, s55, v{ZV+3}")
        P(f"buffer_store_dwordx4 {v(ZO+4*u,4)}, v144, s[8:11], s{52+u} offen sc1")
    for u in range(2):
        P(f"v_cvt_pk_f16_f32 v{ZO+8+u}, v{DC+16+2*u}, v{DC+16+2*u+1}")
        P(f"v_and_or_b32 v{ZO+8+u}, v{ZO+8+u}, s55, v147")
        P(f"buffer_store_dword v{ZO+8+u}, v145, s[8:11], s{56+u} offen sc1")
    P("s_setprio 0")
    stamp(P, 5)
    consts()
    P(f"""
    s_cmp_ge_u32 s{sJ}, 4
    s_cbranch_scc1 L_ffn
    """)
    for i in range(4): P(f"v_readfirstlane_b32 s{ZP[i]}, v{ZV+i}")
    P(f"""
    s_branch L_prep
    L_rare:
    """)
    P.raw(".p2align 12")

    SEC[0] = "p2"
    ZR = 16; CF = 80; AC = 96; X1 = 112; DL = 128; W1 = 144; W2 = 152; PH = 160; YT = 176; GS = 208; AB = 48
    aX1, aX2, aW1, aW2, aSP, aG, aS = 224, 225, 226, 227, 228, 230, 231
    P(f"""
    L_prep:
    v_mov_b32 v5, 0
    v_mov_b32 v7, 0
    s_add_u32 s69, s{sWV}, -2
    s_cmp_lt_u32 s69, 2
    s_cbranch_scc1 L_pub0
    s_cmp_lt_u32 s{sWV}, 2
    s_cbranch_scc1 L_ztail
    v_lshlrev_b32 v5, 11, v{vQ}
    v_lshrrev_b32 v10, 3, v{vN}
    s_add_u32 s49, s{sHW}, s{sJ}
    s_and_b32 s49, s49, 3
    v_lshl_add_u32 v10, s49, 1, v10
    v_lshl_add_u32 v5, v10, 8, v5
    v_and_b32 v9, 7, v{vN}
    v_lshl_add_u32 v5, v9, 4, v5
    v_add_u32 v7, 128, v5
    v_lshrrev_b32 v10, 1, v{vQ}
    v_lshl_add_u32 v10, s49, 1, v10
    v_and_b32 v9, 1, v{vQ}
    v_lshlrev_b32 v9, 5, v9
    s_lshl_b32 s58, s{sGRP}, 16
    s_add_u32 s58, s58, {ZM}
    s_movk_i32 s48, 8192
    s_add_u32 s51, s{sHW}, 2
    s_branch L_zcom
    L_ztail:
    v_lshl_add_u32 v10, s{sWV}, 2, v{vQ}
    v_lshlrev_b32 v5, 9, v{vQ}
    v_lshl_add_u32 v5, v{vN}, 4, v5
    v_lshl_add_u32 v5, s{sWV}, 8, v5
    s_lshl_b32 s58, s{sGRP}, 14
    s_add_u32 s58, s58, {ZT}
    s_movk_i32 s48, 2048
    v_mov_b32 v9, 256
    s_mov_b32 s51, s{sWV}
    L_zcom:
    """)
    for i in range(1, 8): P(f"s_add_u32 s{58+i}, s{57+i}, s48")
    P(f"""
    s_mul_i32 s{sROW}, s{sWV}, s{sSTR}
    s_add_u32 s{sROW}, s{sROW}, s{sTB}
    s_sub_u32 s{sROWB}, 2048, s{sROW}
    s_cmp_eq_u32 s{sROW}, 0
    s_cselect_b32 s{sROWB}, 1024, s{sROWB}
    s_mul_i32 s56, s{sROW}, 1280
    s_mul_i32 s57, s{sROWB}, 1280
    s_mul_i32 s49, s{sWV}, {XP}
    s_add_u32 s49, s49, {L_XR}
    v_add_u32 v233, s49, v{vL4}
    v_lshlrev_b32 v234, 3, v{vW}
    s_cmp_eq_u32 s{sTB}, 0
    s_cselect_b32 s47, 0, 8
    v_add_u32 v10, -1, v10
    v_and_b32 v10, 7, v10
    v_add3_u32 v9, v9, v10, 1
    v_lshlrev_b32 v9, 1, v9
    v_and_b32 v10, 7, v{vN}
    v_mov_b32 v11, s47
    v_cmp_ne_u32 vcc, 0, v10
    v_cndmask_b32 v11, v11, 8, vcc
    v_xor_b32 v11, v11, v{vN}
    s_movk_i32 s49, {XP}
    v_mad_u32_u24 v{aX1}, v{vN}, s49, v9
    v_add_u32 v{aX1}, {L_XR}, v{aX1}
    v_mul_u32_u24 v11, s49, v11
    v_add_u32 v11, {L_XR}, v11
    v_sub_u32 v10, {1280-432}, v9
    v_add_u32 v{aX2}, v11, v10
    s_lshl_b32 s49, s51, 8
    v_lshl_add_u32 v{aW1}, v{vQ}, 4, s49
    s_mul_i32 s51, s51, 768
    s_add_u32 s51, s51, {L_PART}
    v_lshl_add_u32 v{aG}, v{vN}, 4, s51
    v_lshl_add_u32 v{aS}, v{vN}, 3, s51
    v_mov_b32 v12, 0x3f803f80
    v_cmp_eq_u32 vcc, 1, v{vN}
    v_cndmask_b32 v12, 0, v12, vcc
    """)
    P(f"""
    s_cmp_lt_u32 s{sWV}, 2
    s_cbranch_scc1 L_tprep
    """)
    def wmask(on):
        if on: P("s_mov_b32 exec_lo, 0x10001"); P("s_mov_b32 exec_hi, 0x10001")
        else: P("s_mov_b64 exec, -1")
    off = [128*u + 16*r for u in range(4) for r in range(4)]
    for i in range(16):
        P(f"ds_read_u16_d16_hi v{X1+i}, v{aX1} offset:{off[i]}")
        P(f"ds_read_u16_d16_hi v{DL+i}, v{aX2} offset:{432-off[i]}")
        P(f"v_mov_b32 v{W1+i}, v12")
    P("s_waitcnt lgkmcnt(0)")
    for i_ in range(8): P(f"v_pk_add_f32 {v(DL+2*i_,2)}, {v(DL+2*i_,2)}, {v(X1+2*i_,2)} neg_lo:[0,1] neg_hi:[0,1]")
    P("s_setprio 1")
    stamp(P, 6)
    if OPT.get("zdelay"): P(f"s_sleep {OPT['zdelay']}")
    P("s_barrier")
    stamp(P, 7)
    P("s_mov_b32 s50, 0")
    for i in range(8):
        P(f"buffer_load_dwordx4 {v(ZR+8*i,4)}, v5, s[8:11], s{58+i} offen sc1")
        P(f"buffer_load_dwordx4 {v(ZR+8*i+4,4)}, v7, s[8:11], s{58+i} offen sc1")
        if i == 1:
            P(f"v_add_u32 v9, {L_CF}, v{vL16}")
            for k in range(4): P(f"ds_read_b128 {v(CF+4*k,4)}, v9 offset:{1024*k}")
            wmask(1)
            for k in range(4): P(f"ds_read_b128 {v(W1+4*k,4)}, v{aW1} offset:{L_WF + 64*k}")
            wmask(0)
    P(f"""
    s_waitcnt lgkmcnt(0)
    L_zgo:
    v_mov_b32 v10, 0
    """)
    for k in range(4):
        z = ZR + 16*k
        y = YT + 16*(k & 1)
        chk = []
        def mm(u):
            P(f"v_mfma_f32_16x16x32_f16 {v(AC+4*u,4)}, {v(y+4*u,4)}, {v(CF+4*k,4)}, {v(X1+4*u,4) if k==0 else v(AC+4*u,4)}")
            o = [f"v_or3_b32 v10, v10, v{y+4*u}, v{y+4*u+1}", f"v_or3_b32 v10, v10, v{y+4*u+2}, v{y+4*u+3}"]
            if k == 3: chk.extend(o)
            else:
                for x_ in o: P(x_)
        P(f"s_waitcnt vmcnt({12 - 4*k})")
        for u in range(4):
            for l in range(4): P(f"v_xor_b32 v{y+4*u+l}, s{ZP[u]}, v{z+4*l+u}")
            if u: mm(u-1)
        mm(3)
        for x_ in chk: P(x_)
    P(f"v_and_b32 v10, 0x10001, v10")
    P(f"v_cmp_ne_u32 vcc, 0, v10")
    spin_tail(P, 50, "L_zretry", "L_zok")
    stamp(P, 8)
    if OPT["stamps"]: P("s_add_u32 s96, s50, 1")
    def stat_mm(side, f, first):
        p = PH + 8*side + 4*f; w = (W2 if side else W1) + 4*f
        g = GS + 8*side
        P(f"v_mfma_f32_16x16x32_bf16 {v(g,4)}, {v(p,4)}, {v(p,4)}, {'0' if first else v(g,4)}")
        P(f"v_mfma_f32_16x16x32_bf16 {v(g+4,4)}, {v(w,4)}, {v(p,4)}, {'0' if first else v(g+4,4)}")
    for f in range(2):
        for i in range(4): P(f"v_cvt_pk_bf16_f32 v{PH+4*f+i}, v{AC+8*f+2*i}, v{AC+8*f+2*i+1}")
        for i in range(4): P(f"v_pk_add_f32 {v(AC+8*f+2*i,2)}, {v(AC+8*f+2*i,2)}, {v(DL+8*f+2*i,2)}")
        stat_mm(0, f, f == 0)
        for i in range(4): P(f"v_cvt_pk_bf16_f32 v{PH+8+4*f+i}, v{AC+8*f+2*i}, v{AC+8*f+2*i+1}")
        if f == 1: stat_mm(1, 0, True)
    stat_mm(1, 1, False)
    def partw():
        P(f"""
        s_mov_b32 exec_lo, 0x00f0000f
        s_mov_b32 exec_hi, 0xf0000f00
        ds_write_b128 v{aG}, {v(GS,4)}
        ds_write_b128 v{aG}, {v(GS+8,4)} offset:384
        s_mov_b64 exec, 0xffff
        ds_write_b64 v{aS}, {v(GS+4,2)} offset:256
        ds_write_b64 v{aS}, {v(GS+12,2)} offset:640
        s_mov_b64 exec, -1
        s_waitcnt lgkmcnt(0)
        s_barrier
        """)
    partw()
    stamp(P, 9)
    for i in range(16):
        P(f"ds_write_b16{'_d16_hi' if i & 1 else ''} v{aX1}, v{PH+i//2} offset:{off[i]}")
        P(f"ds_write_b16{'_d16_hi' if i & 1 else ''} v{aX2}, v{PH+8+i//2} offset:{432-off[i]}")
    HA = 16; HB = 26; XT = 40; RM = 52
    P(f"""
    L_out:
    s_waitcnt lgkmcnt(0)
    s_barrier
    ds_read2st64_b32 {v(XT,2)}, v233 offset0:0 offset1:1
    ds_read2st64_b32 {v(XT+2,2)}, v233 offset0:2 offset1:3
    ds_read_b32 v{XT+4}, v233 offset:1024
    ds_read_b64 {v(RM,2)}, v234 offset:{L_RM}
    v_add_u32 v232, {8*XP}, v233
    ds_read2st64_b32 {v(XT+6,2)}, v232 offset0:0 offset1:1
    ds_read2st64_b32 {v(XT+8,2)}, v232 offset0:2 offset1:3
    ds_read_b32 v{XT+10}, v232 offset:1024
    ds_read_b64 {v(RM+2,2)}, v234 offset:{L_RM+64}
    """)
    for (Hr, src, rm, so, o, w_) in ((HA, XT, RM, 56, 56, 4), (HB, XT+6, RM+2, 57, 64, 0)):
        P(f"s_waitcnt lgkmcnt({w_})")
        for i in range(5):
            P(f"v_lshlrev_b32 v{Hr+2*i}, 16, v{src+i}")
            P(f"v_and_b32 v{Hr+2*i+1}, 0xffff0000, v{src+i}")
        for i in range(10): P(f"v_fma_f32 v{Hr+i}, v{Hr+i}, v{rm}, -v{rm+1}")
        for i in range(5):
            P(f"v_cvt_pk_bf16_f32 v{o+i}, v{Hr+2*i}, v{Hr+2*i+1}")
            P(f"v_min_u32 v{o+i}, -2, v{o+i}")
            P(f"buffer_store_dword v{o+i}, v{vL4}, s[12:15], s{so} offen offset:{256*i} sc1")
    stamp(P, 11)
    P(f"""
    s_cmp_lg_u32 s{sWV}, 3
    s_cbranch_scc1 L_finp
    s_cmp_lg_u32 s2, 0
    s_cbranch_scc1 L_finp
    s_mov_b64 exec, 1
    buffer_store_dword v14, v5, s[8:11], 0 offen sc1
    L_finp:
    {FIN}
    """)
    LATE_Z = list(LATE); del LATE[:]
    S1, S2, S3, MC, TM = 40, 36, 41, 44, 48
    P(f"""
    L_pub0:
    s_cmp_eq_u32 s{sWV}, 2
    s_cbranch_scc1 L_idle
    s_barrier
    s_mul_i32 s{sROW}, s{sWV}, s{sSTR}
    s_add_u32 s{sROW}, s{sROW}, s{sTB}
    s_sub_u32 s{sROWB}, 2048, s{sROW}
    s_cmp_eq_u32 s{sROW}, 0
    s_cselect_b32 s{sROWB}, 1024, s{sROWB}
    s_mul_i32 s56, s{sROW}, 1280
    s_mul_i32 s57, s{sROWB}, 1280
    s_mul_i32 s49, s{sWV}, {XP}
    s_add_u32 s49, s49, {L_XR}
    v_add_u32 v233, s49, v{vL4}
    v_lshlrev_b32 v234, 3, v{vW}
    s_cmp_eq_u32 s{sTB}, 0
    s_cselect_b32 s47, 0, 8
    v_add_u32 v9, {L_WR}, v{vL16}
    v_add_u32 v10, {L_WR+1024}, v{vL4}
    ds_read_b128 {v(16,4)}, v9
    ds_read_b32 v20, v10
    v_lshrrev_b32 v22, 2, v{vL}
    v_and_b32 v23, 7, v22
    v_mov_b32 v11, s47
    v_cmp_ne_u32 vcc, 0, v23
    v_cndmask_b32 v11, v11, 8, vcc
    v_and_b32 v24, 1, v{vL}
    v_mul_u32_u24 v11, v11, v24
    v_xor_b32 v11, v11, v22
    v_and_b32 v24, 3, v{vL}
    v_mul_u32_u24 v24, 384, v24
    v_lshl_add_u32 v26, v11, 3, v24
    v_lshl_add_u32 v25, v11, 4, v24
    v_and_b32 v11, 3, v11
    v_lshl_add_u32 v25, v11, 2, v25
    v_mul_u32_u24 v23, s{sSTR}, v23
    v_add_u32 v23, s{sTB}, v23
    v_sub_u32 v9, 2048, v23
    v_mov_b32 v10, 1024
    v_cmp_eq_u32 vcc, 0, v23
    v_cndmask_b32 v9, v9, v10, vcc
    v_cmp_lt_u32 vcc, 31, v{vL}
    v_cndmask_b32 v23, v23, v9, vcc
    v_lshlrev_b32 v23, 6, v23
    v_lshlrev_b32 v27, 3, v22
    v_mov_b32 v{MC+2}, v14
    v_mov_b32 v{MC+3}, v14
    s_mul_i32 s54, s{sIDX}, {KST}
    s_add_u32 s54, s54, {KEYS}
    {"buffer_load_dword v253, v5, s[8:11], s54 offen" if OPT.get("kpre", 1) == 1 else ""}
    s_lshr_b32 s36, s2, 6
    s_lshl2_add_u32 s36, s36, s{sJ}
    s_lshl_b32 s43, s{sXCD}, 8
    s_lshl2_add_u32 s36, s36, s43
    s_add_u32 s36, s36, {SEN1}
    s_mov_b32 s47, 0xffff8000
    s_mov_b32 s48, {STATS}
    s_mov_b32 s49, 0x3f803f80
    v_mov_b32 v21, 0
    s_waitcnt lgkmcnt(0)
    """)
    for i in range(5): P(f"v_dot2c_f32_bf16 v21, s49, v{16+i}")
    for sh in (1, 2, 4, 8): P(f"v_add_f32_dpp v21, v21, v21 row_shr:{sh} row_mask:0xf bank_mask:0xf bound_ctrl:0")
    P(f"""
    v_add_f32_dpp v21, v21, v21 row_bcast:15 row_mask:0xa bank_mask:0xf
    v_add_f32_dpp v21, v21, v21 row_bcast:31 row_mask:0xc bank_mask:0xf
    v_readlane_b32 s55, v21, 63
    s_setprio 3
    s_barrier
    """)
    stamp(P, 9)
    for i in range(3):
        P(f"ds_read_b32 v{36+i}, v25 offset:{L_PART + 1536*i}")
        P(f"ds_read_b64 {v(30+2*i,2)}, v26 offset:{L_PART + 1536*i + 256}")
    P(f"""
    s_waitcnt lgkmcnt(2)
    v_add_f32 v36, v36, v37
    v_pk_add_f32 {v(30,2)}, {v(30,2)}, {v(32,2)}
    s_waitcnt lgkmcnt(0)
    v_add_f32 v{S2}, v36, v38
    v_add_f32 v{S1}, v31, v35
    v_add_f32 v{S3}, v30, v34
    """)
    for qp in ("[1,0,3,2]", "[2,3,0,1]"):
        for r in (S2, S1, S3): P(f"v_add_f32_dpp v{r}, v{r}, v{r} quad_perm:{qp} row_mask:0xf bank_mask:0xf")
    P(f"""
    v_mul_f32 v{MC}, s{sC640}, v{S1}
    v_mul_f32 v{TM}, v{MC}, v{MC}
    v_fma_f32 v{S2}, v{S2}, s{sC640}, -v{TM}
    v_max_f32 v{S2}, 0, v{S2}
    """)
    for o in bf16_round(S2): P(o)
    P(f"v_add_f32 v{S2}, {f2u(1e-5)}, v{S2}")
    for o in bf16_round(S2): P(o)
    P(f"v_sqrt_f32 v{S2}, v{S2}")
    for o in bf16_round(MC): P(o)
    for o in bf16_round(S2): P(o)
    P(f"""
    v_rcp_f32 v{TM+2}, v{S2}
    v_fma_f32 v{S3}, -v{MC}, s55, v{S3}
    v_mul_f32 v{S3}, v{S3}, v{TM+2}
    v_cvt_pk_bf16_f32 v{S3}, v{S3}, v{S3}
    v_ashrrev_i32 v{TM}, 31, v{S3}
    v_or_b32 v{TM}, 0x80000000, v{TM}
    v_xor_b32 v{S3}, v{S3}, v{TM}
    v_lshrrev_b32 v{S3}, 1, v{S3}
    v_bfi_b32 v{S3}, s47, v{S3}, v14
    s_mov_b32 exec_lo, 0x11111111
    s_mov_b32 exec_hi, 0x11111111
    {"buffer_store_dword v14, v5, s[8:11], s36 offen" if OPT.get("h1pos", 3) == 2 else ""}
    buffer_store_dword v{S3}, v{vL}, s[8:11], s54 offen sc1
    {"buffer_store_dword v14, v5, s[8:11], s36 offen" if OPT.get("h1pos", 3) == 3 else ""}
    """)
    stamp(P, 10)
    P(f"""
    v_add_f32 v{MC+1}, 1.0, v{S2}
    v_mul_f32 v{TM+3}, v{MC}, v{TM+2}
    v_add_f32 v{TM+2}, 1.0, v{TM+2}
    v_rcp_f32 v{MC+1}, v{MC+1}
    ds_write_b64 v27, {v(TM+2,2)} offset:{L_RM}
    buffer_store_dwordx4 {v(MC,4)}, v23, s[8:11], s48 offen sc1
    s_mov_b64 exec, 1
    {"buffer_store_dword v14, v5, s[8:11], s36 offen" if OPT.get("h1pos", 3) == 1 else ""}
    s_mov_b64 exec, -1
    s_setprio 0
    s_branch L_out
    """)
    P_keep = P; P = Prog()
    P(f"""
    L_idle:
    s_mov_b32 s49, {L_WR}
    v_add_u32 v9, s{sJ}, v{vQ}
    v_and_b32 v9, 3, v9
    v_bfe_u32 v10, v{vL}, 1, 1
    v_lshl_add_u32 v9, v9, 1, v10
    v_add_u32 v9, -1, v9
    v_and_b32 v9, 7, v9
    v_and_b32 v10, 1, v{vL}
    v_lshl_add_u32 v9, v10, 5, v9
    v_and_b32 v10, 4, v{vL}
    v_lshl_add_u32 v9, v10, 5, v9
    v_lshlrev_b32 v9, 1, v9
    v_add_u32 v16, {L_WR+2}, v9
    v_sub_u32 v17, {L_WR+1278}, v9
    v_mov_b32 v18, 16
    v_and_b32 v10, 8, v{vL}
    v_cmp_ne_u32 vcc, 0, v10
    v_cndmask_b32 v16, v16, v17, vcc
    v_cndmask_b32 v18, v18, -16, vcc
    v_lshrrev_b32 v9, 4, v{vL}
    v_and_b32 v10, 3, v{vL}
    v_lshl_add_u32 v9, v9, 2, v10
    v_add_u32 v9, -1, v9
    v_and_b32 v9, 7, v9
    v_lshlrev_b32 v9, 1, v9
    v_add_u32 v19, {L_WR+514}, v9
    v_sub_u32 v17, {L_WR+766}, v9
    v_cndmask_b32 v19, v19, v17, vcc
    """)
    for i in range(8):
        m = 8*(i >> 2) + (i & 3)
        P(f"v_mad_i32_i24 v20, v18, {m}, v16")
        P(f"ds_read_u16 v{24+i}, v20")
    for i in range(8):
        m = (i >> 1) + 4*(i & 1)
        P(f"v_mad_i32_i24 v20, v18, {m}, v19")
        if i == 7: P(f"v_writelane_b32 v20, s49, 8")
        P(f"ds_read_u16 v{32+i}, v20")
    P("s_waitcnt lgkmcnt(0)")
    for i in range(8): P(f"v_lshl_or_b32 v{40+i}, v{25+2*i}, 16, v{24+2*i}")
    P(f"""
    ds_write_b128 v{vL16}, {v(40,4)} offset:{L_WF+512}
    s_mov_b32 exec_hi, 0
    ds_write_b128 v{vL16}, {v(44,4)} offset:{L_WF}
    s_mov_b64 exec, -1
    s_waitcnt lgkmcnt(0)
    s_barrier
    s_mul_i32 s{sROW}, s{sWV}, s{sSTR}
    s_add_u32 s{sROW}, s{sROW}, s{sTB}
    s_sub_u32 s{sROWB}, 2048, s{sROW}
    s_cmp_eq_u32 s{sROW}, 0
    s_cselect_b32 s{sROWB}, 1024, s{sROWB}
    s_mul_i32 s56, s{sROW}, 1280
    s_mul_i32 s57, s{sROWB}, 1280
    s_mul_i32 s49, s{sWV}, {XP}
    s_add_u32 s49, s49, {L_XR}
    v_add_u32 v233, s49, v{vL4}
    v_lshlrev_b32 v234, 3, v{vW}
    s_cmp_eq_u32 s{sTB}, 0
    s_cselect_b32 s47, 0, 8
    s_barrier
    s_branch L_out
    """)
    IDLE = list(P.lines); P = P_keep
    RARE = Prog()
    P_main = P
    P = RARE
    toff = [16*u + 64*ih for u in range(4) for ih in range(2)]
    P(f"""
    L_tprep:
    s_movk_i32 s49, 528
    v_cmp_eq_u32 s[52:53], s49, v9
    v_add_u32 v{aSP}, {432-toff[7]}, v{aX2}
    v_cndmask_b32 v{aSP}, v{aSP}, v11, s[52:53]
    """)
    for i in range(8):
        P(f"ds_read_u16_d16_hi v{X1+4*(i>>1)+(i&1)}, v{aX1} offset:{toff[i]}")
    for i in range(8):
        if i < 7: P(f"ds_read_u16_d16_hi v{DL+i}, v{aX2} offset:{432-toff[i]}")
        else: P(f"ds_read_u16_d16_hi v{DL+i}, v{aSP}")
    for i in range(4):
        P(f"v_mov_b32 v{W1+i}, v12"); P(f"v_mov_b32 v{W2+i}, v12")
        P(f"v_mov_b32 v{X1+4*i+2}, 0"); P(f"v_mov_b32 v{X1+4*i+3}, 0")
    P("s_waitcnt lgkmcnt(0)")
    P(f"v_mov_b32 v{DL+8}, v{DL+7}")
    for u in range(4): P(f"v_pk_add_f32 {v(DL+2*u,2)}, {v(DL+2*u,2)}, {v(X1+4*u,2)} neg_lo:[0,1] neg_hi:[0,1]")
    stamp(P, 6)
    P("s_barrier")
    stamp(P, 7)
    if not OPT.get("tlate"):
        for i in range(8): P(f"buffer_load_dwordx4 {v(ZR+4*i,4)}, v5, s[8:11], s{58+i} offen sc1")
    P("s_mov_b32 s50, 0")
    P(f"v_add_u32 v9, {L_CF}, v{vL16}")
    for k in range(4):
        P(f"ds_read2_b32 {v(CF+4*(k>>1)+2*(k&1),2)}, v9 offset0:0 offset1:2")
        P(f"ds_read2_b32 {v(CF+8+4*(k>>1)+2*(k&1),2)}, v9 offset0:1 offset1:3")
        if k < 3: P(f"v_add_u32 v9, 1024, v9")
    wmask(1)
    P(f"ds_read_b128 {v(W1,4)}, v{aW1} offset:{L_WF}")
    P(f"ds_read_b128 {v(W2,4)}, v{aW1} offset:{L_WF+128}")
    wmask(0)
    if OPT.get("tlate", 0) > 1: P(f"s_sleep {OPT['tlate']}")
    if not OPT.get("tlate"): P("s_branch L_tgo")
    P("L_tretry:")
    for i in range(8): P(f"buffer_load_dwordx4 {v(ZR+4*i,4)}, v5, s[8:11], s{58+i} offen sc1")
    P(f"""
    L_tgo:
    v_mov_b32 v10, 0
    s_waitcnt lgkmcnt(0)
    """)
    for k in range(2):
        z = ZR + 16*k; y = YT + 16*k
        P(f"s_waitcnt vmcnt({4 - 4*k})")
        def mt(u):
            P(f"v_mfma_f32_16x16x32_f16 {v(AC+4*u,4)}, {v(y+4*u,4)}, {v(CF+4*k,4)}, {v(X1+4*u,4) if k==0 else v(AC+4*u,4)}")
            P(f"v_or3_b32 v10, v10, v{y+4*u}, v{y+4*u+1}")
            P(f"v_mfma_f32_16x16x32_f16 {v(AB+4*u,4)}, {v(y+4*u,4)}, {v(CF+8+4*k,4)}, {'0' if k==0 else v(AB+4*u,4)}")
            P(f"v_or3_b32 v10, v10, v{y+4*u+2}, v{y+4*u+3}")
        for u in range(4):
            for l in range(4): P(f"v_xor_b32 v{y+4*u+l}, s{ZP[u]}, v{z+4*l+u}")
            if u: mt(u-1)
        mt(3)
    P(f"v_and_b32 v10, 0x10001, v10")
    P(f"v_cmp_ne_u32 vcc, 0, v10")
    spin_tail(P, 50, "L_tretry", "L_tok")
    stamp(P, 8)
    for u in range(4): P(f"v_pk_add_f32 {v(AC+4*u,2)}, {v(AC+4*u,2)}, {v(AB+4*u+2,2)}")
    for u in range(4): P(f"v_cvt_pk_bf16_f32 v{PH+u}, v{AC+4*u}, v{AC+4*u+1}")
    for u in range(4): P(f"v_pk_add_f32 {v(AC+4*u,2)}, {v(AC+4*u,2)}, {v(DL+2*u,2)}")
    P(f"v_cndmask_b32 v{AC+13}, v{AC+13}, v{DL+8}, s[52:53]")
    stat_mm(0, 0, True)
    for u in range(4): P(f"v_cvt_pk_bf16_f32 v{PH+8+u}, v{AC+4*u}, v{AC+4*u+1}")
    stat_mm(1, 0, True)
    partw()
    stamp(P, 9)
    for i in range(8):
        P(f"ds_write_b16{'_d16_hi' if i & 1 else ''} v{aX1}, v{PH+i//2} offset:{toff[i]}")
        if i < 7: P(f"ds_write_b16{'_d16_hi' if i & 1 else ''} v{aX2}, v{PH+8+i//2} offset:{432-toff[i]}")
        else: P(f"ds_write_b16_d16_hi v{aSP}, v{PH+11}")
    P("s_branch L_out")
    flush_late(P)
    TAILC = list(RARE.lines)
    RARE = Prog(); P = RARE
    P("L_zretry:")
    for i in range(8):
        P(f"buffer_load_dwordx4 {v(ZR+8*i,4)}, v5, s[8:11], s{58+i} offen sc1")
        P(f"buffer_load_dwordx4 {v(ZR+8*i+4,4)}, v7, s[8:11], s{58+i} offen sc1")
    P("s_branch L_zgo")
    for t_ in LATE_Z: P(t_)
    P = P_main
    k_ = P.lines.index("L_rare:") + 1
    P.lines[k_:k_] = RARE.lines
    k_ = P.lines.index("L_M:") - 1
    P.lines[k_:k_] = TAILC
    SEC[0] = "ffn"
    BW = 48; AR = 112; A0 = 128
    KK = 16; ID = 24; K4 = 32; CB = 112
    P.raw(".p2align 12")
    P(f"""
    L_ffn:
    s_barrier
    s_cmp_lg_u32 s{sWV}, 0
    s_cbranch_scc1 L_noflag
    s_mul_i32 s49, s{sIDX}, {KST}
    s_add_u32 s49, s49, {FLAGS}
    s_mov_b64 exec, 1
    buffer_store_dword v14, v13, s[8:11], s49 offen sc1
    s_mov_b64 exec, -1
    L_noflag:
    s_cmp_ge_u32 s{sIDX}, 108
    s_cbranch_scc1 L_setup
    v_lshrrev_b32 v13, 1, v{vL}
    v_and_b32 v9, 2, v13
    v_bfe_u32 v10, v13, 3, 1
    v_and_b32 v13, 21, v13
    v_lshl_or_b32 v13, v9, 2, v13
    v_lshl_or_b32 v13, v10, 1, v13
    v_mul_u32_u24 v13, 3456, v13
    v_and_b32 v9, 1, v{vL}
    v_lshl_add_u32 v13, v9, 4, v13
    s_lshl_b32 s58, s{sIDX}, 5
    s_and_b32 s47, s{sJ}, 3
    s_mul_i32 s47, s47, 5
    s_add_u32 s48, s{sWV}, 5
    L_dma1:
    s_add_u32 s49, s48, s47
    s_cmp_ge_u32 s49, 20
    s_cselect_b32 s50, 20, 0
    s_sub_u32 s49, s49, s50
    s_lshr_b32 s50, s49, 2
    s_lshl_b32 s50, s50, 13
    s_and_b32 s51, s49, 3
    s_lshl_b32 s51, s51, 10
    s_add_u32 s50, s50, s51
    s_add_u32 m0, s50, {L_WT1}
    s_mul_i32 s51, s49, {32*3456}
    s_add_u32 s51, s51, s58
    {"s_nop 0" if OPT.get("now") else f"buffer_load_dwordx4 v13, s[20:23], s51 offen lds"}
    s_add_u32 m0, m0, 4096
    s_add_u32 s48, s48, 8
    {"s_nop 0" if OPT.get("now") else f"buffer_load_dwordx4 v13, s[24:27], s51 offen lds"}
    s_cmp_lt_u32 s48, 20
    s_cbranch_scc1 L_dma1
    L_setup:
    v_lshrrev_b32 v7, 2, v0
    v_mul_u32_u24 v7, {KST}, v7
    v_and_b32 v12, 3, v0
    v_lshl_add_u32 v7, v12, 4, v7
    s_mov_b32 s52, {KEYS}
    {"buffer_load_dword v253, v7, s[8:11], s52 offen sc1" if OPT.get("kwarm", 0) else ""}
    v_and_b32 v9, 1, v{vN}
    v_mul_u32_u24 v144, 0xaaaa, v9
    v_or_b32 v144, 0x4444, v144
    """)
    P(f"""
    v_bfe_u32 v9, v0, 4, 3
    v_lshlrev_b32 v9, 1, v9
    v_add_u32 v40, 1, v9
    v_sub_u32 v41, 32, v9
    v_sub_u32 v42, 32, v40
    v_cmp_eq_u32 vcc, 0, v9
    v_cndmask_b32 v41, v41, 16, vcc
    v_and_b32 v12, 128, v0
    v_cmp_ne_u32 vcc, 0, v12
    v_cndmask_b32 v9, v9, v41, vcc
    v_cndmask_b32 v40, v40, v42, vcc
    v_bfe_u32 v10, v0, 2, 2
    v_and_b32 v12, 1, v0
    v_lshl_add_u32 v10, v10, 1, v12
    v_lshlrev_b32 v10, 2, v10
    v_mov_b32 v11, 64
    v_cmp_eq_u32 vcc, 0, v9
    v_cndmask_b32 v11, v11, 32, vcc
    v_mad_u32_u24 v{ID}, v10, v11, v9
    v_lshl_add_u32 v{ID+4}, v10, 6, v40
    """)
    for i in range(1, 4):
        P(f"v_add_u32 v{ID+i}, v{ID+i-1}, v11")
        P(f"v_add_u32 v{ID+4+i}, 64, v{ID+3+i}")
    P(f"""
    v_and_b32 v12, 2, v0
    v_cmp_ne_u32 vcc, 0, v12
    """)
    for i in range(8):
        P(f"v_sub_u32 v9, 2048, v{ID+i}")
        P(f"v_cndmask_b32 v{ID+i}, v{ID+i}, v9, vcc")
    P(f"""
    v_mov_b32 v11, 1024
    v_cmp_eq_u32 vcc, 2, v0
    v_cndmask_b32 v{ID}, v{ID}, v11, vcc
    s_mov_b32 s53, {KEYS + 64*KST}
    s_lshr_b32 s54, s2, 6
    s_and_b32 s43, s{sJ}, 3
    s_lshl2_add_u32 s54, s54, s43
    s_mov_b32 s55, {OOB}
    s_cmp_eq_u32 s54, 10
    s_cmov_b32 s55, {STATS}
    s_cmp_lt_u32 s54, 10
    s_cselect_b32 s54, s54, {OOB>>7}
    s_lshl_b32 s54, s54, 7
    v_mov_b32 v12, 0
    v_lshrrev_b32 v5, 4, v0
    v_lshlrev_b32 v5, 2, v5
    v_lshlrev_b32 v151, 2, v{vN}
    v_lshlrev_b32 v43, 4, v{vQ}
    v_lshrrev_b32 v147, 1, v{vN}
    v_lshrrev_b32 v9, 3, v{vL}
    s_cmp_ge_u32 s{sWV}, 5
    s_cselect_b64 vcc, -1, 0
    v_cndmask_b32 v147, v147, v9, vcc
    v_lshlrev_b32 v147, 2, v147
    v_and_b32 v148, 1, v{vN}
    v_lshl_add_u32 v148, v{vQ}, 1, v148
    v_lshlrev_b32 v148, 4, v148
    s_cmp_lt_u32 s{sIDX}, 108
    s_cselect_b32 s43, 7, 8
    v_lshlrev_b32 v149, s43, v{vQ}
    v_lshl_add_u32 v149, v{vN}, 2, v149
    v_lshl_add_u32 v149, v{vW}, 10, v149
    v_add_u32 v149, {L_RED}, v149
    s_lshl_b32 s56, s{sWV}, 8
    s_movk_i32 s57, 1280
    v_mov_b32 v152, 1
    v_mov_b32 v153, 0x7fff
    v_mov_b32 v158, 0
    v_mov_b32 v156, 0
    s_mov_b32 s52, {KEYS}
    s_mov_b32 s59, 0x7fff8000
    """)
    P(f"""
    s_cmp_ge_u32 s{sIDX}, 108
    s_cbranch_scc1 L_f2load
    """)
    P(f"""
    v_lshrrev_b32 v9, 1, v{vQ}
    v_and_b32 v10, 1, v{vQ}
    v_lshlrev_b32 v15, 3, v{vN}
    v_lshl_add_u32 v15, v10, 7, v15
    v_lshl_add_u32 v15, v9, 9, v15
    v_add_u32 v15, {L_WT1}, v15
    s_waitcnt vmcnt(0)
    s_barrier
    """)
    P("s_branch L_tk")
    P(f"""
    L_f2load:
    s_waitcnt vmcnt(0)
    s_barrier
    """)
    stamp(P, 9)
    P(f"""
    v_bfe_u32 v13, v{vL}, 2, 1
    v_and_b32 v9, 8, v{vL}
    v_or_b32 v13, v13, v9
    v_lshl_or_b32 v13, v{vQ}, 1, v13
    v_mul_u32_u24 v13, 1280, v13
    v_and_b32 v9, 2, v{vQ}
    v_xor_b32 v9, v9, v{vL}
    v_and_b32 v9, 3, v9
    v_lshl_add_u32 v13, v9, 4, v13
    s_sub_u32 s58, s{sIDX}, 108
    s_lshl_b32 s58, s58, 6
    s_and_b32 s47, s{sJ}, 1
    s_mov_b32 s47, 0
    s_mov_b32 s48, s{sWV}
    L_dma2:
    s_add_u32 s49, s48, s47
    s_cmp_ge_u32 s49, 112
    s_cselect_b32 s50, 112, 0
    s_sub_u32 s49, s49, s50
    s_lshl_b32 s50, s49, 10
    s_add_u32 m0, s50, {L_WT}
    s_mul_i32 s51, s49, {16*1280}
    s_add_u32 s51, s51, s58
    s_add_u32 s48, s48, 8
    {"s_nop 0" if OPT.get("now") else f"buffer_load_dwordx4 v13, s[28:31], s51 offen lds"}
    s_cmp_lt_u32 s48, 112
    s_cbranch_scc1 L_dma2
    v_lshrrev_b32 v9, 2, v{vN}
    v_and_b32 v10, 3, v{vN}
    v_lshlrev_b32 v15, 9, v{vQ}
    v_lshl_add_u32 v15, v9, 6, v15
    v_lshl_add_u32 v15, v10, 3, v15
    v_and_b32 v9, 1, v{vQ}
    v_lshl_add_u32 v15, v9, 5, v15
    v_lshl_add_u32 v15, v{vW}, 14, v15
    v_xor_b32 v145, 32, v15
    s_cmp_lg_u32 s{sWV}, 0
    s_cbranch_scc1 L_dok
    v_mul_u32_u24 v11, {KST}, v{vL}
    s_mov_b32 s49, {FLAGS}
    s_mov_b32 s47, {FLAGS+64*KST}
    s_mov_b32 s50, 0
    L_dpoll:
    buffer_load_dword v9, v11, s[8:11], s49 offen sc1
    buffer_load_dword v10, v11, s[8:11], s47 offen sc1
    s_waitcnt vmcnt(0)
    v_bitop3_b32 v9, v9, v10, v14 bitop3:0x7e
    v_cmp_ne_u32 vcc, 0, v9
    """)
    spin_tail(P, 50, "L_dpoll", "L_dok")
    P(f"""
    s_waitcnt vmcnt(0)
    s_barrier
    """)
    stamp(P, 6)
    P(f"s_cmp_eq_u32 s{sWV}, 7"); P("s_cbranch_scc1 L_f2fin")
    for blk in range(4):
        for ct in range(2):
            for j in range(4):
                P(f"ds_read_b64_tr_b16 {v(BW+16*blk+8*ct+2*j,2)}, v{145 if ct else 15} offset:{L_WT + 4096*blk + 2048*(j>>1) + 256*(j&1)}")
    P("s_branch L_f2")
    P("L_tk:")
    stamp(P, 6)
    P(f"""
    s_cmp_eq_u32 s{sWV}, 6
    s_cbranch_scc1 L_pad0
    s_cmp_eq_u32 s{sWV}, 7
    s_cbranch_scc1 L_fchk
    s_cmp_lg_u32 s{sWV}, 4
    s_cbranch_scc1 L_tk1
    s_branch L_w4prep
    L_tk1:
    s_barrier
    s_cmp_ge_u32 s{sWV}, 4
    s_cbranch_scc1 L_tk2
    s_mov_b32 s50, 0
    """)
    stamp(P, 7)
    P(f"""
    L_kpoll:
    buffer_load_dwordx4 {v(KK,4)}, v7, s[8:11], s52 offen sc1
    buffer_load_dwordx4 {v(KK+4,4)}, v7, s[8:11], s53 offen sc1
    s_waitcnt vmcnt(1)
    v_max3_u32 v10, v{KK}, v{KK+1}, v{KK+2}
    v_bitop3_b32 v40, v{KK}, v{KK+1}, v14 bitop3:0x7e
    v_bitop3_b32 v41, v{KK+2}, v{KK+3}, v14 bitop3:0x7e
    s_waitcnt vmcnt(0)
    v_max3_u32 v11, v{KK+3}, v{KK+4}, v{KK+5}
    v_max3_u32 v10, v10, v{KK+6}, v{KK+7}
    v_max_u32 v10, v10, v11
    v_bitop3_b32 v42, v{KK+4}, v{KK+5}, v14 bitop3:0x7e
    v_bitop3_b32 v11, v{KK+6}, v{KK+7}, v14 bitop3:0x7e
    v_max_u32_dpp v10, v10, v10 row_ror:1 row_mask:0xf bank_mask:0xf
    v_or3_b32 v40, v40, v41, v42
    v_bitop3_b32 v40, v40, v11, v153 bitop3:0xa8
    v_max_u32_dpp v10, v10, v10 row_ror:2 row_mask:0xf bank_mask:0xf
    v_cmp_ne_u32 vcc, 0, v40
    v_and_or_b32 v{KK}, v{KK}, s59, v{ID}
    v_max_u32_dpp v10, v10, v10 row_ror:4 row_mask:0xf bank_mask:0xf
    """)
    spin_tail(P, 50, "L_kpoll", "L_kok")
    stamp(P, 8)
    if OPT["stamps"]: P("s_add_u32 s96, s50, 1")
    P(f"""
    v_and_or_b32 v{KK+1}, v{KK+1}, s59, v{ID+1}
    v_max_u32_dpp v10, v10, v10 row_ror:8 row_mask:0xf bank_mask:0xf
    v_and_or_b32 v10, v10, s59, v5
    ds_write_b32 v5, v10 offset:{L_GM}
    """)
    for i in range(2, 8): P(f"v_and_or_b32 v{KK+i}, v{KK+i}, s59, v{ID+i}")
    P(f"""
    v_max3_u32 v9, v{KK}, v{KK+1}, v{KK+2}
    v_max3_u32 v11, v{KK+3}, v{KK+4}, v{KK+5}
    v_max3_u32 v9, v9, v{KK+6}, v{KK+7}
    v_max_u32 v9, v9, v11
    """)
    P(f"""
    L_tk2:
    s_waitcnt lgkmcnt(0)
    s_barrier
    s_cmp_ge_u32 s{sWV}, 4
    s_cbranch_scc1 L_tk3
    """)
    def rank16(off, own):
        P(f"ds_read_b32 v{own}, v151 offset:{off}")
        P(f"ds_read_b128 {v(CB,4)}, v43 offset:{off}")
    def rank16b(own, acc):
        P("s_waitcnt lgkmcnt(0)")
        for i in range(4): P(f"v_sub_u32 v{CB+i}, v{own}, v{CB+i}")
        P(f"v_lshrrev_b32 v{acc}, 31, v{CB}")
        for i in range(1, 4): P(f"v_alignbit_b32 v{acc}, v{acc}, v{CB+i}, 31")
        P(f"""
        v_bcnt_u32_b32 v{acc}, v{acc}, 0
        v_mov_b32 v{CB}, v{acc}
        v_permlane16_swap_b32 v{acc}, v{CB}
        v_add_u32 v{acc}, v{acc}, v{CB}
        v_mov_b32 v{CB}, v{acc}
        v_permlane32_swap_b32 v{acc}, v{CB}
        v_add_u32 v{acc}, v{acc}, v{CB}
        """)
    rank16(L_GM, 10)
    P(f"""
    v_and_b32 v159, 2047, v9
    v_lshlrev_b32 v160, 6, v159
    v_mul_u32_u24 v159, 1280, v159
    """)
    rank16b(10, 11)
    P(f"""
    v_cmp_eq_u32 vcc, 7, v11
    s_ff1_i32_b64 s47, vcc
    v_readlane_b32 s48, v10, s47
    s_and_b32 s48, s48, s59
    v_cmp_le_i32 vcc, s48, v9
    v_mov_b32 v10, v9
    s_cbranch_vccz L_tk3
    s_mov_b64 exec, vcc
    ds_add_rtn_u32 v11, v12, v152
    buffer_load_dword v253, v159, s[12:15], s54 offen sc1
    buffer_load_dword v253, v160, s[8:11], s55 offen sc1
    s_branch L_app2
    L_tkagain:
    v_mov_b32 v10, v9
    L_app:
    v_cmp_le_i32 vcc, s48, v10
    s_cbranch_vccz L_tk3
    s_mov_b64 exec, vcc
    ds_add_rtn_u32 v11, v12, v152
    {"" if not OPT.get("touch", 1) else f"v_and_b32 v{K4}, 2047, v10"}
    {"" if not OPT.get("touch", 1) else f"v_lshlrev_b32 v{K4+1}, 6, v{K4}"}
    {"" if not OPT.get("touch", 1) else f"v_mul_u32_u24 v{K4}, 1280, v{K4}"}
    {"" if not OPT.get("touch", 1) else f"buffer_load_dword v253, v{K4+1}, s[8:11], s55 offen sc1"}
    {"" if not OPT.get("touch", 1) else f"buffer_load_dword v253, v{K4}, s[12:15], s54 offen sc1"}
    L_app2:
    s_mov_b64 exec, -1
    v_add_u32 v{K4+8}, -1, v10
    """)
    for i in range(8): P(f"v_sub_u32 v{K4+i}, v{K4+8}, v{KK+i}")
    P(f"""
    v_min3_u32 v{K4}, v{K4}, v{K4+1}, v{K4+2}
    v_min3_u32 v{K4+3}, v{K4+3}, v{K4+4}, v{K4+5}
    v_min3_u32 v{K4}, v{K4}, v{K4+6}, v{K4+7}
    v_min3_u32 v{K4}, v{K4}, v{K4+3}, v10
    s_waitcnt lgkmcnt(0)
    v_min_u32 v11, 16, v11
    v_lshlrev_b32 v11, 2, v11
    s_mov_b64 exec, vcc
    ds_write_b32 v11, v10 offset:{L_LIST}
    v_sub_u32 v10, v{K4+8}, v{K4}
    s_mov_b64 exec, -1
    s_branch L_app
    """)
    flush_late(P)
    P(f"""
    L_pad0:
    s_branch L_pad1
    L_fchk:
    """)
    P(f"""
    s_lshl_b32 s49, s{sXCD}, 8
    s_add_u32 s49, s49, {SEN1}
    s_mov_b32 s50, 0
    s_mov_b64 exec, 0xffff
    L_h1:
    buffer_load_dword v10, v{vL4}, s[8:11], s49 offen sc1
    s_add_u32 s50, s50, 1
    s_cmp_gt_u32 s50, {HINTMAX}
    s_waitcnt vmcnt(0)
    v_cmp_ne_u32 vcc, v14, v10
    s_cbranch_scc1 L_h1_d
    s_cbranch_vccnz L_h1
    L_h1_d:
    {f"buffer_load_dword v10, v{vL4}, s[8:11], s49 offen sc1" if OPT.get("k2") else ""}
    {"s_waitcnt vmcnt(0)" if OPT.get("k2") else ""}
    {f"buffer_load_dword v10, v{vL4}, s[8:11], s49 offen sc1" if OPT.get("k2", 0) > 1 else ""}
    {"s_waitcnt vmcnt(0)" if OPT.get("k2", 0) > 1 else ""}
    s_mov_b64 exec, -1
    {"s_sleep %d" % OPT["kdelay"] if OPT.get("kdelay") else ""}
    s_branch L_tk1
    """)
    P(f"""
    L_tk3:
    s_waitcnt lgkmcnt(0)
    s_barrier
    ds_read_b32 v{K4+9}, v12
    """)
    rank16(L_LIST, 10)
    rank16b(10, 11)
    P(f"""
    v_cmp_gt_u32 vcc, 8, v11
    v_readfirstlane_b32 s47, v{K4+9}
    v_lshlrev_b32 v11, 2, v11
    s_mov_b64 exec, vcc
    ds_write_b32 v11, v10 offset:{L_SEL}
    s_mov_b64 exec, -1
    ds_read_b32 v150, v147 offset:{L_SEL}
    ds_read_b64 v[154:155], v158 offset:{L_SEL}
    s_mov_b32 s50, 0
    s_cmp_le_u32 s47, 16
    s_cbranch_scc1 L_tkdone
    ds_read_b32 v10, v12 offset:{L_SEL+28}
    s_waitcnt lgkmcnt(0)
    s_barrier
    v_readfirstlane_b32 s48, v10
    v_mov_b32 v11, -1
    ds_write_b32 v12, v12
    ds_write_b32 v151, v11 offset:{L_LIST}
    s_waitcnt lgkmcnt(0)
    s_barrier
    s_cmp_ge_u32 s{sWV}, 4
    s_cbranch_scc1 L_tk3
    s_branch L_tkagain
    """)
    flush_late(P)
    P(f"""
    L_pad1:
    s_branch L_pad2
    L_tkdone:
    """)
    GB = [48 + 8*b for b in range(8)] + [240, 248]
    UB = [160 + 8*b for b in range(10)]
    AG = [16, 20, 24, 28, 32, 36, 112, 116, 120, 124]
    P(f"""
    s_cmp_lg_u32 s{sWV}, 4
    s_cbranch_scc1 L_selpub
    s_waitcnt lgkmcnt(0)
    """)
    stamp(P, 10)
    P(f"""
    v_and_b32 v9, 2047, v150
    v_mad_u32_u24 v9, v9, s57, v148
    v_and_b32 v154, 2047, v154
    v_and_b32 v155, 2047, v155
    v_lshlrev_b32 v154, 6, v154
    v_lshlrev_b32 v155, 6, v155
    L_gretry:
    """)
    for b in range(10):
        P(f"buffer_load_dwordx4 {v(AG[b],4)}, v9, s[12:15], 0 offen offset:{128*b} sc1")
    P(f"""
    buffer_load_dwordx3 {v(136,3)}, v154, s[8:11], s60 offen sc1
    buffer_load_dwordx3 {v(140,3)}, v155, s[8:11], s60 offen sc1
    """)
    for i in range(8): P(f"v_mov_b32 v{A0+i}, 0")
    P("v_mov_b32 v10, 0")
    for b in range(10):
        P(f"s_waitcnt vmcnt({11-b})")
        P(f"v_smfmac_f32_16x16x64_bf16 {v(A0,4)}, {v(AG[b],4)}, {v(GB[b],8)}, v144")
        P(f"v_max3_u32 v10, v10, v{AG[b]}, v{AG[b]+1}")
        P(f"v_smfmac_f32_16x16x64_bf16 {v(A0+4,4)}, {v(AG[b],4)}, {v(UB[b],8)}, v144")
        P(f"v_max3_u32 v10, v10, v{AG[b]+2}, v{AG[b]+3}")
    P(f"""
    v_cmp_eq_u32 s[62:63], -1, v10
    s_waitcnt vmcnt(0)
    v_bitop3_b32 v10, v138, v142, v14 bitop3:0x7e
    v_mul_f32 v44, {f2u(-1.4426950408889634)}, v137
    v_cmp_ne_u32 vcc, 0, v10
    v_mul_f32 v45, {f2u(-1.4426950408889634)}, v141
    v_mul_f32 v137, v137, v137
    s_or_b64 vcc, vcc, s[62:63]
    v_mul_f32 v141, v141, v141
    """)
    spin_tail(P, 50, "L_gretry", "L_gok")
    stamp(P, 11)
    if OPT["stamps"]: P("s_add_u32 s96, s50, 1")
    P(f"""
    {"buffer_store_dword v14, v12, s[8:11], s64 offen" if OPT.get("h2pos", 2) == 3 else ""}
    v_fma_f32 v{A0}, -v136, v46, v{A0}
    v_fma_f32 v{A0+2}, -v140, v46, v{A0+2}
    v_add_f32 v{A0}, v{A0}, v{A0+1}
    v_add_f32 v{A0+2}, v{A0+2}, v{A0+3}
    v_mul_f32 v44, v44, v{A0}
    v_mul_f32 v45, v45, v{A0+2}
    v_exp_f32 v44, v44
    v_exp_f32 v45, v45
    v_fma_f32 v{A0+4}, -v136, v47, v{A0+4}
    v_fma_f32 v{A0+6}, -v140, v47, v{A0+6}
    v_add_f32 v44, 1.0, v44
    v_add_f32 v45, 1.0, v45
    v_rcp_f32 v44, v44
    v_rcp_f32 v45, v45
    v_add_f32 v{A0+4}, v{A0+4}, v{A0+5}
    v_add_f32 v{A0+6}, v{A0+6}, v{A0+7}
    v_mul_f32 v{A0}, v{A0}, v137
    v_mul_f32 v{A0+2}, v{A0+2}, v141
    v_mul_f32 v{A0}, v{A0}, v44
    v_mul_f32 v{A0+2}, v{A0+2}, v45
    v_mul_f32 v{A0}, v{A0}, v{A0+4}
    v_mul_f32 v{A0+2}, v{A0+2}, v{A0+6}
    v_cvt_pk_bf16_f32 v44, v{A0}, v{A0+2}
    v_mov_b32_dpp v45, v44 quad_perm:[1,0,3,2] row_mask:0xf bank_mask:0xf
    v_perm_b32 v44, v45, v44, v157
    v_min_u32 v44, -2, v44
    {"buffer_store_dword v14, v12, s[8:11], s64 offen" if OPT.get("h2pos", 2) == 2 else ""}
    buffer_store_dword v44, v156, s[8:11], s61 offen sc1
    s_mov_b64 exec, 1
    {"buffer_store_dword v14, v12, s[8:11], s64 offen" if OPT.get("h2pos", 2) == 1 else ""}
    {FIN}
    """)
    flush_late(P)
    P_keep2 = P; P = Prog()
    P("L_w4prep:")
    for b in range(10):
        if b == OPT.get("w4split", 9): P("s_barrier")
        for gu in range(2):
            r = (UB if gu else GB)[b]
            for j in range(4):
                P(f"ds_read_b64_tr_b16 {v(r+2*j,2)}, v15 offset:{8192*(b>>1) + 4096*gu + 2048*(b&1) + 1024*(j>>1) + 256*(j&1)}")
    for i in range(4): P(f"v_mov_b32 v{16+i}, 0x3f803f80")
    for i in range(8): P(f"v_mov_b32 v{A0+i}, 0")
    P(f"""
    v_lshlrev_b32 v158, 3, v{vQ}
    v_and_b32 v9, 1, v{vN}
    v_lshl_add_u32 v156, v{vQ}, 1, v9
    v_lshlrev_b32 v156, 5, v156
    v_and_b32 v10, 14, v{vN}
    v_lshl_add_u32 v156, v10, 1, v156
    v_mov_b32 v157, 0x05040100
    v_mov_b32 v10, 0x03020706
    v_cmp_eq_u32 vcc, 1, v9
    v_cndmask_b32 v157, v157, v10, vcc
    s_mov_b32 s60, {STATS}
    s_lshl_b32 s61, s{sIDX}, 8
    s_add_u32 s61, s61, {ACT}
    {"buffer_load_dword v159, v156, s[8:11], s61 offen" if OPT.get("apre") == 1 else ""}
    s_lshr_b32 s64, s2, 6
    s_and_b32 s43, s{sJ}, 3
    s_lshl2_add_u32 s64, s64, s43
    s_lshl_b32 s43, s{sXCD}, 8
    s_lshl2_add_u32 s64, s64, s43
    s_add_u32 s64, s64, {SEN2}
    s_waitcnt lgkmcnt(0)
    {"s_barrier" if OPT.get("cspos", 0) else ""}
    """)
    for b in range(10):
        P(f"v_smfmac_f32_16x16x64_bf16 {v(A0,4)}, {v(16,4)}, {v(GB[b],8)}, v144")
        P(f"v_smfmac_f32_16x16x64_bf16 {v(A0+4,4)}, {v(16,4)}, {v(UB[b],8)}, v144")
    P(f"""
    v_add_f32 v46, v{A0}, v{A0+1}
    v_add_f32 v47, v{A0+4}, v{A0+5}
    s_setprio 2
    {"" if OPT.get("cspos", 0) else "s_barrier"}
    s_branch L_tk3
    """)
    IDLE += P.lines; P = P_keep2
    D = 16
    P(f"""
    L_selpub:
    s_cmp_lg_u32 s{sWV}, 5
    s_cbranch_scc1 L_fin2
    s_cmp_lg_u32 s54, 0
    s_cbranch_scc1 L_fin2
    ds_read_b32 v150, v{vL4} offset:{L_SEL}
    v_mov_b32 v151, v14
    v_lshlrev_b32 v9, 3, v{vL}
    s_lshl_b32 s49, s{sXCD}, 8
    s_add_u32 s49, s49, {SELR}
    s_mov_b64 exec, 0xffff
    s_waitcnt lgkmcnt(0)
    buffer_store_dwordx2 v[150:151], v9, s[8:11], s49 offen sc1
    s_branch L_fin2
    L_pad2:
    s_branch L_tk1
    """)
    P(f"""
    L_f2:
    s_lshl_b32 s51, s{sWV}, 12
    s_add_u32 s51, s51, {ACT}
    """)
    for i in range(4): P(f"v_mov_b32 v{AR+12+i}, 0")
    P(f"""
    s_lshl_b32 s49, s{sXCD}, 8
    s_add_u32 s49, s49, {SEN2}
    s_mov_b32 s50, 0
    s_mov_b64 exec, 0xfff
    L_h2:
    buffer_load_dword v10, v{vL4}, s[8:11], s49 offen sc1
    s_add_u32 s50, s50, 1
    s_cmp_gt_u32 s50, {HINTMAX}
    s_waitcnt vmcnt(0)
    v_cmp_ne_u32 vcc, v14, v10
    s_cbranch_scc1 L_h2_d
    s_cbranch_vccnz L_h2
    L_h2_d:
    s_mov_b64 exec, -1
    {"s_sleep %d" % OPT["adelay"] if OPT.get("adelay") else ""}
    s_mov_b32 s50, 0
    s_waitcnt lgkmcnt(0)
    """)
    stamp(P, 10)
    P("L_a2:")
    for i in range(3):
        P(f"buffer_load_dwordx4 {v(AR+4*i,4)}, v{vL16}, s[8:11], s51 offen offset:{1024*i} sc1")
    P(f"""
    s_cmp_eq_u32 s{sWV}, 6
    s_cbranch_scc1 L_a3
    buffer_load_dwordx4 {v(AR+12,4)}, v{vL16}, s[8:11], s51 offen offset:3072 sc1
    L_a3:
    v_mov_b32 v10, 0
    """)
    for i in range(8): P(f"v_mov_b32 v{A0+i}, 0")
    for b in range(4):
        if b < 3: P(f"s_waitcnt vmcnt({2-b})")
        for ct in range(2):
            P(f"v_smfmac_f32_16x16x64_bf16 {v(A0+4*ct,4)}, {v(AR+4*b,4)}, {v(BW+16*b+8*ct,8)}, v144")
            P(f"v_max3_u32 v10, v10, v{AR+4*b+2*ct}, v{AR+4*b+2*ct+1}")
    P(f"v_cmp_eq_u32 vcc, -1, v10")
    spin_tail(P, 50, "L_a2", "L_a4")
    stamp(P, 11)
    if OPT["stamps"]: P("s_add_u32 s94, s50, 1")
    P(f"""
    v_add_f32 v{A0}, v{A0}, v{A0+1}
    v_add_f32 v{A0+2}, v{A0+2}, v{A0+3}
    ds_write2_b32 v149, v{A0}, v{A0+2} offset0:0 offset1:32
    v_add_f32 v{A0+4}, v{A0+4}, v{A0+5}
    v_add_f32 v{A0+6}, v{A0+6}, v{A0+7}
    ds_write2_b32 v149, v{A0+4}, v{A0+6} offset0:16 offset1:48
    s_waitcnt lgkmcnt(0)
    s_barrier
    {FIN}
    """)
    flush_late(P)
    P(f"""
    L_f2fin:
    v_and_b32 v13, 7, v{vL}
    v_and_b32 v9, 56, v{vL}
    s_lshl_b32 s49, s{sXCD}, 8
    s_add_u32 s49, s49, {SELR}
    s_mov_b32 s50, 0
    L_spoll:
    buffer_load_dwordx2 v[150:151], v9, s[8:11], s49 offen sc1
    s_waitcnt vmcnt(0)
    v_cmp_ne_u32 vcc, v14, v151
    """)
    spin_tail(P, 50, "L_spoll", "L_spok")
    stamp(P, 8)
    P(f"""
    v_and_b32 v46, 2047, v150
    v_mul_u32_u24 v46, 1280, v46
    v_lshl_add_u32 v46, v13, 3, v46
    L_oretry:
    buffer_load_dwordx2 {v(44,2)}, v46, s[12:15], s58 offen sc1
    s_waitcnt vmcnt(0)
    v_max_u32 v10, v44, v45
    v_cmp_eq_u32 vcc, -1, v10
    """)
    spin_tail(P, 50, "L_oretry", "L_ook")
    P(f"""
    """)
    O = 48
    P(f"""
    v_lshlrev_b32 v9, 1, v150
    v_ashrrev_i32 v10, 31, v9
    v_not_b32 v10, v10
    v_or_b32 v10, 0x80000000, v10
    v_xor_b32 v9, v9, v10
    v_and_b32 v9, 0xffff0000, v9
    v_mul_f32 v9, {f2u(-1.4426950408889634)}, v9
    v_exp_f32 v9, v9
    v_add_f32 v9, 1.0, v9
    v_rcp_f32 v47, v9
    v_lshlrev_b32 v{O}, 16, v44
    v_and_b32 v{O+1}, 0xffff0000, v44
    v_lshlrev_b32 v{O+2}, 16, v45
    v_and_b32 v{O+3}, 0xffff0000, v45
    s_barrier
    """)
    for w in range(7): P(f"ds_read_b128 {v(D+4*w,4)}, v{vL16} offset:{L_RED+1024*w}")
    def pk2(d, x):
        P(f"v_pk_add_f32 {v(d,2)}, {v(d,2)}, {v(x,2)}"); P(f"v_pk_add_f32 {v(d+2,2)}, {v(d+2,2)}, {v(x+2,2)}")
    P("s_waitcnt lgkmcnt(5)"); pk2(D, D+4)
    P("s_waitcnt lgkmcnt(3)"); pk2(D+8, D+12)
    P("s_waitcnt lgkmcnt(1)"); pk2(D+16, D+20); pk2(D, D+8)
    P("s_waitcnt lgkmcnt(0)"); pk2(D+16, D+24); pk2(D, D+16)
    for i in range(4): P(f"v_fma_f32 v{O+i}, v{D+i}, v47, v{O+i}")
    P(f"""
    v_cvt_pk_bf16_f32 v44, v{O}, v{O+1}
    v_cvt_pk_bf16_f32 v45, v{O+2}, v{O+3}
    buffer_store_dwordx2 {v(44,2)}, v46, s[12:15], s58 offen{" sc1" if OPT.get("fsc1", 0) else ""}
    L_fin:
    """)
    if OPT.get("padto"):
        if OPT.get("padwg") is not None:
            P(f"s_cmp_lg_u32 s2, {OPT['padwg']}")
            P("s_cbranch_scc1 L_fin2")
        if OPT.get("padrole") == 1:
            P(f"s_cmp_ge_u32 s{sIDX}, 108"); P("s_cbranch_scc1 L_fin2")
        if OPT.get("padrole") == 2:
            P(f"s_cmp_lt_u32 s{sIDX}, 108"); P("s_cbranch_scc1 L_fin2")
        if OPT.get("padfrom") == 999: P("s_memrealtime s[70:71]")
        P(f"""
        L_padt:
        s_memrealtime s[72:73]
        s_waitcnt lgkmcnt(0)
        s_sub_u32 s72, s72, s70
        s_cmp_lt_u32 s72, {OPT["padto"]}
        s_cbranch_scc1 L_padt
        """)
    P("L_fin2:")
    if OPT["stamps"]:
        P(f"""
        s_memrealtime s[{70+2*NST}:{71+2*NST}]
        s_waitcnt vmcnt(0)
        s_memrealtime s[{72+2*NST}:{73+2*NST}]
        s_waitcnt lgkmcnt(0)
        s_lshl_b32 s49, s2, 6
        s_lshl_b32 s50, s{sWV}, 14
        s_add_u32 s49, s49, s50
        s_add_u32 s49, s49, {ST_OFF}
        s_mov_b64 exec, 1
        v_mov_b32 v1, 0
        """)
        for i in range(NST+2):
            P(f"v_mov_b32 v2, s{70+2*i}")
            P(f"buffer_store_dword v2, v1, s[8:11], s49 offen offset:{4*i}")
    P("L_end:")
    P("s_endpgm")
    flush_late(P)
    P.raw('.p2align 12')
    for l_ in IDLE: P.raw(l_)
    P("L_last:")
    P("s_endpgm")
    return name

def main(out):
    P = Prog()
    name = gen(P)
    body = P.finalize()
    hdr = f"""; x + Re(DFT2(LN(x))), LN, top-8 routed SwiGLU in one persistent launch (256 co-resident workgroups, 1 per CU).
;      twiddles generated with v_cos/v_sin), row statistics by MFMA, 64-point real DFT over s1 -> Z (fp16, launch tag in LSBs)
; @launch grid=(256,1,1) block=(512,1,1) lds={L_END}
.amdgcn_target "amdgcn-amd-amdhsa--gfx950"
.text
"""
    d = f""".section .rodata,"a"
.p2align 6
.amdhsa_kernel {name}
  .amdhsa_next_free_vgpr 256
  .amdhsa_next_free_sgpr 102
  .amdhsa_accum_offset 256
  .amdhsa_group_segment_fixed_size 0
  .amdhsa_kernarg_size 104
  .amdhsa_user_sgpr_count 2
  .amdhsa_user_sgpr_kernarg_segment_ptr 1
  .amdhsa_system_sgpr_workgroup_id_x 1
.end_amdhsa_kernel
"""
    open(out, "w").write(hdr + body + d)

if __name__ == "__main__":
    for a_ in sys.argv[2:]:
        k, _, val = a_.partition("=")
        OPT[k] = int(val) if val else True
    main(sys.argv[1])
```

```python
import sys, struct
sys.path.insert(0, "work")
from asmlib import *

NAME = "sequential_preLN__spectral_fnet__moe_arch_mod__prompt"
XB = 2621440
FLAGS = 0x2c0000
KEYS = 0x8000
KST = 384
ACT = 0x18000
ZM = 0x20000
ZT = ZM + 0x200000
STATS = 0x2a0000
SEN1 = 0x1000
SEN2 = 0x2000
SELR = 0x3000
HINTMAX = 64
ST_OFF = 0x300000
WS_SZ = 0x400000
OOB = 0x1000000
SPIN = 1 << 16

L_MISC = 0
L_CNT = 0; L_TAG = 4; L_SEL = 32; L_ZP = 64; L_GM = 128; L_LIST = 192
L_PS = 512
L_CS = 1024
L_RED = 2048
L_HT = 2048; HS = 128
L_W = 12288
L_X = 32768
L_CF = 114688
L_XR = 118784
XP = 1284
L_WR = 139520
L_PART = 12288
L_WF = 20480
L_RM = 512
L_WT1 = 114688
L_WT = 12288
L_END = 114688 + 40960
RSB = 2576

sGRP, sJ, sWV, sSL, sXCD, sTB, sSTR, sROW, sROWB, sIDX, sRHO, sC640, sHW = 32, 33, 34, 36, 37, 38, 39, 40, 41, 35, 44, 45, 46
vN, vQ, vW, vL, vL4, vL16 = 1, 2, 3, 4, 6, 8
sTAG = 3; sZP = 100

OPT = dict(stamps=False, xnt=0, wnt=0, cpre=1, npre=5, tail=0, pf1=1)

def f2u(x): return "0x%08x" % struct.unpack("<I", struct.pack("<f", x))[0]
NST = 14
SEC = ["p1"]
def stamp(P, i):
    if OPT["stamps"]: P(f"s_memrealtime s[{70+2*i}:{71+2*i}]")
    if OPT.get("padfrom") == {"p1": 0, "m": 100, "p2": 200, "ffn": 300}[SEC[0]] + i and i: P("s_memrealtime s[70:71]")

def bf16_round(r):
    return [f"v_cvt_pk_bf16_f32 {v(r)}, 0, {v(r)}"]

def spin_tail(P, cnt, again, ok):
    P(f"""
    s_cbranch_vccnz {ok}_r
    {ok}:
    """)
    LATE.append(f"""
    {ok}_r:
    s_add_u32 s{cnt}, s{cnt}, 1
    s_cmp_gt_u32 s{cnt}, {SPIN}
    s_cbranch_scc1 {ok}
    s_branch {again}
    """)
LATE = []
def flush_late(P):
    for t in LATE: P(t)
    del LATE[:]

def cheb2(P, T, k):
    for i in range(2, 8):
        P(f"v_fma_f32 v{T+i}, v{k}, v{T+i-1}, -v{T+i-2}")
        P(f"v_fma_f32 v{T+8+i}, v{k}, v{T+8+i-1}, -v{T+8+i-2}")

def gen(P):
    global KST
    KST = OPT.get("kst", 64)
    name = NAME + "_kernel"
    xnt = " nt" if OPT["xnt"] else ""
    wnt = " nt" if OPT["wnt"] else ""
    P.raw(".p2align 12"); P.raw(".fill 0x340, 4, 0xbf810000")
    P.raw(f".globl {name}"); P.raw(".p2align 8"); P.raw(f".type {name},@function"); P.raw(f"{name}:")
    P("L_start:")
    stamp(P, 0)
    if OPT.get("padto"): P("s_memrealtime s[70:71]")
    def ptrs():
        P(f"""
        s_load_dwordx2 s[12:13], s[0:1], 80
        s_load_dwordx2 s[16:17], s[0:1], 48
        s_load_dwordx2 s[20:21], s[0:1], 56
        s_load_dwordx2 s[24:25], s[0:1], 64
        s_load_dwordx2 s[28:29], s[0:1], 72
        """)
    ZP = [66, 67, 42, 68]
    FIN = "s_branch L_fin" if (OPT["stamps"] or OPT.get("padto")) else "s_endpgm"
    MK = 24
    def tagcalc():
        P(f"""
        s_mul_i32 s{sTAG}, s{sTAG}, 0x9e3779b1
        s_add_u32 s{sTAG}, s{sTAG}, 0x7f4a7c15
        v_mov_b32 v14, s{sTAG}
        """)
        P(f"""
        s_and_b32 s43, s{sTAG}, 3
        s_mul_i32 s43, s43, 0x01010101
        s_and_b32 s66, s{sTAG}, 0xfcfcfcfc
        s_or_b32 s43, s43, s66
        v_lshlrev_b32 v48, 1, v{vN}
        v_bfe_u32 v48, s43, v48, 2
        v_mul_u32_u24 v48, 0x8001, v48
        v_and_b32 v48, 0x10001, v48
        v_lshlrev_b32 v49, 2, v{vN}
        """)
    def consts():
        P(f"""
        s_mov_b64 s[12:13], s[26:27]
        s_mov_b64 s[16:17], s[18:19]
        s_mov_b64 s[28:29], s[24:25]
        s_mov_b64 s[24:25], s[22:23]
        s_mov_b32 s14, {XB}
        s_mov_b32 s15, 0x20000
        s_mov_b32 s18, 1280
        s_mov_b32 s19, 0x20000
        s_mov_b32 s22, {640*3456}
        s_mov_b32 s23, 0x20000
        s_mov_b32 s26, {640*3456}
        s_mov_b32 s27, 0x20000
        s_mov_b32 s30, {1728*1280}
        s_mov_b32 s31, 0x20000
        v_lshlrev_b32 v{vL4}, 2, v{vL}
        v_mov_b32 v13, 0
        s_and_b32 s43, s{sJ}, 3
        s_lshr_b32 s{sIDX}, s2, 6
        s_lshl3_add_u32 s{sIDX}, s{sIDX}, s{sXCD}
        s_lshl2_add_u32 s{sIDX}, s{sIDX}, s43
        s_cmp_eq_u32 s{sGRP}, 0
        s_cselect_b32 s{sSTR}, 32, 64
        s_lshl_b32 s{sTB}, s{sSTR}, 3
        s_mul_i32 s{sTB}, s{sTB}, s43
        s_add_u32 s{sTB}, s{sTB}, s{sGRP}
        """)
    def rows4(dst=92):
        for pr in range(2):
            sa, sb = 56 + 2*pr, 57 + 2*pr
            P(f"""
            s_add_u32 s{sa}, s{sHW}, {4*pr}
            s_mul_i32 s{sa}, s{sa}, s{sSTR}
            s_add_u32 s{sa}, s{sa}, s{sTB}
            s_sub_u32 s{sb}, 2048, s{sa}
            s_cmp_eq_u32 s{sa}, 0
            s_cselect_b32 s{sb}, 1024, s{sb}
            s_mul_i32 s{sa}, s{sa}, 1280
            s_mul_i32 s{sb}, s{sb}, 1280
            """)
        P(f"""
        v_mov_b32 v10, s56
        v_mov_b32 v9, s57
        v_mov_b32 v11, s58
        v_mov_b32 v12, s59
        v_mov_b32_dpp v10, v9 quad_perm:[0,1,2,3] row_mask:0x2 bank_mask:0xf
        s_movk_i32 s62, 1024
        v_mov_b32_dpp v10, v11 quad_perm:[0,1,2,3] row_mask:0x4 bank_mask:0xf
        v_mov_b32_dpp v10, v12 quad_perm:[0,1,2,3] row_mask:0x8 bank_mask:0xf
        v_lshl_add_u32 v{dst}, v{vN}, 4, v10
        """)
    P(f"""
    s_load_dwordx2 s[4:5], s[0:1], 0
    s_mov_b32 s10, {WS_SZ}
    s_mov_b32 s11, 0x20000
    v_lshrrev_b32 v{vW}, 6, v0
    s_cmp_ge_u32 s2, 256
    s_cbranch_scc1 L_end
    v_readfirstlane_b32 s{sWV}, v{vW}
    s_bfe_u32 s{sJ}, s2, 0x30003
    v_and_b32 v{vL}, 63, v0
    v_and_b32 v{vN}, 15, v0
    v_bfe_u32 v{vQ}, v0, 4, 2
    s_and_b32 s{sXCD}, s2, 7
    s_lshr_b32 s43, s2, 7
    s_lshl1_add_u32 s{sGRP}, s{sXCD}, s43
    s_sub_u32 s43, 32, s{sGRP}
    s_cmp_eq_u32 s{sGRP}, 0
    s_cselect_b32 s43, 16, s43
    s_bitcmp1_b32 s2, 6
    s_cselect_b32 s{sGRP}, s43, s{sGRP}
    s_mul_i32 s{sRHO}, s{sJ}, 5
    s_lshr_b32 s{sRHO}, s{sRHO}, 2
    s_and_b32 s{sHW}, s{sWV}, 3
    s_mov_b32 s{sC640}, {f2u(1.0/640)}
    v_lshlrev_b32 v{vL16}, 4, v{vL}
    s_cmp_ge_u32 s{sWV}, 4
    s_cbranch_scc1 L_W
    """)
    if OPT["cpre"]:
        P(f"""
        s_cmp_ge_u32 s{sWV}, 3
        s_cbranch_scc1 L_Mx
        s_cmp_ge_u32 s2, {OPT.get("cprewg", 32)}
        s_cbranch_scc1 L_Mx
        s_getpc_b64 s[42:43]
        L_pc:
        v_lshlrev_b32 v10, 7, v0
        v_add_u32 v10, 896, v10
        v_min_u32 v10, L_last-L_pc, v10
        v_mov_b32 v11, s43
        v_add_co_u32 v10, vcc, s42, v10
        v_addc_co_u32 v11, vcc, 0, v11, vcc
        global_load_dword v15, v[10:11], off
        """)
    P(f"""
    L_Mx:
    v_lshrrev_b32 v9, 3, v{vL}
    s_lshl_b32 s47, s{sHW}, 4
    v_add_u32 v5, s47, v9
    v_mul_u32_u24 v5, 40960, v5
    v_lshrrev_b32 v7, 2, v9
    v_and_or_b32 v9, v9, 6, v7
    v_xor_b32 v9, v9, v{vL}
    v_and_b32 v9, 7, v9
    v_lshl_add_u32 v5, v9, 4, v5
    v_xor_b32 v7, 16, v5
    v_add_u32 v7, {8*40960}, v7
    s_mul_i32 s50, s{sGRP}, 1280
    s_add_u32 s47, s50, 1280
    s_lshr_b32 s52, s{sWV}, 2
    s_mul_i32 s52, s52, 5
    s_add_u32 s48, s{sRHO}, s52
    s_cmp_ge_u32 s48, 10
    s_cselect_b32 s49, 10, 0
    s_sub_u32 s48, s48, s49
    s_lshl_b32 s48, s48, 7
    s_add_u32 s48, s48, s50
    s_mul_i32 s49, s{sHW}, 20480
    s_add_u32 s49, s49, {L_X}
    s_lshl_b32 s52, s52, 11
    s_add_u32 m0, s49, s52
    s_mov_b32 s6, {XB}
    s_mov_b32 s7, 0x20000
    s_mov_b32 s52, 5
    s_waitcnt lgkmcnt(0)
    """)
    stamp(P, 1)
    P(f"""
    s_cmp_lt_u32 s{sWV}, 4
    s_cbranch_scc1 L_xl
    s_load_dword s{sTAG}, s[8:9], 0
    s_barrier
    s_branch L_H1
    L_xl:
    buffer_load_dwordx4 v5, s[4:7], s48 offen{xnt} lds
    s_add_u32 m0, m0, 1024
    s_add_u32 s51, s48, 128
    buffer_load_dwordx4 v7, s[4:7], s48 offen{xnt} lds
    s_add_u32 m0, m0, 1024
    s_cmp_eq_u32 s51, s47
    s_cselect_b32 s48, s50, s51
    s_sub_u32 s52, s52, 1
    s_cmp_lg_u32 s52, 0
    s_cbranch_scc1 L_xl
    s_cmp_ge_u32 s{sWV}, 4
    s_cbranch_scc1 L_H2
    s_load_dwordx2 s[8:9], s[0:1], 96
    s_load_dwordx16 s[16:31], s[0:1], 40
    s_barrier
    s_branch L_M
    """)
    def wrow(dst, fill=None):
        T = 32; K8 = 76; a_, b_, c_, d_ = 78, 79, 80, 81
        P(f"""
        s_cmp_eq_u32 s{sJ}, 0
        s_cselect_b32 s53, 8, s{sJ}
        s_lshl_b32 s54, s{sRHO}, 6
        """)
        if dst is None: P(f"s_lshl_b32 s55, s{sHW}, 6"); P("s_add_u32 s53, s53, s55")
        else: P("s_add_u32 s53, s53, 256")
        P(f"""
        v_and_b32 v{a_}, 7, v{vN}
        v_lshl_add_u32 v{a_}, v{a_}, 3, s53
        v_lshrrev_b32 v{c_}, 3, v{vN}
        v_lshl_add_u32 v{b_}, v{vQ}, 1, s54
        v_cvt_f32_u32 v{c_}, v{c_}
        v_mul_u32_u24 v{b_}, v{a_}, v{b_}
        v_mul_f32 v{c_}, {f2u(-0.25)}, v{c_}
        v_cvt_f32_u32 v{a_}, v{a_}
        v_cvt_f32_u32 v{b_}, v{b_}
        v_mul_f32 v{a_}, s{sC640}, v{a_}
        v_fma_f32 v{b_}, v{b_}, s{sC640}, v{c_}
        v_mul_f32 v{K8}, {f2u(8.0)}, v{a_}
        v_fract_f32 v{T}, v{b_}
        v_add_f32 v{T+2}, v{T}, v{a_}
        v_add_f32 v{T+4}, v{T}, v{K8}
        v_add_f32 v{T+6}, v{T+2}, v{K8}
        v_cos_f32 v{K8}, v{K8}
        """)
        for i in range(4):
            P(f"v_sin_f32 v{T+2*i+1}, -v{T+2*i}")
            P(f"v_cos_f32 v{T+2*i}, v{T+2*i}")
        P(f"v_add_f32 v{K8}, v{K8}, v{K8}")
        if dst is None: P(f"s_mul_i32 s55, s{sHW}, 5120"); P(f"v_add_u32 v{d_}, s55, v{vL16}")
        P(f"v_mov_b32 v{K8+1}, v{K8}")
        for kp in range(5):
            if kp:
                for c in (2*kp, 2*kp+1):
                    for i in range(2):
                        P(f"v_pk_fma_f32 {v(T+4*c+2*i,2)}, {v(K8,2)}, {v(T+4*c-4+2*i,2)}, {v(T+4*c-8+2*i,2)} neg_lo:[0,0,1] neg_hi:[0,0,1]")
            pk = 84 + 4*(kp & 1) if dst is None else dst + 4*kp
            for i in range(4): P(f"v_cvt_pk_bf16_f32 v{pk+i}, v{T+8*kp+2*i}, v{T+8*kp+2*i+1}")
            if fill:
                for _ in range(2): P(fill.pop(0))
            if dst is None: P(f"ds_write_b128 v{d_}, {v(pk,4)} offset:{L_W + 1024*kp}")
    P("L_W:")
    P("s_load_dwordx2 s[8:9], s[0:1], 96")
    P("s_load_dwordx16 s[16:31], s[0:1], 40")
    wrow(None)
    PZ = 152; T = 64; F = 80
    P(f"""
    s_branch L_Mx
    L_H1:
    """)
    consts()
    P(f"""
    v_mov_b32 v{PZ}, -1
    v_mov_b32 v{PZ+1}, -1
    v_mov_b32 v{PZ+2}, -1
    v_mov_b32 v{PZ+3}, -1
    v_lshrrev_b32 v150, 1, v{vL}
    v_and_b32 v9, 2, v150
    v_bfe_u32 v10, v150, 3, 1
    v_and_b32 v150, 21, v150
    v_lshl_or_b32 v150, v9, 2, v150
    v_lshl_or_b32 v150, v10, 1, v150
    v_mul_u32_u24 v150, 3456, v150
    v_and_b32 v9, 1, v{vL}
    v_lshl_add_u32 v150, v9, 4, v150
    v_mul_u32_u24 v151, 1280, v{vL}
    s_cmp_ge_u32 s{sJ}, 4
    s_cbranch_scc1 L_hs1
    """)
    rows4(107)
    P(f"""
    s_mul_i32 s53, s{sHW}, {XP}
    s_mul_i32 s54, s{sHW}, 320
    s_mov_b32 s55, m0
    s_add_u32 m0, s54, {L_WR}
    s_mov_b64 exec, 0xfffff
    buffer_load_dwordx4 v{vL16}, s[16:19], s54 offen lds
    s_mov_b64 exec, -1
    s_mov_b32 m0, s55
    s_branch L_xl
    """)
    P(f"""
    L_hs1:
    v_mov_b32 v107, 0
    s_and_b32 s63, s{sJ}, 3
    s_lshl2_add_u32 s63, s63, s{sHW}
    s_and_b32 s56, s{sJ}, 3
    s_mul_i32 s56, s56, 5
    s_add_u32 s57, s56, 4
    s_add_u32 s56, s56, s{sHW}
    s_lshl_b32 s43, s{sIDX}, 5
    s_mul_i32 s58, s56, {32*3456}
    s_add_u32 s58, s58, s43
    s_mul_i32 s59, s57, {32*3456}
    s_add_u32 s59, s59, s43
    s_and_b32 s43, s56, 28
    s_add_u32 s56, s56, s43
    s_lshl_b32 s56, s56, 10
    s_and_b32 s43, s57, 28
    s_add_u32 s57, s57, s43
    s_lshl_b32 s57, s57, 10
    s_lshl_b32 s43, s{sHW}, 4
    s_bfm_b64 s[60:61], 16, s43
    s_and_b32 s63, s63, 7
    s_mul_i32 s65, s63, {54*1280}
    s_sub_u32 s43, s{sIDX}, 108
    s_lshr_b32 s43, s43, 1
    s_lshl_b32 s43, s43, 7
    s_add_u32 s65, s65, s43
    s_lshl2_add_u32 s63, s{sIDX}, s{sHW}
    s_lshl_b32 s63, s63, 6
    s_add_u32 s63, s63, {ACT}
    s_branch L_xl
    L_H2:
    """)
    stamp(P, 2)
    P(f"""
    s_barrier
    s_cmp_ge_u32 s{sJ}, 4
    s_cbranch_scc1 L_hc1
    """)
    for i in range(4):
        P(f"s_add_u32 m0, s53, {L_XR + XP*[0, 8, 4, 12][i]}")
        P(f"buffer_load_dwordx4 v{vL16}, s[4:7], s{56+i} offen lds")
    P("s_mov_b64 exec, 0xffff")
    for i in range(4):
        P(f"s_add_u32 m0, s53, {L_XR + XP*[0, 8, 4, 12][i]}")
        P(f"buffer_load_dwordx4 v{vL16}, s[4:7], s{56+i} offen offset:1024 lds")
    P(f"""
    s_mov_b64 exec, -1
    """)
    NPB = OPT.get("npb", 0)
    pzs = [f"buffer_store_dwordx4 {v(PZ,4)}, v{vL16}, s[12:15], s{56+i} offen sc1" for i in range(4)] + [f"buffer_store_dwordx4 {v(PZ,4)}, v107, s[12:15], s62 offen sc1"]
    for o in pzs[:NPB]: P(o)
    P(f"""
    s_waitcnt vmcnt({8+NPB})
    s_barrier
    """)
    for o in pzs[NPB:]: P(o)
    P(f"""
    s_branch L_hs4
    L_hc1:
    s_cmp_ge_u32 s{sIDX}, 108
    s_cbranch_scc1 L_hs2
    s_mov_b64 exec, 15
    buffer_store_dwordx4 {v(PZ,4)}, v{vL16}, s[8:11], s63 offen sc1
    s_mov_b64 exec, -1
    s_add_u32 m0, s56, {L_WT1}
    s_nop 0
    buffer_load_dwordx4 v150, s[20:23], s58 offen lds
    s_add_u32 m0, s56, {L_WT1+4096}
    s_nop 0
    buffer_load_dwordx4 v150, s[24:27], s58 offen lds
    s_add_u32 m0, s57, {L_WT1}
    s_mov_b64 exec, s[60:61]
    buffer_load_dwordx4 v150, s[20:23], s59 offen lds
    s_add_u32 m0, s57, {L_WT1+4096}
    s_nop 0
    buffer_load_dwordx4 v150, s[24:27], s59 offen lds
    s_lshr_b32 s65, s2, 6
    s_and_b32 s43, s{sJ}, 3
    s_lshl2_add_u32 s65, s65, s43
    s_lshr_b32 s43, s{sHW}, 1
    s_lshl1_add_u32 s65, s65, s43
    s_mul_i32 s65, s65, {36*1280}
    s_and_b32 s43, s{sHW}, 1
    s_lshl1_add_u32 s43, s{sXCD}, s43
    s_lshl_b32 s43, s43, 7
    s_add_u32 s65, s65, s43
    s_add_u32 s65, s65, {864*1280 - 768}
    s_cmp_lt_u32 s{sXCD}, 3
    s_cselect_b32 s65, {OOB}, s65
    s_mov_b32 s64, 0xf
    s_waitcnt vmcnt(5)
    s_branch L_hs3
    L_hs2:
    s_mov_b32 exec_hi, 0x3fffff
    buffer_load_dword v253, v151, s[28:31], s65 offen{wnt}
    s_add_u32 s65, s65, {432*1280}
    s_mov_b32 s64, 0x3fffff
    s_waitcnt vmcnt(1)
    L_hs3:
    s_barrier
    L_hs4:
    s_mov_b64 exec, -1
    s_waitcnt lgkmcnt(0)
    """)
    stamp(P, 3)
    tagcalc()
    P(f"""
    ds_write_b32 v49, v48 offset:{L_ZP}
    ds_write2_b32 v13, v13, v14 offset0:0 offset1:1
    ds_write_b32 v{vL4}, v{PZ} offset:{L_LIST}
    """)
    P(f"""
    s_cmp_ge_u32 s{sJ}, 4
    s_cbranch_scc1 L_hf
    s_waitcnt vmcnt(5) lgkmcnt(0)
    """)
    stamp(P, 4)
    P("s_barrier")
    T = 32
    P(f"""
    v_and_b32 v10, 7, v{vN}
    v_mul_u32_u24 v10, s{sSTR}, v10
    v_add_u32 v10, s{sTB}, v10
    v_sub_u32 v11, 2048, v10
    v_mov_b32 v12, 1024
    v_cmp_eq_u32 vcc, 0, v10
    v_cndmask_b32 v11, v11, v12, vcc
    v_cmp_lt_u32 vcc, 7, v{vN}
    v_cndmask_b32 v10, v10, v11, vcc
    v_and_b32 v11, 63, v10
    v_bfrev_b32 v12, 1
    v_cmp_gt_u32 vcc, 32, v11
    v_cndmask_b32 v12, 0, v12, vcc
    v_lshrrev_b32 v9, 1, v11
    s_lshl_b32 s49, s{sHW}, 3
    """)
    for h in range(2):
        P(f"""
        v_add_u32 v11, s49, v{vQ}
        v_mul_u32_u24 v11, v11, v10
        v_cvt_f32_u32 v11, v11
        v_mul_f32 v11, {f2u(1.0/2048)}, v11
        v_cos_f32 v{T+4}, v11
        v_sin_f32 v{T+5}, v11
        s_add_u32 s49, s49, 4
        v_cvt_pk_f16_f32 v{T+2*h}, v{T+4}, v{T+5}
        v_cvt_pk_f16_f32 v{T+2*h+1}, -v{T+5}, v{T+4}
        v_xor_b32 v{T+2*h}, v12, v{T+2*h}
        v_xor_b32 v{T+2*h+1}, v12, v{T+2*h+1}
        """)
    P(f"""
    s_cmp_lg_u32 s{sGRP}, 0
    s_cbranch_scc1 L_nofix
    """)
    for i in range(4):
        P(f"v_and_b32 v{T+i}, 0xffff, v{T+i}")
        P(f"v_lshlrev_b32 v{T+i}, v9, v{T+i}")
    P(f"""
    L_nofix:
    s_lshl_b32 s49, s{sHW}, 10
    s_add_u32 s49, s49, {L_CF}
    v_add_u32 v11, s49, v{vL16}
    ds_write_b128 v11, {v(T,4)}
    """)

    P(f"""
    s_branch L_prep
    L_hf:
    s_waitcnt lgkmcnt(0)
    """)
    stamp(P, 4)
    P(f"""
    s_barrier
    s_waitcnt vmcnt(4)
    s_barrier
    s_mov_b32 exec_hi, s64
    buffer_load_dword v253, v151, s[28:31], s65 offen{wnt}
    s_mov_b64 exec, -1
    s_branch L_noflag
    """)

    P.raw(".p2align 12")
    WR_ = 156; XL = 16; U = 56; AD = 96; C1 = 108; F = 116; G = 124; S = 128; ON = 132; IX = 136
    ACC = 16; RHO = 138; ZV = 150; PK = 36
    SEC[0] = "m"
    P("L_M:")
    stamp(P, 2)
    wq = [f"ds_read_b128 {v(WR_+4*f,4)}, v{vL16} offset:{L_W + 1024*f}" for f in range(20)]
    for o in wq: P(o)
    wrow(WR_ + 80)
    P(f"""
    v_mul_u32_u24 v9, 10, v{vQ}
    v_lshrrev_b32 v10, 1, v{vN}
    v_xor_b32 v10, v10, v{vN}
    v_bfe_u32 v10, v10, 2, 1
    v_and_or_b32 v10, v{vN}, 6, v10
    v_lshl_add_u32 v11, v{vN}, 7, s49
    """)
    for c in range(0, 10, 2):
        P(f"""
        v_xor_b32 v12, v9, v10
        v_and_b32 v{AD+c}, 7, v12
        v_lshrrev_b32 v12, 3, v12
        v_lshl_add_u32 v{AD+c}, v{AD+c}, 4, v11
        v_lshl_add_u32 v{AD+c}, v12, 11, v{AD+c}
        v_xor_b32 v{AD+c+1}, 16, v{AD+c}
        """)
        if c < 8: P("v_add_u32 v9, 2, v9")
    P(f"""
    v_mov_b32 v{ON}, 0x3f803f80
    v_mov_b32 v{ON+1}, 0x3f803f80
    v_mov_b32 v{ON+2}, 0x3f803f80
    v_mov_b32 v{ON+3}, 0x3f803f80
    v_and_b32 v9, 1, v{vN}
    v_mul_u32_u24 v{IX}, 0xaaaa, v9
    v_or_b32 v{IX}, 0x4444, v{IX}
    s_mov_b32 s60, 0x22222222
    s_mov_b32 s61, s60
    s_lshl_b64 s[62:63], s[60:61], 1
    s_lshl_b64 s[64:65], s[60:61], 2
    """)
    P(f"""
    v_mul_u32_u24 v9, s{sJ}, v{vQ}
    v_and_b32 v10, 1, v{vN}
    v_lshlrev_b32 v10, 1, v10
    v_sub_u32 v9, v9, v10
    v_cvt_f32_i32 v9, v9
    v_mul_f32 v9, {f2u(0.125)}, v9
    v_cos_f32 v9, v9
    v_and_b32 v10, 2, v{vN}
    v_lshlrev_b32 v10, 3, v10
    v_cvt_pk_bf16_f32 v9, v9, 0
    v_lshlrev_b32 v9, v10, v9
    v_lshrrev_b32 v10, 2, v{vN}
    s_and_b32 s43, s{sJ}, 1
    s_mul_i32 s43, s43, 0x80008000
    """)
    for i in range(4):
        P(f"v_cmp_eq_u32 vcc, {i}, v10")
        P(f"v_cndmask_b32 v{C1+i}, 0, v9, vcc")
        P(f"v_xor_b32 v{C1+4+i}, s43, v{C1+i}")
    P_ = P
    P = Prog(); T = 138
    P(f"""
    v_lshrrev_b32 v9, 1, v{vN}
    v_lshl_add_u32 v9, s{sHW}, 3, v9
    v_and_b32 v11, 1, v{vN}
    v_lshl_add_u32 v10, v9, 1, v11
    v_cmp_eq_u32 vcc, 1, v10
    v_cndmask_b32 v9, v9, 32, vcc
    v_cndmask_b32 v11, v11, 0, vcc
    v_cvt_f32_u32 v9, v9
    v_cvt_f32_u32 v11, v11
    v_mul_f32 v9, {f2u(1.0/64)}, v9
    v_mul_f32 v11, {f2u(-0.25)}, v11
    v_lshlrev_b32 v10, 3, v{vQ}
    v_cvt_f32_u32 v10, v10
    v_cos_f32 v12, v9
    v_fma_f32 v{T}, v9, v10, v11
    v_add_f32 v10, {f2u(32.0)}, v10
    v_fma_f32 v{T+8}, v9, v10, v11
    v_add_f32 v{T+1}, v{T}, v9
    v_add_f32 v{T+9}, v{T+8}, v9
    v_cos_f32 v{T}, v{T}
    v_cos_f32 v{T+1}, v{T+1}
    v_cos_f32 v{T+8}, v{T+8}
    v_cos_f32 v{T+9}, v{T+9}
    v_add_f32 v12, v12, v12
    """)
    cheb2(P, T, 12)
    for i in range(8): P(f"v_cvt_pk_f16_f32 v{F+i}, v{T+2*i}, v{T+2*i+1}")
    FG = list(P.lines)
    P = Prog()
    P(f"""
    v_and_b32 v148, 7, v{vN}
    v_lshlrev_b32 v148, 4, v148
    v_lshl_add_u32 v148, v{vN}, 7, v148
    v_lshlrev_b32 v142, 5, v{vW}
    v_lshl_add_u32 v142, v{vQ}, 3, v142
    v_xor_b32 v142, v142, v148
    v_lshlrev_b32 v143, 4, v{vQ}
    v_xor_b32 v143, v143, v148
    v_xor_b32 v148, 64, v143
    v_lshlrev_b32 v144, 17, v{vQ}
    v_lshl_add_u32 v144, v{vN}, 4, v144
    v_lshlrev_b32 v145, 15, v{vQ}
    v_lshl_add_u32 v145, v{vN}, 2, v145
    s_mov_b32 s55, 0xfffefffe
    v_and_b32 v146, 3, v{vN}
    v_lshlrev_b32 v146, 4, v146
    v_lshlrev_b32 v149, 2, v{vN}
    v_mov_b32 v13, 0
    s_lshl_b32 s52, s{sHW}, 19
    s_lshl_b32 s43, s{sGRP}, 11
    s_add_u32 s52, s52, s43
    s_lshl_b32 s43, s{sJ}, 8
    s_add_u32 s52, s52, s43
    s_lshr_b32 s56, s52, 2
    s_add_u32 s52, s52, {ZM}
    s_add_u32 s53, s52, 65536
    s_add_u32 s56, s56, {ZT}
    s_add_u32 s57, s56, 16384
    """)
    AB_ = list(P.lines)
    P = P_
    P(f"""
    v_mov_b32 v{S}, 0
    v_mov_b32 v{S+1}, 0
    v_mov_b32 v{S+2}, 0
    v_mov_b32 v{S+3}, 0
    """)
    stamp(P, 13)
    P("s_waitcnt vmcnt(0)")
    stamp(P, 3)
    def half(hi, fills, extra):
        for c in range(10): P(f"ds_read_b128 {v(XL+4*c,4)}, v{AD+c}" + (" offset:10240" if hi else ""))
        if not hi: P("s_barrier")
        for k in range(5):
            x = XL + 8*k
            fl = fills(k)
            mm = [f"v_mfma_f32_16x16x32_bf16 {v(U+8*k,4)}, {v(C1+4*hi,4)}, {v(x,4)}, {v(U+8*k,4) if hi else '0'}",
                  f"v_mfma_f32_16x16x32_bf16 {v(G,4)}, {v(x,4)}, {v(x,4)}, {'0' if (k==0 and not hi) else v(G,4)}",
                  f"v_mfma_f32_16x16x32_bf16 {v(U+8*k+4,4)}, {v(C1+4*hi,4)}, {v(x+4,4)}, {v(U+8*k+4,4) if hi else '0'}",
                  f"v_mfma_f32_16x16x32_bf16 {v(G,4)}, {v(x+4,4)}, {v(x+4,4)}, {v(G,4)}",
                  f"v_smfmac_f32_16x16x64_bf16 {v(S,4)}, {v(ON,4)}, {v(x,8)}, v{IX}"]
            for i, m in enumerate(mm):
                if i in (0, 2): P(f"s_waitcnt lgkmcnt({9 - 2*k - i//2})")
                P(m)
                for _ in range(2):
                    if i >= 2 and fl: P(fl.pop(0))
                    elif extra: P(extra.pop(0))
        for o in extra: P(o)
    half(0, lambda k: [], FG)
    P(f"""
    s_cmp_lg_u32 s{sJ}, 0
    s_cbranch_scc1 L_nooff
    v_add_f32 v9, v{S}, v{S+1}
    v_mul_f32 v9, {f2u(-8.0/320)}, v9
    """)
    for i in range(20): P(f"v_add_f32 v{U+2*i}, v{U+2*i}, v9")
    P(f"""
    L_nooff:
    s_setprio 2
    s_barrier
    """)
    stamp(P, 12)
    def cvt(k): return [f"v_cvt_pk_bf16_f32 v{U+8*k+i}, v{U+8*k+2*i}, v{U+8*k+2*i+1}" for i in range(4)]
    half(1, lambda k: cvt(k-1) if k else [], AB_)
    chain = cvt(4) + [f"v_add_f32 v{S}, v{S}, v{S+1}",
             f"v_cndmask_b32 v{G}, v{G}, v{G+1}, s[60:61]",
             f"v_mul_f32 v{S}, s{sC640}, v{S}",
             f"v_cndmask_b32 v{G}, v{G}, v{G+2}, s[62:63]",
             f"v_mul_f32 v{S}, v{S}, v{S}",
             f"v_cndmask_b32 v{G}, v{G}, v{G+3}, s[64:65]",
             f"v_fma_f32 v{G}, v{G}, s{sC640}, -v{S}",
             f"v_max_f32 v{G}, 0, v{G}"] + bf16_round(G) + [f"v_add_f32 v{G}, {f2u(1e-5)}, v{G}"] + bf16_round(G) + \
            [f"v_sqrt_f32 v{G}, v{G}", None] + bf16_round(G) + [f"v_rcp_f32 v{G}, v{G}", None, None] + \
            [f"v_mov_b32_dpp v{RHO+r}, v{G} row_newbcast:{4*q+r} row_mask:{hex(1<<q)} bank_mask:0xf" for q in range(4) for r in range(4)]
    n = 0
    for kp in range(5):
        for t in range(5):
            P(f"v_mfma_f32_16x16x32_bf16 {v(ACC+4*t,4)}, {v(U+8*kp,4)}, {v(WR_+4*(5*t+kp),4)}, {'0' if kp==0 else v(ACC+4*t,4)}")
            n += 1
            if n >= 3:
                for _ in range(2):
                    if chain:
                        o = chain.pop(0)
                        if o: P(o)
    assert not chain
    stamp(P, 4)
    for t in range(5):
        P(f"v_pk_mul_f32 {v(ACC+4*t,2)}, {v(ACC+4*t,2)}, {v(RHO,2)}")
        P(f"v_pk_mul_f32 {v(ACC+4*t+2,2)}, {v(ACC+4*t+2,2)}, {v(RHO+2,2)}")
        P(f"v_cvt_pk_f16_f32 v{PK+2*t}, v{ACC+4*t}, v{ACC+4*t+1}")
        P(f"v_cvt_pk_f16_f32 v{PK+2*t+1}, v{ACC+4*t+2}, v{ACC+4*t+3}")
        P(f"ds_write_b64 v142, {v(PK+2*t,2)} offset:{L_HT + 16*t*HS}")
    P(f"""
    s_waitcnt lgkmcnt(0)
    s_barrier
    """)
    BF = 16; DC = 70; ZO = 92
    for t in range(5):
        for kk in range(2):
            P(f"ds_read_b128 {v(BF+8*t+4*kk,4)}, v{148 if kk else 143} offset:{L_HT + 16*t*HS}")
        if t == 2: P(f"ds_read_b128 {v(ZV,4)}, v146 offset:{L_ZP}")
    P(f"ds_read_b32 v147, v149 offset:{L_ZP}")
    P(f"ds_read_b32 v14, v13 offset:{L_TAG}")
    for t in range(5):
        c = DC + 4*t
        P(f"s_waitcnt lgkmcnt({[11, 9, 6, 4, 0][t]})")
        P(f"v_mfma_f32_16x16x32_f16 {v(c,4)}, {v(F,4)}, {v(BF+8*t,4)}, 0")
        P(f"v_mfma_f32_16x16x32_f16 {v(c,4)}, {v(F+4,4)}, {v(BF+8*t+4,4)}, {v(c,4)}")
        if t >= 2:
            for u in range(2):
                P(f"v_cvt_pk_f16_f32 v{ZO+4*u+t-2}, v{DC+4*(t-2)+2*u}, v{DC+4*(t-2)+2*u+1}")
                P(f"v_and_or_b32 v{ZO+4*u+t-2}, v{ZO+4*u+t-2}, s55, v{ZV+t-2}")
    for u in range(2):
        P(f"v_cvt_pk_f16_f32 v{ZO+4*u+3}, v{DC+12+2*u}, v{DC+12+2*u+1}")
        P(f"v_and_or_b32 v{ZO+4*u+3}, v{ZO+4*u+3}, s55, v{ZV+3}")
        P(f"buffer_store_dwordx4 {v(ZO+4*u,4)}, v144, s[8:11], s{52+u} offen sc1")
    for u in range(2):
        P(f"v_cvt_pk_f16_f32 v{ZO+8+u}, v{DC+16+2*u}, v{DC+16+2*u+1}")
        P(f"v_and_or_b32 v{ZO+8+u}, v{ZO+8+u}, s55, v147")
        P(f"buffer_store_dword v{ZO+8+u}, v145, s[8:11], s{56+u} offen sc1")
    P("s_setprio 0")
    stamp(P, 5)
    consts()
    P(f"""
    s_cmp_ge_u32 s{sJ}, 4
    s_cbranch_scc1 L_ffn
    """)
    P(f"""
    s_branch L_prep
    L_rare:
    """)
    P.raw(".p2align 12")

    SEC[0] = "p2"
    ZR = 16; CF = 80; AC = 96; X1 = 112; DL = 128; W1 = 144; W2 = 152; PH = 160; YT = 176; GS = 208; AB = 48
    aX1, aX2, aW1, aW2, aSP, aG, aS = 224, 225, 226, 227, 228, 230, 231
    P(f"""
    L_prep:
    v_mov_b32 v5, 0
    v_mov_b32 v7, 0
    s_add_u32 s69, s{sWV}, -2
    s_cmp_lt_u32 s69, 2
    s_cbranch_scc1 L_pub0
    s_cmp_lt_u32 s{sWV}, 2
    s_cbranch_scc1 L_ztail
    v_lshlrev_b32 v5, 11, v{vQ}
    v_lshrrev_b32 v10, 3, v{vN}
    s_add_u32 s49, s{sHW}, s{sJ}
    s_and_b32 s49, s49, 3
    v_lshl_add_u32 v10, s49, 1, v10
    v_lshl_add_u32 v5, v10, 8, v5
    v_and_b32 v9, 7, v{vN}
    v_lshl_add_u32 v5, v9, 4, v5
    v_add_u32 v7, 128, v5
    v_lshrrev_b32 v10, 1, v{vQ}
    v_lshl_add_u32 v10, s49, 1, v10
    v_and_b32 v9, 1, v{vQ}
    v_lshlrev_b32 v9, 5, v9
    s_lshl_b32 s58, s{sGRP}, 16
    s_add_u32 s58, s58, {ZM}
    s_movk_i32 s48, 8192
    s_add_u32 s51, s{sHW}, 2
    s_branch L_zcom
    L_ztail:
    v_lshl_add_u32 v10, s{sWV}, 2, v{vQ}
    v_lshlrev_b32 v5, 9, v{vQ}
    v_lshl_add_u32 v5, v{vN}, 4, v5
    v_lshl_add_u32 v5, s{sWV}, 8, v5
    s_lshl_b32 s58, s{sGRP}, 14
    s_add_u32 s58, s58, {ZT}
    s_movk_i32 s48, 2048
    v_mov_b32 v9, 256
    s_mov_b32 s51, s{sWV}
    L_zcom:
    v_and_b32 v11, 3, v{vN}
    v_lshlrev_b32 v11, 4, v11
    ds_read_b128 v[236:239], v11 offset:{L_ZP}
    """)
    for i in range(1, 8): P(f"s_add_u32 s{58+i}, s{57+i}, s48")
    P(f"""
    s_mul_i32 s{sROW}, s{sWV}, s{sSTR}
    s_add_u32 s{sROW}, s{sROW}, s{sTB}
    s_sub_u32 s{sROWB}, 2048, s{sROW}
    s_cmp_eq_u32 s{sROW}, 0
    s_cselect_b32 s{sROWB}, 1024, s{sROWB}
    s_mul_i32 s56, s{sROW}, 1280
    s_mul_i32 s57, s{sROWB}, 1280
    s_mul_i32 s49, s{sWV}, {XP}
    s_add_u32 s49, s49, {L_XR}
    v_add_u32 v233, s49, v{vL4}
    v_lshlrev_b32 v234, 3, v{vW}
    s_cmp_eq_u32 s{sTB}, 0
    s_cselect_b32 s47, 0, 8
    v_add_u32 v10, -1, v10
    v_and_b32 v10, 7, v10
    v_add3_u32 v9, v9, v10, 1
    v_lshlrev_b32 v9, 1, v9
    v_and_b32 v10, 7, v{vN}
    v_mov_b32 v11, s47
    v_cmp_ne_u32 vcc, 0, v10
    v_cndmask_b32 v11, v11, 8, vcc
    v_xor_b32 v11, v11, v{vN}
    s_movk_i32 s49, {XP}
    v_mad_u32_u24 v{aX1}, v{vN}, s49, v9
    v_add_u32 v{aX1}, {L_XR}, v{aX1}
    v_mul_u32_u24 v11, s49, v11
    v_add_u32 v11, {L_XR}, v11
    v_sub_u32 v10, {1280-432}, v9
    v_add_u32 v{aX2}, v11, v10
    s_lshl_b32 s49, s51, 8
    v_lshl_add_u32 v{aW1}, v{vQ}, 4, s49
    s_mul_i32 s51, s51, 768
    s_add_u32 s51, s51, {L_PART}
    v_lshl_add_u32 v{aG}, v{vN}, 4, s51
    v_lshl_add_u32 v{aS}, v{vN}, 3, s51
    v_mov_b32 v12, 0x3f803f80
    v_cmp_eq_u32 vcc, 1, v{vN}
    v_cndmask_b32 v12, 0, v12, vcc
    """)
    P(f"""
    s_cmp_lt_u32 s{sWV}, 2
    s_cbranch_scc1 L_tprep
    """)
    def wmask(on):
        if on: P("s_mov_b32 exec_lo, 0x10001"); P("s_mov_b32 exec_hi, 0x10001")
        else: P("s_mov_b64 exec, -1")
    off = [128*u + 16*r for u in range(4) for r in range(4)]
    for i in range(16):
        P(f"ds_read_u16_d16_hi v{X1+i}, v{aX1} offset:{off[i]}")
        P(f"ds_read_u16_d16_hi v{DL+i}, v{aX2} offset:{432-off[i]}")
        P(f"v_mov_b32 v{W1+i}, v12")
    P("s_waitcnt lgkmcnt(0)")
    for i_ in range(8): P(f"v_pk_add_f32 {v(DL+2*i_,2)}, {v(DL+2*i_,2)}, {v(X1+2*i_,2)} neg_lo:[0,1] neg_hi:[0,1]")
    P("s_setprio 1")
    stamp(P, 6)
    if OPT.get("zdelay"): P(f"s_sleep {OPT['zdelay']}")
    P("s_barrier")
    stamp(P, 7)
    P("s_mov_b32 s50, 0")
    for i in range(8):
        P(f"buffer_load_dwordx4 {v(ZR+8*i,4)}, v5, s[8:11], s{58+i} offen sc1")
        P(f"buffer_load_dwordx4 {v(ZR+8*i+4,4)}, v7, s[8:11], s{58+i} offen sc1")
        if i == 1:
            P(f"v_add_u32 v9, {L_CF}, v{vL16}")
            for k in range(4): P(f"ds_read_b128 {v(CF+4*k,4)}, v9 offset:{1024*k}")
            wmask(1)
            for k in range(4): P(f"ds_read_b128 {v(W1+4*k,4)}, v{aW1} offset:{L_WF + 64*k}")
            wmask(0)
    P(f"""
    s_waitcnt lgkmcnt(0)
    L_zgo:
    v_mov_b32 v10, 0
    """)
    for k in range(4):
        z = ZR + 16*k
        y = YT + 16*(k & 1)
        chk = []
        def mm(u):
            P(f"v_mfma_f32_16x16x32_f16 {v(AC+4*u,4)}, {v(y+4*u,4)}, {v(CF+4*k,4)}, {v(X1+4*u,4) if k==0 else v(AC+4*u,4)}")
            o = [f"v_or3_b32 v10, v10, v{y+4*u}, v{y+4*u+1}", f"v_or3_b32 v10, v10, v{y+4*u+2}, v{y+4*u+3}"]
            if k == 3: chk.extend(o)
            else:
                for x_ in o: P(x_)
        P(f"s_waitcnt vmcnt({12 - 4*k})")
        for u in range(4):
            for l in range(4): P(f"v_xor_b32 v{y+4*u+l}, v{236+u}, v{z+4*l+u}")
            if u: mm(u-1)
        mm(3)
        for x_ in chk: P(x_)
    P(f"v_and_b32 v10, 0x10001, v10")
    P(f"v_cmp_ne_u32 vcc, 0, v10")
    spin_tail(P, 50, "L_zretry", "L_zok")
    stamp(P, 8)
    if OPT["stamps"]: P("s_add_u32 s96, s50, 1")
    def stat_mm(side, f, first):
        p = PH + 8*side + 4*f; w = (W2 if side else W1) + 4*f
        g = GS + 8*side
        P(f"v_mfma_f32_16x16x32_bf16 {v(g,4)}, {v(p,4)}, {v(p,4)}, {'0' if first else v(g,4)}")
        P(f"v_mfma_f32_16x16x32_bf16 {v(g+4,4)}, {v(w,4)}, {v(p,4)}, {'0' if first else v(g+4,4)}")
    for f in range(2):
        for i in range(4): P(f"v_cvt_pk_bf16_f32 v{PH+4*f+i}, v{AC+8*f+2*i}, v{AC+8*f+2*i+1}")
        for i in range(4): P(f"v_pk_add_f32 {v(AC+8*f+2*i,2)}, {v(AC+8*f+2*i,2)}, {v(DL+8*f+2*i,2)}")
        stat_mm(0, f, f == 0)
        for i in range(4): P(f"v_cvt_pk_bf16_f32 v{PH+8+4*f+i}, v{AC+8*f+2*i}, v{AC+8*f+2*i+1}")
        if f == 1: stat_mm(1, 0, True)
    stat_mm(1, 1, False)
    def partw():
        P(f"""
        s_mov_b32 exec_lo, 0x00f0000f
        s_mov_b32 exec_hi, 0xf0000f00
        ds_write_b128 v{aG}, {v(GS,4)}
        ds_write_b128 v{aG}, {v(GS+8,4)} offset:384
        s_mov_b64 exec, 0xffff
        ds_write_b64 v{aS}, {v(GS+4,2)} offset:256
        ds_write_b64 v{aS}, {v(GS+12,2)} offset:640
        s_mov_b64 exec, -1
        s_waitcnt lgkmcnt(0)
        s_barrier
        """)
    partw()
    stamp(P, 9)
    for i in range(16):
        P(f"ds_write_b16{'_d16_hi' if i & 1 else ''} v{aX1}, v{PH+i//2} offset:{off[i]}")
        P(f"ds_write_b16{'_d16_hi' if i & 1 else ''} v{aX2}, v{PH+8+i//2} offset:{432-off[i]}")
    HA = 16; HB = 26; XT = 40; RM = 52
    P(f"""
    L_out:
    s_setprio 0
    s_waitcnt lgkmcnt(0)
    s_barrier
    ds_read2st64_b32 {v(XT,2)}, v233 offset0:0 offset1:1
    ds_read2st64_b32 {v(XT+2,2)}, v233 offset0:2 offset1:3
    ds_read_b32 v{XT+4}, v233 offset:1024
    ds_read_b64 {v(RM,2)}, v234 offset:{L_RM}
    v_add_u32 v232, {8*XP}, v233
    ds_read2st64_b32 {v(XT+6,2)}, v232 offset0:0 offset1:1
    ds_read2st64_b32 {v(XT+8,2)}, v232 offset0:2 offset1:3
    ds_read_b32 v{XT+10}, v232 offset:1024
    ds_read_b64 {v(RM+2,2)}, v234 offset:{L_RM+64}
    """)
    for (Hr, src, rm, so, o, w_) in ((HA, XT, RM, 56, 56, 4), (HB, XT+6, RM+2, 57, 64, 0)):
        P(f"s_waitcnt lgkmcnt({w_})")
        for i in range(5):
            P(f"v_lshlrev_b32 v{Hr+2*i}, 16, v{src+i}")
            P(f"v_and_b32 v{Hr+2*i+1}, 0xffff0000, v{src+i}")
        for i in range(5): P(f"v_pk_fma_f32 {v(Hr+2*i,2)}, {v(Hr+2*i,2)}, {v(rm,2)}, {v(rm,2)} op_sel:[0,0,1] op_sel_hi:[1,0,1] neg_lo:[0,0,1] neg_hi:[0,0,1]")
        for i in range(5):
            P(f"v_cvt_pk_bf16_f32 v{o+i}, v{Hr+2*i}, v{Hr+2*i+1}")
            P(f"v_min_u32 v{o+i}, -2, v{o+i}")
            P(f"buffer_store_dword v{o+i}, v{vL4}, s[12:15], s{so} offen offset:{256*i} sc1")
    stamp(P, 11)
    P(f"""
    s_cmp_lg_u32 s{sWV}, 3
    s_cbranch_scc1 L_finp
    s_cmp_lg_u32 s2, 0
    s_cbranch_scc1 L_finp
    s_mov_b64 exec, 1
    buffer_store_dword v14, v5, s[8:11], 0 offen sc1
    L_finp:
    {FIN}
    """)
    LATE_Z = list(LATE); del LATE[:]
    S1, S2, S3, MC, TM = 40, 36, 41, 44, 48
    P(f"""
    L_pub0:
    s_cmp_eq_u32 s{sWV}, 2
    s_cbranch_scc1 L_idle
    s_barrier
    s_mul_i32 s{sROW}, s{sWV}, s{sSTR}
    s_add_u32 s{sROW}, s{sROW}, s{sTB}
    s_sub_u32 s{sROWB}, 2048, s{sROW}
    s_cmp_eq_u32 s{sROW}, 0
    s_cselect_b32 s{sROWB}, 1024, s{sROWB}
    s_mul_i32 s56, s{sROW}, 1280
    s_mul_i32 s57, s{sROWB}, 1280
    s_mul_i32 s49, s{sWV}, {XP}
    s_add_u32 s49, s49, {L_XR}
    v_add_u32 v233, s49, v{vL4}
    v_lshlrev_b32 v234, 3, v{vW}
    s_cmp_eq_u32 s{sTB}, 0
    s_cselect_b32 s47, 0, 8
    v_add_u32 v9, {L_WR}, v{vL16}
    v_add_u32 v10, {L_WR+1024}, v{vL4}
    ds_read_b128 {v(16,4)}, v9
    ds_read_b32 v20, v10
    v_lshrrev_b32 v22, 2, v{vL}
    v_and_b32 v23, 7, v22
    v_mov_b32 v11, s47
    v_cmp_ne_u32 vcc, 0, v23
    v_cndmask_b32 v11, v11, 8, vcc
    v_and_b32 v24, 1, v{vL}
    v_mul_u32_u24 v11, v11, v24
    v_xor_b32 v11, v11, v22
    v_and_b32 v24, 3, v{vL}
    v_mul_u32_u24 v24, 384, v24
    v_lshl_add_u32 v26, v11, 3, v24
    v_lshl_add_u32 v25, v11, 4, v24
    v_and_b32 v11, 3, v11
    v_lshl_add_u32 v25, v11, 2, v25
    v_mul_u32_u24 v23, s{sSTR}, v23
    v_add_u32 v23, s{sTB}, v23
    v_sub_u32 v9, 2048, v23
    v_mov_b32 v10, 1024
    v_cmp_eq_u32 vcc, 0, v23
    v_cndmask_b32 v9, v9, v10, vcc
    v_cmp_lt_u32 vcc, 31, v{vL}
    v_cndmask_b32 v23, v23, v9, vcc
    v_lshlrev_b32 v23, 6, v23
    v_lshlrev_b32 v27, 3, v22
    v_mov_b32 v{MC+2}, v14
    v_mov_b32 v{MC+3}, v14
    s_mul_i32 s54, s{sIDX}, {KST}
    s_add_u32 s54, s54, {KEYS}
    {"buffer_load_dword v253, v5, s[8:11], s54 offen" if OPT.get("kpre", 1) == 1 else ""}
    s_lshr_b32 s36, s2, 6
    s_lshl2_add_u32 s36, s36, s{sJ}
    s_lshl_b32 s43, s{sXCD}, 8
    s_lshl2_add_u32 s36, s36, s43
    s_add_u32 s36, s36, {SEN1}
    s_mov_b32 s47, 0xffff8000
    s_mov_b32 s50, 0x11111111
    s_mov_b32 s51, s50
    s_brev_b32 s52, 1
    s_mov_b32 s48, {STATS}
    s_mov_b32 s49, 0x3f803f80
    v_mov_b32 v21, 0
    s_waitcnt lgkmcnt(0)
    """)
    for i in range(5): P(f"v_dot2c_f32_bf16 v21, s49, v{16+i}")
    for sh in (1, 2, 4, 8): P(f"v_add_f32_dpp v21, v21, v21 row_shr:{sh} row_mask:0xf bank_mask:0xf bound_ctrl:0")
    P(f"""
    v_add_f32_dpp v21, v21, v21 row_bcast:15 row_mask:0xa bank_mask:0xf
    v_add_f32_dpp v21, v21, v21 row_bcast:31 row_mask:0xc bank_mask:0xf
    v_readlane_b32 s55, v21, 63
    s_setprio 3
    s_barrier
    """)
    stamp(P, 9)
    for i in range(3):
        P(f"ds_read_b32 v{36+i}, v25 offset:{L_PART + 1536*i}")
        P(f"ds_read_b64 {v(30+2*i,2)}, v26 offset:{L_PART + 1536*i + 256}")
    P(f"""
    s_waitcnt lgkmcnt(2)
    v_add_f32 v36, v36, v37
    v_pk_add_f32 {v(30,2)}, {v(30,2)}, {v(32,2)}
    s_waitcnt lgkmcnt(0)
    v_add_f32 v{S2}, v36, v38
    v_add_f32 v{S1}, v31, v35
    v_add_f32 v{S3}, v30, v34
    """)
    for qp in ("[1,0,3,2]", "[2,3,0,1]"):
        for r in (S2, S1, S3): P(f"v_add_f32_dpp v{r}, v{r}, v{r} quad_perm:{qp} row_mask:0xf bank_mask:0xf")
    P(f"""
    v_mul_f32 v{MC}, s{sC640}, v{S1}
    v_mul_f32 v{TM}, v{MC}, v{MC}
    v_fma_f32 v{S2}, v{S2}, s{sC640}, -v{TM}
    v_max_f32 v{S2}, 0, v{S2}
    """)
    for o in bf16_round(S2): P(o)
    P(f"v_add_f32 v{S2}, {f2u(1e-5)}, v{S2}")
    for o in bf16_round(S2): P(o)
    P(f"v_sqrt_f32 v{S2}, v{S2}")
    for o in bf16_round(MC): P(o)
    for o in bf16_round(S2): P(o)
    P(f"""
    v_rcp_f32 v{TM+2}, v{S2}
    v_fma_f32 v{S3}, -v{MC}, s55, v{S3}
    v_mul_f32 v{S3}, v{S3}, v{TM+2}
    v_cvt_pk_bf16_f32 v{S3}, v{S3}, v{S3}
    v_ashrrev_i32 v{TM}, 31, v{S3}
    s_mov_b64 exec, s[50:51]
    v_bitop3_b32 v{S3}, v{S3}, v{TM}, s52 bitop3:0x1e
    v_lshrrev_b32 v{S3}, 1, v{S3}
    v_bfi_b32 v{S3}, s47, v{S3}, v14
    {"buffer_store_dword v14, v5, s[8:11], s36 offen" if OPT.get("h1pos", 3) == 2 else ""}
    buffer_store_dword v{S3}, v{vL}, s[8:11], s54 offen sc1
    {"buffer_store_dword v14, v5, s[8:11], s36 offen" if OPT.get("h1pos", 3) == 3 else ""}
    """)
    stamp(P, 10)
    P(f"""
    v_add_f32 v{MC+1}, 1.0, v{S2}
    v_mul_f32 v{TM+3}, v{MC}, v{TM+2}
    v_add_f32 v{TM+2}, 1.0, v{TM+2}
    v_rcp_f32 v{MC+1}, v{MC+1}
    ds_write_b64 v27, {v(TM+2,2)} offset:{L_RM}
    buffer_store_dwordx4 {v(MC,4)}, v23, s[8:11], s48 offen sc1
    s_mov_b64 exec, -1
    s_setprio 0
    s_branch L_out
    """)
    P_keep = P; P = Prog()
    P(f"""
    L_idle:
    s_mov_b32 s49, {L_WR}
    v_add_u32 v9, s{sJ}, v{vQ}
    v_and_b32 v9, 3, v9
    v_bfe_u32 v10, v{vL}, 1, 1
    v_lshl_add_u32 v9, v9, 1, v10
    v_add_u32 v9, -1, v9
    v_and_b32 v9, 7, v9
    v_and_b32 v10, 1, v{vL}
    v_lshl_add_u32 v9, v10, 5, v9
    v_and_b32 v10, 4, v{vL}
    v_lshl_add_u32 v9, v10, 5, v9
    v_lshlrev_b32 v9, 1, v9
    v_add_u32 v16, {L_WR+2}, v9
    v_sub_u32 v17, {L_WR+1278}, v9
    v_mov_b32 v18, 16
    v_and_b32 v10, 8, v{vL}
    v_cmp_ne_u32 vcc, 0, v10
    v_cndmask_b32 v16, v16, v17, vcc
    v_cndmask_b32 v18, v18, -16, vcc
    v_lshrrev_b32 v9, 4, v{vL}
    v_and_b32 v10, 3, v{vL}
    v_lshl_add_u32 v9, v9, 2, v10
    v_add_u32 v9, -1, v9
    v_and_b32 v9, 7, v9
    v_lshlrev_b32 v9, 1, v9
    v_add_u32 v19, {L_WR+514}, v9
    v_sub_u32 v17, {L_WR+766}, v9
    v_cndmask_b32 v19, v19, v17, vcc
    """)
    for i in range(8):
        m = 8*(i >> 2) + (i & 3)
        P(f"v_mad_i32_i24 v20, v18, {m}, v16")
        P(f"ds_read_u16 v{24+i}, v20")
    for i in range(8):
        m = (i >> 1) + 4*(i & 1)
        P(f"v_mad_i32_i24 v20, v18, {m}, v19")
        if i == 7: P(f"v_writelane_b32 v20, s49, 8")
        P(f"ds_read_u16 v{32+i}, v20")
    P("s_waitcnt lgkmcnt(0)")
    for i in range(8): P(f"v_lshl_or_b32 v{40+i}, v{25+2*i}, 16, v{24+2*i}")
    P(f"""
    ds_write_b128 v{vL16}, {v(40,4)} offset:{L_WF+512}
    s_mov_b32 exec_hi, 0
    ds_write_b128 v{vL16}, {v(44,4)} offset:{L_WF}
    s_mov_b64 exec, -1
    s_waitcnt lgkmcnt(0)
    s_barrier
    s_mul_i32 s{sROW}, s{sWV}, s{sSTR}
    s_add_u32 s{sROW}, s{sROW}, s{sTB}
    s_sub_u32 s{sROWB}, 2048, s{sROW}
    s_cmp_eq_u32 s{sROW}, 0
    s_cselect_b32 s{sROWB}, 1024, s{sROWB}
    s_mul_i32 s56, s{sROW}, 1280
    s_mul_i32 s57, s{sROWB}, 1280
    s_mul_i32 s49, s{sWV}, {XP}
    s_add_u32 s49, s49, {L_XR}
    v_add_u32 v233, s49, v{vL4}
    v_lshlrev_b32 v234, 3, v{vW}
    s_cmp_eq_u32 s{sTB}, 0
    s_cselect_b32 s47, 0, 8
    s_barrier
    s_branch L_out
    """)
    IDLE = list(P.lines); P = P_keep
    RARE = Prog()
    P_main = P
    P = RARE
    toff = [16*u + 64*ih for u in range(4) for ih in range(2)]
    P(f"""
    L_tprep:
    s_movk_i32 s49, 528
    v_cmp_eq_u32 s[52:53], s49, v9
    v_add_u32 v{aSP}, {432-toff[7]}, v{aX2}
    v_cndmask_b32 v{aSP}, v{aSP}, v11, s[52:53]
    """)
    for i in range(8):
        P(f"ds_read_u16_d16_hi v{X1+4*(i>>1)+(i&1)}, v{aX1} offset:{toff[i]}")
    for i in range(8):
        if i < 7: P(f"ds_read_u16_d16_hi v{DL+i}, v{aX2} offset:{432-toff[i]}")
        else: P(f"ds_read_u16_d16_hi v{DL+i}, v{aSP}")
    for i in range(4):
        P(f"v_mov_b32 v{W1+i}, v12"); P(f"v_mov_b32 v{W2+i}, v12")
        P(f"v_mov_b32 v{X1+4*i+2}, 0"); P(f"v_mov_b32 v{X1+4*i+3}, 0")
    P("s_waitcnt lgkmcnt(0)")
    P(f"v_mov_b32 v{DL+8}, v{DL+7}")
    for u in range(4): P(f"v_pk_add_f32 {v(DL+2*u,2)}, {v(DL+2*u,2)}, {v(X1+4*u,2)} neg_lo:[0,1] neg_hi:[0,1]")
    stamp(P, 6)
    P("s_barrier")
    stamp(P, 7)
    if not OPT.get("tlate"):
        for i in range(8): P(f"buffer_load_dwordx4 {v(ZR+4*i,4)}, v5, s[8:11], s{58+i} offen sc1")
    P("s_mov_b32 s50, 0")
    P(f"v_add_u32 v9, {L_CF}, v{vL16}")
    for k in range(4):
        P(f"ds_read2_b32 {v(CF+4*(k>>1)+2*(k&1),2)}, v9 offset0:0 offset1:2")
        P(f"ds_read2_b32 {v(CF+8+4*(k>>1)+2*(k&1),2)}, v9 offset0:1 offset1:3")
        if k < 3: P(f"v_add_u32 v9, 1024, v9")
    wmask(1)
    P(f"ds_read_b128 {v(W1,4)}, v{aW1} offset:{L_WF}")
    P(f"ds_read_b128 {v(W2,4)}, v{aW1} offset:{L_WF+128}")
    wmask(0)
    if OPT.get("tlate", 0) > 1: P(f"s_sleep {OPT['tlate']}")
    if not OPT.get("tlate"): P("s_branch L_tgo")
    P("L_tretry:")
    for i in range(8): P(f"buffer_load_dwordx4 {v(ZR+4*i,4)}, v5, s[8:11], s{58+i} offen sc1")
    P(f"""
    L_tgo:
    {"s_setprio 2" if OPT.get("tprio", 1) else ""}
    v_mov_b32 v10, 0
    s_waitcnt lgkmcnt(0)
    """)
    for k in range(2):
        z = ZR + 16*k; y = YT + 16*k
        P(f"s_waitcnt vmcnt({4 - 4*k})")
        def mt(u):
            P(f"v_mfma_f32_16x16x32_f16 {v(AC+4*u,4)}, {v(y+4*u,4)}, {v(CF+4*k,4)}, {v(X1+4*u,4) if k==0 else v(AC+4*u,4)}")
            P(f"v_or3_b32 v10, v10, v{y+4*u}, v{y+4*u+1}")
            P(f"v_mfma_f32_16x16x32_f16 {v(AB+4*u,4)}, {v(y+4*u,4)}, {v(CF+8+4*k,4)}, {'0' if k==0 else v(AB+4*u,4)}")
            P(f"v_or3_b32 v10, v10, v{y+4*u+2}, v{y+4*u+3}")
        for u in range(4):
            for l in range(4): P(f"v_xor_b32 v{y+4*u+l}, v{236+u}, v{z+4*l+u}")
            if u: mt(u-1)
        mt(3)
    P(f"v_and_b32 v10, 0x10001, v10")
    P(f"v_cmp_ne_u32 vcc, 0, v10")
    spin_tail(P, 50, "L_tretry", "L_tok")
    stamp(P, 8)
    for u in range(4): P(f"v_pk_add_f32 {v(AC+4*u,2)}, {v(AC+4*u,2)}, {v(AB+4*u+2,2)}")
    for u in range(4): P(f"v_cvt_pk_bf16_f32 v{PH+u}, v{AC+4*u}, v{AC+4*u+1}")
    for u in range(4): P(f"v_pk_add_f32 {v(AC+4*u,2)}, {v(AC+4*u,2)}, {v(DL+2*u,2)}")
    P(f"v_cndmask_b32 v{AC+13}, v{AC+13}, v{DL+8}, s[52:53]")
    stat_mm(0, 0, True)
    for u in range(4): P(f"v_cvt_pk_bf16_f32 v{PH+8+u}, v{AC+4*u}, v{AC+4*u+1}")
    stat_mm(1, 0, True)
    partw()
    stamp(P, 9)
    for i in range(8):
        P(f"ds_write_b16{'_d16_hi' if i & 1 else ''} v{aX1}, v{PH+i//2} offset:{toff[i]}")
        if i < 7: P(f"ds_write_b16{'_d16_hi' if i & 1 else ''} v{aX2}, v{PH+8+i//2} offset:{432-toff[i]}")
        else: P(f"ds_write_b16_d16_hi v{aSP}, v{PH+11}")
    P("s_branch L_out")
    flush_late(P)
    TAILC = list(RARE.lines)
    RARE = Prog(); P = RARE
    P("L_zretry:")
    for i in range(8):
        P(f"buffer_load_dwordx4 {v(ZR+8*i,4)}, v5, s[8:11], s{58+i} offen sc1")
        P(f"buffer_load_dwordx4 {v(ZR+8*i+4,4)}, v7, s[8:11], s{58+i} offen sc1")
    P("s_branch L_zgo")
    for t_ in LATE_Z: P(t_)
    P = P_main
    k_ = P.lines.index("L_rare:") + 1
    P.lines[k_:k_] = RARE.lines
    k_ = P.lines.index("L_M:") - 1
    P.lines[k_:k_] = TAILC
    SEC[0] = "ffn"
    BW = 48; AR = 112; A0 = 128
    KK = 16; ID = 24; K4 = 32; CB = 112
    P.raw(".p2align 12")
    P(f"""
    L_ffn:
    s_barrier
    s_cmp_lg_u32 s{sWV}, 0
    s_cbranch_scc1 L_noflag
    s_mul_i32 s49, s{sIDX}, {KST}
    s_add_u32 s49, s49, {FLAGS}
    s_mov_b64 exec, 1
    buffer_store_dword v14, v13, s[8:11], s49 offen sc1
    s_mov_b64 exec, -1
    L_noflag:
    s_cmp_ge_u32 s{sIDX}, 108
    s_cbranch_scc1 L_setup
    v_lshrrev_b32 v13, 1, v{vL}
    v_and_b32 v9, 2, v13
    v_bfe_u32 v10, v13, 3, 1
    v_and_b32 v13, 21, v13
    v_lshl_or_b32 v13, v9, 2, v13
    v_lshl_or_b32 v13, v10, 1, v13
    v_mul_u32_u24 v13, 3456, v13
    v_and_b32 v9, 1, v{vL}
    v_lshl_add_u32 v13, v9, 4, v13
    s_lshl_b32 s58, s{sIDX}, 5
    s_and_b32 s47, s{sJ}, 3
    s_mul_i32 s47, s47, 5
    s_add_u32 s48, s{sWV}, 5
    L_dma1:
    s_add_u32 s49, s48, s47
    s_cmp_ge_u32 s49, 20
    s_cselect_b32 s50, 20, 0
    s_sub_u32 s49, s49, s50
    s_lshr_b32 s50, s49, 2
    s_lshl_b32 s50, s50, 13
    s_and_b32 s51, s49, 3
    s_lshl_b32 s51, s51, 10
    s_add_u32 s50, s50, s51
    s_add_u32 m0, s50, {L_WT1}
    s_mul_i32 s51, s49, {32*3456}
    s_add_u32 s51, s51, s58
    {"s_nop 0" if OPT.get("now") else f"buffer_load_dwordx4 v13, s[20:23], s51 offen lds"}
    s_add_u32 m0, m0, 4096
    s_add_u32 s48, s48, 8
    {"s_nop 0" if OPT.get("now") else f"buffer_load_dwordx4 v13, s[24:27], s51 offen lds"}
    s_cmp_lt_u32 s48, 20
    s_cbranch_scc1 L_dma1
    L_setup:
    v_lshrrev_b32 v7, 2, v0
    v_mul_u32_u24 v7, {KST}, v7
    v_and_b32 v12, 3, v0
    v_lshl_add_u32 v7, v12, 4, v7
    s_mov_b32 s52, {KEYS}
    {"buffer_load_dword v253, v7, s[8:11], s52 offen sc1" if OPT.get("kwarm", 0) else ""}
    v_and_b32 v9, 1, v{vN}
    v_mul_u32_u24 v144, 0xaaaa, v9
    v_or_b32 v144, 0x4444, v144
    """)
    P(f"""
    v_bfe_u32 v9, v0, 4, 3
    v_lshlrev_b32 v9, 1, v9
    v_add_u32 v40, 1, v9
    v_sub_u32 v41, 32, v9
    v_sub_u32 v42, 32, v40
    v_cmp_eq_u32 vcc, 0, v9
    v_cndmask_b32 v41, v41, 16, vcc
    v_and_b32 v12, 128, v0
    v_cmp_ne_u32 vcc, 0, v12
    v_cndmask_b32 v9, v9, v41, vcc
    v_cndmask_b32 v40, v40, v42, vcc
    v_bfe_u32 v10, v0, 2, 2
    v_and_b32 v12, 1, v0
    v_lshl_add_u32 v10, v10, 1, v12
    v_lshlrev_b32 v10, 2, v10
    v_mov_b32 v11, 64
    v_cmp_eq_u32 vcc, 0, v9
    v_cndmask_b32 v11, v11, 32, vcc
    v_mad_u32_u24 v{ID}, v10, v11, v9
    v_lshl_add_u32 v{ID+4}, v10, 6, v40
    """)
    for i in range(1, 4):
        P(f"v_add_u32 v{ID+i}, v{ID+i-1}, v11")
        P(f"v_add_u32 v{ID+4+i}, 64, v{ID+3+i}")
    P(f"""
    v_and_b32 v12, 2, v0
    v_cmp_ne_u32 vcc, 0, v12
    """)
    for i in range(8):
        P(f"v_sub_u32 v9, 2048, v{ID+i}")
        P(f"v_cndmask_b32 v{ID+i}, v{ID+i}, v9, vcc")
    P(f"""
    v_mov_b32 v11, 1024
    v_cmp_eq_u32 vcc, 2, v0
    v_cndmask_b32 v{ID}, v{ID}, v11, vcc
    s_mov_b32 s53, {KEYS + 64*KST}
    s_lshr_b32 s54, s2, 6
    s_and_b32 s43, s{sJ}, 3
    s_lshl2_add_u32 s54, s54, s43
    s_mov_b32 s55, {OOB}
    s_cmp_eq_u32 s54, 10
    s_cmov_b32 s55, {STATS}
    s_cmp_lt_u32 s54, 10
    s_cselect_b32 s54, s54, {OOB>>7}
    s_lshl_b32 s54, s54, 7
    v_mov_b32 v12, 0
    v_lshrrev_b32 v5, 4, v0
    v_lshlrev_b32 v5, 2, v5
    v_lshlrev_b32 v151, 2, v{vN}
    v_lshlrev_b32 v43, 4, v{vQ}
    v_lshrrev_b32 v147, 1, v{vN}
    v_lshrrev_b32 v9, 3, v{vL}
    s_cmp_ge_u32 s{sWV}, 5
    s_cselect_b64 vcc, -1, 0
    v_cndmask_b32 v147, v147, v9, vcc
    v_lshlrev_b32 v147, 2, v147
    v_and_b32 v148, 1, v{vN}
    v_lshl_add_u32 v148, v{vQ}, 1, v148
    v_lshlrev_b32 v148, 4, v148
    s_cmp_lt_u32 s{sIDX}, 108
    s_cselect_b32 s43, 7, 8
    v_lshlrev_b32 v149, s43, v{vQ}
    v_lshl_add_u32 v149, v{vN}, 2, v149
    v_lshl_add_u32 v149, v{vW}, 10, v149
    v_add_u32 v149, {L_RED}, v149
    s_lshl_b32 s56, s{sWV}, 8
    s_movk_i32 s57, 1280
    v_mov_b32 v152, 1
    v_mov_b32 v153, 0x7fff
    v_mov_b32 v158, 0
    v_mov_b32 v156, 0
    s_mov_b32 s52, {KEYS}
    s_mov_b32 s59, 0x7fff8000
    """)
    P(f"""
    s_cmp_ge_u32 s{sIDX}, 108
    s_cbranch_scc1 L_f2load
    """)
    P(f"""
    v_lshrrev_b32 v9, 1, v{vQ}
    v_and_b32 v10, 1, v{vQ}
    v_lshlrev_b32 v15, 3, v{vN}
    v_lshl_add_u32 v15, v10, 7, v15
    v_lshl_add_u32 v15, v9, 9, v15
    v_add_u32 v15, {L_WT1}, v15
    s_waitcnt vmcnt(0)
    s_barrier
    """)
    P("s_branch L_tk")
    P(f"""
    L_f2load:
    s_waitcnt vmcnt(0)
    s_barrier
    """)
    stamp(P, 9)
    P(f"""
    v_bfe_u32 v13, v{vL}, 2, 1
    v_and_b32 v9, 8, v{vL}
    v_or_b32 v13, v13, v9
    v_lshl_or_b32 v13, v{vQ}, 1, v13
    v_mul_u32_u24 v13, 1280, v13
    v_and_b32 v9, 2, v{vQ}
    v_xor_b32 v9, v9, v{vL}
    v_and_b32 v9, 3, v9
    v_lshl_add_u32 v13, v9, 4, v13
    s_sub_u32 s58, s{sIDX}, 108
    s_lshl_b32 s58, s58, 6
    s_and_b32 s47, s{sJ}, 1
    s_mov_b32 s47, 0
    s_mov_b32 s48, s{sWV}
    L_dma2:
    s_add_u32 s49, s48, s47
    s_cmp_ge_u32 s49, 112
    s_cselect_b32 s50, 112, 0
    s_sub_u32 s49, s49, s50
    s_lshl_b32 s50, s49, 10
    s_add_u32 m0, s50, {L_WT}
    s_mul_i32 s51, s49, {16*1280}
    s_add_u32 s51, s51, s58
    s_add_u32 s48, s48, 8
    {"s_nop 0" if OPT.get("now") else f"buffer_load_dwordx4 v13, s[28:31], s51 offen lds"}
    s_cmp_lt_u32 s48, 112
    s_cbranch_scc1 L_dma2
    v_lshrrev_b32 v9, 2, v{vN}
    v_and_b32 v10, 3, v{vN}
    v_lshlrev_b32 v15, 9, v{vQ}
    v_lshl_add_u32 v15, v9, 6, v15
    v_lshl_add_u32 v15, v10, 3, v15
    v_and_b32 v9, 1, v{vQ}
    v_lshl_add_u32 v15, v9, 5, v15
    v_lshl_add_u32 v15, v{vW}, 14, v15
    v_xor_b32 v145, 32, v15
    s_cmp_lg_u32 s{sWV}, 0
    s_cbranch_scc1 L_dok
    v_mul_u32_u24 v11, {KST}, v{vL}
    s_mov_b32 s49, {FLAGS}
    s_mov_b32 s47, {FLAGS+64*KST}
    s_mov_b32 s50, 0
    L_dpoll:
    buffer_load_dword v9, v11, s[8:11], s49 offen sc1
    buffer_load_dword v10, v11, s[8:11], s47 offen sc1
    s_waitcnt vmcnt(0)
    v_bitop3_b32 v9, v9, v10, v14 bitop3:0x7e
    v_cmp_ne_u32 vcc, 0, v9
    """)
    spin_tail(P, 50, "L_dpoll", "L_dok")
    P(f"""
    s_waitcnt vmcnt(0)
    s_barrier
    """)
    stamp(P, 6)
    P(f"s_cmp_eq_u32 s{sWV}, 7"); P("s_cbranch_scc1 L_f2fin")
    for blk in range(4):
        for ct in range(2):
            for j in range(4):
                P(f"ds_read_b64_tr_b16 {v(BW+16*blk+8*ct+2*j,2)}, v{145 if ct else 15} offset:{L_WT + 4096*blk + 2048*(j>>1) + 256*(j&1)}")
    P("s_branch L_f2")
    P("L_tk:")
    stamp(P, 6)
    P(f"""
    s_cmp_eq_u32 s{sWV}, 6
    s_cbranch_scc1 L_pad0
    s_cmp_eq_u32 s{sWV}, 7
    s_cbranch_scc1 L_fchk
    s_cmp_lg_u32 s{sWV}, 4
    s_cbranch_scc1 L_tk1
    s_branch L_w4prep
    L_tk1:
    s_barrier
    s_cmp_ge_u32 s{sWV}, 4
    s_cbranch_scc1 L_tk2
    s_mov_b32 s50, 0
    """)
    stamp(P, 7)
    P(f"""
    L_kpoll:
    buffer_load_dwordx4 {v(KK,4)}, v7, s[8:11], s52 offen sc1
    buffer_load_dwordx4 {v(KK+4,4)}, v7, s[8:11], s53 offen sc1
    s_waitcnt vmcnt(1)
    v_max3_u32 v10, v{KK}, v{KK+1}, v{KK+2}
    v_bitop3_b32 v40, v{KK}, v{KK+1}, v14 bitop3:0x7e
    v_bitop3_b32 v41, v{KK+2}, v{KK+3}, v14 bitop3:0x7e
    s_waitcnt vmcnt(0)
    v_max3_u32 v11, v{KK+3}, v{KK+4}, v{KK+5}
    v_max3_u32 v10, v10, v{KK+6}, v{KK+7}
    v_max_u32 v10, v10, v11
    v_bitop3_b32 v42, v{KK+4}, v{KK+5}, v14 bitop3:0x7e
    v_bitop3_b32 v11, v{KK+6}, v{KK+7}, v14 bitop3:0x7e
    v_max_u32_dpp v10, v10, v10 row_ror:1 row_mask:0xf bank_mask:0xf
    v_or3_b32 v40, v40, v41, v42
    v_bitop3_b32 v40, v40, v11, v153 bitop3:0xa8
    v_max_u32_dpp v10, v10, v10 row_ror:2 row_mask:0xf bank_mask:0xf
    v_cmp_ne_u32 vcc, 0, v40
    v_and_or_b32 v{KK}, v{KK}, s59, v{ID}
    v_max_u32_dpp v10, v10, v10 row_ror:4 row_mask:0xf bank_mask:0xf
    """)
    spin_tail(P, 50, "L_kpoll", "L_kok")
    stamp(P, 8)
    if OPT["stamps"]: P("s_add_u32 s96, s50, 1")
    P(f"""
    v_and_or_b32 v{KK+1}, v{KK+1}, s59, v{ID+1}
    v_max_u32_dpp v10, v10, v10 row_ror:8 row_mask:0xf bank_mask:0xf
    v_and_or_b32 v10, v10, s59, v5
    ds_write_b32 v5, v10 offset:{L_GM}
    """)
    for i in range(2, 8): P(f"v_and_or_b32 v{KK+i}, v{KK+i}, s59, v{ID+i}")
    P(f"""
    v_max3_u32 v9, v{KK}, v{KK+1}, v{KK+2}
    v_max3_u32 v11, v{KK+3}, v{KK+4}, v{KK+5}
    v_max3_u32 v9, v9, v{KK+6}, v{KK+7}
    v_max_u32 v9, v9, v11
    """)
    P(f"""
    L_tk2:
    s_waitcnt lgkmcnt(0)
    s_barrier
    s_cmp_ge_u32 s{sWV}, 4
    s_cbranch_scc1 L_tk3
    """)
    def rank16(off, own):
        P(f"ds_read_b32 v{own}, v151 offset:{off}")
        P(f"ds_read_b128 {v(CB,4)}, v43 offset:{off}")
    def rank16b(own, acc):
        P("s_waitcnt lgkmcnt(0)")
        for i in range(4): P(f"v_sub_u32 v{CB+i}, v{own}, v{CB+i}")
        P(f"v_lshrrev_b32 v{acc}, 31, v{CB}")
        for i in range(1, 4): P(f"v_alignbit_b32 v{acc}, v{acc}, v{CB+i}, 31")
        P(f"""
        v_bcnt_u32_b32 v{acc}, v{acc}, 0
        v_mov_b32 v{CB}, v{acc}
        v_permlane16_swap_b32 v{acc}, v{CB}
        v_add_u32 v{acc}, v{acc}, v{CB}
        v_mov_b32 v{CB}, v{acc}
        v_permlane32_swap_b32 v{acc}, v{CB}
        v_add_u32 v{acc}, v{acc}, v{CB}
        """)
    rank16(L_GM, 10)
    P(f"""
    v_and_b32 v159, 2047, v9
    v_lshlrev_b32 v160, 6, v159
    v_mul_u32_u24 v159, 1280, v159
    """)
    rank16b(10, 11)
    P(f"""
    v_cmp_eq_u32 vcc, 7, v11
    s_ff1_i32_b64 s47, vcc
    v_readlane_b32 s48, v10, s47
    s_and_b32 s48, s48, s59
    v_cmp_le_i32 vcc, s48, v9
    v_mov_b32 v10, v9
    s_cbranch_vccz L_tk3
    s_mov_b64 exec, vcc
    ds_add_rtn_u32 v11, v12, v152
    buffer_load_dword v253, v159, s[12:15], s54 offen sc1
    buffer_load_dword v253, v160, s[8:11], s55 offen sc1
    s_branch L_app2
    L_tkagain:
    v_mov_b32 v10, v9
    L_app:
    v_cmp_le_i32 vcc, s48, v10
    s_cbranch_vccz L_tk3
    s_mov_b64 exec, vcc
    ds_add_rtn_u32 v11, v12, v152
    {"" if not OPT.get("touch", 1) else f"v_and_b32 v{K4}, 2047, v10"}
    {"" if not OPT.get("touch", 1) else f"v_lshlrev_b32 v{K4+1}, 6, v{K4}"}
    {"" if not OPT.get("touch", 1) else f"v_mul_u32_u24 v{K4}, 1280, v{K4}"}
    {"" if not OPT.get("touch", 1) else f"buffer_load_dword v253, v{K4+1}, s[8:11], s55 offen sc1"}
    {"" if not OPT.get("touch", 1) else f"buffer_load_dword v253, v{K4}, s[12:15], s54 offen sc1"}
    L_app2:
    s_mov_b64 exec, -1
    v_add_u32 v{K4+8}, -1, v10
    """)
    for i in range(8): P(f"v_sub_u32 v{K4+i}, v{K4+8}, v{KK+i}")
    P(f"""
    v_min3_u32 v{K4}, v{K4}, v{K4+1}, v{K4+2}
    v_min3_u32 v{K4+3}, v{K4+3}, v{K4+4}, v{K4+5}
    v_min3_u32 v{K4}, v{K4}, v{K4+6}, v{K4+7}
    v_min3_u32 v{K4}, v{K4}, v{K4+3}, v10
    s_waitcnt lgkmcnt(0)
    v_min_u32 v11, 16, v11
    v_lshlrev_b32 v11, 2, v11
    s_mov_b64 exec, vcc
    ds_write_b32 v11, v10 offset:{L_LIST}
    v_sub_u32 v10, v{K4+8}, v{K4}
    s_mov_b64 exec, -1
    s_branch L_app
    """)
    flush_late(P)
    P(f"""
    L_pad0:
    s_branch L_pad1
    L_fchk:
    """)
    P(f"""
    s_lshl_b32 s49, s{sXCD}, 8
    s_add_u32 s49, s49, {SEN1}
    s_mov_b32 s50, 0
    s_mov_b64 exec, 0xffff
    L_h1:
    buffer_load_dword v10, v{vL4}, s[8:11], s49 offen sc1
    s_add_u32 s50, s50, 1
    s_cmp_gt_u32 s50, {HINTMAX}
    s_waitcnt vmcnt(0)
    v_cmp_ne_u32 vcc, v14, v10
    s_cbranch_scc1 L_h1_d
    s_cbranch_vccnz L_h1
    L_h1_d:
    {f"buffer_load_dword v10, v{vL4}, s[8:11], s49 offen sc1" if OPT.get("k2") else ""}
    {"s_waitcnt vmcnt(0)" if OPT.get("k2") else ""}
    {f"buffer_load_dword v10, v{vL4}, s[8:11], s49 offen sc1" if OPT.get("k2", 0) > 1 else ""}
    {"s_waitcnt vmcnt(0)" if OPT.get("k2", 0) > 1 else ""}
    s_mov_b64 exec, -1
    {"s_sleep %d" % OPT["kdelay"] if OPT.get("kdelay") else ""}
    s_branch L_tk1
    """)
    P(f"""
    L_tk3:
    s_waitcnt lgkmcnt(0)
    s_barrier
    ds_read_b32 v{K4+9}, v12
    """)
    rank16(L_LIST, 10)
    rank16b(10, 11)
    P(f"""
    v_cmp_gt_u32 vcc, 8, v11
    v_readfirstlane_b32 s47, v{K4+9}
    v_lshlrev_b32 v11, 2, v11
    s_mov_b64 exec, vcc
    ds_write_b32 v11, v10 offset:{L_SEL}
    s_mov_b64 exec, -1
    ds_read_b32 v150, v147 offset:{L_SEL}
    ds_read_b64 v[154:155], v158 offset:{L_SEL}
    s_mov_b32 s50, 0
    s_cmp_le_u32 s47, 16
    s_cbranch_scc1 L_tkdone
    ds_read_b32 v10, v12 offset:{L_SEL+28}
    s_waitcnt lgkmcnt(0)
    s_barrier
    v_readfirstlane_b32 s48, v10
    v_mov_b32 v11, -1
    ds_write_b32 v12, v12
    ds_write_b32 v151, v11 offset:{L_LIST}
    s_waitcnt lgkmcnt(0)
    s_barrier
    s_cmp_ge_u32 s{sWV}, 4
    s_cbranch_scc1 L_tk3
    s_branch L_tkagain
    """)
    flush_late(P)
    P(f"""
    L_pad1:
    s_branch L_pad2
    L_tkdone:
    """)
    GB = [48 + 8*b for b in range(8)] + [240, 248]
    UB = [160 + 8*b for b in range(10)]
    AG = [16, 20, 24, 28, 32, 36, 112, 116, 120, 124]
    P(f"""
    s_cmp_lg_u32 s{sWV}, 4
    s_cbranch_scc1 L_selpub
    s_waitcnt lgkmcnt(0)
    """)
    stamp(P, 10)
    P(f"""
    v_and_b32 v9, 2047, v150
    v_mad_u32_u24 v9, v9, s57, v148
    v_and_b32 v154, 2047, v154
    v_and_b32 v155, 2047, v155
    v_lshlrev_b32 v154, 6, v154
    v_lshlrev_b32 v155, 6, v155
    L_gretry:
    """)
    for b in range(10):
        P(f"buffer_load_dwordx4 {v(AG[b],4)}, v9, s[12:15], 0 offen offset:{128*b} sc1")
    P(f"""
    buffer_load_dwordx3 {v(136,3)}, v154, s[8:11], s60 offen sc1
    buffer_load_dwordx3 {v(140,3)}, v155, s[8:11], s60 offen sc1
    """)
    for i in range(8): P(f"v_mov_b32 v{A0+i}, 0")
    P("v_mov_b32 v10, 0")
    for b in range(10):
        P(f"s_waitcnt vmcnt({11-b})")
        P(f"v_smfmac_f32_16x16x64_bf16 {v(A0,4)}, {v(AG[b],4)}, {v(GB[b],8)}, v144")
        P(f"v_max3_u32 v10, v10, v{AG[b]}, v{AG[b]+1}")
        P(f"v_smfmac_f32_16x16x64_bf16 {v(A0+4,4)}, {v(AG[b],4)}, {v(UB[b],8)}, v144")
        P(f"v_max3_u32 v10, v10, v{AG[b]+2}, v{AG[b]+3}")
    P(f"""
    v_cmp_eq_u32 s[62:63], -1, v10
    s_waitcnt vmcnt(0)
    v_bitop3_b32 v10, v138, v142, v14 bitop3:0x7e
    v_mul_f32 v44, {f2u(-1.4426950408889634)}, v137
    v_cmp_ne_u32 vcc, 0, v10
    v_mul_f32 v45, {f2u(-1.4426950408889634)}, v141
    v_mul_f32 v137, v137, v137
    s_or_b64 vcc, vcc, s[62:63]
    v_mul_f32 v141, v141, v141
    """)
    spin_tail(P, 50, "L_gretry", "L_gok")
    stamp(P, 11)
    if OPT["stamps"]: P("s_add_u32 s96, s50, 1")
    P(f"""
    {"buffer_store_dword v14, v12, s[8:11], s64 offen" if OPT.get("h2pos", 2) == 3 else ""}
    v_fma_f32 v{A0}, -v136, v46, v{A0}
    v_fma_f32 v{A0+2}, -v140, v46, v{A0+2}
    v_add_f32 v{A0}, v{A0}, v{A0+1}
    v_add_f32 v{A0+2}, v{A0+2}, v{A0+3}
    v_mul_f32 v44, v44, v{A0}
    v_mul_f32 v45, v45, v{A0+2}
    v_exp_f32 v44, v44
    v_exp_f32 v45, v45
    v_fma_f32 v{A0+4}, -v136, v47, v{A0+4}
    v_fma_f32 v{A0+6}, -v140, v47, v{A0+6}
    v_add_f32 v44, 1.0, v44
    v_add_f32 v45, 1.0, v45
    v_rcp_f32 v44, v44
    v_rcp_f32 v45, v45
    v_add_f32 v{A0+4}, v{A0+4}, v{A0+5}
    v_add_f32 v{A0+6}, v{A0+6}, v{A0+7}
    v_mul_f32 v{A0}, v{A0}, v137
    v_mul_f32 v{A0+2}, v{A0+2}, v141
    v_mul_f32 v{A0}, v{A0}, v44
    v_mul_f32 v{A0+2}, v{A0+2}, v45
    v_mul_f32 v{A0}, v{A0}, v{A0+4}
    v_mul_f32 v{A0+2}, v{A0+2}, v{A0+6}
    v_cvt_pk_bf16_f32 v44, v{A0}, v{A0+2}
    v_mov_b32_dpp v45, v44 quad_perm:[1,0,3,2] row_mask:0xf bank_mask:0xf
    v_perm_b32 v44, v45, v44, v157
    v_min_u32 v44, -2, v44
    {"buffer_store_dword v14, v12, s[8:11], s64 offen" if OPT.get("h2pos", 2) == 2 else ""}
    buffer_store_dword v44, v156, s[8:11], s61 offen sc1
    s_mov_b64 exec, 1
    {"buffer_store_dword v14, v12, s[8:11], s64 offen" if OPT.get("h2pos", 2) == 1 else ""}
    {FIN}
    """)
    flush_late(P)
    P_keep2 = P; P = Prog()
    P("L_w4prep:")
    for b in range(10):
        if b == OPT.get("w4split", 9): P("s_barrier")
        for gu in range(2):
            r = (UB if gu else GB)[b]
            for j in range(4):
                P(f"ds_read_b64_tr_b16 {v(r+2*j,2)}, v15 offset:{8192*(b>>1) + 4096*gu + 2048*(b&1) + 1024*(j>>1) + 256*(j&1)}")
    for i in range(4): P(f"v_mov_b32 v{16+i}, 0x3f803f80")
    for i in range(8): P(f"v_mov_b32 v{A0+i}, 0")
    P(f"""
    v_lshlrev_b32 v158, 3, v{vQ}
    v_and_b32 v9, 1, v{vN}
    v_lshl_add_u32 v156, v{vQ}, 1, v9
    v_lshlrev_b32 v156, 5, v156
    v_and_b32 v10, 14, v{vN}
    v_lshl_add_u32 v156, v10, 1, v156
    v_mov_b32 v157, 0x05040100
    v_mov_b32 v10, 0x03020706
    v_cmp_eq_u32 vcc, 1, v9
    v_cndmask_b32 v157, v157, v10, vcc
    s_mov_b32 s60, {STATS}
    s_lshl_b32 s61, s{sIDX}, 8
    s_add_u32 s61, s61, {ACT}
    {"buffer_load_dword v159, v156, s[8:11], s61 offen" if OPT.get("apre") == 1 else ""}
    s_lshr_b32 s64, s2, 6
    s_and_b32 s43, s{sJ}, 3
    s_lshl2_add_u32 s64, s64, s43
    s_lshl_b32 s43, s{sXCD}, 8
    s_lshl2_add_u32 s64, s64, s43
    s_add_u32 s64, s64, {SEN2}
    s_waitcnt lgkmcnt(0)
    {"s_barrier" if OPT.get("cspos", 0) else ""}
    """)
    for b in range(10):
        P(f"v_smfmac_f32_16x16x64_bf16 {v(A0,4)}, {v(16,4)}, {v(GB[b],8)}, v144")
        P(f"v_smfmac_f32_16x16x64_bf16 {v(A0+4,4)}, {v(16,4)}, {v(UB[b],8)}, v144")
    P(f"""
    v_add_f32 v46, v{A0}, v{A0+1}
    v_add_f32 v47, v{A0+4}, v{A0+5}
    s_setprio 2
    {"" if OPT.get("cspos", 0) else "s_barrier"}
    s_branch L_tk3
    """)
    IDLE += P.lines; P = P_keep2
    D = 16
    P(f"""
    L_selpub:
    s_cmp_lg_u32 s{sWV}, 5
    s_cbranch_scc1 L_fin2
    s_cmp_lg_u32 s54, 0
    s_cbranch_scc1 L_fin2
    ds_read_b32 v150, v{vL4} offset:{L_SEL}
    v_mov_b32 v151, v14
    v_lshlrev_b32 v9, 3, v{vL}
    s_lshl_b32 s49, s{sXCD}, 8
    s_add_u32 s49, s49, {SELR}
    s_mov_b64 exec, 0xffff
    s_waitcnt lgkmcnt(0)
    buffer_store_dwordx2 v[150:151], v9, s[8:11], s49 offen sc1
    s_branch L_fin2
    L_pad2:
    s_branch L_tk1
    """)
    P(f"""
    L_f2:
    s_lshl_b32 s51, s{sWV}, 12
    s_add_u32 s51, s51, {ACT}
    """)
    for i in range(4): P(f"v_mov_b32 v{AR+12+i}, 0")
    P(f"""
    s_lshl_b32 s49, s{sXCD}, 8
    s_add_u32 s49, s49, {SEN2}
    s_mov_b32 s50, 0
    s_mov_b64 exec, 0xfff
    L_h2:
    buffer_load_dword v10, v{vL4}, s[8:11], s49 offen sc1
    s_add_u32 s50, s50, 1
    s_cmp_gt_u32 s50, {HINTMAX}
    s_waitcnt vmcnt(0)
    v_cmp_ne_u32 vcc, v14, v10
    s_cbranch_scc1 L_h2_d
    s_cbranch_vccnz L_h2
    L_h2_d:
    s_mov_b64 exec, -1
    {"s_sleep %d" % OPT["adelay"] if OPT.get("adelay") else ""}
    s_mov_b32 s50, 0
    s_waitcnt lgkmcnt(0)
    """)
    stamp(P, 10)
    P("L_a2:")
    for i in range(3):
        P(f"buffer_load_dwordx4 {v(AR+4*i,4)}, v{vL16}, s[8:11], s51 offen offset:{1024*i} sc1")
    P(f"""
    s_cmp_eq_u32 s{sWV}, 6
    s_cbranch_scc1 L_a3
    buffer_load_dwordx4 {v(AR+12,4)}, v{vL16}, s[8:11], s51 offen offset:3072 sc1
    L_a3:
    v_mov_b32 v10, 0
    """)
    for i in range(8): P(f"v_mov_b32 v{A0+i}, 0")
    for b in range(4):
        if b < 3: P(f"s_waitcnt vmcnt({2-b})")
        for ct in range(2):
            P(f"v_smfmac_f32_16x16x64_bf16 {v(A0+4*ct,4)}, {v(AR+4*b,4)}, {v(BW+16*b+8*ct,8)}, v144")
            P(f"v_max3_u32 v10, v10, v{AR+4*b+2*ct}, v{AR+4*b+2*ct+1}")
    P(f"v_cmp_eq_u32 vcc, -1, v10")
    spin_tail(P, 50, "L_a2", "L_a4")
    stamp(P, 11)
    if OPT["stamps"]: P("s_add_u32 s94, s50, 1")
    P(f"""
    v_add_f32 v{A0}, v{A0}, v{A0+1}
    v_add_f32 v{A0+2}, v{A0+2}, v{A0+3}
    ds_write2_b32 v149, v{A0}, v{A0+2} offset0:0 offset1:32
    v_add_f32 v{A0+4}, v{A0+4}, v{A0+5}
    v_add_f32 v{A0+6}, v{A0+6}, v{A0+7}
    ds_write2_b32 v149, v{A0+4}, v{A0+6} offset0:16 offset1:48
    s_waitcnt lgkmcnt(0)
    s_barrier
    {FIN}
    """)
    flush_late(P)
    P(f"""
    L_f2fin:
    v_and_b32 v13, 7, v{vL}
    v_and_b32 v9, 56, v{vL}
    s_lshl_b32 s49, s{sXCD}, 8
    s_add_u32 s49, s49, {SELR}
    s_mov_b32 s50, 0
    L_spoll:
    buffer_load_dwordx2 v[150:151], v9, s[8:11], s49 offen sc1
    s_waitcnt vmcnt(0)
    v_cmp_ne_u32 vcc, v14, v151
    """)
    spin_tail(P, 50, "L_spoll", "L_spok")
    stamp(P, 8)
    P(f"""
    v_and_b32 v46, 2047, v150
    v_mul_u32_u24 v46, 1280, v46
    v_lshl_add_u32 v46, v13, 3, v46
    L_oretry:
    buffer_load_dwordx2 {v(44,2)}, v46, s[12:15], s58 offen sc1
    s_waitcnt vmcnt(0)
    v_max_u32 v10, v44, v45
    v_cmp_eq_u32 vcc, -1, v10
    """)
    spin_tail(P, 50, "L_oretry", "L_ook")
    P(f"""
    """)
    O = 48
    P(f"""
    v_lshlrev_b32 v9, 1, v150
    v_ashrrev_i32 v10, 31, v9
    v_not_b32 v10, v10
    v_or_b32 v10, 0x80000000, v10
    v_xor_b32 v9, v9, v10
    v_and_b32 v9, 0xffff0000, v9
    v_mul_f32 v9, {f2u(-1.4426950408889634)}, v9
    v_exp_f32 v9, v9
    v_add_f32 v9, 1.0, v9
    v_rcp_f32 v47, v9
    v_lshlrev_b32 v{O}, 16, v44
    v_and_b32 v{O+1}, 0xffff0000, v44
    v_lshlrev_b32 v{O+2}, 16, v45
    v_and_b32 v{O+3}, 0xffff0000, v45
    s_barrier
    """)
    for w in range(7): P(f"ds_read_b128 {v(D+4*w,4)}, v{vL16} offset:{L_RED+1024*w}")
    def pk2(d, x):
        P(f"v_pk_add_f32 {v(d,2)}, {v(d,2)}, {v(x,2)}"); P(f"v_pk_add_f32 {v(d+2,2)}, {v(d+2,2)}, {v(x+2,2)}")
    P("s_waitcnt lgkmcnt(5)"); pk2(D, D+4)
    P("s_waitcnt lgkmcnt(3)"); pk2(D+8, D+12)
    P("s_waitcnt lgkmcnt(1)"); pk2(D+16, D+20); pk2(D, D+8)
    P("s_waitcnt lgkmcnt(0)"); pk2(D+16, D+24); pk2(D, D+16)
    for i in range(4): P(f"v_fma_f32 v{O+i}, v{D+i}, v47, v{O+i}")
    P(f"""
    v_cvt_pk_bf16_f32 v44, v{O}, v{O+1}
    v_cvt_pk_bf16_f32 v45, v{O+2}, v{O+3}
    buffer_store_dwordx2 {v(44,2)}, v46, s[12:15], s58 offen{" sc1" if OPT.get("fsc1", 0) else ""}
    L_fin:
    """)
    if OPT.get("padto"):
        if OPT.get("padwg") is not None:
            P(f"s_cmp_lg_u32 s2, {OPT['padwg']}")
            P("s_cbranch_scc1 L_fin2")
        if OPT.get("padrole") == 1:
            P(f"s_cmp_ge_u32 s{sIDX}, 108"); P("s_cbranch_scc1 L_fin2")
        if OPT.get("padrole") == 2:
            P(f"s_cmp_lt_u32 s{sIDX}, 108"); P("s_cbranch_scc1 L_fin2")
        if OPT.get("padfrom") == 999: P("s_memrealtime s[70:71]")
        P(f"""
        L_padt:
        s_memrealtime s[72:73]
        s_waitcnt lgkmcnt(0)
        s_sub_u32 s72, s72, s70
        s_cmp_lt_u32 s72, {OPT["padto"]}
        s_cbranch_scc1 L_padt
        """)
    P("L_fin2:")
    if OPT["stamps"]:
        P(f"""
        s_memrealtime s[{70+2*NST}:{71+2*NST}]
        s_waitcnt vmcnt(0)
        s_memrealtime s[{72+2*NST}:{73+2*NST}]
        s_waitcnt lgkmcnt(0)
        s_lshl_b32 s49, s2, 6
        s_lshl_b32 s50, s{sWV}, 14
        s_add_u32 s49, s49, s50
        s_add_u32 s49, s49, {ST_OFF}
        s_mov_b64 exec, 1
        v_mov_b32 v1, 0
        """)
        for i in range(NST+2):
            P(f"v_mov_b32 v2, s{70+2*i}")
            P(f"buffer_store_dword v2, v1, s[8:11], s49 offen offset:{4*i}")
    P("L_end:")
    P("s_endpgm")
    flush_late(P)
    P.raw('.p2align 12')
    for l_ in IDLE: P.raw(l_)
    P("L_last:")
    P("s_endpgm")
    return name

def main(out):
    P = Prog()
    name = gen(P)
    body = P.finalize()
    hdr = f"""; x + Re(DFT2(LN(x))), LN, top-8 routed SwiGLU in one persistent launch (256 co-resident workgroups, 1 per CU).
;      twiddles generated with v_cos/v_sin), row statistics by MFMA, 64-point real DFT over s1 -> Z (fp16, launch tag in LSBs)
; @launch grid=(256,1,1) block=(512,1,1) lds={L_END}
.amdgcn_target "amdgcn-amd-amdhsa--gfx950"
.text
"""
    d = f""".section .rodata,"a"
.p2align 6
.amdhsa_kernel {name}
  .amdhsa_next_free_vgpr 256
  .amdhsa_next_free_sgpr 102
  .amdhsa_accum_offset 256
  .amdhsa_group_segment_fixed_size 0
  .amdhsa_kernarg_size 104
  .amdhsa_user_sgpr_count 2
  .amdhsa_user_sgpr_kernarg_segment_ptr 1
  .amdhsa_system_sgpr_workgroup_id_x 1
.end_amdhsa_kernel
"""
    open(out, "w").write(hdr + body + d)

if __name__ == "__main__":
    for a_ in sys.argv[2:]:
        k, _, val = a_.partition("=")
        OPT[k] = int(val) if val else True
    main(sys.argv[1])
```

```python
import sys, struct
sys.path.insert(0, "work")
from asmlib import *

NAME = "sequential_preLN__spectral_fnet__moe_arch_mod__prompt"
XB = 2621440
FLAGS = 0x2c0000
KEYS = 0x8000
KST = 384
ACT = 0x18000
ZM = 0x20000
ZT = ZM + 0x200000
STATS = 0x2a0000
SEN1 = 0x1000
SEN2 = 0x2000
SELR = 0x3000
HINTMAX = 64
ST_OFF = 0x300000
WS_SZ = 0x400000
OOB = 0x1000000
SPIN = 1 << 16

L_MISC = 0
L_CNT = 0; L_TAG = 4; L_SEL = 32; L_ZP = 64; L_GM = 128; L_LIST = 192
L_PS = 512
L_CS = 1024
L_RED = 2048
L_HT = 2048; HS = 128
L_W = 12288
L_X = 32768
L_CF = 114688
L_XR = 118784
XP = 1284
L_WR = 139520
L_PART = 12288
L_WF = 20480
L_RM = 512
L_WT1 = 114688
L_WT = 12288
L_END = 114688 + 40960
RSB = 2576

sGRP, sJ, sWV, sSL, sXCD, sTB, sSTR, sROW, sROWB, sIDX, sRHO, sC640, sHW = 32, 33, 34, 36, 37, 38, 39, 40, 41, 35, 44, 45, 46
vN, vQ, vW, vL, vL4, vL16 = 1, 2, 3, 4, 6, 8
sTAG = 3; sZP = 100

OPT = dict(stamps=False, xnt=0, wnt=0, cpre=1, npre=5, tail=0, pf1=1)

def f2u(x): return "0x%08x" % struct.unpack("<I", struct.pack("<f", x))[0]
NST = 14
SEC = ["p1"]
def stamp(P, i):
    light = {"p1": (0,), "m": (5,), "p2": (10,), "ffn": (6, 7, 10)}
    if OPT["stamps"] and (not OPT.get("light") or i in light[SEC[0]]): P(f"s_memrealtime s[{70+2*i}:{71+2*i}]")
    if OPT.get("padfrom") == {"p1": 0, "m": 100, "p2": 200, "ffn": 300}[SEC[0]] + i and i: P("s_memrealtime s[70:71]")

def bf16_round(r):
    return [f"v_cvt_pk_bf16_f32 {v(r)}, 0, {v(r)}"]

def spin_tail(P, cnt, again, ok):
    P(f"""
    s_cbranch_vccnz {ok}_r
    {ok}:
    """)
    LATE.append(f"""
    {ok}_r:
    s_add_u32 s{cnt}, s{cnt}, 1
    s_cmp_gt_u32 s{cnt}, {SPIN}
    s_cbranch_scc1 {ok}
    s_branch {again}
    """)
LATE = []
def flush_late(P):
    for t in LATE: P(t)
    del LATE[:]

def cheb2(P, T, k):
    for i in range(2, 8):
        P(f"v_fma_f32 v{T+i}, v{k}, v{T+i-1}, -v{T+i-2}")
        P(f"v_fma_f32 v{T+8+i}, v{k}, v{T+8+i-1}, -v{T+8+i-2}")

def gen(P):
    global KST
    KST = OPT.get("kst", 64)
    name = NAME + "_kernel"
    xnt = " nt" if OPT["xnt"] else ""
    wnt = " nt" if OPT["wnt"] else ""
    P.raw(".p2align 12"); P.raw(".fill 0x340, 4, 0xbf810000")
    P.raw(f".globl {name}"); P.raw(".p2align 8"); P.raw(f".type {name},@function"); P.raw(f"{name}:")
    P("L_start:")
    stamp(P, 0)
    if OPT.get("padto"): P("s_memrealtime s[70:71]")
    def ptrs():
        P(f"""
        s_load_dwordx2 s[12:13], s[0:1], 80
        s_load_dwordx2 s[16:17], s[0:1], 48
        s_load_dwordx2 s[20:21], s[0:1], 56
        s_load_dwordx2 s[24:25], s[0:1], 64
        s_load_dwordx2 s[28:29], s[0:1], 72
        """)
    WRL = OPT.get('wrl', 0)
    E5 = OPT.get('e5', 1)
    HP = OPT.get('hp', 0); HN = OPT.get('hn', 27)
    FIN = "s_branch L_fin" if (OPT["stamps"] or OPT.get("padto")) else "s_endpgm"
    MK = 24
    def tagcalc():
        P(f"""
        s_mul_i32 s{sTAG}, s{sTAG}, 0x9e3779b1
        s_add_u32 s{sTAG}, s{sTAG}, 0x7f4a7c15
        v_mov_b32 v14, s{sTAG}
        """)
        P(f"""
        s_and_b32 s43, s{sTAG}, 3
        s_mul_i32 s43, s43, 0x01010101
        s_and_b32 s66, s{sTAG}, 0xfcfcfcfc
        s_or_b32 s43, s43, s66
        v_lshlrev_b32 v48, 1, v{vN}
        v_bfe_u32 v48, s43, v48, 2
        v_mul_u32_u24 v48, 0x8001, v48
        v_and_b32 v48, 0x10001, v48
        v_lshlrev_b32 v49, 2, v{vN}
        """)
    def consts():
        P(f"""
        s_mov_b64 s[12:13], s[26:27]
        s_mov_b64 s[16:17], s[18:19]
        s_mov_b64 s[28:29], s[24:25]
        s_mov_b64 s[24:25], s[22:23]
        s_mov_b32 s14, {XB}
        s_mov_b32 s15, 0x20000
        s_mov_b32 s18, 1280
        s_mov_b32 s19, 0x20000
        s_mov_b32 s22, {640*3456}
        s_mov_b32 s23, 0x20000
        s_mov_b32 s26, {640*3456}
        s_mov_b32 s27, 0x20000
        s_mov_b32 s30, {1728*1280}
        s_mov_b32 s31, 0x20000
        v_lshlrev_b32 v{vL4}, 2, v{vL}
        v_mov_b32 v13, 0
        s_and_b32 s43, s{sJ}, 3
        s_lshr_b32 s{sIDX}, s2, 6
        s_lshl3_add_u32 s{sIDX}, s{sIDX}, s{sXCD}
        s_lshl2_add_u32 s{sIDX}, s{sIDX}, s43
        s_cmp_eq_u32 s{sGRP}, 0
        s_cselect_b32 s{sSTR}, 32, 64
        s_lshl_b32 s{sTB}, s{sSTR}, 3
        s_mul_i32 s{sTB}, s{sTB}, s43
        s_add_u32 s{sTB}, s{sTB}, s{sGRP}
        """)
    def rows4(dst=92):
        for pr in range(2):
            sa, sb = 56 + 2*pr, 57 + 2*pr
            P(f"""
            s_add_u32 s{sa}, s{sHW}, {4*pr}
            s_mul_i32 s{sa}, s{sa}, s{sSTR}
            s_add_u32 s{sa}, s{sa}, s{sTB}
            s_sub_u32 s{sb}, 2048, s{sa}
            s_cmp_eq_u32 s{sa}, 0
            s_cselect_b32 s{sb}, 1024, s{sb}
            s_mul_i32 s{sa}, s{sa}, 1280
            s_mul_i32 s{sb}, s{sb}, 1280
            """)
        P(f"""
        v_mov_b32 v10, s56
        v_mov_b32 v9, s57
        v_mov_b32 v11, s58
        v_mov_b32 v12, s59
        v_mov_b32_dpp v10, v9 quad_perm:[0,1,2,3] row_mask:0x2 bank_mask:0xf
        s_movk_i32 s62, 1024
        v_mov_b32_dpp v10, v11 quad_perm:[0,1,2,3] row_mask:0x4 bank_mask:0xf
        v_mov_b32_dpp v10, v12 quad_perm:[0,1,2,3] row_mask:0x8 bank_mask:0xf
        v_lshl_add_u32 v{dst}, v{vN}, 4, v10
        """)
    P(f"""
    s_load_dwordx2 s[4:5], s[0:1], 0
    s_mov_b32 s10, {WS_SZ}
    s_mov_b32 s11, 0x20000
    v_lshrrev_b32 v{vW}, 6, v0
    s_cmp_ge_u32 s2, 256
    s_cbranch_scc1 L_end
    v_readfirstlane_b32 s{sWV}, v{vW}
    s_bfe_u32 s{sJ}, s2, 0x30003
    v_and_b32 v{vL}, 63, v0
    v_and_b32 v{vN}, 15, v0
    v_bfe_u32 v{vQ}, v0, 4, 2
    s_and_b32 s{sXCD}, s2, 7
    s_lshr_b32 s43, s2, 7
    s_lshl1_add_u32 s{sGRP}, s{sXCD}, s43
    s_sub_u32 s43, 32, s{sGRP}
    s_cmp_eq_u32 s{sGRP}, 0
    s_cselect_b32 s43, 16, s43
    s_bitcmp1_b32 s2, 6
    s_cselect_b32 s{sGRP}, s43, s{sGRP}
    s_mul_i32 s{sRHO}, s{sJ}, 5
    s_lshr_b32 s{sRHO}, s{sRHO}, 2
    s_and_b32 s{sHW}, s{sWV}, 3
    s_mov_b32 s{sC640}, {f2u(1.0/640)}
    v_lshlrev_b32 v{vL16}, 4, v{vL}
    s_cmp_ge_u32 s{sWV}, 4
    s_cbranch_scc1 L_W
    {"s_setprio 1" if OPT.get("mp0", 0) else ""}
    """)
    if OPT["cpre"]:
        P(f"""
        s_cmp_ge_u32 s{sWV}, 3
        s_cbranch_scc1 L_Mx
        s_lshr_b32 s43, s2, {OPT.get("cpsh", 5)}
        s_cmp_lg_u32 s43, {OPT.get("cpv", 0)}
        s_cbranch_scc1 L_Mx
        s_getpc_b64 s[42:43]
        L_pc:
        v_lshlrev_b32 v10, 7, v0
        v_add_u32 v10, 896, v10
        v_min_u32 v10, L_last-L_pc, v10
        v_mov_b32 v11, s43
        v_add_co_u32 v10, vcc, s42, v10
        v_addc_co_u32 v11, vcc, 0, v11, vcc
        global_load_dword v15, v[10:11], off
        """)
    P(f"""
    L_Mx:
    v_lshrrev_b32 v9, 3, v{vL}
    s_lshl_b32 s47, s{sHW}, 4
    v_add_u32 v5, s47, v9
    v_mul_u32_u24 v5, 40960, v5
    v_lshrrev_b32 v7, 2, v9
    v_and_or_b32 v9, v9, 6, v7
    v_xor_b32 v9, v9, v{vL}
    v_and_b32 v9, 7, v9
    v_lshl_add_u32 v5, v9, 4, v5
    v_xor_b32 v7, 16, v5
    v_add_u32 v7, {8*40960}, v7
    s_mul_i32 s50, s{sGRP}, 1280
    s_add_u32 s47, s50, 1280
    s_lshr_b32 s52, s{sWV}, 2
    s_mul_i32 s52, s52, 5
    s_add_u32 s48, s{sRHO}, s52
    s_cmp_ge_u32 s48, 10
    s_cselect_b32 s49, 10, 0
    s_sub_u32 s48, s48, s49
    s_lshl_b32 s48, s48, 7
    s_add_u32 s48, s48, s50
    s_mul_i32 s49, s{sHW}, 20480
    s_add_u32 s49, s49, {L_X}
    s_lshl_b32 s52, s52, 11
    s_add_u32 m0, s49, s52
    s_mov_b32 s6, {XB}
    s_mov_b32 s7, 0x20000
    s_mov_b32 s52, 5
    s_waitcnt lgkmcnt(0)
    """)
    stamp(P, 1)
    P(f"""
    s_cmp_lt_u32 s{sWV}, 4
    s_cbranch_scc1 L_xl
    s_load_dword s{sTAG}, s[8:9], 0
    s_barrier
    s_branch L_H1
    L_xl:
    buffer_load_dwordx4 v5, s[4:7], s48 offen{xnt} lds
    s_add_u32 m0, m0, 1024
    s_add_u32 s51, s48, 128
    buffer_load_dwordx4 v7, s[4:7], s48 offen{xnt} lds
    s_add_u32 m0, m0, 1024
    s_cmp_eq_u32 s51, s47
    s_cselect_b32 s48, s50, s51
    s_sub_u32 s52, s52, 1
    s_cmp_lg_u32 s52, 0
    s_cbranch_scc1 L_xl
    s_cmp_ge_u32 s{sWV}, 4
    s_cbranch_scc1 L_H2
    s_load_dwordx2 s[8:9], s[0:1], 96
    s_load_dwordx16 s[16:31], s[0:1], 40
    s_barrier
    s_branch L_M
    """)
    def wrow(dst, fill=None):
        T = 32; K8 = 76; a_, b_, c_, d_ = 78, 79, 80, 81
        P(f"""
        s_cmp_eq_u32 s{sJ}, 0
        s_cselect_b32 s53, 8, s{sJ}
        s_lshl_b32 s54, s{sRHO}, 6
        """)
        if dst is None: P(f"s_lshl_b32 s55, s{sHW}, 6"); P("s_add_u32 s53, s53, s55")
        else: P("s_add_u32 s53, s53, 256")
        P(f"""
        v_and_b32 v{a_}, 7, v{vN}
        v_lshl_add_u32 v{a_}, v{a_}, 3, s53
        v_lshrrev_b32 v{c_}, 3, v{vN}
        v_lshl_add_u32 v{b_}, v{vQ}, 1, s54
        v_cvt_f32_u32 v{c_}, v{c_}
        v_mul_u32_u24 v{b_}, v{a_}, v{b_}
        v_mul_f32 v{c_}, {f2u(-0.25)}, v{c_}
        v_cvt_f32_u32 v{a_}, v{a_}
        v_cvt_f32_u32 v{b_}, v{b_}
        v_mul_f32 v{a_}, s{sC640}, v{a_}
        v_fma_f32 v{b_}, v{b_}, s{sC640}, v{c_}
        v_mul_f32 v{K8}, {f2u(8.0)}, v{a_}
        v_fract_f32 v{T}, v{b_}
        v_add_f32 v{T+2}, v{T}, v{a_}
        v_add_f32 v{T+4}, v{T}, v{K8}
        v_add_f32 v{T+6}, v{T+2}, v{K8}
        v_cos_f32 v{K8}, v{K8}
        """)
        for i in range(4):
            P(f"v_sin_f32 v{T+2*i+1}, -v{T+2*i}")
            P(f"v_cos_f32 v{T+2*i}, v{T+2*i}")
        P(f"v_add_f32 v{K8}, v{K8}, v{K8}")
        if dst is None: P(f"s_mul_i32 s55, s{sHW}, 5120"); P(f"v_add_u32 v{d_}, s55, v{vL16}")
        P(f"v_mov_b32 v{K8+1}, v{K8}")
        for kp in range(5):
            if kp:
                for c in (2*kp, 2*kp+1):
                    for i in range(2):
                        P(f"v_pk_fma_f32 {v(T+4*c+2*i,2)}, {v(K8,2)}, {v(T+4*c-4+2*i,2)}, {v(T+4*c-8+2*i,2)} neg_lo:[0,0,1] neg_hi:[0,0,1]")
            pk = 84 + 4*(kp & 1) if dst is None else dst + 4*kp
            for i in range(4): P(f"v_cvt_pk_bf16_f32 v{pk+i}, v{T+8*kp+2*i}, v{T+8*kp+2*i+1}")
            if fill:
                for _ in range(2): P(fill.pop(0))
            if dst is None: P(f"ds_write_b128 v{d_}, {v(pk,4)} offset:{L_W + 1024*kp}")
    P("L_W:")
    P("s_load_dwordx2 s[8:9], s[0:1], 96")
    P("s_load_dwordx16 s[16:31], s[0:1], 40")
    wrow(None)
    PZ = 152; T = 64; F = 80
    P(f"""
    s_branch L_Mx
    L_H1:
    """)
    consts()
    P(f"""
    v_mov_b32 v{PZ}, -1
    v_mov_b32 v{PZ+1}, -1
    v_mov_b32 v{PZ+2}, -1
    v_mov_b32 v{PZ+3}, -1
    v_lshrrev_b32 v150, 1, v{vL}
    v_and_b32 v9, 2, v150
    v_bfe_u32 v10, v150, 3, 1
    v_and_b32 v150, 21, v150
    v_lshl_or_b32 v150, v9, 2, v150
    v_lshl_or_b32 v150, v10, 1, v150
    v_mul_u32_u24 v150, 3456, v150
    v_and_b32 v9, 1, v{vL}
    v_lshl_add_u32 v150, v9, 4, v150
    v_mul_u32_u24 v151, 1280, v{vL}
    s_cmp_ge_u32 s{sJ}, 4
    s_cbranch_scc1 L_hs1
    """)
    rows4(107)
    P(f"""
    s_mul_i32 s53, s{sHW}, {XP}
    s_mul_i32 s54, s{sHW}, 320
    {"" if WRL else "s_mov_b32 s55, m0"}
    {"" if WRL else f"s_add_u32 m0, s54, {L_WR}"}
    {"" if WRL else "s_mov_b64 exec, 0xfffff"}
    {"" if WRL else f"buffer_load_dwordx4 v{vL16}, s[16:19], s54 offen lds"}
    {"" if WRL else "s_mov_b64 exec, -1"}
    {"" if WRL else "s_mov_b32 m0, s55"}
    s_branch L_xl
    """)
    P(f"""
    L_hs1:
    v_mov_b32 v107, 0
    s_and_b32 s63, s{sJ}, 3
    s_lshl2_add_u32 s63, s63, s{sHW}
    s_and_b32 s56, s{sJ}, 3
    s_mul_i32 s56, s56, 5
    s_add_u32 s57, s56, 4
    s_add_u32 s56, s56, s{sHW}
    s_lshl_b32 s43, s{sIDX}, 5
    s_mul_i32 s58, s56, {32*3456}
    s_add_u32 s58, s58, s43
    s_mul_i32 s59, s57, {32*3456}
    s_add_u32 s59, s59, s43
    s_and_b32 s43, s56, 28
    s_add_u32 s56, s56, s43
    s_lshl_b32 s56, s56, 10
    s_and_b32 s43, s57, 28
    s_add_u32 s57, s57, s43
    s_lshl_b32 s57, s57, 10
    s_lshl_b32 s43, s{sHW}, 4
    s_bfm_b64 s[60:61], 16, s43
    s_and_b32 s63, s63, 7
    s_mul_i32 s65, s63, {54*1280}
    s_sub_u32 s43, s{sIDX}, 108
    s_lshr_b32 s43, s43, 1
    s_lshl_b32 s43, s43, 7
    s_add_u32 s65, s65, s43
    s_lshl2_add_u32 s63, s{sIDX}, s{sHW}
    s_lshl_b32 s63, s63, 6
    s_add_u32 s63, s63, {ACT}
    """)
    if WRL:
        P(f"""
        s_lshr_b32 s43, s2, 5
        s_cmp_lg_u32 s43, 3
        s_cbranch_scc1 L_xl
        s_mul_i32 s43, s{sHW}, 320
        """)
        for i in range(5):
            P(f"s_load_dword s69, s[16:17], s43")
            if i < 4: P("s_add_u32 s43, s43, 64")
    P(f"""
    s_branch L_xl
    L_H2:
    """)
    stamp(P, 2)
    P(f"""
    s_barrier
    s_cmp_ge_u32 s{sJ}, 4
    s_cbranch_scc1 L_hc1
    """)
    for i in range(4):
        P(f"s_add_u32 m0, s53, {L_XR + XP*[0, 8, 4, 12][i]}")
        P(f"buffer_load_dwordx4 v{vL16}, s[4:7], s{56+i} offen lds")
    P("s_mov_b64 exec, 0xffff")
    for i in range(4):
        P(f"s_add_u32 m0, s53, {L_XR + XP*[0, 8, 4, 12][i]}")
        P(f"buffer_load_dwordx4 v{vL16}, s[4:7], s{56+i} offen offset:1024 lds")
    if WRL:
        P(f"s_add_u32 m0, s54, {L_WR}"); P("s_mov_b64 exec, 0xfffff"); P(f"buffer_load_dwordx4 v{vL16}, s[16:19], s54 offen lds")
    P(f"""
    s_mov_b64 exec, -1
    """)
    NPB = OPT.get("npb", 0)
    pzs = [f"buffer_store_dwordx4 {v(PZ,4)}, v{vL16}, s[12:15], s{56+i} offen sc1" for i in range(4)] + [f"buffer_store_dwordx4 {v(PZ,4)}, v107, s[12:15], s62 offen sc1"]
    for o in pzs[:NPB]: P(o)
    P(f"""
    s_waitcnt vmcnt({8+WRL+NPB})
    s_barrier
    """)
    ZPRE = OPT.get("zpre", 0)
    def zpre():
        P(f"""
        s_lshl2_add_u32 s43, s{sJ}, s{sHW}
        s_lshl_b32 s43, s43, 17
        s_lshl_b32 s55, s{sGRP}, 11
        s_add_u32 s43, s43, s55
        s_lshr_b32 s55, s43, 2
        s_add_u32 s43, s43, {ZM}
        s_add_u32 s55, s55, {ZT}
        v_lshlrev_b32 v9, 16, v{vQ}
        v_lshl_add_u32 v9, v{vN}, 7, v9
        v_add_u32 v9, s43, v9
        v_and_b32 v10, 3, v{vL}
        v_lshlrev_b32 v10, 7, v10
        v_and_b32 v11, 4, v{vL}
        v_lshl_add_u32 v10, v11, 12, v10
        s_mov_b32 exec_lo, 0
        v_add_u32 v9, s55, v10
        s_mov_b32 exec_lo, -1
        s_mov_b32 exec_hi, 0xff
        buffer_load_dword v253, v9, s[8:11], 0 offen
        s_mov_b64 exec, -1
        """)
    if HP == 2:
        P(f"""
        s_lshr_b32 s43, s2, 6
        s_lshl2_add_u32 s43, s43, s{sJ}
        s_lshr_b32 s55, s{sHW}, 1
        s_lshl1_add_u32 s43, s43, s55
        s_mul_i32 s43, s43, {HN*1280}
        s_and_b32 s55, s{sHW}, 1
        s_lshl1_add_u32 s55, s{sXCD}, s55
        s_lshl_b32 s55, s55, 7
        s_add_u32 s43, s43, s55
        s_add_u32 s43, s43, {(1728 - 32*HN)*1280 - 768}
        s_cmp_lt_u32 s{sXCD}, 3
        s_cselect_b32 s43, {OOB}, s43
        s_bfm_b64 exec, {HN}, 0
        buffer_load_dword v253, v151, s[28:31], s43 offen
        s_mov_b64 exec, -1
        """)
    for o in pzs[NPB:]: P(o)
    if HP == 3:
        P(f"""
        s_lshr_b32 s43, s2, 6
        s_lshl2_add_u32 s43, s43, s{sJ}
        s_lshr_b32 s55, s{sHW}, 1
        s_lshl1_add_u32 s43, s43, s55
        s_mul_i32 s43, s43, {HN*1280}
        s_and_b32 s55, s{sHW}, 1
        s_lshl1_add_u32 s55, s{sXCD}, s55
        s_lshl_b32 s55, s55, 7
        s_add_u32 s43, s43, s55
        s_add_u32 s43, s43, {(1728 - 32*HN)*1280 - 768}
        s_cmp_lt_u32 s{sXCD}, 3
        s_cselect_b32 s43, {OOB}, s43
        s_bfm_b64 exec, {HN}, 0
        buffer_load_dword v253, v151, s[28:31], s43 offen
        s_mov_b64 exec, -1
        """)
    P(f"""
    s_branch L_hs4
    L_hc1:
    {"s_waitcnt vmcnt(0)" if OPT.get("chlate") else ""}
    {"s_barrier" if OPT.get("chlate") else ""}
    s_cmp_ge_u32 s{sIDX}, 108
    s_cbranch_scc1 L_hs2
    s_mov_b64 exec, 15
    buffer_store_dwordx4 {v(PZ,4)}, v{vL16}, s[8:11], s63 offen sc1
    s_mov_b64 exec, -1
    s_add_u32 m0, s56, {L_WT1}
    s_nop 0
    buffer_load_dwordx4 v150, s[20:23], s58 offen lds
    s_add_u32 m0, s56, {L_WT1+4096}
    s_nop 0
    buffer_load_dwordx4 v150, s[24:27], s58 offen lds
    {f"s_add_u32 m0, s57, {L_WT1}" if E5 else ""}
    {"s_mov_b64 exec, s[60:61]" if E5 else ""}
    {"buffer_load_dwordx4 v150, s[20:23], s59 offen lds" if E5 else ""}
    {f"s_add_u32 m0, s57, {L_WT1+4096}" if E5 else ""}
    {"buffer_load_dwordx4 v150, s[24:27], s59 offen lds" if E5 else ""}
    s_lshr_b32 s65, s2, 6
    s_and_b32 s43, s{sJ}, 3
    s_lshl2_add_u32 s65, s65, s43
    s_lshr_b32 s43, s{sHW}, 1
    s_lshl1_add_u32 s65, s65, s43
    s_mul_i32 s65, s65, {36*1280}
    s_and_b32 s43, s{sHW}, 1
    s_lshl1_add_u32 s43, s{sXCD}, s43
    s_lshl_b32 s43, s43, 7
    s_add_u32 s65, s65, s43
    s_add_u32 s65, s65, {864*1280 - 768}
    s_cmp_lt_u32 s{sXCD}, 3
    s_cselect_b32 s65, {OOB}, s65
    s_mov_b32 s64, 0xf
    s_waitcnt vmcnt({5 if E5 else 3})
    s_branch L_hs3
    L_hs2:
    s_mov_b32 exec_hi, 0x3fffff
    buffer_load_dword v253, v151, s[28:31], s65 offen{wnt}
    s_add_u32 s65, s65, {432*1280}
    s_mov_b32 s64, 0x3fffff
    s_waitcnt vmcnt(1)
    L_hs3:
    {"" if OPT.get("chlate") else "s_barrier"}
    L_hs4:
    s_mov_b64 exec, -1
    s_waitcnt lgkmcnt(0)
    """)
    stamp(P, 3)
    tagcalc()
    P(f"""
    ds_write_b32 v49, v48 offset:{L_ZP}
    ds_write2_b32 v13, v13, v14 offset0:0 offset1:1
    ds_write_b32 v{vL4}, v{PZ} offset:{L_LIST}
    """)
    P(f"""
    s_cmp_ge_u32 s{sJ}, 4
    s_cbranch_scc1 L_hf
    s_waitcnt vmcnt({6 if HP >= 2 else 5}) lgkmcnt(0)
    """)
    stamp(P, 4)
    P("s_barrier")
    T = 32
    P(f"""
    v_and_b32 v10, 7, v{vN}
    v_mul_u32_u24 v10, s{sSTR}, v10
    v_add_u32 v10, s{sTB}, v10
    v_sub_u32 v11, 2048, v10
    v_mov_b32 v12, 1024
    v_cmp_eq_u32 vcc, 0, v10
    v_cndmask_b32 v11, v11, v12, vcc
    v_cmp_lt_u32 vcc, 7, v{vN}
    v_cndmask_b32 v10, v10, v11, vcc
    v_and_b32 v11, 63, v10
    v_bfrev_b32 v12, 1
    v_cmp_gt_u32 vcc, 32, v11
    v_cndmask_b32 v12, 0, v12, vcc
    v_lshrrev_b32 v9, 1, v11
    s_lshl_b32 s49, s{sHW}, 3
    """)
    for h in range(2):
        P(f"""
        v_add_u32 v11, s49, v{vQ}
        v_mul_u32_u24 v11, v11, v10
        v_cvt_f32_u32 v11, v11
        v_mul_f32 v11, {f2u(1.0/2048)}, v11
        v_cos_f32 v{T+4}, v11
        v_sin_f32 v{T+5}, v11
        s_add_u32 s49, s49, 4
        v_cvt_pk_f16_f32 v{T+2*h}, v{T+4}, v{T+5}
        v_cvt_pk_f16_f32 v{T+2*h+1}, -v{T+5}, v{T+4}
        v_xor_b32 v{T+2*h}, v12, v{T+2*h}
        v_xor_b32 v{T+2*h+1}, v12, v{T+2*h+1}
        """)
    P(f"""
    s_cmp_lg_u32 s{sGRP}, 0
    s_cbranch_scc1 L_nofix
    """)
    for i in range(4):
        P(f"v_and_b32 v{T+i}, 0xffff, v{T+i}")
        P(f"v_lshlrev_b32 v{T+i}, v9, v{T+i}")
    P(f"""
    L_nofix:
    s_lshl_b32 s49, s{sHW}, 10
    s_add_u32 s49, s49, {L_CF}
    v_add_u32 v11, s49, v{vL16}
    ds_write_b128 v11, {v(T,4)}
    """)

    P(f"""
    s_branch L_prep
    L_hf:
    s_waitcnt lgkmcnt(0)
    """)
    stamp(P, 4)
    P(f"""
    s_barrier
    s_waitcnt vmcnt({4 if E5 else 2})
    s_barrier
    {f"s_cmp_lt_u32 s{sIDX}, {108 if HN == 27 else 999}" if HP else ""}
    {"s_cbranch_scc1 L_noflag" if HP else ""}
    s_mov_b32 exec_hi, s64
    buffer_load_dword v253, v151, s[28:31], s65 offen{wnt}
    s_mov_b64 exec, -1
    s_branch L_noflag
    """)

    P.raw(".p2align 12")
    WR_ = 156; XL = 16; U = 56; AD = 96; C1 = 108; F = 116; G = 124; S = 128; ON = 132; IX = 136
    ACC = 16; RHO = 138; ZV = 150; PK = 36
    SEC[0] = "m"
    P("L_M:")
    stamp(P, 2)
    wq = [f"ds_read_b128 {v(WR_+4*f,4)}, v{vL16} offset:{L_W + 1024*f}" for f in range(20)]
    for o in wq: P(o)
    wrow(WR_ + 80)
    P(f"""
    v_mul_u32_u24 v9, 10, v{vQ}
    v_lshrrev_b32 v10, 1, v{vN}
    v_xor_b32 v10, v10, v{vN}
    v_bfe_u32 v10, v10, 2, 1
    v_and_or_b32 v10, v{vN}, 6, v10
    v_lshl_add_u32 v11, v{vN}, 7, s49
    """)
    for c in range(0, 10, 2):
        P(f"""
        v_xor_b32 v12, v9, v10
        v_and_b32 v{AD+c}, 7, v12
        v_lshrrev_b32 v12, 3, v12
        v_lshl_add_u32 v{AD+c}, v{AD+c}, 4, v11
        v_lshl_add_u32 v{AD+c}, v12, 11, v{AD+c}
        v_xor_b32 v{AD+c+1}, 16, v{AD+c}
        """)
        if c < 8: P("v_add_u32 v9, 2, v9")
    P(f"""
    v_mov_b32 v{ON}, 0x3f803f80
    v_mov_b32 v{ON+1}, 0x3f803f80
    v_mov_b32 v{ON+2}, 0x3f803f80
    v_mov_b32 v{ON+3}, 0x3f803f80
    v_and_b32 v9, 1, v{vN}
    v_mul_u32_u24 v{IX}, 0xaaaa, v9
    v_or_b32 v{IX}, 0x4444, v{IX}
    s_mov_b32 s60, 0x22222222
    s_mov_b32 s61, s60
    s_lshl_b64 s[62:63], s[60:61], 1
    s_lshl_b64 s[64:65], s[60:61], 2
    """)
    P(f"""
    v_mul_u32_u24 v9, s{sJ}, v{vQ}
    v_and_b32 v10, 1, v{vN}
    v_lshlrev_b32 v10, 1, v10
    v_sub_u32 v9, v9, v10
    v_cvt_f32_i32 v9, v9
    v_mul_f32 v9, {f2u(0.125)}, v9
    v_cos_f32 v9, v9
    v_and_b32 v10, 2, v{vN}
    v_lshlrev_b32 v10, 3, v10
    v_cvt_pk_bf16_f32 v9, v9, 0
    v_lshlrev_b32 v9, v10, v9
    v_lshrrev_b32 v10, 2, v{vN}
    s_and_b32 s43, s{sJ}, 1
    s_mul_i32 s43, s43, 0x80008000
    """)
    for i in range(4):
        P(f"v_cmp_eq_u32 vcc, {i}, v10")
        P(f"v_cndmask_b32 v{C1+i}, 0, v9, vcc")
        P(f"v_xor_b32 v{C1+4+i}, s43, v{C1+i}")
    P_ = P
    P = Prog(); T = 138
    P(f"""
    v_lshrrev_b32 v9, 1, v{vN}
    v_lshl_add_u32 v9, s{sHW}, 3, v9
    v_and_b32 v11, 1, v{vN}
    v_lshl_add_u32 v10, v9, 1, v11
    v_cmp_eq_u32 vcc, 1, v10
    v_cndmask_b32 v9, v9, 32, vcc
    v_cndmask_b32 v11, v11, 0, vcc
    v_cvt_f32_u32 v9, v9
    v_cvt_f32_u32 v11, v11
    v_mul_f32 v9, {f2u(1.0/64)}, v9
    v_mul_f32 v11, {f2u(-0.25)}, v11
    v_lshlrev_b32 v10, 3, v{vQ}
    v_cvt_f32_u32 v10, v10
    v_cos_f32 v12, v9
    v_fma_f32 v{T}, v9, v10, v11
    v_add_f32 v10, {f2u(32.0)}, v10
    v_fma_f32 v{T+8}, v9, v10, v11
    v_add_f32 v{T+1}, v{T}, v9
    v_add_f32 v{T+9}, v{T+8}, v9
    v_cos_f32 v{T}, v{T}
    v_cos_f32 v{T+1}, v{T+1}
    v_cos_f32 v{T+8}, v{T+8}
    v_cos_f32 v{T+9}, v{T+9}
    v_add_f32 v12, v12, v12
    """)
    cheb2(P, T, 12)
    for i in range(8): P(f"v_cvt_pk_f16_f32 v{F+i}, v{T+2*i}, v{T+2*i+1}")
    FG = list(P.lines)
    P = Prog()
    P(f"""
    v_and_b32 v148, 7, v{vN}
    v_lshlrev_b32 v148, 4, v148
    v_lshl_add_u32 v148, v{vN}, 7, v148
    v_lshlrev_b32 v142, 5, v{vW}
    v_lshl_add_u32 v142, v{vQ}, 3, v142
    v_xor_b32 v142, v142, v148
    v_lshlrev_b32 v143, 4, v{vQ}
    v_xor_b32 v143, v143, v148
    v_xor_b32 v148, 64, v143
    v_lshlrev_b32 v144, 17, v{vQ}
    v_lshl_add_u32 v144, v{vN}, 4, v144
    v_lshlrev_b32 v145, 15, v{vQ}
    v_lshl_add_u32 v145, v{vN}, 2, v145
    s_mov_b32 s55, 0xfffefffe
    v_and_b32 v146, 3, v{vN}
    v_lshlrev_b32 v146, 4, v146
    v_lshlrev_b32 v149, 2, v{vN}
    v_mov_b32 v13, 0
    s_lshl_b32 s52, s{sHW}, 19
    s_lshl_b32 s43, s{sGRP}, 11
    s_add_u32 s52, s52, s43
    s_lshl_b32 s43, s{sJ}, 8
    s_add_u32 s52, s52, s43
    s_lshr_b32 s56, s52, 2
    s_add_u32 s52, s52, {ZM}
    s_add_u32 s53, s52, 65536
    s_add_u32 s56, s56, {ZT}
    s_add_u32 s57, s56, 16384
    """)
    AB_ = list(P.lines)
    P = P_
    P(f"""
    v_mov_b32 v{S}, 0
    v_mov_b32 v{S+1}, 0
    v_mov_b32 v{S+2}, 0
    v_mov_b32 v{S+3}, 0
    """)
    NF_ = OPT.get("fpre", 0)
    for _ in range(NF_): P(FG.pop(0))
    if NF_: FG += AB_; AB_ = []
    stamp(P, 13)
    P("s_waitcnt vmcnt(0)")
    stamp(P, 3)
    def half(hi, fills, extra):
        for c in range(10): P(f"ds_read_b128 {v(XL+4*c,4)}, v{AD+c}" + (" offset:10240" if hi else ""))
        if not hi: P("s_barrier")
        for k in range(5):
            x = XL + 8*k
            fl = fills(k)
            mm = [f"v_mfma_f32_16x16x32_bf16 {v(U+8*k,4)}, {v(C1+4*hi,4)}, {v(x,4)}, {v(U+8*k,4) if hi else '0'}",
                  f"v_mfma_f32_16x16x32_bf16 {v(G,4)}, {v(x,4)}, {v(x,4)}, {'0' if (k==0 and not hi) else v(G,4)}",
                  f"v_mfma_f32_16x16x32_bf16 {v(U+8*k+4,4)}, {v(C1+4*hi,4)}, {v(x+4,4)}, {v(U+8*k+4,4) if hi else '0'}",
                  f"v_mfma_f32_16x16x32_bf16 {v(G,4)}, {v(x+4,4)}, {v(x+4,4)}, {v(G,4)}",
                  f"v_smfmac_f32_16x16x64_bf16 {v(S,4)}, {v(ON,4)}, {v(x,8)}, v{IX}"]
            for i, m in enumerate(mm):
                if i in (0, 2): P(f"s_waitcnt lgkmcnt({9 - 2*k - i//2})")
                P(m)
                for _ in range(2):
                    if i >= 2 and fl: P(fl.pop(0))
                    elif extra: P(extra.pop(0))
        for o in extra: P(o)
    half(0, lambda k: [], FG)
    P(f"""
    s_cmp_lg_u32 s{sJ}, 0
    s_cbranch_scc1 L_nooff
    v_add_f32 v9, v{S}, v{S+1}
    v_mul_f32 v9, {f2u(-8.0/320)}, v9
    """)
    for i in range(20): P(f"v_add_f32 v{U+2*i}, v{U+2*i}, v9")
    P(f"""
    L_nooff:
    s_setprio 2
    s_barrier
    """)
    stamp(P, 12)
    def cvt(k): return [f"v_cvt_pk_bf16_f32 v{U+8*k+i}, v{U+8*k+2*i}, v{U+8*k+2*i+1}" for i in range(4)]
    half(1, lambda k: cvt(k-1) if k else [], AB_)
    chain = cvt(4) + [f"v_add_f32 v{S}, v{S}, v{S+1}",
             f"v_cndmask_b32 v{G}, v{G}, v{G+1}, s[60:61]",
             f"v_mul_f32 v{S}, s{sC640}, v{S}",
             f"v_cndmask_b32 v{G}, v{G}, v{G+2}, s[62:63]",
             f"v_mul_f32 v{S}, v{S}, v{S}",
             f"v_cndmask_b32 v{G}, v{G}, v{G+3}, s[64:65]",
             f"v_fma_f32 v{G}, v{G}, s{sC640}, -v{S}",
             f"v_max_f32 v{G}, 0, v{G}"] + bf16_round(G) + [f"v_add_f32 v{G}, {f2u(1e-5)}, v{G}"] + bf16_round(G) + \
            [f"v_sqrt_f32 v{G}, v{G}", None] + bf16_round(G) + [f"v_rcp_f32 v{G}, v{G}", None, None] + \
            [f"v_mov_b32_dpp v{RHO+r}, v{G} row_newbcast:{4*q+r} row_mask:{hex(1<<q)} bank_mask:0xf" for q in range(4) for r in range(4)]
    n = 0
    for kp in range(5):
        for t in range(5):
            P(f"v_mfma_f32_16x16x32_bf16 {v(ACC+4*t,4)}, {v(U+8*kp,4)}, {v(WR_+4*(5*t+kp),4)}, {'0' if kp==0 else v(ACC+4*t,4)}")
            n += 1
            if n >= 3:
                for _ in range(2):
                    if chain:
                        o = chain.pop(0)
                        if o: P(o)
    assert not chain
    stamp(P, 4)
    for t in range(5):
        P(f"v_pk_mul_f32 {v(ACC+4*t,2)}, {v(ACC+4*t,2)}, {v(RHO,2)}")
        P(f"v_pk_mul_f32 {v(ACC+4*t+2,2)}, {v(ACC+4*t+2,2)}, {v(RHO+2,2)}")
        P(f"v_cvt_pk_f16_f32 v{PK+2*t}, v{ACC+4*t}, v{ACC+4*t+1}")
        P(f"v_cvt_pk_f16_f32 v{PK+2*t+1}, v{ACC+4*t+2}, v{ACC+4*t+3}")
        P(f"ds_write_b64 v142, {v(PK+2*t,2)} offset:{L_HT + 16*t*HS}")
    P(f"""
    s_waitcnt lgkmcnt(0)
    s_barrier
    """)
    BF = 16; DC = 70; ZO = 92
    for t in range(5):
        for kk in range(2):
            P(f"ds_read_b128 {v(BF+8*t+4*kk,4)}, v{148 if kk else 143} offset:{L_HT + 16*t*HS}")
        if t == 2: P(f"ds_read_b128 {v(ZV,4)}, v146 offset:{L_ZP}")
    P(f"ds_read_b32 v147, v149 offset:{L_ZP}")
    P(f"ds_read_b32 v14, v13 offset:{L_TAG}")
    for t in range(5):
        c = DC + 4*t
        P(f"s_waitcnt lgkmcnt({[11, 9, 6, 4, 0][t]})")
        P(f"v_mfma_f32_16x16x32_f16 {v(c,4)}, {v(F,4)}, {v(BF+8*t,4)}, 0")
        P(f"v_mfma_f32_16x16x32_f16 {v(c,4)}, {v(F+4,4)}, {v(BF+8*t+4,4)}, {v(c,4)}")
        if t >= 2:
            for u in range(2):
                P(f"v_cvt_pk_f16_f32 v{ZO+4*u+t-2}, v{DC+4*(t-2)+2*u}, v{DC+4*(t-2)+2*u+1}")
                P(f"v_and_or_b32 v{ZO+4*u+t-2}, v{ZO+4*u+t-2}, s55, v{ZV+t-2}")
    for u in range(2):
        P(f"v_cvt_pk_f16_f32 v{ZO+4*u+3}, v{DC+12+2*u}, v{DC+12+2*u+1}")
        P(f"v_and_or_b32 v{ZO+4*u+3}, v{ZO+4*u+3}, s55, v{ZV+3}")
        P(f"buffer_store_dwordx4 {v(ZO+4*u,4)}, v144, s[8:11], s{52+u} offen sc1")
    for u in range(2):
        P(f"v_cvt_pk_f16_f32 v{ZO+8+u}, v{DC+16+2*u}, v{DC+16+2*u+1}")
        P(f"v_and_or_b32 v{ZO+8+u}, v{ZO+8+u}, s55, v147")
        P(f"buffer_store_dword v{ZO+8+u}, v145, s[8:11], s{56+u} offen sc1")
    P("s_setprio 0")
    stamp(P, 5)
    consts()
    P(f"""
    s_cmp_ge_u32 s{sJ}, 4
    s_cbranch_scc1 L_ffn
    """)
    P(f"""
    s_branch L_prep
    L_rare:
    """)
    P.raw(".p2align 12")

    SEC[0] = "p2"
    ZR = 16; CF = 80; AC = 96; X1 = 112; DL = 128; W1 = 144; W2 = 152; PH = 160; YT = 176; GS = 208; AB = 48
    aX1, aX2, aW1, aW2, aSP, aG, aS = 224, 225, 226, 227, 228, 230, 231
    P(f"""
    L_prep:
    v_mov_b32 v5, 0
    v_mov_b32 v7, 0
    s_add_u32 s69, s{sWV}, -2
    s_cmp_lt_u32 s69, 2
    s_cbranch_scc1 L_pub0
    s_cmp_lt_u32 s{sWV}, 2
    s_cbranch_scc1 L_ztail
    v_lshlrev_b32 v5, 11, v{vQ}
    v_lshrrev_b32 v10, 3, v{vN}
    s_add_u32 s49, s{sHW}, s{sJ}
    s_and_b32 s49, s49, 3
    v_lshl_add_u32 v10, s49, 1, v10
    v_lshl_add_u32 v5, v10, 8, v5
    v_and_b32 v9, 7, v{vN}
    v_lshl_add_u32 v5, v9, 4, v5
    v_add_u32 v7, 128, v5
    v_lshrrev_b32 v10, 1, v{vQ}
    v_lshl_add_u32 v10, s49, 1, v10
    v_and_b32 v9, 1, v{vQ}
    v_lshlrev_b32 v9, 5, v9
    s_lshl_b32 s58, s{sGRP}, 16
    s_add_u32 s58, s58, {ZM}
    s_movk_i32 s48, 8192
    s_add_u32 s51, s{sHW}, 2
    s_branch L_zcom
    L_ztail:
    v_lshl_add_u32 v10, s{sWV}, 2, v{vQ}
    v_lshlrev_b32 v5, 9, v{vQ}
    v_lshl_add_u32 v5, v{vN}, 4, v5
    v_lshl_add_u32 v5, s{sWV}, 8, v5
    s_lshl_b32 s58, s{sGRP}, 14
    s_add_u32 s58, s58, {ZT}
    s_movk_i32 s48, 2048
    v_mov_b32 v9, 256
    s_mov_b32 s51, s{sWV}
    L_zcom:
    v_and_b32 v11, 3, v{vN}
    v_lshlrev_b32 v11, 4, v11
    ds_read_b128 v[236:239], v11 offset:{L_ZP}
    """)
    for i in range(1, 8): P(f"s_add_u32 s{58+i}, s{57+i}, s48")
    P(f"""
    s_mul_i32 s{sROW}, s{sWV}, s{sSTR}
    s_add_u32 s{sROW}, s{sROW}, s{sTB}
    s_sub_u32 s{sROWB}, 2048, s{sROW}
    s_cmp_eq_u32 s{sROW}, 0
    s_cselect_b32 s{sROWB}, 1024, s{sROWB}
    s_mul_i32 s56, s{sROW}, 1280
    s_mul_i32 s57, s{sROWB}, 1280
    s_mul_i32 s49, s{sWV}, {XP}
    s_add_u32 s49, s49, {L_XR}
    v_add_u32 v233, s49, v{vL4}
    v_lshlrev_b32 v234, 3, v{vW}
    s_cmp_eq_u32 s{sTB}, 0
    s_cselect_b32 s47, 0, 8
    v_add_u32 v10, -1, v10
    v_and_b32 v10, 7, v10
    v_add3_u32 v9, v9, v10, 1
    v_lshlrev_b32 v9, 1, v9
    v_and_b32 v10, 7, v{vN}
    v_mov_b32 v11, s47
    v_cmp_ne_u32 vcc, 0, v10
    v_cndmask_b32 v11, v11, 8, vcc
    v_xor_b32 v11, v11, v{vN}
    s_movk_i32 s49, {XP}
    v_mad_u32_u24 v{aX1}, v{vN}, s49, v9
    v_add_u32 v{aX1}, {L_XR}, v{aX1}
    v_mul_u32_u24 v11, s49, v11
    v_add_u32 v11, {L_XR}, v11
    v_sub_u32 v10, {1280-432}, v9
    v_add_u32 v{aX2}, v11, v10
    s_lshl_b32 s49, s51, 8
    v_lshl_add_u32 v{aW1}, v{vQ}, 4, s49
    s_mul_i32 s51, s51, 768
    s_add_u32 s51, s51, {L_PART}
    v_lshl_add_u32 v{aG}, v{vN}, 4, s51
    v_lshl_add_u32 v{aS}, v{vN}, 3, s51
    v_mov_b32 v12, 0x3f803f80
    v_cmp_eq_u32 vcc, 1, v{vN}
    v_cndmask_b32 v12, 0, v12, vcc
    """)
    P(f"""
    s_cmp_lt_u32 s{sWV}, 2
    s_cbranch_scc1 L_tprep
    """)
    def wmask(on):
        if on: P("s_mov_b32 exec_lo, 0x10001"); P("s_mov_b32 exec_hi, 0x10001")
        else: P("s_mov_b64 exec, -1")
    off = [128*u + 16*r for u in range(4) for r in range(4)]
    for i in range(16):
        P(f"ds_read_u16_d16_hi v{X1+i}, v{aX1} offset:{off[i]}")
        P(f"ds_read_u16_d16_hi v{DL+i}, v{aX2} offset:{432-off[i]}")
        P(f"v_mov_b32 v{W1+i}, v12")
    P("s_waitcnt lgkmcnt(0)")
    for i_ in range(8): P(f"v_pk_add_f32 {v(DL+2*i_,2)}, {v(DL+2*i_,2)}, {v(X1+2*i_,2)} neg_lo:[0,1] neg_hi:[0,1]")
    P("s_setprio 1")
    stamp(P, 6)
    if OPT.get("zdelay"): P(f"s_sleep {OPT['zdelay']}")
    P("s_barrier")
    stamp(P, 7)
    P("s_mov_b32 s50, 0")
    for i in range(8):
        P(f"buffer_load_dwordx4 {v(ZR+8*i,4)}, v5, s[8:11], s{58+i} offen sc1")
        P(f"buffer_load_dwordx4 {v(ZR+8*i+4,4)}, v7, s[8:11], s{58+i} offen sc1")
        if i == 1:
            P(f"v_add_u32 v9, {L_CF}, v{vL16}")
            for k in range(4): P(f"ds_read_b128 {v(CF+4*k,4)}, v9 offset:{1024*k}")
            wmask(1)
            for k in range(4): P(f"ds_read_b128 {v(W1+4*k,4)}, v{aW1} offset:{L_WF + 64*k}")
            wmask(0)
    P(f"""
    s_waitcnt lgkmcnt(0)
    L_zgo:
    v_mov_b32 v10, 0
    """)
    for k in range(4):
        z = ZR + 16*k
        y = YT + 16*(k & 1)
        chk = []
        def mm(u):
            P(f"v_mfma_f32_16x16x32_f16 {v(AC+4*u,4)}, {v(y+4*u,4)}, {v(CF+4*k,4)}, {v(X1+4*u,4) if k==0 else v(AC+4*u,4)}")
            o = [f"v_or3_b32 v10, v10, v{y+4*u}, v{y+4*u+1}", f"v_or3_b32 v10, v10, v{y+4*u+2}, v{y+4*u+3}"]
            if k == 3: chk.extend(o)
            else:
                for x_ in o: P(x_)
        P(f"s_waitcnt vmcnt({12 - 4*k})")
        for u in range(4):
            for l in range(4): P(f"v_xor_b32 v{y+4*u+l}, v{236+u}, v{z+4*l+u}")
            if u: mm(u-1)
        mm(3)
        for x_ in chk: P(x_)
    P(f"v_and_b32 v10, 0x10001, v10")
    P(f"v_cmp_ne_u32 vcc, 0, v10")
    spin_tail(P, 50, "L_zretry", "L_zok")
    stamp(P, 8)
    if OPT["stamps"]: P("s_add_u32 s96, s50, 1")
    def stat_mm(side, f, first):
        p = PH + 8*side + 4*f; w = (W2 if side else W1) + 4*f
        g = GS + 8*side
        P(f"v_mfma_f32_16x16x32_bf16 {v(g,4)}, {v(p,4)}, {v(p,4)}, {'0' if first else v(g,4)}")
        P(f"v_mfma_f32_16x16x32_bf16 {v(g+4,4)}, {v(w,4)}, {v(p,4)}, {'0' if first else v(g+4,4)}")
    for f in range(2):
        for i in range(4): P(f"v_cvt_pk_bf16_f32 v{PH+4*f+i}, v{AC+8*f+2*i}, v{AC+8*f+2*i+1}")
        for i in range(4): P(f"v_pk_add_f32 {v(AC+8*f+2*i,2)}, {v(AC+8*f+2*i,2)}, {v(DL+8*f+2*i,2)}")
        stat_mm(0, f, f == 0)
        for i in range(4): P(f"v_cvt_pk_bf16_f32 v{PH+8+4*f+i}, v{AC+8*f+2*i}, v{AC+8*f+2*i+1}")
        if f == 1: stat_mm(1, 0, True)
    stat_mm(1, 1, False)
    def partw():
        P(f"""
        s_mov_b32 exec_lo, 0x00f0000f
        s_mov_b32 exec_hi, 0xf0000f00
        ds_write_b128 v{aG}, {v(GS,4)}
        ds_write_b128 v{aG}, {v(GS+8,4)} offset:384
        s_mov_b64 exec, 0xffff
        ds_write_b64 v{aS}, {v(GS+4,2)} offset:256
        ds_write_b64 v{aS}, {v(GS+12,2)} offset:640
        s_mov_b64 exec, -1
        s_waitcnt lgkmcnt(0)
        s_barrier
        """)
    partw()
    stamp(P, 9)
    for i in range(16):
        P(f"ds_write_b16{'_d16_hi' if i & 1 else ''} v{aX1}, v{PH+i//2} offset:{off[i]}")
        P(f"ds_write_b16{'_d16_hi' if i & 1 else ''} v{aX2}, v{PH+8+i//2} offset:{432-off[i]}")
    HA = 16; HB = 26; XT = 40; RM = 52
    P(f"""
    L_out:
    s_setprio 0
    s_waitcnt lgkmcnt(0)
    s_barrier
    ds_read2st64_b32 {v(XT,2)}, v233 offset0:0 offset1:1
    ds_read2st64_b32 {v(XT+2,2)}, v233 offset0:2 offset1:3
    ds_read_b32 v{XT+4}, v233 offset:1024
    ds_read_b64 {v(RM,2)}, v234 offset:{L_RM}
    v_add_u32 v232, {8*XP}, v233
    ds_read2st64_b32 {v(XT+6,2)}, v232 offset0:0 offset1:1
    ds_read2st64_b32 {v(XT+8,2)}, v232 offset0:2 offset1:3
    ds_read_b32 v{XT+10}, v232 offset:1024
    ds_read_b64 {v(RM+2,2)}, v234 offset:{L_RM+64}
    """)
    for (Hr, src, rm, so, o, w_) in ((HA, XT, RM, 56, 56, 4), (HB, XT+6, RM+2, 57, 64, 0)):
        P(f"s_waitcnt lgkmcnt({w_})")
        for i in range(5):
            P(f"v_lshlrev_b32 v{Hr+2*i}, 16, v{src+i}")
            P(f"v_and_b32 v{Hr+2*i+1}, 0xffff0000, v{src+i}")
        for i in range(5): P(f"v_pk_fma_f32 {v(Hr+2*i,2)}, {v(Hr+2*i,2)}, {v(rm,2)}, {v(rm,2)} op_sel:[0,0,1] op_sel_hi:[1,0,1] neg_lo:[0,0,1] neg_hi:[0,0,1]")
        for i in range(5):
            P(f"v_cvt_pk_bf16_f32 v{o+i}, v{Hr+2*i}, v{Hr+2*i+1}")
            P(f"v_min_u32 v{o+i}, -2, v{o+i}")
            P(f"buffer_store_dword v{o+i}, v{vL4}, s[12:15], s{so} offen offset:{256*i} sc1")
    stamp(P, 11)
    P(f"""
    s_cmp_lg_u32 s{sWV}, 3
    s_cbranch_scc1 L_finp
    s_cmp_lg_u32 s2, 0
    s_cbranch_scc1 L_finp
    s_mov_b64 exec, 1
    buffer_store_dword v14, v5, s[8:11], 0 offen sc1
    L_finp:
    {FIN}
    """)
    LATE_Z = list(LATE); del LATE[:]
    S1, S2, S3, MC, TM = 40, 36, 41, 44, 48
    P(f"""
    L_pub0:
    s_cmp_eq_u32 s{sWV}, 2
    s_cbranch_scc1 L_idle
    s_barrier
    s_mul_i32 s{sROW}, s{sWV}, s{sSTR}
    s_add_u32 s{sROW}, s{sROW}, s{sTB}
    s_sub_u32 s{sROWB}, 2048, s{sROW}
    s_cmp_eq_u32 s{sROW}, 0
    s_cselect_b32 s{sROWB}, 1024, s{sROWB}
    s_mul_i32 s56, s{sROW}, 1280
    s_mul_i32 s57, s{sROWB}, 1280
    s_mul_i32 s49, s{sWV}, {XP}
    s_add_u32 s49, s49, {L_XR}
    v_add_u32 v233, s49, v{vL4}
    v_lshlrev_b32 v234, 3, v{vW}
    s_cmp_eq_u32 s{sTB}, 0
    s_cselect_b32 s47, 0, 8
    v_add_u32 v9, {L_WR}, v{vL16}
    v_add_u32 v10, {L_WR+1024}, v{vL4}
    ds_read_b128 {v(16,4)}, v9
    ds_read_b32 v20, v10
    v_lshrrev_b32 v22, 2, v{vL}
    v_and_b32 v23, 7, v22
    v_mov_b32 v11, s47
    v_cmp_ne_u32 vcc, 0, v23
    v_cndmask_b32 v11, v11, 8, vcc
    v_and_b32 v24, 1, v{vL}
    v_mul_u32_u24 v11, v11, v24
    v_xor_b32 v11, v11, v22
    v_and_b32 v24, 3, v{vL}
    v_mul_u32_u24 v24, 384, v24
    v_lshl_add_u32 v26, v11, 3, v24
    v_lshl_add_u32 v25, v11, 4, v24
    v_and_b32 v11, 3, v11
    v_lshl_add_u32 v25, v11, 2, v25
    v_mul_u32_u24 v23, s{sSTR}, v23
    v_add_u32 v23, s{sTB}, v23
    v_sub_u32 v9, 2048, v23
    v_mov_b32 v10, 1024
    v_cmp_eq_u32 vcc, 0, v23
    v_cndmask_b32 v9, v9, v10, vcc
    v_cmp_lt_u32 vcc, 31, v{vL}
    v_cndmask_b32 v23, v23, v9, vcc
    v_lshlrev_b32 v23, 6, v23
    v_lshlrev_b32 v27, 3, v22
    v_mov_b32 v{MC+2}, v14
    v_mov_b32 v{MC+3}, v14
    s_mul_i32 s54, s{sIDX}, {KST}
    s_add_u32 s54, s54, {KEYS}
    {"buffer_load_dword v253, v5, s[8:11], s54 offen" if OPT.get("kpre", 1) == 1 else ""}
    s_lshr_b32 s36, s2, 6
    s_lshl2_add_u32 s36, s36, s{sJ}
    s_lshl_b32 s43, s{sXCD}, 8
    s_lshl2_add_u32 s36, s36, s43
    s_add_u32 s36, s36, {SEN1}
    s_mov_b32 s47, 0xffff8000
    s_mov_b32 s50, 0x11111111
    s_mov_b32 s51, s50
    s_brev_b32 s52, 1
    s_mov_b32 s48, {STATS}
    s_mov_b32 s49, 0x3f803f80
    v_mov_b32 v21, 0
    s_waitcnt lgkmcnt(0)
    """)
    for i in range(5): P(f"v_dot2c_f32_bf16 v21, s49, v{16+i}")
    for sh in (1, 2, 4, 8): P(f"v_add_f32_dpp v21, v21, v21 row_shr:{sh} row_mask:0xf bank_mask:0xf bound_ctrl:0")
    P(f"""
    v_add_f32_dpp v21, v21, v21 row_bcast:15 row_mask:0xa bank_mask:0xf
    v_add_f32_dpp v21, v21, v21 row_bcast:31 row_mask:0xc bank_mask:0xf
    v_readlane_b32 s55, v21, 63
    s_setprio 3
    s_barrier
    """)
    stamp(P, 9)
    for i in range(3):
        P(f"ds_read_b32 v{36+i}, v25 offset:{L_PART + 1536*i}")
        P(f"ds_read_b64 {v(30+2*i,2)}, v26 offset:{L_PART + 1536*i + 256}")
    P(f"""
    s_waitcnt lgkmcnt(2)
    v_add_f32 v36, v36, v37
    v_pk_add_f32 {v(30,2)}, {v(30,2)}, {v(32,2)}
    s_waitcnt lgkmcnt(0)
    v_add_f32 v{S2}, v36, v38
    v_add_f32 v{S1}, v31, v35
    v_add_f32 v{S3}, v30, v34
    """)
    for qp in ("[1,0,3,2]", "[2,3,0,1]"):
        for r in (S2, S1, S3): P(f"v_add_f32_dpp v{r}, v{r}, v{r} quad_perm:{qp} row_mask:0xf bank_mask:0xf")
    P(f"""
    v_mul_f32 v{MC}, s{sC640}, v{S1}
    v_mul_f32 v{TM}, v{MC}, v{MC}
    v_fma_f32 v{S2}, v{S2}, s{sC640}, -v{TM}
    v_max_f32 v{S2}, 0, v{S2}
    """)
    for o in bf16_round(S2): P(o)
    P(f"v_add_f32 v{S2}, {f2u(1e-5)}, v{S2}")
    for o in bf16_round(S2): P(o)
    P(f"v_sqrt_f32 v{S2}, v{S2}")
    for o in bf16_round(MC): P(o)
    for o in bf16_round(S2): P(o)
    P(f"""
    v_rcp_f32 v{TM+2}, v{S2}
    v_fma_f32 v{S3}, -v{MC}, s55, v{S3}
    v_mul_f32 v{S3}, v{S3}, v{TM+2}
    v_cvt_pk_bf16_f32 v{S3}, v{S3}, v{S3}
    v_ashrrev_i32 v{TM}, 31, v{S3}
    s_mov_b64 exec, s[50:51]
    v_bitop3_b32 v{S3}, v{S3}, v{TM}, s52 bitop3:0x1e
    v_lshrrev_b32 v{S3}, 1, v{S3}
    v_bfi_b32 v{S3}, s47, v{S3}, v14
    {"buffer_store_dword v14, v5, s[8:11], s36 offen" if OPT.get("h1pos", 3) == 2 else ""}
    buffer_store_dword v{S3}, v{vL}, s[8:11], s54 offen sc1
    {"buffer_store_dword v14, v5, s[8:11], s36 offen" if OPT.get("h1pos", 3) == 3 else ""}
    """)
    stamp(P, 10)
    P(f"""
    v_add_f32 v{MC+1}, 1.0, v{S2}
    v_mul_f32 v{TM+3}, v{MC}, v{TM+2}
    v_add_f32 v{TM+2}, 1.0, v{TM+2}
    v_rcp_f32 v{MC+1}, v{MC+1}
    ds_write_b64 v27, {v(TM+2,2)} offset:{L_RM}
    buffer_store_dwordx4 {v(MC,4)}, v23, s[8:11], s48 offen sc1
    s_mov_b64 exec, -1
    s_setprio 0
    s_branch L_out
    """)
    P_keep = P; P = Prog()
    P(f"""
    L_idle:
    s_mov_b32 s49, {L_WR}
    v_add_u32 v9, s{sJ}, v{vQ}
    v_and_b32 v9, 3, v9
    v_bfe_u32 v10, v{vL}, 1, 1
    v_lshl_add_u32 v9, v9, 1, v10
    v_add_u32 v9, -1, v9
    v_and_b32 v9, 7, v9
    v_and_b32 v10, 1, v{vL}
    v_lshl_add_u32 v9, v10, 5, v9
    v_and_b32 v10, 4, v{vL}
    v_lshl_add_u32 v9, v10, 5, v9
    v_lshlrev_b32 v9, 1, v9
    v_add_u32 v16, {L_WR+2}, v9
    v_sub_u32 v17, {L_WR+1278}, v9
    v_mov_b32 v18, 16
    v_and_b32 v10, 8, v{vL}
    v_cmp_ne_u32 vcc, 0, v10
    v_cndmask_b32 v16, v16, v17, vcc
    v_cndmask_b32 v18, v18, -16, vcc
    v_lshrrev_b32 v9, 4, v{vL}
    v_and_b32 v10, 3, v{vL}
    v_lshl_add_u32 v9, v9, 2, v10
    v_add_u32 v9, -1, v9
    v_and_b32 v9, 7, v9
    v_lshlrev_b32 v9, 1, v9
    v_add_u32 v19, {L_WR+514}, v9
    v_sub_u32 v17, {L_WR+766}, v9
    v_cndmask_b32 v19, v19, v17, vcc
    """)
    for i in range(8):
        m = 8*(i >> 2) + (i & 3)
        P(f"v_mad_i32_i24 v20, v18, {m}, v16")
        P(f"ds_read_u16 v{24+i}, v20")
    for i in range(8):
        m = (i >> 1) + 4*(i & 1)
        P(f"v_mad_i32_i24 v20, v18, {m}, v19")
        if i == 7: P(f"v_writelane_b32 v20, s49, 8")
        P(f"ds_read_u16 v{32+i}, v20")
    P("s_waitcnt lgkmcnt(0)")
    for i in range(8): P(f"v_lshl_or_b32 v{40+i}, v{25+2*i}, 16, v{24+2*i}")
    P(f"""
    ds_write_b128 v{vL16}, {v(40,4)} offset:{L_WF+512}
    s_mov_b32 exec_hi, 0
    ds_write_b128 v{vL16}, {v(44,4)} offset:{L_WF}
    s_mov_b64 exec, -1
    s_waitcnt lgkmcnt(0)
    s_barrier
    s_mul_i32 s{sROW}, s{sWV}, s{sSTR}
    s_add_u32 s{sROW}, s{sROW}, s{sTB}
    s_sub_u32 s{sROWB}, 2048, s{sROW}
    s_cmp_eq_u32 s{sROW}, 0
    s_cselect_b32 s{sROWB}, 1024, s{sROWB}
    s_mul_i32 s56, s{sROW}, 1280
    s_mul_i32 s57, s{sROWB}, 1280
    s_mul_i32 s49, s{sWV}, {XP}
    s_add_u32 s49, s49, {L_XR}
    v_add_u32 v233, s49, v{vL4}
    v_lshlrev_b32 v234, 3, v{vW}
    s_cmp_eq_u32 s{sTB}, 0
    s_cselect_b32 s47, 0, 8
    s_barrier
    s_branch L_out
    """)
    IDLE = list(P.lines); P = P_keep
    RARE = Prog()
    P_main = P
    P = RARE
    toff = [16*u + 64*ih for u in range(4) for ih in range(2)]
    P(f"""
    L_tprep:
    s_movk_i32 s49, 528
    v_cmp_eq_u32 s[52:53], s49, v9
    v_add_u32 v{aSP}, {432-toff[7]}, v{aX2}
    v_cndmask_b32 v{aSP}, v{aSP}, v11, s[52:53]
    """)
    for i in range(8):
        P(f"ds_read_u16_d16_hi v{X1+4*(i>>1)+(i&1)}, v{aX1} offset:{toff[i]}")
    for i in range(8):
        if i < 7: P(f"ds_read_u16_d16_hi v{DL+i}, v{aX2} offset:{432-toff[i]}")
        else: P(f"ds_read_u16_d16_hi v{DL+i}, v{aSP}")
    for i in range(4):
        P(f"v_mov_b32 v{W1+i}, v12"); P(f"v_mov_b32 v{W2+i}, v12")
        P(f"v_mov_b32 v{X1+4*i+2}, 0"); P(f"v_mov_b32 v{X1+4*i+3}, 0")
    P("s_waitcnt lgkmcnt(0)")
    P(f"v_mov_b32 v{DL+8}, v{DL+7}")
    for u in range(4): P(f"v_pk_add_f32 {v(DL+2*u,2)}, {v(DL+2*u,2)}, {v(X1+4*u,2)} neg_lo:[0,1] neg_hi:[0,1]")
    stamp(P, 6)
    P("s_barrier")
    stamp(P, 7)
    if not OPT.get("tlate"):
        for i in range(8): P(f"buffer_load_dwordx4 {v(ZR+4*i,4)}, v5, s[8:11], s{58+i} offen sc1")
    P("s_mov_b32 s50, 0")
    P(f"v_add_u32 v9, {L_CF}, v{vL16}")
    for k in range(4):
        P(f"ds_read2_b32 {v(CF+4*(k>>1)+2*(k&1),2)}, v9 offset0:0 offset1:2")
        P(f"ds_read2_b32 {v(CF+8+4*(k>>1)+2*(k&1),2)}, v9 offset0:1 offset1:3")
        if k < 3: P(f"v_add_u32 v9, 1024, v9")
    wmask(1)
    P(f"ds_read_b128 {v(W1,4)}, v{aW1} offset:{L_WF}")
    P(f"ds_read_b128 {v(W2,4)}, v{aW1} offset:{L_WF+128}")
    wmask(0)
    if OPT.get("tlate", 0) > 1: P(f"s_sleep {OPT['tlate']}")
    if not OPT.get("tlate"): P("s_branch L_tgo")
    P("L_tretry:")
    for i in range(8): P(f"buffer_load_dwordx4 {v(ZR+4*i,4)}, v5, s[8:11], s{58+i} offen sc1")
    P(f"""
    L_tgo:
    {"s_setprio 2" if OPT.get("tprio", 1) else ""}
    v_mov_b32 v10, 0
    s_waitcnt lgkmcnt(0)
    """)
    for k in range(2):
        z = ZR + 16*k; y = YT + 16*k
        P(f"s_waitcnt vmcnt({4 - 4*k})")
        def mt(u):
            P(f"v_mfma_f32_16x16x32_f16 {v(AC+4*u,4)}, {v(y+4*u,4)}, {v(CF+4*k,4)}, {v(X1+4*u,4) if k==0 else v(AC+4*u,4)}")
            P(f"v_or3_b32 v10, v10, v{y+4*u}, v{y+4*u+1}")
            P(f"v_mfma_f32_16x16x32_f16 {v(AB+4*u,4)}, {v(y+4*u,4)}, {v(CF+8+4*k,4)}, {'0' if k==0 else v(AB+4*u,4)}")
            P(f"v_or3_b32 v10, v10, v{y+4*u+2}, v{y+4*u+3}")
        for u in range(4):
            for l in range(4): P(f"v_xor_b32 v{y+4*u+l}, v{236+u}, v{z+4*l+u}")
            if u: mt(u-1)
        mt(3)
    P(f"v_and_b32 v10, 0x10001, v10")
    P(f"v_cmp_ne_u32 vcc, 0, v10")
    spin_tail(P, 50, "L_tretry", "L_tok")
    stamp(P, 8)
    for u in range(4): P(f"v_pk_add_f32 {v(AC+4*u,2)}, {v(AC+4*u,2)}, {v(AB+4*u+2,2)}")
    for u in range(4): P(f"v_cvt_pk_bf16_f32 v{PH+u}, v{AC+4*u}, v{AC+4*u+1}")
    for u in range(4): P(f"v_pk_add_f32 {v(AC+4*u,2)}, {v(AC+4*u,2)}, {v(DL+2*u,2)}")
    P(f"v_cndmask_b32 v{AC+13}, v{AC+13}, v{DL+8}, s[52:53]")
    stat_mm(0, 0, True)
    for u in range(4): P(f"v_cvt_pk_bf16_f32 v{PH+8+u}, v{AC+4*u}, v{AC+4*u+1}")
    stat_mm(1, 0, True)
    partw()
    stamp(P, 9)
    for i in range(8):
        P(f"ds_write_b16{'_d16_hi' if i & 1 else ''} v{aX1}, v{PH+i//2} offset:{toff[i]}")
        if i < 7: P(f"ds_write_b16{'_d16_hi' if i & 1 else ''} v{aX2}, v{PH+8+i//2} offset:{432-toff[i]}")
        else: P(f"ds_write_b16_d16_hi v{aSP}, v{PH+11}")
    P("s_branch L_out")
    flush_late(P)
    TAILC = list(RARE.lines)
    RARE = Prog(); P = RARE
    P("L_zretry:")
    for i in range(8):
        P(f"buffer_load_dwordx4 {v(ZR+8*i,4)}, v5, s[8:11], s{58+i} offen sc1")
        P(f"buffer_load_dwordx4 {v(ZR+8*i+4,4)}, v7, s[8:11], s{58+i} offen sc1")
    P("s_branch L_zgo")
    for t_ in LATE_Z: P(t_)
    P = P_main
    k_ = P.lines.index("L_rare:") + 1
    P.lines[k_:k_] = RARE.lines
    k_ = P.lines.index("L_M:") - 1
    P.lines[k_:k_] = TAILC
    SEC[0] = "ffn"
    BW = 48; AR = 112; A0 = 128
    KK = 16; ID = 24; K4 = 32; CB = 112
    P.raw(".p2align 12")
    P(f"""
    L_ffn:
    s_barrier
    s_cmp_lg_u32 s{sWV}, 0
    s_cbranch_scc1 L_noflag
    s_mul_i32 s49, s{sIDX}, {KST}
    s_add_u32 s49, s49, {FLAGS}
    s_mov_b64 exec, 1
    buffer_store_dword v14, v13, s[8:11], s49 offen sc1
    s_mov_b64 exec, -1
    L_noflag:
    s_cmp_ge_u32 s{sIDX}, 108
    s_cbranch_scc1 L_setup
    v_lshrrev_b32 v13, 1, v{vL}
    v_and_b32 v9, 2, v13
    v_bfe_u32 v10, v13, 3, 1
    v_and_b32 v13, 21, v13
    v_lshl_or_b32 v13, v9, 2, v13
    v_lshl_or_b32 v13, v10, 1, v13
    v_mul_u32_u24 v13, 3456, v13
    v_and_b32 v9, 1, v{vL}
    v_lshl_add_u32 v13, v9, 4, v13
    s_lshl_b32 s58, s{sIDX}, 5
    s_and_b32 s47, s{sJ}, 3
    s_mul_i32 s47, s47, 5
    s_add_u32 s48, s{sWV}, {5 if E5 else 4}
    L_dma1:
    s_add_u32 s49, s48, s47
    s_cmp_ge_u32 s49, 20
    s_cselect_b32 s50, 20, 0
    s_sub_u32 s49, s49, s50
    s_lshr_b32 s50, s49, 2
    s_lshl_b32 s50, s50, 13
    s_and_b32 s51, s49, 3
    s_lshl_b32 s51, s51, 10
    s_add_u32 s50, s50, s51
    s_add_u32 m0, s50, {L_WT1}
    s_mul_i32 s51, s49, {32*3456}
    s_add_u32 s51, s51, s58
    {"s_nop 0" if OPT.get("now") else f"buffer_load_dwordx4 v13, s[20:23], s51 offen lds"}
    s_add_u32 m0, m0, 4096
    s_add_u32 s48, s48, 8
    {"s_nop 0" if OPT.get("now") else f"buffer_load_dwordx4 v13, s[24:27], s51 offen lds"}
    s_cmp_lt_u32 s48, 20
    s_cbranch_scc1 L_dma1
    L_setup:
    v_lshrrev_b32 v7, 2, v0
    v_mul_u32_u24 v7, {KST}, v7
    v_and_b32 v12, 3, v0
    v_lshl_add_u32 v7, v12, 4, v7
    s_mov_b32 s52, {KEYS}
    {"buffer_load_dword v253, v7, s[8:11], s52 offen sc1" if OPT.get("kwarm", 0) else ""}
    v_and_b32 v9, 1, v{vN}
    v_mul_u32_u24 v144, 0xaaaa, v9
    v_or_b32 v144, 0x4444, v144
    """)
    P(f"""
    v_bfe_u32 v9, v0, 4, 3
    v_lshlrev_b32 v9, 1, v9
    v_add_u32 v40, 1, v9
    v_sub_u32 v41, 32, v9
    v_sub_u32 v42, 32, v40
    v_cmp_eq_u32 vcc, 0, v9
    v_cndmask_b32 v41, v41, 16, vcc
    v_and_b32 v12, 128, v0
    v_cmp_ne_u32 vcc, 0, v12
    v_cndmask_b32 v9, v9, v41, vcc
    v_cndmask_b32 v40, v40, v42, vcc
    v_bfe_u32 v10, v0, 2, 2
    v_and_b32 v12, 1, v0
    v_lshl_add_u32 v10, v10, 1, v12
    v_lshlrev_b32 v10, 2, v10
    v_mov_b32 v11, 64
    v_cmp_eq_u32 vcc, 0, v9
    v_cndmask_b32 v11, v11, 32, vcc
    v_mad_u32_u24 v{ID}, v10, v11, v9
    v_lshl_add_u32 v{ID+4}, v10, 6, v40
    """)
    for i in range(1, 4):
        P(f"v_add_u32 v{ID+i}, v{ID+i-1}, v11")
        P(f"v_add_u32 v{ID+4+i}, 64, v{ID+3+i}")
    P(f"""
    v_and_b32 v12, 2, v0
    v_cmp_ne_u32 vcc, 0, v12
    """)
    for i in range(8):
        P(f"v_sub_u32 v9, 2048, v{ID+i}")
        P(f"v_cndmask_b32 v{ID+i}, v{ID+i}, v9, vcc")
    P(f"""
    v_mov_b32 v11, 1024
    v_cmp_eq_u32 vcc, 2, v0
    v_cndmask_b32 v{ID}, v{ID}, v11, vcc
    s_mov_b32 s53, {KEYS + 64*KST}
    s_lshr_b32 s54, s2, 6
    s_and_b32 s43, s{sJ}, 3
    s_lshl2_add_u32 s54, s54, s43
    s_mov_b32 s55, {OOB}
    s_cmp_eq_u32 s54, 10
    s_cmov_b32 s55, {STATS}
    s_cmp_lt_u32 s54, 10
    s_cselect_b32 s54, s54, {OOB>>7}
    s_lshl_b32 s54, s54, 7
    v_mov_b32 v12, 0
    v_lshrrev_b32 v5, 4, v0
    v_lshlrev_b32 v5, 2, v5
    v_lshlrev_b32 v151, 2, v{vN}
    v_lshlrev_b32 v43, 4, v{vQ}
    v_lshrrev_b32 v147, 1, v{vN}
    v_lshrrev_b32 v9, 3, v{vL}
    s_cmp_ge_u32 s{sWV}, 5
    s_cselect_b64 vcc, -1, 0
    v_cndmask_b32 v147, v147, v9, vcc
    v_lshlrev_b32 v147, 2, v147
    v_and_b32 v148, 1, v{vN}
    v_lshl_add_u32 v148, v{vQ}, 1, v148
    v_lshlrev_b32 v148, 4, v148
    s_cmp_lt_u32 s{sIDX}, 108
    s_cselect_b32 s43, 7, 8
    v_lshlrev_b32 v149, s43, v{vQ}
    v_lshl_add_u32 v149, v{vN}, 2, v149
    v_lshl_add_u32 v149, v{vW}, 10, v149
    v_add_u32 v149, {L_RED}, v149
    s_lshl_b32 s56, s{sWV}, 8
    s_movk_i32 s57, 1280
    v_mov_b32 v152, 1
    v_mov_b32 v153, 0x7fff
    v_mov_b32 v158, 0
    v_mov_b32 v156, 0
    s_mov_b32 s52, {KEYS}
    s_mov_b32 s59, 0x7fff8000
    """)
    P(f"""
    s_cmp_ge_u32 s{sIDX}, 108
    s_cbranch_scc1 L_f2load
    """)
    P(f"""
    v_lshrrev_b32 v9, 1, v{vQ}
    v_and_b32 v10, 1, v{vQ}
    v_lshlrev_b32 v15, 3, v{vN}
    v_lshl_add_u32 v15, v10, 7, v15
    v_lshl_add_u32 v15, v9, 9, v15
    v_add_u32 v15, {L_WT1}, v15
    s_waitcnt vmcnt(0)
    s_barrier
    """)
    P("s_branch L_tk")
    P(f"""
    L_f2load:
    s_waitcnt vmcnt(0)
    s_barrier
    """)
    stamp(P, 9)
    P(f"""
    v_bfe_u32 v13, v{vL}, 2, 1
    v_and_b32 v9, 8, v{vL}
    v_or_b32 v13, v13, v9
    v_lshl_or_b32 v13, v{vQ}, 1, v13
    v_mul_u32_u24 v13, 1280, v13
    v_and_b32 v9, 2, v{vQ}
    v_xor_b32 v9, v9, v{vL}
    v_and_b32 v9, 3, v9
    v_lshl_add_u32 v13, v9, 4, v13
    s_sub_u32 s58, s{sIDX}, 108
    s_lshl_b32 s58, s58, 6
    s_and_b32 s47, s{sJ}, 1
    s_mov_b32 s47, 0
    s_mov_b32 s48, s{sWV}
    L_dma2:
    s_add_u32 s49, s48, s47
    s_cmp_ge_u32 s49, 112
    s_cselect_b32 s50, 112, 0
    s_sub_u32 s49, s49, s50
    s_lshl_b32 s50, s49, 10
    s_add_u32 m0, s50, {L_WT}
    s_mul_i32 s51, s49, {16*1280}
    s_add_u32 s51, s51, s58
    s_add_u32 s48, s48, 8
    {"s_nop 0" if OPT.get("now") else f"buffer_load_dwordx4 v13, s[28:31], s51 offen lds"}
    s_cmp_lt_u32 s48, 112
    s_cbranch_scc1 L_dma2
    v_lshrrev_b32 v9, 2, v{vN}
    v_and_b32 v10, 3, v{vN}
    v_lshlrev_b32 v15, 9, v{vQ}
    v_lshl_add_u32 v15, v9, 6, v15
    v_lshl_add_u32 v15, v10, 3, v15
    v_and_b32 v9, 1, v{vQ}
    v_lshl_add_u32 v15, v9, 5, v15
    v_lshl_add_u32 v15, v{vW}, 14, v15
    v_xor_b32 v145, 32, v15
    s_cmp_lg_u32 s{sWV}, 0
    s_cbranch_scc1 L_dok
    v_mul_u32_u24 v11, {KST}, v{vL}
    s_mov_b32 s49, {FLAGS}
    s_mov_b32 s47, {FLAGS+64*KST}
    s_mov_b32 s50, 0
    L_dpoll:
    buffer_load_dword v9, v11, s[8:11], s49 offen sc1
    buffer_load_dword v10, v11, s[8:11], s47 offen sc1
    s_waitcnt vmcnt(0)
    v_bitop3_b32 v9, v9, v10, v14 bitop3:0x7e
    v_cmp_ne_u32 vcc, 0, v9
    """)
    spin_tail(P, 50, "L_dpoll", "L_dok")
    P(f"""
    s_waitcnt vmcnt(0)
    s_barrier
    """)
    stamp(P, 6)
    P(f"s_cmp_eq_u32 s{sWV}, 7"); P("s_cbranch_scc1 L_f2fin")
    for blk in range(4):
        for ct in range(2):
            for j in range(4):
                P(f"ds_read_b64_tr_b16 {v(BW+16*blk+8*ct+2*j,2)}, v{145 if ct else 15} offset:{L_WT + 4096*blk + 2048*(j>>1) + 256*(j&1)}")
    P("s_branch L_f2")
    P("L_tk:")
    if HP == 1:
        P(f"""
        s_cmp_lt_u32 s{sWV}, 4
        s_cbranch_scc1 L_nohelp
        v_mul_u32_u24 v9, 1280, v{vL}
        s_mov_b32 exec_hi, 0xf
        buffer_load_dword v159, v9, s[28:31], s65 offen
        s_mov_b64 exec, -1
        L_nohelp:
        """)
    stamp(P, 6)
    P(f"""
    s_cmp_eq_u32 s{sWV}, 6
    s_cbranch_scc1 L_pad0
    s_cmp_eq_u32 s{sWV}, 7
    s_cbranch_scc1 L_fchk
    s_cmp_lg_u32 s{sWV}, 4
    s_cbranch_scc1 L_tk1
    s_branch L_w4prep
    L_tk1:
    s_barrier
    s_cmp_ge_u32 s{sWV}, 4
    s_cbranch_scc1 L_tk2
    s_mov_b32 s50, 0
    """)
    stamp(P, 7)
    P(f"""
    L_kpoll:
    buffer_load_dwordx4 {v(KK,4)}, v7, s[8:11], s52 offen sc1
    buffer_load_dwordx4 {v(KK+4,4)}, v7, s[8:11], s53 offen sc1
    s_waitcnt vmcnt(1)
    v_max3_u32 v10, v{KK}, v{KK+1}, v{KK+2}
    v_bitop3_b32 v40, v{KK}, v{KK+1}, v14 bitop3:0x7e
    v_bitop3_b32 v41, v{KK+2}, v{KK+3}, v14 bitop3:0x7e
    s_waitcnt vmcnt(0)
    v_max3_u32 v11, v{KK+3}, v{KK+4}, v{KK+5}
    v_max3_u32 v10, v10, v{KK+6}, v{KK+7}
    v_max_u32 v10, v10, v11
    v_bitop3_b32 v42, v{KK+4}, v{KK+5}, v14 bitop3:0x7e
    v_bitop3_b32 v11, v{KK+6}, v{KK+7}, v14 bitop3:0x7e
    v_max_u32_dpp v10, v10, v10 row_ror:1 row_mask:0xf bank_mask:0xf
    v_or3_b32 v40, v40, v41, v42
    v_bitop3_b32 v40, v40, v11, v153 bitop3:0xa8
    v_max_u32_dpp v10, v10, v10 row_ror:2 row_mask:0xf bank_mask:0xf
    v_cmp_ne_u32 vcc, 0, v40
    v_and_or_b32 v{KK}, v{KK}, s59, v{ID}
    v_max_u32_dpp v10, v10, v10 row_ror:4 row_mask:0xf bank_mask:0xf
    """)
    spin_tail(P, 50, "L_kpoll", "L_kok")
    stamp(P, 8)
    if OPT["stamps"]: P("s_add_u32 s96, s50, 1")
    P(f"""
    v_and_or_b32 v{KK+1}, v{KK+1}, s59, v{ID+1}
    v_max_u32_dpp v10, v10, v10 row_ror:8 row_mask:0xf bank_mask:0xf
    v_and_or_b32 v10, v10, s59, v5
    ds_write_b32 v5, v10 offset:{L_GM}
    """)
    for i in range(2, 8): P(f"v_and_or_b32 v{KK+i}, v{KK+i}, s59, v{ID+i}")
    P(f"""
    v_max3_u32 v9, v{KK}, v{KK+1}, v{KK+2}
    v_max3_u32 v11, v{KK+3}, v{KK+4}, v{KK+5}
    v_max3_u32 v9, v9, v{KK+6}, v{KK+7}
    v_max_u32 v9, v9, v11
    """)
    P(f"""
    L_tk2:
    s_waitcnt lgkmcnt(0)
    s_barrier
    s_cmp_ge_u32 s{sWV}, 4
    s_cbranch_scc1 L_tk3
    """)
    def rank16(off, own):
        P(f"ds_read_b32 v{own}, v151 offset:{off}")
        P(f"ds_read_b128 {v(CB,4)}, v43 offset:{off}")
    def rank16b(own, acc):
        P("s_waitcnt lgkmcnt(0)")
        for i in range(4): P(f"v_sub_u32 v{CB+i}, v{own}, v{CB+i}")
        P(f"v_lshrrev_b32 v{acc}, 31, v{CB}")
        for i in range(1, 4): P(f"v_alignbit_b32 v{acc}, v{acc}, v{CB+i}, 31")
        P(f"""
        v_bcnt_u32_b32 v{acc}, v{acc}, 0
        v_mov_b32 v{CB}, v{acc}
        v_permlane16_swap_b32 v{acc}, v{CB}
        v_add_u32 v{acc}, v{acc}, v{CB}
        v_mov_b32 v{CB}, v{acc}
        v_permlane32_swap_b32 v{acc}, v{CB}
        v_add_u32 v{acc}, v{acc}, v{CB}
        """)
    rank16(L_GM, 10)
    P(f"""
    v_and_b32 v159, 2047, v9
    v_lshlrev_b32 v160, 6, v159
    v_mul_u32_u24 v159, 1280, v159
    """)
    rank16b(10, 11)
    P(f"""
    v_cmp_eq_u32 vcc, 7, v11
    s_ff1_i32_b64 s47, vcc
    v_readlane_b32 s48, v10, s47
    s_and_b32 s48, s48, s59
    v_cmp_le_i32 vcc, s48, v9
    v_mov_b32 v10, v9
    s_cbranch_vccz L_tk3
    s_mov_b64 exec, vcc
    ds_add_rtn_u32 v11, v12, v152
    buffer_load_dword v253, v159, s[12:15], s54 offen sc1
    buffer_load_dword v253, v160, s[8:11], s55 offen sc1
    s_branch L_app2
    L_tkagain:
    v_mov_b32 v10, v9
    L_app:
    v_cmp_le_i32 vcc, s48, v10
    s_cbranch_vccz L_tk3
    s_mov_b64 exec, vcc
    ds_add_rtn_u32 v11, v12, v152
    {"" if not OPT.get("touch", 1) else f"v_and_b32 v{K4}, 2047, v10"}
    {"" if not OPT.get("touch", 1) else f"v_lshlrev_b32 v{K4+1}, 6, v{K4}"}
    {"" if not OPT.get("touch", 1) else f"v_mul_u32_u24 v{K4}, 1280, v{K4}"}
    {"" if not OPT.get("touch", 1) else f"buffer_load_dword v253, v{K4+1}, s[8:11], s55 offen sc1"}
    {"" if not OPT.get("touch", 1) else f"buffer_load_dword v253, v{K4}, s[12:15], s54 offen sc1"}
    L_app2:
    s_mov_b64 exec, -1
    v_add_u32 v{K4+8}, -1, v10
    """)
    for i in range(8): P(f"v_sub_u32 v{K4+i}, v{K4+8}, v{KK+i}")
    P(f"""
    v_min3_u32 v{K4}, v{K4}, v{K4+1}, v{K4+2}
    v_min3_u32 v{K4+3}, v{K4+3}, v{K4+4}, v{K4+5}
    v_min3_u32 v{K4}, v{K4}, v{K4+6}, v{K4+7}
    v_min3_u32 v{K4}, v{K4}, v{K4+3}, v10
    s_waitcnt lgkmcnt(0)
    v_min_u32 v11, 16, v11
    v_lshlrev_b32 v11, 2, v11
    s_mov_b64 exec, vcc
    ds_write_b32 v11, v10 offset:{L_LIST}
    v_sub_u32 v10, v{K4+8}, v{K4}
    s_mov_b64 exec, -1
    s_branch L_app
    """)
    flush_late(P)
    P(f"""
    L_pad0:
    s_branch L_pad1
    L_fchk:
    """)
    P(f"""
    s_lshl_b32 s49, s{sXCD}, 8
    s_add_u32 s49, s49, {SEN1}
    s_mov_b32 s50, 0
    s_mov_b64 exec, 0xffff
    L_h1:
    buffer_load_dword v10, v{vL4}, s[8:11], s49 offen sc1
    s_add_u32 s50, s50, 1
    s_cmp_gt_u32 s50, {HINTMAX}
    s_waitcnt vmcnt(0)
    v_cmp_ne_u32 vcc, v14, v10
    s_cbranch_scc1 L_h1_d
    s_cbranch_vccnz L_h1
    L_h1_d:
    {f"buffer_load_dword v10, v{vL4}, s[8:11], s49 offen sc1" if OPT.get("k2") else ""}
    {"s_waitcnt vmcnt(0)" if OPT.get("k2") else ""}
    {f"buffer_load_dword v10, v{vL4}, s[8:11], s49 offen sc1" if OPT.get("k2", 0) > 1 else ""}
    {"s_waitcnt vmcnt(0)" if OPT.get("k2", 0) > 1 else ""}
    s_mov_b64 exec, -1
    {"s_sleep %d" % OPT["kdelay"] if OPT.get("kdelay") else ""}
    s_branch L_tk1
    """)
    P(f"""
    L_tk3:
    s_waitcnt lgkmcnt(0)
    s_barrier
    ds_read_b32 v{K4+9}, v12
    """)
    rank16(L_LIST, 10)
    rank16b(10, 11)
    P(f"""
    v_cmp_gt_u32 vcc, 8, v11
    v_readfirstlane_b32 s47, v{K4+9}
    v_lshlrev_b32 v11, 2, v11
    s_mov_b64 exec, vcc
    ds_write_b32 v11, v10 offset:{L_SEL}
    s_mov_b64 exec, -1
    ds_read_b32 v150, v147 offset:{L_SEL}
    ds_read_b64 v[154:155], v158 offset:{L_SEL}
    s_mov_b32 s50, 0
    s_cmp_le_u32 s47, 16
    s_cbranch_scc1 L_tkdone
    ds_read_b32 v10, v12 offset:{L_SEL+28}
    s_waitcnt lgkmcnt(0)
    s_barrier
    v_readfirstlane_b32 s48, v10
    v_mov_b32 v11, -1
    ds_write_b32 v12, v12
    ds_write_b32 v151, v11 offset:{L_LIST}
    s_waitcnt lgkmcnt(0)
    s_barrier
    s_cmp_ge_u32 s{sWV}, 4
    s_cbranch_scc1 L_tk3
    s_branch L_tkagain
    """)
    flush_late(P)
    P(f"""
    L_pad1:
    s_branch L_pad2
    L_tkdone:
    """)
    GB = [48 + 8*b for b in range(8)] + [240, 248]
    UB = [160 + 8*b for b in range(10)]
    AG = [16, 20, 24, 28, 32, 36, 112, 116, 120, 124]
    P(f"""
    s_cmp_lg_u32 s{sWV}, 4
    s_cbranch_scc1 L_selpub
    s_waitcnt lgkmcnt(0)
    """)
    stamp(P, 10)
    P(f"""
    v_and_b32 v9, 2047, v150
    v_mad_u32_u24 v9, v9, s57, v148
    v_and_b32 v154, 2047, v154
    v_and_b32 v155, 2047, v155
    v_lshlrev_b32 v154, 6, v154
    v_lshlrev_b32 v155, 6, v155
    L_gretry:
    """)
    for b in range(10):
        P(f"buffer_load_dwordx4 {v(AG[b],4)}, v9, s[12:15], 0 offen offset:{128*b} sc1")
    P(f"""
    buffer_load_dwordx3 {v(136,3)}, v154, s[8:11], s60 offen sc1
    buffer_load_dwordx3 {v(140,3)}, v155, s[8:11], s60 offen sc1
    """)
    for i in range(8): P(f"v_mov_b32 v{A0+i}, 0")
    P("v_mov_b32 v10, 0")
    for b in range(10):
        P(f"s_waitcnt vmcnt({11-b})")
        P(f"v_smfmac_f32_16x16x64_bf16 {v(A0,4)}, {v(AG[b],4)}, {v(GB[b],8)}, v144")
        P(f"v_max3_u32 v10, v10, v{AG[b]}, v{AG[b]+1}")
        P(f"v_smfmac_f32_16x16x64_bf16 {v(A0+4,4)}, {v(AG[b],4)}, {v(UB[b],8)}, v144")
        P(f"v_max3_u32 v10, v10, v{AG[b]+2}, v{AG[b]+3}")
    P(f"""
    v_cmp_eq_u32 s[62:63], -1, v10
    s_waitcnt vmcnt(0)
    v_bitop3_b32 v10, v138, v142, v14 bitop3:0x7e
    v_mul_f32 v44, {f2u(-1.4426950408889634)}, v137
    v_cmp_ne_u32 vcc, 0, v10
    v_mul_f32 v45, {f2u(-1.4426950408889634)}, v141
    v_mul_f32 v137, v137, v137
    s_or_b64 vcc, vcc, s[62:63]
    v_mul_f32 v141, v141, v141
    """)
    spin_tail(P, 50, "L_gretry", "L_gok")
    stamp(P, 11)
    if OPT["stamps"]: P("s_add_u32 s96, s50, 1")
    P(f"""
    {"buffer_store_dword v14, v12, s[8:11], s64 offen" if OPT.get("h2pos", 2) == 3 else ""}
    v_fma_f32 v{A0}, -v136, v46, v{A0}
    v_fma_f32 v{A0+2}, -v140, v46, v{A0+2}
    v_add_f32 v{A0}, v{A0}, v{A0+1}
    v_add_f32 v{A0+2}, v{A0+2}, v{A0+3}
    v_mul_f32 v44, v44, v{A0}
    v_mul_f32 v45, v45, v{A0+2}
    v_exp_f32 v44, v44
    v_exp_f32 v45, v45
    v_fma_f32 v{A0+4}, -v136, v47, v{A0+4}
    v_fma_f32 v{A0+6}, -v140, v47, v{A0+6}
    v_add_f32 v44, 1.0, v44
    v_add_f32 v45, 1.0, v45
    v_rcp_f32 v44, v44
    v_rcp_f32 v45, v45
    v_add_f32 v{A0+4}, v{A0+4}, v{A0+5}
    v_add_f32 v{A0+6}, v{A0+6}, v{A0+7}
    v_mul_f32 v{A0}, v{A0}, v137
    v_mul_f32 v{A0+2}, v{A0+2}, v141
    v_mul_f32 v{A0}, v{A0}, v44
    v_mul_f32 v{A0+2}, v{A0+2}, v45
    v_mul_f32 v{A0}, v{A0}, v{A0+4}
    v_mul_f32 v{A0+2}, v{A0+2}, v{A0+6}
    v_cvt_pk_bf16_f32 v44, v{A0}, v{A0+2}
    v_mov_b32_dpp v45, v44 quad_perm:[1,0,3,2] row_mask:0xf bank_mask:0xf
    v_perm_b32 v44, v45, v44, v157
    v_min_u32 v44, -2, v44
    {"buffer_store_dword v14, v12, s[8:11], s64 offen" if OPT.get("h2pos", 2) == 2 else ""}
    buffer_store_dword v44, v156, s[8:11], s61 offen sc1
    s_mov_b64 exec, 1
    {"buffer_store_dword v14, v12, s[8:11], s64 offen" if OPT.get("h2pos", 2) == 1 else ""}
    {FIN}
    """)
    flush_late(P)
    P_keep2 = P; P = Prog()
    P("L_w4prep:")
    for b in range(10):
        if b == OPT.get("w4split", 9): P("s_barrier")
        for gu in range(2):
            r = (UB if gu else GB)[b]
            for j in range(4):
                P(f"ds_read_b64_tr_b16 {v(r+2*j,2)}, v15 offset:{8192*(b>>1) + 4096*gu + 2048*(b&1) + 1024*(j>>1) + 256*(j&1)}")
    for i in range(4): P(f"v_mov_b32 v{16+i}, 0x3f803f80")
    for i in range(8): P(f"v_mov_b32 v{A0+i}, 0")
    P(f"""
    v_lshlrev_b32 v158, 3, v{vQ}
    v_and_b32 v9, 1, v{vN}
    v_lshl_add_u32 v156, v{vQ}, 1, v9
    v_lshlrev_b32 v156, 5, v156
    v_and_b32 v10, 14, v{vN}
    v_lshl_add_u32 v156, v10, 1, v156
    v_mov_b32 v157, 0x05040100
    v_mov_b32 v10, 0x03020706
    v_cmp_eq_u32 vcc, 1, v9
    v_cndmask_b32 v157, v157, v10, vcc
    s_mov_b32 s60, {STATS}
    s_lshl_b32 s61, s{sIDX}, 8
    s_add_u32 s61, s61, {ACT}
    {"buffer_load_dword v159, v156, s[8:11], s61 offen" if OPT.get("apre") == 1 else ""}
    s_lshr_b32 s64, s2, 6
    s_and_b32 s43, s{sJ}, 3
    s_lshl2_add_u32 s64, s64, s43
    s_lshl_b32 s43, s{sXCD}, 8
    s_lshl2_add_u32 s64, s64, s43
    s_add_u32 s64, s64, {SEN2}
    s_waitcnt lgkmcnt(0)
    {"s_barrier" if OPT.get("cspos", 0) else ""}
    """)
    for b in range(10):
        P(f"v_smfmac_f32_16x16x64_bf16 {v(A0,4)}, {v(16,4)}, {v(GB[b],8)}, v144")
        P(f"v_smfmac_f32_16x16x64_bf16 {v(A0+4,4)}, {v(16,4)}, {v(UB[b],8)}, v144")
    P(f"""
    v_add_f32 v46, v{A0}, v{A0+1}
    v_add_f32 v47, v{A0+4}, v{A0+5}
    s_setprio 2
    {"" if OPT.get("cspos", 0) else "s_barrier"}
    s_branch L_tk3
    """)
    IDLE += P.lines; P = P_keep2
    D = 16
    P(f"""
    L_selpub:
    s_cmp_lg_u32 s{sWV}, 5
    s_cbranch_scc1 L_fin2
    s_cmp_lg_u32 s54, 0
    s_cbranch_scc1 L_fin2
    ds_read_b32 v150, v{vL4} offset:{L_SEL}
    v_mov_b32 v151, v14
    v_lshlrev_b32 v9, 3, v{vL}
    s_lshl_b32 s49, s{sXCD}, 8
    s_add_u32 s49, s49, {SELR}
    s_mov_b64 exec, 0xffff
    s_waitcnt lgkmcnt(0)
    buffer_store_dwordx2 v[150:151], v9, s[8:11], s49 offen sc1
    s_branch L_fin2
    L_pad2:
    s_branch L_tk1
    """)
    P(f"""
    L_f2:
    s_lshl_b32 s51, s{sWV}, 12
    s_add_u32 s51, s51, {ACT}
    """)
    for i in range(4): P(f"v_mov_b32 v{AR+12+i}, 0")
    P(f"""
    s_lshl_b32 s49, s{sXCD}, 8
    s_add_u32 s49, s49, {SEN2}
    s_mov_b32 s50, 0
    s_mov_b64 exec, 0xfff
    L_h2:
    buffer_load_dword v10, v{vL4}, s[8:11], s49 offen sc1
    s_add_u32 s50, s50, 1
    s_cmp_gt_u32 s50, {HINTMAX}
    s_waitcnt vmcnt(0)
    v_cmp_ne_u32 vcc, v14, v10
    s_cbranch_scc1 L_h2_d
    s_cbranch_vccnz L_h2
    L_h2_d:
    s_mov_b64 exec, -1
    {"s_sleep %d" % OPT["adelay"] if OPT.get("adelay") else ""}
    s_mov_b32 s50, 0
    s_waitcnt lgkmcnt(0)
    """)
    stamp(P, 10)
    P("L_a2:")
    for i in range(3):
        P(f"buffer_load_dwordx4 {v(AR+4*i,4)}, v{vL16}, s[8:11], s51 offen offset:{1024*i} sc1")
    P(f"""
    s_cmp_eq_u32 s{sWV}, 6
    s_cbranch_scc1 L_a3
    buffer_load_dwordx4 {v(AR+12,4)}, v{vL16}, s[8:11], s51 offen offset:3072 sc1
    L_a3:
    v_mov_b32 v10, 0
    """)
    for i in range(8): P(f"v_mov_b32 v{A0+i}, 0")
    for b in range(4):
        if b < 3: P(f"s_waitcnt vmcnt({2-b})")
        for ct in range(2):
            P(f"v_smfmac_f32_16x16x64_bf16 {v(A0+4*ct,4)}, {v(AR+4*b,4)}, {v(BW+16*b+8*ct,8)}, v144")
            P(f"v_max3_u32 v10, v10, v{AR+4*b+2*ct}, v{AR+4*b+2*ct+1}")
    P(f"v_cmp_eq_u32 vcc, -1, v10")
    spin_tail(P, 50, "L_a2", "L_a4")
    stamp(P, 11)
    if OPT["stamps"]: P("s_add_u32 s94, s50, 1")
    P(f"""
    v_add_f32 v{A0}, v{A0}, v{A0+1}
    v_add_f32 v{A0+2}, v{A0+2}, v{A0+3}
    ds_write2_b32 v149, v{A0}, v{A0+2} offset0:0 offset1:32
    v_add_f32 v{A0+4}, v{A0+4}, v{A0+5}
    v_add_f32 v{A0+6}, v{A0+6}, v{A0+7}
    ds_write2_b32 v149, v{A0+4}, v{A0+6} offset0:16 offset1:48
    s_waitcnt lgkmcnt(0)
    s_barrier
    {FIN}
    """)
    flush_late(P)
    P(f"""
    L_f2fin:
    v_and_b32 v13, 7, v{vL}
    v_and_b32 v9, 56, v{vL}
    s_lshl_b32 s49, s{sXCD}, 8
    s_add_u32 s49, s49, {SELR}
    s_mov_b32 s50, 0
    L_spoll:
    buffer_load_dwordx2 v[150:151], v9, s[8:11], s49 offen sc1
    s_waitcnt vmcnt(0)
    v_cmp_ne_u32 vcc, v14, v151
    """)
    spin_tail(P, 50, "L_spoll", "L_spok")
    stamp(P, 8)
    P(f"""
    v_and_b32 v46, 2047, v150
    v_mul_u32_u24 v46, 1280, v46
    v_lshl_add_u32 v46, v13, 3, v46
    L_oretry:
    buffer_load_dwordx2 {v(44,2)}, v46, s[12:15], s58 offen sc1
    s_waitcnt vmcnt(0)
    v_max_u32 v10, v44, v45
    v_cmp_eq_u32 vcc, -1, v10
    """)
    spin_tail(P, 50, "L_oretry", "L_ook")
    P(f"""
    """)
    O = 48
    P(f"""
    v_lshlrev_b32 v9, 1, v150
    v_ashrrev_i32 v10, 31, v9
    v_not_b32 v10, v10
    v_or_b32 v10, 0x80000000, v10
    v_xor_b32 v9, v9, v10
    v_and_b32 v9, 0xffff0000, v9
    v_mul_f32 v9, {f2u(-1.4426950408889634)}, v9
    v_exp_f32 v9, v9
    v_add_f32 v9, 1.0, v9
    v_rcp_f32 v47, v9
    v_lshlrev_b32 v{O}, 16, v44
    v_and_b32 v{O+1}, 0xffff0000, v44
    v_lshlrev_b32 v{O+2}, 16, v45
    v_and_b32 v{O+3}, 0xffff0000, v45
    s_barrier
    """)
    for w in range(7): P(f"ds_read_b128 {v(D+4*w,4)}, v{vL16} offset:{L_RED+1024*w}")
    def pk2(d, x):
        P(f"v_pk_add_f32 {v(d,2)}, {v(d,2)}, {v(x,2)}"); P(f"v_pk_add_f32 {v(d+2,2)}, {v(d+2,2)}, {v(x+2,2)}")
    P("s_waitcnt lgkmcnt(5)"); pk2(D, D+4)
    P("s_waitcnt lgkmcnt(3)"); pk2(D+8, D+12)
    P("s_waitcnt lgkmcnt(1)"); pk2(D+16, D+20); pk2(D, D+8)
    P("s_waitcnt lgkmcnt(0)"); pk2(D+16, D+24); pk2(D, D+16)
    for i in range(4): P(f"v_fma_f32 v{O+i}, v{D+i}, v47, v{O+i}")
    P(f"""
    v_cvt_pk_bf16_f32 v44, v{O}, v{O+1}
    v_cvt_pk_bf16_f32 v45, v{O+2}, v{O+3}
    buffer_store_dwordx2 {v(44,2)}, v46, s[12:15], s58 offen{" sc1" if OPT.get("fsc1", 0) else ""}
    L_fin:
    """)
    if OPT.get("padto"):
        if OPT.get("padwg") is not None:
            P(f"s_cmp_lg_u32 s2, {OPT['padwg']}")
            P("s_cbranch_scc1 L_fin2")
        if OPT.get("padrole") == 1:
            P(f"s_cmp_ge_u32 s{sIDX}, 108"); P("s_cbranch_scc1 L_fin2")
        if OPT.get("padrole") == 2:
            P(f"s_cmp_lt_u32 s{sIDX}, 108"); P("s_cbranch_scc1 L_fin2")
        if OPT.get("padfrom") == 999: P("s_memrealtime s[70:71]")
        P(f"""
        L_padt:
        s_memrealtime s[72:73]
        s_waitcnt lgkmcnt(0)
        s_sub_u32 s72, s72, s70
        s_cmp_lt_u32 s72, {OPT["padto"]}
        s_cbranch_scc1 L_padt
        """)
    P("L_fin2:")
    if OPT["stamps"]:
        P(f"""
        s_memrealtime s[{70+2*NST}:{71+2*NST}]
        s_waitcnt vmcnt(0)
        s_memrealtime s[{72+2*NST}:{73+2*NST}]
        s_waitcnt lgkmcnt(0)
        s_lshl_b32 s49, s2, 6
        s_lshl_b32 s50, s{sWV}, 14
        s_add_u32 s49, s49, s50
        s_add_u32 s49, s49, {ST_OFF}
        s_mov_b64 exec, 1
        v_mov_b32 v1, 0
        """)
        for i in range(NST+2):
            P(f"v_mov_b32 v2, s{70+2*i}")
            P(f"buffer_store_dword v2, v1, s[8:11], s49 offen offset:{4*i}")
    P("L_end:")
    P("s_endpgm")
    flush_late(P)
    P.raw('.p2align 12')
    for l_ in IDLE: P.raw(l_)
    P("L_last:")
    P("s_endpgm")
    return name

def main(out):
    P = Prog()
    name = gen(P)
    body = P.finalize()
    hdr = f"""; x + Re(DFT2(LN(x))), LN, top-8 routed SwiGLU in one persistent launch (256 co-resident workgroups, 1 per CU).
;      twiddles generated with v_cos/v_sin), row statistics by MFMA, 64-point real DFT over s1 -> Z (fp16, launch tag in LSBs)
; @launch grid=(256,1,1) block=(512,1,1) lds={L_END}
.amdgcn_target "amdgcn-amd-amdhsa--gfx950"
.text
"""
    d = f""".section .rodata,"a"
.p2align 6
.amdhsa_kernel {name}
  .amdhsa_next_free_vgpr 256
  .amdhsa_next_free_sgpr 102
  .amdhsa_accum_offset 256
  .amdhsa_group_segment_fixed_size 0
  .amdhsa_kernarg_size 104
  .amdhsa_user_sgpr_count 2
  .amdhsa_user_sgpr_kernarg_segment_ptr 1
  .amdhsa_system_sgpr_workgroup_id_x 1
.end_amdhsa_kernel
"""
    open(out, "w").write(hdr + body + d)

if __name__ == "__main__":
    for a_ in sys.argv[2:]:
        k, _, val = a_.partition("=")
        OPT[k] = int(val) if val else True
    main(sys.argv[1])
```
